```python
import torch

def _softmax(x, axis=-1):
    return torch.softmax(x, dim=axis)
def _gelu(x):
    return torch.nn.functional.gelu(x, approximate="tanh")
def _silu(x):
    return torch.nn.functional.silu(x)
def _sigmoid(x):
    return torch.sigmoid(x)
def _layernorm(x, axis=-1, eps=1e-5):
    m = x.mean(dim=axis, keepdim=True)
    v = x.var(dim=axis, keepdim=True, unbiased=False)
    return (x - m) / torch.sqrt(v + eps)
def _scatter_add(tgt, idx, src, axis=0):
    return tgt.clone().index_add_(axis, idx, src)
def _segment_sum(src, seg, n):
    out = torch.zeros((n,) + src.shape[1:], dtype=src.dtype)
    return out.index_add_(0, seg, src)
def _pad(x, pw):
    flat = tuple(v for pair in reversed(pw) for v in pair)
    return torch.nn.functional.pad(x, flat)

kernel_name = 'standalone__self_sup_conv_stem_wavlm__speech'

def setup_inputs():

    _w = (lambda a: (lambda t: t.to(torch.bfloat16) if t.is_floating_point() else t)(torch.as_tensor(a)))
    B, T, D, K = 2, 16000, 512, 31
    scale = (K * D) ** -0.5
    return {
        "x": _w((lambda *s: torch.randn(*s, dtype=torch.bfloat16) * 0.05)(B, T, D)),
        "w": _w((lambda *s: torch.randn(*s, dtype=torch.bfloat16) * 0.05)(K, D, D) * scale),
        "gn_gamma": _w((lambda *s: torch.randn(*s, dtype=torch.bfloat16) * 0.05)(D) * 0.1 + 1.0),
        "gn_beta": _w((lambda *s: torch.randn(*s, dtype=torch.bfloat16) * 0.05)(D) * 0.1),
    }

def reference(x, w, gn_gamma, gn_beta):
    B, T, D = x.shape
    K = w.shape[0]
    s = 2
    L = (T - K) // s + 1
    h = torch.einsum('blc,cd->bld', x[:, 0:s * L:s, :], w[0])
    for i in range(1, K):
        h = h + torch.einsum('blc,cd->bld', x[:, i:i + s * L:s, :], w[i])
    mu = torch.einsum('bld->bd', h)[:, None, :] / L
    var = torch.einsum('bld->bd', (h - mu) ** 2)[:, None, :] / L
    h = (h - mu) / torch.sqrt(var + 1e-5)
    h = h * gn_gamma[None, None, :] + gn_beta[None, None, :]
    return _gelu(h)
```

```python
import re

def vr(a, n=1):
    return f"v{a}" if n == 1 else f"v[{a}:{a+n-1}]"
def sr(a, n=1):
    return f"s{a}" if n == 1 else f"s[{a}:{a+n-1}]"

_reg_re = re.compile(r'^(-|\|)?(v|s|a)(\d+)\|?$')
_rng_re = re.compile(r'^(-)?(v|s|a)\[(\d+):(\d+)\]$')

def parse_reg(tok):
    tok = tok.strip()
    m = _reg_re.match(tok)
    if m:
        return {(m.group(2), int(m.group(3)))}
    m = _rng_re.match(tok)
    if m:
        return {(m.group(2), i) for i in range(int(m.group(3)), int(m.group(4)) + 1)}
    if tok == 'vcc':
        return {('s', 'vcc')}
    if tok == 'exec':
        return {('s', 'exec')}
    if tok == 'm0':
        return {('s', 'm0')}
    return set()

TRANS = ('v_exp_f32', 'v_log_f32', 'v_rcp_f32', 'v_rsq_f32', 'v_sqrt_f32', 'v_sin_f32', 'v_cos_f32')

class Ins:
    __slots__ = ('text', 'op', 'kind', 'wr', 'rd', 'mfma_c', 'passes', 'nop', 'wide_store', 'lds_dma', 'label')
    def __init__(self, text):
        self.text = text
        t = text.split(';')[0].split('//')[0].strip()
        self.wr = set(); self.rd = set(); self.mfma_c = set(); self.passes = 0; self.nop = 1
        self.wide_store = False; self.lds_dma = False; self.label = False
        if not t:
            self.kind = 'none'; self.op = ''; self.nop = 0; return
        if t.endswith(':') or t.startswith('.'):
            self.kind = 'none'; self.op = ''; self.nop = 0; self.label = t.endswith(':'); return
        parts = t.split(None, 1)
        op = parts[0]; self.op = op
        for suf in ('_e32', '_e64'):
            if op.endswith(suf): op = op[:-4]
        self.op = op
        ops = []
        if len(parts) > 1:
            cur = ''; depth = 0
            for ch in parts[1]:
                if ch == '[': depth += 1
                if ch == ']': depth -= 1
                if ch == ',' and depth == 0:
                    ops.append(cur.strip()); cur = ''
                else:
                    cur += ch
            ops.append(cur.strip())
        mods = ''
        if ops:
            sp = ops[-1].split(None, 1)
            ops[-1] = sp[0]
            if len(sp) > 1: mods = sp[1]
        R = [parse_reg(o) for o in ops]
        if op == 's_nop':
            self.kind = 'salu'; self.nop = int(ops[0], 0) + 1
        elif op.startswith('v_mfma'):
            self.kind = 'mfma'
            self.wr = R[0]; self.rd = R[1] | R[2] | R[3]; self.mfma_c = R[3]
            self.passes = 8 if '32x32' in op else 4
        elif op.startswith('v_cmp'):
            self.kind = 'valu'; self.wr = R[0]
            for r in R[1:]: self.rd |= r
            if op.startswith('v_cmpx'): self.wr |= {('s', 'exec')}
        elif op in ('v_readfirstlane_b32', 'v_readlane_b32'):
            self.kind = 'valu'; self.wr = R[0]
            for r in R[1:]: self.rd |= r
        elif op.startswith('v_permlane') and 'swap' in op:
            self.kind = 'valu'; self.wr = R[0] | R[1]; self.rd = R[0] | R[1]
        elif op.startswith('v_add_co') or op.startswith('v_sub_co') or op.startswith('v_addc_co') or op.startswith('v_subb_co'):
            self.kind = 'valu'; self.wr = R[0] | R[1]
            for r in R[2:]: self.rd |= r
        elif op.startswith('v_'):
            self.kind = 'valu'; self.wr = R[0]
            for r in R[1:]: self.rd |= r
            if op.startswith('v_fmac') or op.startswith('v_mac') or op.startswith('v_pk_fmac') or op.startswith('v_dot2c'):
                self.rd |= R[0]
            if op == 'v_cndmask_b32' and len(ops) == 3:
                self.rd |= {('s', 'vcc')}
        elif op.startswith('ds_read') or op.startswith('ds_bpermute') or op.startswith('ds_swizzle'):
            self.kind = 'ds'; self.wr = R[0]
            for r in R[1:]: self.rd |= r
        elif op.startswith('ds_'):
            self.kind = 'ds'
            for r in R: self.rd |= r
        elif op.startswith('buffer_load') or op.startswith('global_load'):
            self.kind = 'vmem'
            if 'lds' in mods.split() or op.startswith('global_load_lds'):
                self.lds_dma = True
                for r in R: self.rd |= r
                self.rd |= {('s', 'm0')}
            else:
                self.wr = R[0]
                for r in R[1:]: self.rd |= r
        elif op.startswith('buffer_store') or op.startswith('global_store') or op.startswith('buffer_atomic') or op.startswith('global_atomic'):
            self.kind = 'vmem'
            for r in R: self.rd |= r
            if 'x4' in op or 'x3' in op:
                self.wide_store = True
        elif op.startswith('buffer_') :
            self.kind = 'vmem'
        elif op.startswith('s_'):
            self.kind = 'salu'
            if op.startswith('s_cmp') or op.startswith('s_waitcnt') or op.startswith('s_cbranch') or op in ('s_barrier', 's_branch', 's_endpgm', 's_setprio', 's_sleep', 's_bitcmp1_b32', 's_bitcmp0_b32'):
                for r in R: self.rd |= r
            else:
                if R:
                    self.wr = R[0]
                    for r in R[1:]: self.rd |= r
                if 'saveexec' in op: self.wr |= {('s', 'exec')}
        else:
            raise ValueError('unknown instruction: ' + text)

def isv(r): return r[0] in ('v', 'a')

def need_states(p, c):
    n = 0
    pv = {r for r in p.wr if isv(r)}
    ps = {r for r in p.wr if not isv(r)}
    if p.kind == 'valu':
        if c.kind == 'mfma' and (pv & c.rd): n = max(n, 2)
        if c.op in ('v_readfirstlane_b32', 'v_readlane_b32') and (pv & c.rd): n = max(n, 1)
        if c.op.startswith('v_permlane') and (pv & c.rd): n = max(n, 2)
        if c.kind == 'valu' and ' row_' in c.text and (pv & c.rd): n = max(n, 2)
        if c.kind == 'valu' and ' quad_perm' in c.text and (pv & c.rd): n = max(n, 2)
        if p.op in TRANS and c.kind in ('valu', 'mfma') and (pv & c.rd): n = max(n, 1)
        if ps:
            if c.kind == 'vmem' and (ps & c.rd): n = max(n, 5)
            if c.kind == 'valu' and (ps & c.rd): n = max(n, 4 if c.op in ('v_readlane_b32', 'v_writelane_b32') else 2)
            if c.kind == 'salu' and (ps & c.rd): n = max(n, 4)
            if ('s', 'exec') in ps and c.kind in ('mfma',): n = max(n, 4)
            if ('s', 'exec') in ps and c.kind == 'valu' and c.op.startswith('v_permlane'): n = max(n, 4)
    if p.kind == 'mfma':
        big = p.passes == 8
        if c.kind == 'mfma':
            if p.wr & (c.rd - c.mfma_c) or (p.wr & c.rd and not (p.wr & c.mfma_c)): n = max(n, 12 if big else 8)
            if p.wr & c.mfma_c:
                if p.wr != c.mfma_c or p.passes != c.passes: n = max(n, 10 if big else 6)
            ab = c.rd - c.mfma_c
            if p.wr & ab: n = max(n, 12 if big else 8)
        elif c.kind in ('valu', 'vmem', 'ds'):
            if p.wr & (c.rd | c.wr): n = max(n, 12 if big else 8)
        if c.kind == 'valu' and (p.mfma_c & c.wr): n = max(n, 7 if big else 3)
    if p.kind == 'salu':
        if ('s', 'm0') in p.wr and c.lds_dma: n = max(n, 1)
    if p.kind == 'vmem' and p.wide_store:
        data = {r for r in p.rd if isv(r)}
        if c.kind == 'valu' and (data & c.wr): n = max(n, 2)
        elif c.kind in ('ds', 'vmem', 'mfma') and (data & c.wr): n = max(n, 1)
    return n

def hazard_pass(lines, window=14):
    out = []
    hist = []
    for ln in lines:
        ins = Ins(ln)
        if ins.kind == 'none':
            out.append(ln); continue
        need = 0
        dist = 0
        for p in reversed(hist):
            req = need_states(p, ins)
            if req > dist: need = max(need, req - dist)
            dist += p.nop
            if dist >= window: break
        while need > 0:
            k = min(need, 16)
            nl = f"    s_nop {k-1}"
            out.append(nl); hist.append(Ins(nl)); need -= k
        out.append(ln); hist.append(ins)
        if len(hist) > 64: hist = hist[-32:]
    return out

def check_backedge(body_lines, window=14):
    ins = [Ins(l) for l in body_lines]
    ins = [i for i in ins if i.kind != 'none']
    bad = []
    n = len(ins)
    for ci in range(min(n, window)):
        c = ins[ci]
        dist = sum(x.nop for x in ins[:ci])
        for p in reversed(ins):
            req = need_states(p, c)
            if req > dist: bad.append((p.text, c.text, req, dist))
            dist += p.nop
            if dist >= window: break
    return bad

class Asm:
    def __init__(self):
        self.lines = []
    def __call__(self, s):
        for l in s.split('\n'):
            l = l.rstrip()
            if l.strip():
                if not (l.strip().endswith(':') or l.strip().startswith('.')):
                    l = '    ' + l.strip()
                self.lines.append(l)
    def label(self, name):
        self.lines.append(name + ':')
    def c(self, s):
        self.lines.append('    ; ' + s)
```

```python
from asmlib import *
import gen as G

STAGE = 37888
NSTAGE = 4
LDS_BYTES = STAGE * NSTAGE + 1024

class LQ:
    def __init__(self, a): self.a = a; self.q = []
    def issue(self, tag): self.q.append(tag)
    def wait(self, tag):
        idx = [i for i, t in enumerate(self.q) if t == tag]
        if not idx: return
        last = idx[-1]
        n = len(self.q) - 1 - last
        assert n <= 15, n
        self.a(f"s_waitcnt lgkmcnt({n})")
        self.q = self.q[last + 1:]

def gen_variant(a, mh, cfg):
    T = 6 if mh == 0 else 5
    tile0 = 0 if mh == 0 else 6
    ACC = 0
    WF = 96
    XR = 144
    vWa = 176
    vXa = 184
    vDW = 188; vDX = 189; vSt = 190; vT = 191
    def acc(i, c, t): return ACC + ((i * 2 + c) * 2 + t) * 4
    def wf(p, which): return WF + p * 24 + which * 4
    def xr(slot, c): return XR + slot * 8 + c * 4
    lq = LQ(a)
    sWo, sXo, sLW, sLX = 40, 41, 42, 43
    def dma_ops(stage_buf):
        ops = []
        ops.append([f"s_add_u32 m0, s{sLW}, {stage_buf*STAGE}",
                    f"buffer_load_dwordx4 v{vDW}, s[16:19], s{sWo} offen lds"])
        ops.append([f"buffer_load_dwordx4 v{vDW}, s[16:19], s{sWo} offen offset:1024 lds",
                    f"s_add_u32 s{sWo}, s{sWo}, 16384"])
        ops.append([f"s_add_u32 m0, s{sLX}, {stage_buf*STAGE}",
                    f"buffer_load_dwordx4 v{vDX}, s[16:19], s{sXo} offen lds"])
        ops.append([f"buffer_load_dwordx4 v{vDX}, s[16:19], s{sXo} offen offset:1024 lds"])
        ops.append(["s_mov_b64 exec, s[44:45]",
                    f"buffer_load_dwordx4 v{vDX}, s[16:19], s{sXo} offen offset:2048 lds",
                    "s_mov_b64 exec, -1",
                    f"s_add_u32 s{sXo}, s{sXo}, {G.XF_TILE}"])
        return ops
    def x_read(step, i, slot):
        buf = step % NSTAGE
        for c in range(2):
            r = xr(slot, c)
            off = 16384 + c * (G.ROWS * 64) + (tile0 + i) * 1024
            a(f"ds_read_b128 v[{r}:{r+3}], v{vXa+buf} offset:{off}")
            lq.issue(('x', step, i))
    def w_read(step, c):
        buf = step % NSTAGE; p = step & 1
        for t in range(2):
            r = wf(p, c * 2 + t)
            for e in range(2):
                a(f"ds_read_b64_tr_b16 v[{r+2*e}:{r+2*e+1}], v{vWa+buf*2+t} offset:{c*8192+e*1024}")
                lq.issue(('w', step))
    def w_xor(step, part=None):
        p = step & 1
        l = []
        for t in range(2):
            for e in range(4):
                l.append(f"v_xor_b32 v{wf(p,4+t)+e}, 0x80008000, v{wf(p,2+t)+e}")
        return l
    def mf(d, A, B):
        return f"v_mfma_f32_16x16x32_bf16 v[{d}:{d+3}], v[{A}:{A+3}], v[{B}:{B+3}], v[{d}:{d+3}]"
    def step_code(s, tau0, do_dma, vm, barrier, nxt):
        p = s & 1
        if vm is not None: a(f"s_waitcnt vmcnt({vm})")
        if barrier: a("s_barrier")
        dm = dma_ops((s + 3) % NSTAGE) if do_dma else []
        for i in range(T):
            tau = tau0 + i
            slot = tau % 4
            lq.wait(('x', s, i))
            fill = [[] for _ in range(8)]
            def xr_fill():
                if i + 2 < T: x_read(s, i + 2, (tau + 2) % 4)
                elif nxt: x_read(s + 1, i + 2 - T, (tau + 2) % 4)
            ms = [mf(acc(i,0,0), wf(p,0), xr(slot,0)), mf(acc(i,0,1), wf(p,1), xr(slot,0)),
                  mf(acc(i,1,0), wf(p,4), xr(slot,0)), mf(acc(i,1,1), wf(p,5), xr(slot,0)),
                  mf(acc(i,0,0), wf(p,2), xr(slot,1)), mf(acc(i,0,1), wf(p,3), xr(slot,1)),
                  mf(acc(i,1,0), wf(p,0), xr(slot,1)), mf(acc(i,1,1), wf(p,1), xr(slot,1))]
            xors = None
            for m in range(8):
                a(ms[m])
                if m == 0: xr_fill()
                if m == 2 and nxt and i == T - 3: w_read(s + 1, 0)
                if m == 2 and nxt and i == T - 2: w_read(s + 1, 1)
                if m == 4 and dm and i < len(dm) + 0 and i < T:
                    pass
                if m == 3 and dm:
                    for ins in dm.pop(0): a(ins)
                if nxt and i == T - 1:
                    if m == 1:
                        lq.wait(('w', s + 1))
                        xors = w_xor(s + 1)
                    if xors and m >= 2:
                        for _ in range(2):
                            if xors: a(xors.pop(0))
            if xors:
                for x in xors: a(x)
        assert not dm
    for st in range(3):
        for grp in dma_ops(st):
            for ins in grp: a(ins)
    for r in range(T * 16): a(f"v_mov_b32 v{ACC+r}, 0")
    a("s_waitcnt vmcnt(10)")
    a("s_barrier")
    w_read(0, 0); w_read(0, 1)
    x_read(0, 0, 0); x_read(0, 1, 1)
    lq.wait(('w', 0))
    for x in w_xor(0): a(x)
    a(f"s_mov_b32 s46, 7")
    lab = f"L_k3_loop{mh}"
    a.label(lab)
    q0 = list(lq.q)
    start = len(a.lines)
    for u in range(4):
        step_code(u, u * T, True, 5, True, True)
    q1 = [(t[0], t[1] - 4) + tuple(t[2:]) for t in lq.q]
    assert q0[len(q0)-len(q1):] == q1, (q0, q1)
    assert (4 * T) % 4 == 0
    a("s_sub_u32 s46, s46, 1")
    a("s_cmp_lg_u32 s46, 0")
    a(f"s_cbranch_scc1 {lab}")
    lq.q = [(t[0], t[1] + 24) + tuple(t[2:]) for t in lq.q]
    step_code(28, 0 * T, True, 5, True, True)
    step_code(29, 1 * T, False, 5, True, True)
    step_code(30, 2 * T, False, 0, True, True)
    step_code(31, 3 * T, False, None, False, False)
    a("s_nop 7")
    for i in range(T):
        for c in range(2):
            d = acc(i, c, 0); d1 = acc(i, c, 1)
            a(f"v_cvt_pk_bf16_f32 v{d}, v{d}, v{d+1}")
            a(f"v_cvt_pk_bf16_f32 v{d+1}, v{d+2}, v{d+3}")
            a(f"v_cvt_pk_bf16_f32 v{d+2}, v{d1}, v{d1+1}")
            a(f"v_cvt_pk_bf16_f32 v{d+3}, v{d1+2}, v{d1+3}")
            off = c * G.YF_J + (tile0 + i) * 16 * 1024
            a(f"s_add_u32 s47, s48, {off}")
            vs = vSt + 0
            if mh == 1 and i == 4: vs = vT
            a(f"buffer_store_dwordx4 v[{d}:{d+3}], v{vs}, s[16:19], s47 offen")
    a("s_endpgm")

def gen_k3(cfg=None):
    a = Asm()
    name = 'gemm_kernel'
    G.kernel_header(a, name)
    vWa = 176; vXa = 184; vDW = 188; vDX = 189; vSt = 190; vT = 191
    a("s_cmp_ge_u32 s2, 256")
    a("s_cbranch_scc1 L_k3_end")
    a("s_load_dwordx2 s[8:9], s[0:1], 48")
    a(f"v_lshrrev_b32 v{vT+1}, 6, v0")
    a(f"v_and_b32 v0, 63, v0")
    a(f"v_readfirstlane_b32 s10, v{vT+1}")
    a("s_and_b32 s11, s2, 7")
    a("s_lshr_b32 s12, s2, 3")
    a("s_lshr_b32 s13, s12, 3")
    a("s_lshl_b32 s11, s11, 2")
    a("s_add_u32 s11, s11, s13")
    a("s_bfe_u32 s13, s12, 0x10002")
    a("s_and_b32 s14, s12, 3")
    a("s_and_b32 s15, s10, 3")
    a(f"s_mul_i32 s40, s11, {G.WF_K}")
    a("s_lshl_b32 s20, s14, 19")
    a("s_add_u32 s40, s40, s20")
    if G.WF_BASE: a(f"s_add_u32 s40, s40, {G.WF_BASE}")
    a(f"s_mul_i32 s41, s11, {G.XF_K}")
    a(f"s_mul_i32 s20, s13, {G.XF_B}")
    a("s_add_u32 s41, s41, s20")
    a(f"s_add_u32 s41, s41, {G.XF_BASE}")
    a("s_lshl_b32 s42, s10, 11")
    a("s_mul_i32 s43, s10, 2688")
    a(f"v_lshlrev_b32 v{vDW}, 4, v0")
    a(f"v_add_u32 v{vDX}, s43, v{vDW}")
    a(f"v_add_u32 v{vDW}, s42, v{vDW}")
    a("s_add_u32 s43, s43, 16384")
    a("s_mov_b32 s44, -1")
    a("s_mov_b32 s45, 0xff")
    g = vT + 2; c16 = vT + 3; t0 = vT + 4; t1 = vT + 5; t2 = vT + 6
    a(f"v_lshrrev_b32 v{g}, 4, v0")
    a(f"v_and_b32 v{c16}, 15, v0")
    a(f"v_bfe_u32 v{t0}, v{c16}, 3, 1")
    a(f"v_mul_u32_u24 v{t0}, 3, v{t0}")
    a(f"v_xor_b32 v{t0}, v{t0}, v{g}")
    a(f"v_lshlrev_b32 v{t0}, 4, v{t0}")
    a(f"v_lshl_add_u32 v{vXa}, v{c16}, 6, v{t0}")
    for st in range(1, 4):
        a(f"v_add_u32 v{vXa+st}, {st*STAGE}, v{vXa}")
    a(f"v_lshrrev_b32 v{t0}, 2, v{c16}")
    a(f"v_and_b32 v{t1}, 1, v{g}")
    a(f"v_lshl_or_b32 v{t1}, v{t1}, 2, v{t0}")
    a(f"v_lshl_add_u32 v{t0}, v{g}, 3, v{t0}")
    a(f"v_lshlrev_b32 v{t0}, 8, v{t0}")
    a(f"v_and_b32 v{t2}, 3, v{c16}")
    a(f"v_lshl_add_u32 v{t0}, v{t2}, 3, v{t0}")
    a("s_lshl_b32 s20, s15, 1")
    for t in range(2):
        if t: a("s_add_u32 s20, s20, 1")
        a(f"v_xor_b32 v{t2}, s20, v{t1}")
        a(f"v_lshl_add_u32 v{vWa+t}, v{t2}, 5, v{t0}")
        for st in range(1, 4):
            a(f"v_add_u32 v{vWa+st*2+t}, {st*STAGE}, v{vWa+t}")
    a(f"v_lshlrev_b32 v{vSt}, 10, v{c16}")
    a(f"v_lshl_add_u32 v{vSt}, v{g}, 4, v{vSt}")
    a("s_lshl_b32 s20, s15, 6")
    a(f"v_add_u32 v{vSt}, s20, v{vSt}")
    a(f"v_cmp_gt_u32 vcc, 7, v{c16}")
    a(f"v_mov_b32 v{vT}, 0x80000000")
    a(f"v_cndmask_b32 v{vT}, v{vT}, v{vSt}, vcc")
    a(f"s_mul_i32 s48, s11, {2*G.YF_J}")
    a(f"s_mul_i32 s20, s13, {G.YF_B}")
    a("s_add_u32 s48, s48, s20")
    a("s_lshl_b32 s20, s14, 8")
    a("s_add_u32 s48, s48, s20")
    a(f"s_add_u32 s48, s48, {G.YF_BASE}")
    a("s_waitcnt lgkmcnt(0)")
    G.make_srd(a, 16, 8, 9, G.WS_BYTES)
    a("s_cmp_ge_u32 s10, 4")
    a("s_cbranch_scc1 L_k3_mh1")
    gen_variant(a, 0, cfg)
    a.label("L_k3_mh1")
    gen_variant(a, 1, cfg)
    a.label("L_k3_end")
    a("s_endpgm")
    return name, a.lines, 200, (256, 512, LDS_BYTES)
```

```python
from asmlib import *
import gen as G

RAW = 0
AF = 64
BF = 88
ACC = 104
VT = 200
VTID4 = 214

def common(a, tag, ngrp_wg):
    vLane = VT; vR = VT+1; vG = VT+2; vOff = VT+3; vT0 = VT+4
    a(f"s_cmp_ge_u32 s2, {2*G.NGRP*4}")
    a(f"s_cbranch_scc1 L_{tag}_end")
    a("s_load_dwordx4 s[4:7], s[0:1], 16")
    a("s_load_dwordx2 s[8:9], s[0:1], 48")
    a("s_load_dwordx2 s[28:29], s[0:1], 32")
    a(f"v_lshlrev_b32 v{VTID4}, 2, v0")
    a(f"v_and_b32 v{vLane}, 63, v0")
    a(f"v_lshrrev_b32 v{vT0}, 6, v0")
    a(f"v_and_b32 v{vR}, 15, v{vLane}")
    a(f"v_readfirstlane_b32 s10, v{vT0}")
    a(f"v_lshrrev_b32 v{vG}, 4, v{vLane}")
    a("s_mov_b32 s30, 0x05040100")
    a("s_mov_b32 s31, 0x07060302")
    a("s_and_b32 s13, s2, 3")
    a("s_lshr_b32 s12, s2, 2")
    a(f"s_cmp_ge_u32 s12, {G.NGRP}")
    a("s_cselect_b32 s11, 1, 0")
    a(f"s_mul_i32 s15, s11, {G.NGRP}")
    a("s_sub_u32 s12, s12, s15")
    a("s_lshl_b32 s14, s12, 2")
    a("s_add_u32 s14, s14, s10")
    a("s_waitcnt lgkmcnt(0)")
    G.make_srd(a, 16, 8, 9, G.WS_BYTES)
    a(f"s_mov_b32 s24, {8*G.YF_J}")
    a(f"v_mul_u32_u24 v{vOff}, s24, v{vG}")
    a(f"v_lshl_add_u32 v{vOff}, v{vR}, 4, v{vOff}")
    a(f"s_mul_i32 s24, s11, {G.YF_B}")
    a("s_lshl_b32 s25, s14, 10")
    a("s_add_u32 s24, s24, s25")
    a("s_lshl_b32 s25, s13, 8")
    a("s_add_u32 s24, s24, s25")
    a(f"s_add_u32 s24, s24, {G.YF_BASE}")
    for s in range(2):
        for i in range(8):
            r = RAW + 4 * (8 * s + i)
            a(f"s_add_u32 s25, s24, {(32*s+i)*G.YF_J}")
            a(f"buffer_load_dwordx4 v[{r}:{r+3}], v{vOff}, s[16:19], s25 offen")
    a.c("G table: wave w<3 -> o = w")
    a("s_cmp_ge_u32 s10, 3")
    a(f"s_cbranch_scc1 L_{tag}_notab")
    vN = vT0; vA = vT0+1; vP = BF
    a("s_lshl_b32 s25, s10, 4")
    a(f"v_add_u32 v{vN}, s25, v{vR}")
    for s in range(2):
        a(f"v_lshlrev_b32 v{vA}, 3, v{vG}")
        a(f"v_add_u32 v{vA}, {32*s+1}, v{vA}")
        for e2 in range(4):
            a(f"v_mul_u32_u24 v{vP+2*e2}, v{vA}, v{vN}")
            a(f"v_add_u32 v{vP+2*e2+1}, 32, v{vP+2*e2}")
            if e2 < 3: a(f"v_add_u32 v{vA}, 2, v{vA}")
        G.cos_table(a, None, [vP+e for e in range(8)], ACC, ACC+4, scale="0x3d000000")
        a("s_lshl_b32 s25, s10, 11")
        a(f"v_lshlrev_b32 v{vT0+3}, 4, v{vLane}")
        a(f"v_add_u32 v{vT0+3}, s25, v{vT0+3}")
        a(f"ds_write_b128 v{vT0+3}, v[{ACC}:{ACC+3}] offset:{s*1024}")
    a.label(f"L_{tag}_notab")
    return dict(vLane=vLane, vR=vR, vG=vG, vOff=vOff, vT0=vT0)

def read_tables(a, R):
    vT0 = R['vT0']
    a(f"v_lshlrev_b32 v{vT0+3}, 4, v{R['vLane']}")
    for o in range(3):
        for s in range(2):
            r = AF + 4 * (2 * o + s)
            a(f"ds_read_b128 v[{r}:{r+3}], v{vT0+3} offset:{(2*o+s)*1024}")

def transform(a):
    def perms(q):
        for s in range(2):
            for h in range(2):
                for e in range(4):
                    d = BF + (s * 2 + h) * 4 + e
                    r0 = RAW + 4 * (8 * s + 2 * e) + q
                    r1 = RAW + 4 * (8 * s + 2 * e + 1) + q
                    a(f"v_perm_b32 v{d}, v{r1}, v{r0}, s{30+h}")
    for q in range(4):
        perms(q)
        for s in range(2):
            for o in range(3):
                for h in range(2):
                    dd = 2 * q + h
                    d = ACC + (o * 8 + dd) * 4
                    A = AF + 4 * (2 * o + s)
                    B = BF + (s * 2 + h) * 4
                    c = "0" if s == 0 else f"v[{d}:{d+3}]"
                    a(f"v_mfma_f32_16x16x32_bf16 v[{d}:{d+3}], v[{A}:{A+3}], v[{B}:{B+3}], {c}")

def hreg(o, dd, rp): return ACC + (o * 8 + dd) * 4 + rp

def gen_k4(cfg=None):
    a = Asm()
    name = 'stats_kernel'
    G.kernel_header(a, name)
    R = common(a, 'k4', 1)
    vLane, vR, vG, vT0 = R['vLane'], R['vR'], R['vG'], R['vT0']
    a("s_waitcnt lgkmcnt(0)")
    a("s_barrier")
    read_tables(a, R)
    S1 = RAW; S2 = RAW + 8
    a(f"s_cmp_ge_u32 s14, {G.NBLK}")
    a("s_cbranch_scc1 L_k4_zero")
    a("s_waitcnt lgkmcnt(0)")
    a(f"s_cmp_lg_u32 s14, {G.NBLK-1}")
    a("s_cbranch_scc1 L_k4_full")
    lastn = G.L_OUT - 48 * (G.NBLK - 1)
    for o in range(3):
        nvalid = lastn - 16 * o
        a(f"v_cmp_gt_i32 vcc, {max(nvalid,0)}, v{vR}")
        for r in range(8):
            a(f"v_cndmask_b32 v{AF+8*o+r}, 0, v{AF+8*o+r}, vcc")
    a.label("L_k4_full")
    a("s_waitcnt vmcnt(0)")
    transform(a)
    a("s_nop 7")
    for dd in range(8):
        first = True
        for o in range(3):
            for rp in range(4):
                h = hreg(o, dd, rp)
                if first:
                    a(f"v_mul_f32 v{S2+dd}, v{h}, v{h}")
                    a(f"v_mov_b32 v{S1+dd}, v{h}")
                    first = False
                else:
                    a(f"v_fmac_f32 v{S2+dd}, v{h}, v{h}")
                    a(f"v_add_f32 v{S1+dd}, v{S1+dd}, v{h}")
    a("s_branch L_k4_red")
    a.label("L_k4_zero")
    a("s_waitcnt vmcnt(0) lgkmcnt(0)")
    for r in range(16): a(f"v_mov_b32 v{RAW+r}, 0")
    a.label("L_k4_red")
    a("s_lshl_b32 s25, s10, 12")
    a(f"v_lshlrev_b32 v{vT0}, 10, v{vG}")
    a(f"v_lshl_add_u32 v{vT0}, v{vR}, 5, v{vT0}")
    a(f"v_add_u32 v{vT0}, s25, v{vT0}")
    a(f"ds_write_b128 v{vT0}, v[{S1}:{S1+3}] offset:8192")
    a(f"ds_write_b128 v{vT0}, v[{S1+4}:{S1+7}] offset:{8192+16}")
    a(f"ds_write_b128 v{vT0}, v[{S2}:{S2+3}] offset:{8192+512}")
    a(f"ds_write_b128 v{vT0}, v[{S2+4}:{S2+7}] offset:{8192+512+16}")
    a("s_waitcnt lgkmcnt(0)")
    a("s_barrier")
    for p in range(16):
        a(f"ds_read_b32 v{RAW+16+p}, v{VTID4} offset:{8192+p*1024}")
    a("s_waitcnt lgkmcnt(0)")
    for p in range(1, 16):
        a(f"v_add_f32 v{RAW+16}, v{RAW+16}, v{RAW+16+p}")
    a(f"s_mul_i32 s24, s11, {4*G.NGRP}")
    a(f"s_mul_i32 s25, s13, {G.NGRP}")
    a("s_add_u32 s24, s24, s25")
    a("s_add_u32 s24, s24, s12")
    a("s_lshl_b32 s24, s24, 10")
    a(f"s_add_u32 s24, s24, {G.PART_BASE}")
    a(f"buffer_store_dword v{RAW+16}, v{VTID4}, s[16:19], s24 offen")
    a.label("L_k4_end")
    a("s_endpgm")
    return name, a.lines, 216, (2 * G.NGRP * 4, 256, 8192 + 16384)

def gen_k5(cfg=None):
    a = Asm()
    name = 'final_kernel'
    G.kernel_header(a, name)
    R = common(a, 'k5', 1)
    vLane, vR, vG, vT0 = R['vLane'], R['vR'], R['vG'], R['vT0']
    PT = ACC + 8
    a(f"s_mul_i32 s24, s11, {4*G.NGRP}")
    a(f"s_mul_i32 s25, s13, {G.NGRP}")
    a("s_add_u32 s24, s24, s25")
    a("s_lshl_b32 s24, s24, 10")
    a(f"s_add_u32 s24, s24, {G.PART_BASE}")
    vTid4 = VTID4
    for p in range(G.NGRP):
        if p % 4 == 0 and p: a("s_add_u32 s24, s24, 4096")
        a(f"buffer_load_dword v{PT+p}, v{vTid4}, s[16:19], s24 offen offset:{(p%4)*1024}")
    G.make_srd(a, 20, 4, 5, 1024)
    G.make_srd(a, 36, 6, 7, 1024)
    a(f"v_lshlrev_b32 v{vT0+6}, 4, v{vR}")
    a("s_lshl_b32 s25, s13, 8")
    GB = ACC + 56
    a(f"buffer_load_dwordx4 v[{GB}:{GB+3}], v{vT0+6}, s[20:23], s25 offen")
    a(f"buffer_load_dwordx4 v[{GB+4}:{GB+7}], v{vT0+6}, s[36:39], s25 offen")
    a("s_waitcnt vmcnt(2)")
    vals = [PT + p for p in range(G.NGRP)]
    while len(vals) > 1:
        nv = []
        for i in range(0, len(vals) - 1, 2):
            a(f"v_add_f32 v{vals[i]}, v{vals[i]}, v{vals[i+1]}")
            nv.append(vals[i])
        if len(vals) & 1: nv.append(vals[-1])
        vals = nv
    a(f"ds_write_b32 v{vTid4}, v{vals[0]} offset:8192")
    a("s_waitcnt lgkmcnt(0)")
    a("s_barrier")
    read_tables(a, R)
    ST = ACC + 64
    a(f"v_lshlrev_b32 v{vT0+6}, 5, v{vR}")
    a(f"ds_read_b128 v[{ST}:{ST+3}], v{vT0+6} offset:8192")
    a(f"ds_read_b128 v[{ST+4}:{ST+7}], v{vT0+6} offset:{8192+16}")
    a(f"ds_read_b128 v[{ST+8}:{ST+11}], v{vT0+6} offset:{8192+512}")
    a(f"ds_read_b128 v[{ST+12}:{ST+15}], v{vT0+6} offset:{8192+512+16}")
    a(f"s_cmp_ge_u32 s14, {G.NBLK}")
    a("s_cbranch_scc1 L_k5_end")
    a("s_waitcnt vmcnt(0) lgkmcnt(0)")
    PA = VT + 16; PB = VT + 24
    invL = "0x%08x" % __import__('struct').unpack('<I', __import__('struct').pack('<f', 1.0 / G.L_OUT))[0]
    a(f"s_mov_b32 s24, {invL}")
    a("s_mov_b32 s25, 0x3727c5ac")
    for dd in range(8):
        mu = ST + dd; m2 = ST + 8 + dd
        a(f"v_mul_f32 v{mu}, s24, v{mu}")
        a(f"v_mul_f32 v{m2}, s24, v{m2}")
        a(f"v_fma_f32 v{m2}, -v{mu}, v{mu}, v{m2}")
        a(f"v_max_f32 v{m2}, 0, v{m2}")
        a(f"v_add_f32 v{m2}, s25, v{m2}")
        a(f"v_rsq_f32 v{m2}, v{m2}")
        gsrc = GB + (dd >> 1); bsrc = GB + 4 + (dd >> 1)
        if dd & 1:
            a(f"v_and_b32 v{PA+dd}, 0xffff0000, v{gsrc}")
            a(f"v_and_b32 v{PB+dd}, 0xffff0000, v{bsrc}")
        else:
            a(f"v_lshlrev_b32 v{PA+dd}, 16, v{gsrc}")
            a(f"v_lshlrev_b32 v{PB+dd}, 16, v{bsrc}")
        a(f"v_mul_f32 v{PA+dd}, v{PA+dd}, v{m2}")
        a(f"v_fma_f32 v{PB+dd}, -v{mu}, v{PA+dd}, v{PB+dd}")
    transform(a)
    a("s_nop 7")
    a(f"s_mul_i32 s24, s11, {G.OUT_B}")
    a("s_add_u32 s28, s28, s24")
    a("s_addc_u32 s29, s29, 0")
    G.make_srd(a, 32, 28, 29, G.OUT_B)
    vO = vT0 + 6
    a("s_mul_i32 s24, s14, %d" % (48 * 1024))
    a("s_lshl_b32 s25, s13, 8")
    a("s_add_u32 s24, s24, s25")
    a(f"v_lshlrev_b32 v{vO}, 12, v{vG}")
    a(f"v_lshl_add_u32 v{vO}, v{vR}, 4, v{vO}")
    a(f"v_add_u32 v{vO}, s24, v{vO}")
    import math, struct
    c0 = -2.0 * math.log2(math.e) * math.sqrt(2.0 / math.pi); c1 = c0 * 0.044715
    f2h = lambda x: "0x%08x" % struct.unpack('<I', struct.pack('<f', x))[0]
    a(f"s_mov_b32 s26, {f2h(c1)}")
    a(f"v_mov_b32 v{vT0+7}, {f2h(c0)}")
    T0 = RAW
    for o in range(3):
        for rp in range(4):
            ob = RAW + 16 + 4 * ((o * 4 + rp) % 8)
            for dd in range(8):
                h = hreg(o, dd, rp); t = T0 + dd
                a(f"v_fma_f32 v{h}, v{h}, v{PA+dd}, v{PB+dd}")
            for dd in range(8):
                h = hreg(o, dd, rp); t = T0 + dd
                a(f"v_mul_f32 v{t}, v{h}, v{h}")
            for dd in range(8):
                h = hreg(o, dd, rp); t = T0 + dd
                a(f"v_fma_f32 v{t}, v{t}, s26, v{vT0+7}")
            for dd in range(8):
                h = hreg(o, dd, rp); t = T0 + dd
                a(f"v_mul_f32 v{t}, v{t}, v{h}")
            for dd in range(8):
                t = T0 + dd
                a(f"v_exp_f32 v{t}, v{t}")
            for dd in range(8):
                t = T0 + dd
                a(f"v_add_f32 v{t}, 1.0, v{t}")
            for dd in range(8):
                t = T0 + dd
                a(f"v_rcp_f32 v{t}, v{t}")
            for dd in range(8):
                h = hreg(o, dd, rp); t = T0 + dd
                a(f"v_mul_f32 v{t}, v{t}, v{h}")
            for q in range(4):
                a(f"v_cvt_pk_bf16_f32 v{ob+q}, v{T0+2*q}, v{T0+2*q+1}")
            row = 16 * o + rp
            a(f"v_add_u32 v{vT0+8}, {row*1024}, v{vO}")
            a(f"buffer_store_dwordx4 v[{ob}:{ob+3}], v{vT0+8}, s[32:35], 0 offen")
    a.label("L_k5_end")
    a("s_endpgm")
    return name, a.lines, 232, (2 * G.NGRP * 4, 256, 8192 + 1024)
```

```python
import sys, os
sys.path.insert(0, os.path.dirname(os.path.abspath(__file__)))
from asmlib import *

NAME = 'standalone__self_sup_conv_stem_wavlm__speech'

L_OUT = 7985
NBLK = 167
ROWS = 168
X_BYTES_B = 8000 * 2048
W_BYTES = 31 * 524288
WS_BYTES = 268435456
WF_BASE = 0
WF_K = 4 * 32 * 16384
XF_BASE = 64 << 20
XF_TILE = 2 * ROWS * 64
XF_B = 32 * XF_TILE
XF_K = 2 * XF_B
YF_BASE = 112 << 20
YF_B = 176 * 1024
YF_J = 2 * YF_B
PART_BASE = 140 << 20
NGRP = 42
OUT_B = L_OUT * 1024

CFG = dict(
    x_hilo=False,
    y_hilo=False,
)

def kernel_header(a, name):
    a(f".globl {name}")
    a(".p2align 8")
    a(f".type {name},@function")
    a.label(name)

def kernel_desc(name, vgpr, sgpr=96, accum=None):
    accum = accum or ((vgpr + 3) // 4 * 4)
    return f""".amdhsa_kernel {name}
  .amdhsa_next_free_vgpr {vgpr}
  .amdhsa_next_free_sgpr {sgpr}
  .amdhsa_accum_offset {accum}
  .amdhsa_group_segment_fixed_size 0
  .amdhsa_kernarg_size 56
  .amdhsa_user_sgpr_count 2
  .amdhsa_user_sgpr_kernarg_segment_ptr 1
  .amdhsa_system_sgpr_workgroup_id_x 1
  .amdhsa_float_denorm_mode_32 3
.end_amdhsa_kernel
"""

def make_srd(a, s, base_lo, base_hi, size):
    a(f"s_mov_b32 s{s}, s{base_lo}")
    a(f"s_and_b32 s{s+1}, s{base_hi}, 0xffff")
    a(f"s_mov_b32 s{s+2}, {size}")
    a(f"s_mov_b32 s{s+3}, 0x00020000")

def cos_table(a, vp0, vstep_list, dst, tmp, scale=None, lo_sel=None):
    for e in range(8):
        r = vstep_list[e]
        a(f"v_and_b32 v{r}, 127, v{r}")
        a(f"v_cvt_f32_u32 v{r}, v{r}")
        a(f"v_mul_f32 v{r}, 0x3c000000, v{r}")
        a(f"v_cos_f32 v{r}, v{r}")
    if scale is not None:
        for e in range(8):
            r = vstep_list[e]
            a(f"v_mul_f32 v{r}, {scale}, v{r}")
    for e2 in range(4):
        r0, r1 = vstep_list[2*e2], vstep_list[2*e2+1]
        a(f"v_cvt_pk_bf16_f32 v{dst+e2}, v{r0}, v{r1}")
    if lo_sel is not None:
        for e2 in range(4):
            r0, r1 = vstep_list[2*e2], vstep_list[2*e2+1]
            a(f"v_lshlrev_b32 v{tmp}, 16, v{dst+e2}")
            a(f"v_and_b32 v{tmp+1}, 0xffff0000, v{dst+e2}")
            a(f"v_sub_f32 v{r0}, v{r0}, v{tmp}")
            a(f"v_sub_f32 v{r1}, v{r1}, v{tmp+1}")
            a(f"v_cvt_pk_bf16_f32 v{tmp}, v{r0}, v{r1}")
            a(f"v_cndmask_b32 v{dst+e2}, v{dst+e2}, v{tmp}, s[{lo_sel}:{lo_sel+1}]")

def gen_k12():
    a = Asm()
    name = 'xform_kernel'
    kernel_header(a, name)
    NX = 2 * NGRP * 8
    NW = 1024
    RAW = 0
    AF = 64
    BF = 96
    ACC = 112
    VT = 144
    vLane = VT; vR = VT+1; vG = VT+2; vOff = VT+3; vSt = VT+4; vT0 = VT+5
    NV = 160
    a("s_cmp_ge_u32 s2, %d" % (NX + NW))
    a("s_cbranch_scc1 L_k12_end")
    a("s_load_dwordx4 s[4:7], s[0:1], 0")
    a("s_load_dwordx2 s[8:9], s[0:1], 48")
    a(f"v_and_b32 v{vLane}, 63, v0")
    a(f"v_lshrrev_b32 v{vT0}, 6, v0")
    a(f"v_and_b32 v{vR}, 15, v{vLane}")
    a(f"v_readfirstlane_b32 s10, v{vT0}")
    a(f"v_lshrrev_b32 v{vG}, 4, v{vLane}")
    a("s_mov_b32 s30, 0x05040100")
    a("s_mov_b32 s31, 0x07060302")
    a("s_waitcnt lgkmcnt(0)")
    make_srd(a, 16, 8, 9, WS_BYTES)
    a("s_cmp_ge_u32 s2, %d" % NX)
    a("s_cbranch_scc1 L_k12_w")
    a.c("X item: b, cg, grp")
    a("s_cmp_ge_u32 s2, 336")
    a("s_cselect_b32 s11, 1, 0")
    a("s_mul_i32 s12, s11, 336")
    a("s_sub_u32 s12, s2, s12")
    a("s_and_b32 s13, s12, 7")
    a("s_lshr_b32 s14, s12, 3")
    a("s_lshl_b32 s14, s14, 2")
    a("s_add_u32 s14, s14, s10")
    a(f"s_mul_i32 s15, s11, {X_BYTES_B}")
    a("s_add_u32 s4, s4, s15")
    a("s_addc_u32 s5, s5, 0")
    make_srd(a, 12+8, 4, 5, X_BYTES_B)
    a("s_mul_i32 s15, s14, %d" % (48 * 2048))
    a("s_lshl_b32 s24, s13, 8")
    a("s_add_u32 s15, s15, s24")
    a(f"v_lshlrev_b32 v{vOff}, 14, v{vG}")
    a(f"v_lshl_add_u32 v{vOff}, v{vR}, 4, v{vOff}")
    a(f"v_add_u32 v{vOff}, s15, v{vOff}")
    for s in range(2):
        for i in range(8):
            off = (32 * s + i) * 2048
            if off == 0:
                a(f"buffer_load_dwordx4 v[{RAW}:{RAW+3}], v{vOff}, s[20:23], 0 offen")
            else:
                a(f"v_add_u32 v{vT0}, {off}, v{vOff}")
                r = RAW + 4 * (8 * s + i)
                a(f"buffer_load_dwordx4 v[{r}:{r+3}], v{vT0}, s[20:23], 0 offen")
    a.c("table generation: wave w -> o = w, s = 0,1")
    vA = vT0; vC = vT0+1; vP = BF
    a(f"v_lshrrev_b32 v{vA}, 2, v{vR}")
    a(f"v_lshlrev_b32 v{vA}, 1, v{vA}")
    a(f"v_bfe_u32 v{vC}, v{vR}, 1, 1")
    a(f"v_add_u32 v{vA}, v{vA}, v{vC}")
    a("s_lshl_b32 s24, s10, 3")
    a(f"v_add_u32 v{vA}, s24, v{vA}")
    a(f"v_lshl_add_u32 v{vA}, v{vA}, 1, 1")
    a(f"v_and_b32 v{vC}, 1, v{vR}")
    a(f"v_lshlrev_b32 v{vC}, 5, v{vC}")
    for s in range(2):
        a(f"v_lshlrev_b32 v{vT0+2}, 3, v{vG}")
        if s: a(f"v_add_u32 v{vT0+2}, 32, v{vT0+2}")
        a(f"v_mad_u32_u24 v{vP}, v{vA}, v{vT0+2}, v{vC}")
        for e in range(1, 8):
            a(f"v_add_u32 v{vP+e}, v{vP+e-1}, v{vA}")
        cos_table(a, None, [vP+e for e in range(8)], ACC, ACC+4)
        a("s_lshl_b32 s24, s10, 11")
        a(f"v_lshlrev_b32 v{vT0+3}, 4, v{vLane}")
        a(f"v_add_u32 v{vT0+3}, s24, v{vT0+3}")
        a(f"ds_write_b128 v{vT0+3}, v[{ACC}:{ACC+3}] offset:{s*1024}")
    a("s_waitcnt lgkmcnt(0)")
    a("s_barrier")
    a(f"v_lshlrev_b32 v{vT0+3}, 4, v{vLane}")
    for o in range(4):
        for s in range(2):
            r = AF + 4 * (2 * o + s)
            a(f"ds_read_b128 v[{r}:{r+3}], v{vT0+3} offset:{(2*o+s)*1024}")
    a("s_bfe_u32 s24, s14, 0x10003")
    a("s_mul_i32 s24, s24, 3")
    a(f"v_and_b32 v{vT0}, 3, v{vR}")
    a(f"v_xor_b32 v{vT0}, s24, v{vT0}")
    a(f"v_lshlrev_b32 v{vT0}, 4, v{vT0}")
    a(f"v_lshrrev_b32 v{vT0+1}, 2, v{vR}")
    a(f"s_mov_b32 s24, {XF_TILE}")
    a(f"v_mad_u32_u24 v{vT0}, v{vT0+1}, s24, v{vT0}")
    a(f"s_mov_b32 s24, {2*XF_K}")
    a(f"v_mad_u32_u24 v{vSt}, v{vG}, s24, v{vT0}")
    a(f"s_mul_i32 s24, s11, {XF_B}")
    a(f"s_mul_i32 s25, s13, {4*XF_TILE}")
    a("s_add_u32 s24, s24, s25")
    a("s_lshl_b32 s25, s14, 6")
    a("s_add_u32 s24, s24, s25")
    a(f"s_add_u32 s24, s24, {XF_BASE}")
    a("s_waitcnt vmcnt(0) lgkmcnt(0)")
    def perms(q):
        for s in range(2):
            for h in range(2):
                for e in range(4):
                    d = BF + (s * 2 + h) * 4 + e
                    r0 = RAW + 4 * (8 * s + 2 * e) + q
                    r1 = RAW + 4 * (8 * s + 2 * e + 1) + q
                    a(f"v_perm_b32 v{d}, v{r1}, v{r0}, s{30+h}")
    def mfmas():
        for s in range(2):
            for o in range(4):
                for h in range(2):
                    d = ACC + (o * 2 + h) * 4
                    A = AF + 4 * (2 * o + s)
                    B = BF + (s * 2 + h) * 4
                    c = "0" if s == 0 else f"v[{d}:{d+3}]"
                    a(f"v_mfma_f32_16x16x32_bf16 v[{d}:{d+3}], v[{A}:{A+3}], v[{B}:{B+3}], {c}")
    def cvts(q):
        for o in range(4):
            for rp in range(4):
                d = RAW + 4 * (4 * o + rp) + q
                a(f"v_cvt_pk_bf16_f32 v{d}, v{ACC+(o*2)*4+rp}, v{ACC+(o*2+1)*4+rp}")
    perms(0)
    for q in range(4):
        mfmas()
        if q < 3: perms(q + 1)
        cvts(q)
    for o in range(4):
        for rp in range(4):
            off = (8 * o + (rp >> 1)) * XF_K + (rp & 1) * (ROWS * 64)
            a(f"s_add_u32 s25, s24, {off}")
            r = RAW + 4 * (4 * o + rp)
            a(f"buffer_store_dwordx4 v[{r}:{r+3}], v{vSt}, s[16:19], s25 offen")
    a("s_endpgm")
    a.label("L_k12_w")
    a(f"s_sub_u32 s12, s2, {NX}")
    a("s_and_b32 s13, s12, 3")
    a("s_lshr_b32 s14, s12, 2")
    a("s_lshl_b32 s14, s14, 2")
    a("s_add_u32 s14, s14, s10")
    make_srd(a, 20, 6, 7, W_BYTES)
    a(f"v_and_b32 v{vT0}, 1, v{vG}")
    a(f"v_lshlrev_b32 v{vOff}, 23, v{vT0}")
    a(f"v_lshrrev_b32 v{vT0}, 2, v{vR}")
    a(f"v_lshl_add_u32 v{vOff}, v{vT0}, 6, v{vOff}")
    a(f"v_and_b32 v{vT0}, 1, v{vR}")
    a(f"v_lshl_add_u32 v{vOff}, v{vT0}, 5, v{vOff}")
    a(f"v_bfe_u32 v{vT0}, v{vR}, 1, 1")
    a(f"v_lshl_add_u32 v{vOff}, v{vT0}, 3, v{vOff}")
    a("s_lshl_b32 s15, s14, 10")
    a("s_lshl_b32 s24, s13, 8")
    a("s_add_u32 s15, s15, s24")
    a(f"v_add_u32 v{vOff}, s15, v{vOff}")
    for i in range(8):
        r = RAW + 4 * i
        if i == 0:
            src = vOff
        else:
            a(f"v_add_u32 v{vT0}, {i << 20}, v{vOff}")
            src = vT0
        a(f"buffer_load_dwordx2 v[{r}:{r+1}], v{src}, s[20:23], 0 offen")
        a(f"buffer_load_dwordx2 v[{r+2}:{r+3}], v{src}, s[20:23], 0 offen offset:16")
    a.c("table: wave w -> o = w")
    vA = vT0; vC = vT0+1; vP = BF
    a(f"v_lshrrev_b32 v{vA}, 2, v{vR}")
    a(f"v_lshlrev_b32 v{vA}, 1, v{vA}")
    a(f"v_bfe_u32 v{vC}, v{vR}, 1, 1")
    a(f"v_add_u32 v{vA}, v{vA}, v{vC}")
    a("s_lshl_b32 s24, s10, 3")
    a(f"v_add_u32 v{vA}, s24, v{vA}")
    a(f"v_lshl_add_u32 v{vA}, v{vA}, 1, 1")
    a(f"v_and_b32 v{vC}, 1, v{vR}")
    a(f"v_lshlrev_b32 v{vC}, 5, v{vC}")
    a(f"v_and_b32 v{vT0+2}, 1, v{vG}")
    a(f"v_lshlrev_b32 v{vT0+2}, 3, v{vT0+2}")
    a(f"v_mad_u32_u24 v{vP}, v{vA}, v{vT0+2}, v{vC}")
    for e in range(1, 8):
        a(f"v_add_u32 v{vP+e}, v{vP+e-1}, v{vA}")
    a(f"v_cmp_lt_u32 s[26:27], 1, v{vG}")
    cos_table(a, None, [vP+e for e in range(8)], ACC, ACC+4, lo_sel=26)
    a("s_lshl_b32 s24, s10, 10")
    a(f"v_lshlrev_b32 v{vT0+3}, 4, v{vLane}")
    a(f"v_add_u32 v{vT0+3}, s24, v{vT0+3}")
    a(f"ds_write_b128 v{vT0+3}, v[{ACC}:{ACC+3}]")
    a("s_waitcnt lgkmcnt(0)")
    a("s_barrier")
    a(f"v_lshlrev_b32 v{vT0+3}, 4, v{vLane}")
    for o in range(4):
        r = AF + 4 * o
        a(f"ds_read_b128 v[{r}:{r+3}], v{vT0+3} offset:{o*1024}")
    a("s_and_b32 s24, s14, 3")
    a("s_bfe_u32 s25, s14, 0x10003")
    a("s_lshl_b32 s25, s25, 2")
    a("s_or_b32 s24, s24, s25")
    a("s_lshl_b32 s24, s24, 1")
    a(f"v_xor_b32 v{vT0}, s24, v{vR}")
    a(f"v_lshlrev_b32 v{vT0}, 4, v{vT0}")
    a(f"v_lshlrev_b32 v{vSt}, 22, v{vG}")
    a(f"v_add_u32 v{vSt}, v{vSt}, v{vT0}")
    a("s_lshl_b32 s24, s13, 19")
    a("s_lshr_b32 s25, s14, 5")
    a("s_lshl_b32 s25, s25, 14")
    a("s_add_u32 s24, s24, s25")
    a("s_and_b32 s25, s14, 31")
    a("s_lshl_b32 s25, s25, 8")
    a("s_add_u32 s24, s24, s25")
    if WF_BASE: a(f"s_add_u32 s24, s24, {WF_BASE}")
    a("s_waitcnt vmcnt(0) lgkmcnt(0)")
    OUT = 32
    FR = 32
    for dd in range(8):
        q = dd >> 1; h = dd & 1
        for e in range(4):
            r0 = RAW + 4 * (2 * e) + q
            r1 = RAW + 4 * (2 * e + 1) + q
            a(f"v_perm_b32 v{FR+4*dd+e}, v{r1}, v{r0}, s{30+h}")
    for o in range(4):
        A = AF + 4 * o
        for dd in range(8):
            d = ACC + 4 * dd
            a(f"v_mfma_f32_16x16x32_bf16 v[{d}:{d+3}], v[{A}:{A+3}], v[{FR+4*dd}:{FR+4*dd+3}], 0")
        ob = RAW + 16 * (o & 1)
        for rp in range(4):
            for q in range(4):
                a(f"v_cvt_pk_bf16_f32 v{ob+4*rp+q}, v{ACC+8*q+rp}, v{ACC+8*q+4+rp}")
        for rp in range(4):
            off = (8 * o + (rp >> 1)) * WF_K + (rp & 1) * 8192
            a(f"s_add_u32 s25, s24, {off}")
            r = ob + 4 * rp
            a(f"buffer_store_dwordx4 v[{r}:{r+3}], v{vSt}, s[16:19], s25 offen")
    a.label("L_k12_end")
    a("s_endpgm")
    return name, a.lines, NV, (NX + NW, 256, 16384)

def build(kernels):
    hdr = open(os.path.join(os.path.dirname(os.path.abspath(__file__)), '..', NAME + '.s.ref')).read().split('\n')
    out = []
    for l in hdr:
        if l.startswith('; Override launch') or l.startswith('; grid=ceil') or l.startswith('; @launch'): continue
        if l.startswith(';'): out.append(l)
        else: break
    for (name, lines, nv, (g, blk, lds)) in kernels:
        out.append(f"; @launch kernel={name} grid=({g},1,1) block=({blk},1,1) lds={lds}")
    out.append('.amdgcn_target "amdgcn-amd-amdhsa--gfx950"')
    out.append('.text')
    for (name, lines, nv, _) in kernels:
        out += hazard_pass(lines)
    out.append('.section .rodata,"a"')
    for (name, lines, nv, _) in kernels:
        out.append('.p2align 6')
        out.append(kernel_desc(name, nv))
    return '\n'.join(out) + '\n'

if __name__ == '__main__':
    from gen_k3 import gen_k3
    from gen_k45 import gen_k4, gen_k5
    ks = [gen_k12(), gen_k3(), gen_k4(), gen_k5()]
    dst = sys.argv[1] if len(sys.argv) > 1 else os.path.join(os.path.dirname(os.path.abspath(__file__)), '..', NAME + '.s')
    open(dst, 'w').write(build(ks))
    print('wrote', dst)
```

```python
from asmlib import *
import gen as G
from gen_k3 import STAGE, NSTAGE, LDS_BYTES
import gen_k3b as K3

FLAG_BASE = 150 << 20
SPIN_MAX = 1 << 15
XF2_K = 2 * G.XF_TILE
XF_KP = 32 * XF2_K
XF2_B = 16 * XF_KP

vDW, vDX, vL, vSt, vZ, vTag, vPA = 1, 2, 3, 4, 5, 6, 7
vP = 8
vT = 12
AF = 20
BF = 52
ACC = 84
RAWA = 116
RAWB = 180
sWo, sXo, sLW, sLX = 40, 41, 42, 43
sLd, sStb, sFl, sPl, sNon = 50, 51, 52, 53, 54

class VQ:
    def __init__(self, a, table, collect):
        self.a = a; self.h = []; self.table = table; self.collect = collect
    def issue(self, tag): self.h.append(tag)
    def wait(self, tag, site):
        if self.collect:
            idx = [i for i, t in enumerate(self.h) if t == tag]
            if idx:
                m = len(self.h) - 1 - idx[-1]
                self.table[site] = min(self.table.get(site, 63), m)
        elif site in self.table:
            self.a(f"s_waitcnt vmcnt({min(63, self.table[site])})")

class Null:
    lines = []
    def __call__(self, s): pass
    def label(self, s): pass
    def c(self, s): pass

def helper_code(a_real, kind, cfg):
    table = {}
    for final in (False, True):
        a = a_real if final else Null()
        vq = VQ(a, table, not final)
        emit_helper(a, vq, kind, final, cfg)

def emit_helper(a, vq, kind, final, cfg):
    sc = cfg.get('st_flags', 'sc1'); ldf = cfg.get('dma_flags', '')
    uid = [0]
    def lab(n): return f"L_{kind}_{n}"
    def stamp(code=0):
        if not cfg.get('hstamp'): return
        a("s_memrealtime s[70:71]")
        a("s_waitcnt lgkmcnt(0)")
        a("s_mov_b32 m0, s72")
        a("v_writelane_b32 v250, s70, m0")
        a("s_add_u32 s72, s72, 1")
    def pstamp(idx):
        if not cfg.get('hstamp'): return
        a("s_memrealtime s[70:71]")
        a("s_waitcnt lgkmcnt(0)")
        a(f"v_writelane_b32 v251, s70, {idx}")
    def dma(step):
        buf = step % NSTAGE
        tag = ('dma', step)
        a(f"s_add_u32 m0, s{sLW}, {buf*STAGE}")
        for j in range(4):
            a(f"buffer_load_dwordx4 v{vDW}, s[16:19], s{sWo} offen offset:{j*1024} {ldf} lds"); vq.issue(tag)
        a(f"s_add_u32 s{sWo}, s{sWo}, {G.WF_KS}")
        a(f"s_add_u32 m0, s{sLX}, {buf*STAGE}")
        if cfg.get('xfull'):
            for j in range(4):
                if j: a(f"s_add_u32 s49, s{sXo}, {1024*j}")
                a(f"buffer_load_dwordx4 v{vDX}, s[16:19], s{49 if j else sXo} offen offset:{j*1024} {ldf} lds"); vq.issue(tag)
            a(f"s_add_u32 m0, s{sLX}, {buf*STAGE+4096}")
            a(f"s_add_u32 s49, s{sXo}, 8192")
            a(f"buffer_load_dwordx4 v{vDX}, s[16:19], s49 offen {ldf} lds"); vq.issue(tag)
            a(f"s_add_u32 s49, s{sXo}, {8192+1024}")
            a("s_mov_b64 exec, 0xffff")
            a(f"buffer_load_dwordx4 v{vDX}, s[16:19], s49 offen offset:1024 {ldf} lds"); vq.issue(tag)
            a("s_mov_b64 exec, -1")
            adv = 64 if (step & 1) == 0 else (XF_KP - 64)
            a(f"s_add_u32 s{sXo}, s{sXo}, {adv}")
        else:
            for j in range(4):
                a(f"buffer_load_dwordx4 v{vDX}, s[16:19], s{sXo} offen offset:{j*1024} {ldf} lds"); vq.issue(tag)
            a(f"s_add_u32 m0, s{sLX}, {buf*STAGE+4096}")
            a(f"s_add_u32 s49, s{sXo}, 4096")
            a(f"buffer_load_dwordx4 v{vDX}, s[16:19], s49 offen {ldf} lds"); vq.issue(tag)
            a("s_mov_b64 exec, 0xffff")
            a(f"buffer_load_dwordx4 v{vDX}, s[16:19], s49 offen offset:1024 {ldf} lds"); vq.issue(tag)
            a("s_mov_b64 exec, -1")
            a(f"s_add_u32 s{sXo}, s{sXo}, {G.XF_KS}")
    def L(c, raw):
        tag = ('ld', c)
        if kind == 'X':
            for s in range(2):
                for i in range(8):
                    r = raw + 4 * (8 * s + i)
                    a(f"s_add_u32 s55, s{sLd}, {(32*s+i)*2048}")
                    a(f"buffer_load_dwordx4 v[{r}:{r+3}], v{vL}, s[20:23], s55 offen"); vq.issue(tag)
            a(f"s_add_u32 s{sLd}, s{sLd}, 256")
        elif kind == 'W':
            for i in range(8):
                r = raw + 4 * i
                a(f"s_add_u32 s55, s{sLd}, {i << 20}")
                a(f"buffer_load_dwordx2 v[{r}:{r+1}], v{vL}, s[20:23], s55 offen"); vq.issue(tag)
                a(f"buffer_load_dwordx2 v[{r+2}:{r+3}], v{vL}, s[20:23], s55 offen offset:16"); vq.issue(tag)
            a(f"s_add_u32 s{sLd}, s{sLd}, {128*1024}")
    def x_q(q, raw):
        for s in range(2):
            for h in range(2):
                for e in range(4):
                    d = BF + (s * 2 + h) * 4 + e
                    r0 = raw + 4 * (8 * s + 2 * e) + q
                    r1 = raw + 4 * (8 * s + 2 * e + 1) + q
                    a(f"v_perm_b32 v{d}, v{r1}, v{r0}, s{30+h}")
        for s in range(2):
            for o in range(4):
                for h in range(2):
                    d = ACC + (o * 2 + h) * 4
                    A = AF + 4 * (2 * o + s); B = BF + (s * 2 + h) * 4
                    c = "0" if s == 0 else f"v[{d}:{d+3}]"
                    a(f"v_mfma_f32_16x16x32_bf16 v[{d}:{d+3}], v[{A}:{A+3}], v[{B}:{B+3}], {c}")
        for o in range(4):
            for rp in range(4):
                d = raw + 4 * (4 * o + rp) + q
                a(f"v_cvt_pk_bf16_f32 v{d}, v{ACC+(o*2)*4+rp}, v{ACC+(o*2+1)*4+rp}")
    def w_o(o, c):
        A = AF + 4 * o
        for dd in range(8):
            d = ACC + 4 * dd
            a(f"v_mfma_f32_16x16x32_bf16 v[{d}:{d+3}], v[{A}:{A+3}], v[{BF+4*dd}:{BF+4*dd+3}], 0")
        ob = RAWA + 32 + 16 * (o & 1)
        for rp in range(4):
            for q in range(4):
                a(f"v_cvt_pk_bf16_f32 v{ob+4*rp+q}, v{ACC+8*q+rp}, v{ACC+8*q+4+rp}")
        for rp in range(4):
            off = (8 * o + (rp >> 1)) * G.WF_K + (rp & 1) * 8192
            a(f"s_add_u32 s55, s{sStb}, {off}")
            r = ob + 4 * rp
            a(f"buffer_store_dwordx4 v[{r}:{r+3}], v{vSt}, s[16:19], s55 offen {sc}"); vq.issue(('st', c))
    fine = [None]
    def fs():
        if fine[0] is not None:
            pstamp(fine[0]); fine[0] += 1
    def C1(c, raw, site):
        if kind == 'I': return
        fs()
        vq.wait(('ld', c), site)
        fs()
        if kind == 'X':
            x_q(0, raw); fs(); x_q(1, raw); fs()
        else:
            for dd in range(8):
                q = dd >> 1; h = dd & 1
                for e in range(4):
                    a(f"v_perm_b32 v{BF+4*dd+e}, v{raw+4*(2*e+1)+q}, v{raw+4*(2*e)+q}, s{30+h}")
            fs(); w_o(0, c); fs(); w_o(1, c); fs()
    def C2S(c, raw):
        if kind == 'I': return
        if kind == 'X':
            x_q(2, raw); fs(); x_q(3, raw); fs()
            for o in range(4):
                for rp in range(4):
                    off = (8 * o + (rp >> 1)) * G.XF_K + (rp & 1) * (G.ROWS * 64)
                    if cfg.get('xfull'): off = (8 * o + (rp >> 1)) * XF2_K + (rp & 1) * (G.ROWS * 128)
                    a(f"s_add_u32 s55, s{sStb}, {off}")
                    r = raw + 4 * (4 * o + rp)
                    a(f"buffer_store_dwordx4 v[{r}:{r+3}], v{vSt}, s[16:19], s55 offen {sc}"); vq.issue(('st', c))
            a(f"s_add_u32 s{sStb}, s{sStb}, {2*XF_KP if cfg.get('xfull') else 4*G.XF_KS}")
            fs()
        else:
            w_o(2, c); fs(); w_o(3, c); fs()
            a(f"s_add_u32 s{sStb}, s{sStb}, {4*G.WF_KS}")
    def F(c, site):
        if kind != 'I': vq.wait(('st', c), site)
        a("s_mov_b64 exec, 1")
        a(f"buffer_store_dword v{vTag}, v{vZ}, s[16:19], s{sFl} offen sc1"); vq.issue(('fl', c))
        a("s_mov_b64 exec, -1")
        a(f"v_add_u32 v{vTag}, 1, v{vTag}")
        a(f"s_add_u32 s{sFl}, s{sFl}, 4096")
    def poll_issue(c):
        a(f"buffer_load_dwordx4 v[{vP}:{vP+3}], v{vPA}, s[16:19], s{sPl} offen sc1"); vq.issue(('pl', c))
    def check(c, site):
        uid[0] += 1
        n = f"{site}"
        vq.wait(('pl', c), site)
        a(f"s_mov_b32 s57, {SPIN_MAX}")
        a.label(lab(f"chk_{n}"))
        a(f"v_xor_b32 v{vT}, s56, v{vP}")
        a(f"v_xor_b32 v{vT+1}, s56, v{vP+1}")
        a(f"v_xor_b32 v{vT+2}, s56, v{vP+2}")
        a(f"v_xor_b32 v{vT+3}, s56, v{vP+3}")
        a(f"v_or3_b32 v{vT}, v{vT}, v{vT+1}, v{vT+2}")
        a(f"v_or_b32 v{vT}, v{vT}, v{vT+3}")
        a(f"v_cmp_ne_u32 vcc, 0, v{vT}")
        a("s_cmp_eq_u64 vcc, 0")
        a(f"s_cbranch_scc1 {lab(f'ok_{n}')}")
        a("s_sub_u32 s57, s57, 1")
        a("s_cmp_eq_u32 s57, 0")
        a(f"s_cbranch_scc1 {lab(f'ok_{n}')}")
        a(f"buffer_load_dwordx4 v[{vP}:{vP+3}], v{vPA}, s[16:19], s{sPl} offen sc1")
        a("s_waitcnt vmcnt(0)")
        a(f"s_branch {lab(f'chk_{n}')}")
        a.label(lab(f"ok_{n}"))
        if cfg.get('hstamp'):
            a(f"s_sub_u32 s73, s56, s{sNon}")
            a(f"s_sub_u32 s74, {SPIN_MAX}, s57")
            a("s_mov_b32 m0, s73")
            a("v_writelane_b32 v252, s74, m0")
        a("s_add_u32 s56, s56, 1")
        a(f"s_add_u32 s{sPl}, s{sPl}, 4096")
    def B(s, site):
        stamp(1)
        vq.wait(('dma', s + 1), site)
        a("s_barrier")
        stamp(3)
    if cfg.get('hstamp'):
        a("s_mov_b32 s72, 0"); a("v_mov_b32 v250, 0"); a("v_mov_b32 v251, 0"); a("v_mov_b32 v252, 0"); a("v_mov_b32 v253, 0")
    pstamp(0)
    a(f"buffer_load_dword v{vP}, v{vZ}, s[24:27], 0 offen sc1"); vq.issue(('non', 0))
    L(0, RAWA); L(1, RAWB)
    pstamp(1)
    tables(a, kind)
    pstamp(2)
    vq.wait(('non', 0), 'non')
    pstamp(3)
    a(f"s_mov_b32 s57, {SPIN_MAX}")
    a.label(lab("non"))
    a(f"v_readfirstlane_b32 s{sNon}, v{vP}")
    a(f"s_cmp_lg_u32 s{sNon}, 0")
    a(f"s_cbranch_scc1 {lab('nonok')}")
    a("s_sub_u32 s57, s57, 1")
    a("s_cmp_eq_u32 s57, 0")
    a(f"s_cbranch_scc1 {lab('nonok')}")
    a(f"buffer_load_dword v{vP}, v{vZ}, s[24:27], 0 offen sc1")
    a("s_waitcnt vmcnt(0)")
    a(f"s_branch {lab('non')}")
    a.label(lab("nonok"))
    a(f"v_mov_b32 v{vTag}, s{sNon}")
    a(f"s_mov_b32 s56, s{sNon}")
    pstamp(4)
    fine[0] = 16
    C1(0, RAWA, 'p0'); C2S(0, RAWA)
    pstamp(5)
    L(2, RAWA)
    fine[0] = 32
    C1(1, RAWB, 'p1')
    fine[0] = None
    pstamp(6)
    F(0, 'pf0')
    pstamp(7)
    C2S(1, RAWB)
    poll_issue(0)
    pstamp(8)
    F(1, 'pf1')
    pstamp(9)
    check(0, 'pc0')
    pstamp(10)
    a("s_barrier")
    pstamp(11)
    dma(0); dma(1); dma(2)
    C1(2, RAWA, 'p2')
    pstamp(12)
    vq.wait(('dma', 0), 'pd0')
    pstamp(13)
    a("s_barrier")
    pstamp(14)
    def period(P, tagp):
        s = 4 * P
        B(s, tagp + 'b0')
        if P + 1 <= 7: poll_issue(P + 1)
        if s + 3 <= 31: dma(s + 3)
        if P + 2 <= 7: C2S(P + 2, RAWA)
        if P + 3 <= 7: L(P + 3, RAWA)
        if P + 1 <= 7: check(P + 1, tagp + 'c')
        B(s + 1, tagp + 'b1')
        if s + 4 <= 31: dma(s + 4)
        B(s + 2, tagp + 'b2')
        if s + 5 <= 31: dma(s + 5)
        if P + 2 <= 7: F(P + 2, tagp + 'f')
        if s + 3 <= 30:
            B(s + 3, tagp + 'b3')
        if s + 6 <= 31: dma(s + 6)
        if P + 3 <= 7: C1(P + 3, RAWA, tagp + 'l')
    if final:
        a("s_mov_b32 s46, 5")
        a.label(lab("loop"))
        period(0, 'L')
        a("s_sub_u32 s46, s46, 1")
        a("s_cmp_lg_u32 s46, 0")
        a(f"s_cbranch_scc1 {lab('loop')}")
    else:
        for P in range(5): period(P, 'L')
    period(5, 'T5'); period(6, 'T6'); period(7, 'T7')
    if cfg.get('hstamp'):
        a("s_lshl_b32 s73, s2, 2"); a("s_add_u32 s73, s73, s15"); a("s_lshl_b32 s73, s73, 10")
        a(f"s_add_u32 s73, s73, {210 << 20}")
        a("v_lshlrev_b32 v249, 2, v0")
        a("buffer_store_dword v250, v249, s[16:19], s73 offen")
        a("buffer_store_dword v251, v249, s[16:19], s73 offen offset:256")
        a("buffer_store_dword v252, v249, s[16:19], s73 offen offset:512")
    a("s_endpgm")

def tables(a, kind):
    if kind == 'I': return
    vR, vG, vA0, vC, vA, vN = vT, vT + 1, vT + 2, vT + 3, vT + 4, vT + 5
    P = ACC
    a(f"v_and_b32 v{vR}, 15, v0")
    a(f"v_lshrrev_b32 v{vG}, 4, v0")
    a(f"v_lshrrev_b32 v{vA0}, 2, v{vR}")
    a(f"v_lshlrev_b32 v{vA0}, 1, v{vA0}")
    a(f"v_bfe_u32 v{vC}, v{vR}, 1, 1")
    a(f"v_add_u32 v{vA0}, v{vA0}, v{vC}")
    a(f"v_lshl_add_u32 v{vA0}, v{vA0}, 1, 1")
    a(f"v_and_b32 v{vC}, 1, v{vR}")
    a(f"v_lshlrev_b32 v{vC}, 5, v{vC}")
    if kind == 'W':
        a(f"v_cmp_lt_u32 s[58:59], 1, v{vG}")
    for o in range(4):
        a(f"v_add_u32 v{vA}, {16*o}, v{vA0}")
        for s_ in range(2 if kind == 'X' else 1):
            if kind == 'X':
                a(f"v_lshlrev_b32 v{vN}, 3, v{vG}")
                if s_: a(f"v_add_u32 v{vN}, 32, v{vN}")
            else:
                a(f"v_and_b32 v{vN}, 1, v{vG}")
                a(f"v_lshlrev_b32 v{vN}, 3, v{vN}")
            a(f"v_mad_u32_u24 v{P}, v{vA}, v{vN}, v{vC}")
            for e in range(1, 8):
                a(f"v_add_u32 v{P+e}, v{P+e-1}, v{vA}")
            dst = AF + 4 * (2 * o + s_) if kind == 'X' else AF + 4 * o
            G.cos_table(a, None, [P + e for e in range(8)], dst, P + 8, lo_sel=(58 if kind == 'W' else None))

def gen_k123(cfg=None):
    cfg = cfg or G.CFG
    a = Asm()
    name = 'conv_kernel'
    G.kernel_header(a, name)
    vTT = K3.vT
    a("s_cmp_ge_u32 s2, 256")
    a("s_cbranch_scc1 L_k3_end")
    a("s_load_dwordx4 s[4:7], s[0:1], 0")
    a("s_load_dwordx4 s[60:63], s[0:1], 40")
    a(f"v_lshrrev_b32 v{vTT}, 6, v0")
    a(f"v_and_b32 v0, 63, v0")
    a(f"v_readfirstlane_b32 s10, v{vTT}")
    a("s_and_b32 s11, s2, 7")
    a("s_lshr_b32 s12, s2, 3")
    a("s_lshr_b32 s13, s12, 3")
    a("s_lshl_b32 s11, s11, 2")
    a("s_add_u32 s11, s11, s13")
    a("s_bfe_u32 s13, s12, 0x10002")
    a("s_and_b32 s14, s12, 3")
    a("s_and_b32 s15, s10, 3")
    a("s_waitcnt lgkmcnt(0)")
    G.make_srd(a, 16, 62, 63, G.WS_BYTES)
    a("s_cmp_ge_u32 s10, 4")
    a("s_cbranch_scc1 L_k3_helper")
    vT_ = K3.vT; XR = K3.XR; vXa = K3.vXa; vWa = K3.vWa; vS = K3.vSt; vS2 = K3.vSt2
    g = vT_; c16 = vT_ + 1; t0 = vT_ + 2; t1 = XR; t2 = XR + 1
    a(f"v_lshrrev_b32 v{g}, 4, v0")
    a(f"v_and_b32 v{c16}, 15, v0")
    a(f"v_bfe_u32 v{t0}, v{c16}, 3, 1")
    a(f"v_mul_u32_u24 v{t0}, 3, v{t0}")
    a(f"v_xor_b32 v{t0}, v{t0}, v{g}")
    a(f"v_lshlrev_b32 v{t0}, 4, v{t0}")
    a(f"v_lshl_add_u32 v{vXa}, v{c16}, 6, v{t0}")
    a(f"v_lshrrev_b32 v{t0}, 2, v{c16}")
    a(f"v_and_b32 v{t1}, 1, v{g}")
    a(f"v_lshl_or_b32 v{t1}, v{t1}, 2, v{t0}")
    a(f"v_lshl_add_u32 v{t0}, v{g}, 3, v{t0}")
    a(f"v_lshlrev_b32 v{t0}, 8, v{t0}")
    a(f"v_and_b32 v{t2}, 3, v{c16}")
    a(f"v_lshl_add_u32 v{t0}, v{t2}, 3, v{t0}")
    a("s_lshl_b32 s20, s15, 1")
    for t in range(2):
        if t: a("s_add_u32 s20, s20, 1")
        a(f"v_xor_b32 v{t2}, s20, v{t1}")
        a(f"v_lshl_add_u32 v{vWa+t}, v{t2}, 5, v{t0}")
    a(f"s_mov_b32 s21, {G.YF_ROW}")
    a(f"v_mul_u32_u24 v{vS}, s21, v{c16}")
    a(f"v_lshl_add_u32 v{vS}, v{g}, 4, v{vS}")
    a("s_lshl_b32 s20, s15, 6")
    a(f"v_add_u32 v{vS}, s20, v{vS}")
    a(f"v_cmp_gt_u32 vcc, 7, v{c16}")
    a(f"v_mov_b32 v{vS2}, 0x80000000")
    a(f"v_cndmask_b32 v{vS2}, v{vS2}, v{vS}, vcc")
    a(f"s_mul_i32 s48, s11, {2*G.YF_J}")
    a(f"s_mul_i32 s20, s13, {G.YF_B}")
    a("s_add_u32 s48, s48, s20")
    a("s_lshl_b32 s20, s14, 8")
    a("s_add_u32 s48, s48, s20")
    a(f"s_add_u32 s48, s48, {G.YF_BASE}")
    a("s_barrier")
    K3.gemm_wave(a, cfg)
    a.label("L_k3_helper")
    if cfg.get('hprio'): a(f"s_setprio {cfg['hprio']}")
    a(f"s_mul_i32 s40, s11, {G.WF_K}")
    a(f"s_mul_i32 s20, s14, {G.WF_DQ}")
    a("s_add_u32 s40, s40, s20")
    if G.WF_BASE: a(f"s_add_u32 s40, s40, {G.WF_BASE}")
    xf = cfg.get('xfull')
    a(f"s_mul_i32 s41, s11, {XF2_K if xf else G.XF_K}")
    a(f"s_mul_i32 s20, s13, {XF2_B if xf else G.XF_B}")
    a("s_add_u32 s41, s41, s20")
    a(f"s_add_u32 s41, s41, {G.XF_BASE}")
    a("s_lshl_b32 s42, s15, 12")
    a("s_mul_i32 s43, s15, 5376")
    a(f"v_lshlrev_b32 v{vPA}, 4, v0")
    if xf:
        a(f"v_lshrrev_b32 v{vDX}, 2, v0")
        a(f"v_lshlrev_b32 v{vDX}, 7, v{vDX}")
        a(f"v_and_b32 v{vT}, 3, v0")
        a(f"v_lshl_add_u32 v{vDX}, v{vT}, 4, v{vDX}")
        a("s_lshl_b32 s20, s43, 1")
        a(f"v_add_u32 v{vDX}, s20, v{vDX}")
    else:
        a(f"v_add_u32 v{vDX}, s43, v{vPA}")
    a(f"v_add_u32 v{vDW}, s42, v{vPA}")
    a("s_add_u32 s43, s43, 16384")
    a(f"v_mov_b32 v{vZ}, 0")
    a("s_mov_b32 s30, 0x05040100")
    a("s_mov_b32 s31, 0x07060302")
    G.make_srd(a, 24, 60, 61, 256)
    a("s_lshl_b32 s20, s2, 2")
    a("s_add_u32 s20, s20, s15")
    a("s_lshl_b32 s52, s20, 2")
    a(f"s_add_u32 s52, s52, {FLAG_BASE}")
    a("s_lshl_b32 s53, s15, 10")
    a(f"s_add_u32 s53, s53, {FLAG_BASE}")
    a("s_cmp_lg_u32 s20, 0")
    a("s_cbranch_scc1 L_nononce")
    a("s_memrealtime s[64:65]")
    a("s_waitcnt lgkmcnt(0)")
    a("s_or_b32 s64, s64, 1")
    a(f"v_mov_b32 v{vTag}, s64")
    a("s_mov_b64 exec, 1")
    a(f"buffer_store_dword v{vTag}, v{vZ}, s[24:27], 0 offen sc1")
    a("s_mov_b64 exec, -1")
    a.label("L_nononce")
    a(f"v_and_b32 v{vT}, 15, v0")
    a(f"v_lshrrev_b32 v{vT+1}, 4, v0")
    a("s_cmp_ge_u32 s15, 2")
    a("s_cbranch_scc1 L_setup_w")
    a("s_lshl_b32 s69, s15, 8")
    a("s_add_u32 s69, s69, s2")
    a("s_cmp_ge_u32 s69, 336")
    a("s_cbranch_scc1 L_kind_I")
    a(f"s_cmp_ge_u32 s69, {G.ROWS}")
    a("s_cselect_b32 s66, 1, 0")
    a(f"s_mul_i32 s67, s66, {G.ROWS}")
    a("s_sub_u32 s67, s69, s67")
    a(f"s_mul_i32 s68, s66, {G.X_BYTES_B}")
    a("s_add_u32 s4, s4, s68")
    a("s_addc_u32 s5, s5, 0")
    a(f"s_mul_i32 s50, s67, {48*2048}")
    a(f"s_mul_i32 s51, s66, {XF2_B if xf else G.XF_B}")
    a(f"s_lshl_b32 s68, s67, {7 if xf else 6}")
    a("s_add_u32 s51, s51, s68")
    a(f"s_add_u32 s51, s51, {G.XF_BASE}")
    a("s_bfe_u32 s68, s67, 0x10003")
    a("s_mul_i32 s68, s68, 3")
    G.make_srd(a, 20, 4, 5, G.X_BYTES_B)
    a(f"v_lshlrev_b32 v{vL}, 14, v{vT+1}")
    a(f"v_lshl_add_u32 v{vL}, v{vT}, 4, v{vL}")
    a(f"v_and_b32 v{vT+2}, 3, v{vT}")
    a(f"v_xor_b32 v{vT+2}, s68, v{vT+2}")
    a(f"v_lshlrev_b32 v{vT+2}, 4, v{vT+2}")
    if xf:
        a(f"v_bfe_u32 v{vT+3}, v{vT}, 2, 1")
        a(f"v_lshl_add_u32 v{vT+2}, v{vT+3}, 6, v{vT+2}")
        a(f"v_lshrrev_b32 v{vT+3}, 3, v{vT}")
        a(f"s_mov_b32 s55, {XF_KP}")
    else:
        a(f"v_lshrrev_b32 v{vT+3}, 2, v{vT}")
        a(f"s_mov_b32 s55, {G.XF_KS}")
    a(f"v_mad_u32_u24 v{vT+2}, v{vT+3}, s55, v{vT+2}")
    a(f"s_mov_b32 s55, {2*(XF2_K if xf else G.XF_K)}")
    a(f"v_mad_u32_u24 v{vSt}, v{vT+1}, s55, v{vT+2}")
    helper_code(a, 'X', cfg)
    a.label("L_setup_w")
    a("s_lshl_b32 s69, s2, 1")
    a("s_add_u32 s69, s69, s15")
    a("s_sub_u32 s69, s69, 2")
    a("s_and_b32 s66, s69, 3")
    a("s_lshr_b32 s67, s69, 2")
    G.make_srd(a, 20, 6, 7, G.W_BYTES)
    a("s_lshl_b32 s50, s67, 10")
    a("s_lshl_b32 s68, s66, 8")
    a("s_add_u32 s50, s50, s68")
    a(f"v_and_b32 v{vT+2}, 1, v{vT+1}")
    a(f"v_lshlrev_b32 v{vL}, 23, v{vT+2}")
    a(f"v_lshrrev_b32 v{vT+2}, 2, v{vT}")
    a(f"v_lshl_add_u32 v{vL}, v{vT+2}, 6, v{vL}")
    a(f"v_and_b32 v{vT+2}, 1, v{vT}")
    a(f"v_lshl_add_u32 v{vL}, v{vT+2}, 5, v{vL}")
    a(f"v_bfe_u32 v{vT+2}, v{vT}, 1, 1")
    a(f"v_lshl_add_u32 v{vL}, v{vT+2}, 3, v{vL}")
    a("s_and_b32 s68, s67, 3")
    a("s_bfe_u32 s55, s67, 0x10003")
    a("s_lshl_b32 s55, s55, 2")
    a("s_or_b32 s68, s68, s55")
    a("s_lshl_b32 s68, s68, 1")
    a(f"v_xor_b32 v{vT+2}, s68, v{vT}")
    a(f"v_lshlrev_b32 v{vT+2}, 4, v{vT+2}")
    a(f"s_mov_b32 s55, {2*G.WF_K}")
    a(f"v_mul_u32_u24 v{vSt}, s55, v{vT+1}")
    a(f"v_add_u32 v{vSt}, v{vSt}, v{vT+2}")
    a(f"s_mul_i32 s51, s66, {G.WF_DQ}")
    a("s_lshr_b32 s68, s67, 5")
    a(f"s_mul_i32 s68, s68, {G.WF_KS}")
    a("s_add_u32 s51, s51, s68")
    a("s_and_b32 s68, s67, 31")
    a("s_lshl_b32 s68, s68, 8")
    a("s_add_u32 s51, s51, s68")
    if G.WF_BASE: a(f"s_add_u32 s51, s51, {G.WF_BASE}")
    helper_code(a, 'W', cfg)
    a.label("L_kind_I")
    helper_code(a, 'I', cfg)
    a.label("L_k3_end")
    a("s_endpgm")
    return name, a.lines, 256, (256, 512, LDS_BYTES)
```

```python
from asmlib import *
import gen as G

STAGE = 37888
NSTAGE = 4
LDS_BYTES = STAGE * NSTAGE + 1024

class LQ:
    def __init__(self, a): self.a = a; self.q = []
    def issue(self, tag): self.q.append(tag)
    def wait(self, tag):
        idx = [i for i, t in enumerate(self.q) if t == tag]
        if not idx: return
        last = idx[-1]
        n = len(self.q) - 1 - last
        assert n <= 15, n
        self.a(f"s_waitcnt lgkmcnt({n})")
        self.q = self.q[last + 1:]

def stamp(a, i):
    if not G.CFG['k3_stamp']: return
    a(f"s_memtime s[{52+4*i}:{53+4*i}]")
    a(f"s_memrealtime s[{54+4*i}:{55+4*i}]")
    a("s_waitcnt lgkmcnt(0)")

def stamp_store(a, mh):
    if not G.CFG['k3_stamp']: return
    a("s_waitcnt vmcnt(0)")
    stamp(a, 3)
    a("s_load_dwordx2 s[70:71], s[0:1], 40")
    a("s_waitcnt lgkmcnt(0)")
    a("s_mov_b32 s72, s70"); a("s_and_b32 s73, s71, 0xffff"); a("s_mov_b32 s74, 256"); a("s_mov_b32 s75, 0x00020000")
    a("s_mov_b32 s76, -1")
    a("s_lshl_b32 s77, s2, 3"); a("s_add_u32 s77, s77, s10")
    a("s_cmp_eq_u32 s77, 0"); a("s_cselect_b32 s76, 0, s76")
    a(f"s_cmp_eq_u32 s77, {200*8+4}"); a("s_cselect_b32 s76, 64, s76")
    a(f"s_cmp_eq_u32 s77, {101*8+3}"); a("s_cselect_b32 s76, 128, s76")
    a(f"s_cmp_eq_u32 s77, {255*8+7}"); a("s_cselect_b32 s76, 192, s76")
    a("s_cmp_eq_u32 s76, -1")
    a(f"s_cbranch_scc1 L_nostamp{mh}")
    a("v_mov_b32 v1, s76")
    for i in range(16):
        a(f"v_mov_b32 v2, s{52+i}")
        a(f"buffer_store_dword v2, v1, s[72:75], 0 offen offset:{4*i}")
    a.label(f"L_nostamp{mh}")

def gen_variant(a, mh, cfg):
    T = 6 if mh == 0 else 5
    tile0 = 0 if mh == 0 else 6
    ACC = 0
    WF = 96
    XR = 144
    vWa = 176
    vXa = 184
    vDW = 188; vDX = 189; vSt = 190; vT = 191
    def acc(i, c, t): return ACC + ((i * 2 + c) * 2 + t) * 4
    def wf(p, which): return WF + p * 24 + which * 4
    def xr(slot, c): return XR + slot * 8 + c * 4
    lq = LQ(a)
    step_in_loop = [False]
    sWo, sXo, sLW, sLX = 40, 41, 42, 43
    def dma_ops(stage_buf):
        ops = []
        ops.append([f"s_add_u32 m0, s{sLW}, {stage_buf*STAGE}",
                    f"buffer_load_dwordx4 v{vDW}, s[16:19], s{sWo} offen lds"])
        ops.append([f"buffer_load_dwordx4 v{vDW}, s[16:19], s{sWo} offen offset:1024 lds",
                    f"s_add_u32 s{sWo}, s{sWo}, {G.WF_KS}"])
        ops.append([f"s_add_u32 m0, s{sLX}, {stage_buf*STAGE}",
                    f"buffer_load_dwordx4 v{vDX}, s[16:19], s{sXo} offen lds"])
        ops.append([f"buffer_load_dwordx4 v{vDX}, s[16:19], s{sXo} offen offset:1024 lds"])
        ops.append(["s_mov_b64 exec, s[44:45]",
                    f"buffer_load_dwordx4 v{vDX}, s[16:19], s{sXo} offen offset:2048 lds",
                    "s_mov_b64 exec, -1",
                    f"s_add_u32 s{sXo}, s{sXo}, {G.XF_KS}"])
        return ops
    def x_read(step, i, slot):
        buf = step % NSTAGE
        for c in range(2):
            r = xr(slot, c)
            off = 16384 + c * (G.ROWS * 64) + (tile0 + i) * 1024
            if G.CFG['k3_nolds'] and step_in_loop[0]: continue
            a(f"ds_read_b128 v[{r}:{r+3}], v{vXa+buf} offset:{off}")
            lq.issue(('x', step, i))
    def w_read(step, c):
        buf = step % NSTAGE; p = step & 1
        for t in range(2):
            r = wf(p, c * 2 + t)
            for e in range(2):
                if G.CFG['k3_nolds'] and step_in_loop[0]: continue
                a(f"ds_read_b64_tr_b16 v[{r+2*e}:{r+2*e+1}], v{vWa+buf*2+t} offset:{c*8192+e*1024}")
                lq.issue(('w', step))
    def w_xor(step, part=None):
        p = step & 1
        l = []
        for t in range(2):
            for e in range(4):
                l.append(f"v_xor_b32 v{wf(p,4+t)+e}, 0x80008000, v{wf(p,2+t)+e}")
        return l
    def mf(d, A, B):
        return f"v_mfma_f32_16x16x32_bf16 v[{d}:{d+3}], v[{A}:{A+3}], v[{B}:{B+3}], v[{d}:{d+3}]"
    def step_code(s, tau0, do_dma, vm, barrier, nxt):
        p = s & 1
        if vm is not None: a(f"s_waitcnt vmcnt({vm})")
        if barrier: a("s_barrier")
        dm = dma_ops((s + 3) % NSTAGE) if (do_dma and not G.CFG['k3_nodma']) else []
        if G.CFG['k3_nodma'] and vm is not None: pass
        for i in range(T):
            tau = tau0 + i
            slot = tau % 4
            lq.wait(('x', s, i))
            fill = [[] for _ in range(8)]
            def xr_fill():
                if i + 2 < T: x_read(s, i + 2, (tau + 2) % 4)
                elif nxt: x_read(s + 1, i + 2 - T, (tau + 2) % 4)
            ms = [mf(acc(i,0,0), wf(p,0), xr(slot,0)), mf(acc(i,0,1), wf(p,1), xr(slot,0)),
                  mf(acc(i,1,0), wf(p,4), xr(slot,0)), mf(acc(i,1,1), wf(p,5), xr(slot,0)),
                  mf(acc(i,0,0), wf(p,2), xr(slot,1)), mf(acc(i,0,1), wf(p,3), xr(slot,1)),
                  mf(acc(i,1,0), wf(p,0), xr(slot,1)), mf(acc(i,1,1), wf(p,1), xr(slot,1))]
            xors = None
            for m in range(8):
                if not G.CFG['k3_nomfma']: a(ms[m])
                if m == 0: xr_fill()
                if m == 2 and nxt and i == T - 3: w_read(s + 1, 0)
                if m == 2 and nxt and i == T - 2: w_read(s + 1, 1)
                if m == 4 and dm and i < len(dm) + 0 and i < T:
                    pass
                if m == 3 and dm:
                    for ins in dm.pop(0): a(ins)
                if nxt and i == T - 1:
                    if m == 1:
                        lq.wait(('w', s + 1))
                        xors = w_xor(s + 1)
                    if xors and m >= 2:
                        for _ in range(2):
                            if xors: a(xors.pop(0))
            if xors:
                for x in xors: a(x)
        assert not dm
    for st in range(3):
        for grp in dma_ops(st):
            for ins in grp: a(ins)
    for r in range(T * 16): a(f"v_mov_b32 v{ACC+r}, 0")
    a("s_waitcnt vmcnt(10)")
    a("s_barrier")
    w_read(0, 0); w_read(0, 1)
    x_read(0, 0, 0); x_read(0, 1, 1)
    lq.wait(('w', 0))
    for x in w_xor(0): a(x)
    stamp(a, 1)
    step_in_loop[0] = True
    a(f"s_mov_b32 s46, 7")
    lab = f"L_k3_loop{mh}"
    a.label(lab)
    q0 = list(lq.q)
    start = len(a.lines)
    for u in range(4):
        step_code(u, u * T, True, 5, True, True)
    q1 = [(t[0], t[1] - 4) + tuple(t[2:]) for t in lq.q]
    assert G.CFG['k3_nolds'] or q0[len(q0)-len(q1):] == q1, (q0, q1)
    assert (4 * T) % 4 == 0
    a("s_sub_u32 s46, s46, 1")
    a("s_cmp_lg_u32 s46, 0")
    a(f"s_cbranch_scc1 {lab}")
    lq.q = [(t[0], t[1] + 24) + tuple(t[2:]) for t in lq.q]
    step_code(28, 0 * T, True, 5, True, True)
    step_code(29, 1 * T, False, 5, True, True)
    step_code(30, 2 * T, False, 0, True, True)
    step_code(31, 3 * T, False, None, False, False)
    stamp(a, 2)
    a("s_nop 7")
    for i in range(T):
        for c in range(2):
            d = acc(i, c, 0); d1 = acc(i, c, 1)
            a(f"v_cvt_pk_bf16_f32 v{d}, v{d}, v{d+1}")
            a(f"v_cvt_pk_bf16_f32 v{d+1}, v{d+2}, v{d+3}")
            a(f"v_cvt_pk_bf16_f32 v{d+2}, v{d1}, v{d1+1}")
            a(f"v_cvt_pk_bf16_f32 v{d+3}, v{d1+2}, v{d1+3}")
            off = c * G.YF_J + (tile0 + i) * 16 * G.YF_ROW
            a(f"s_add_u32 s47, s48, {off}")
            vs = vSt + 0
            if mh == 1 and i == 4: vs = vT
            a(f"buffer_store_dwordx4 v[{d}:{d+3}], v{vs}, s[16:19], s47 offen {G.CFG['k3_st']}")
    stamp_store(a, mh)
    a("s_endpgm")

def gen_k3(cfg=None):
    a = Asm()
    name = 'gemm_kernel'
    G.kernel_header(a, name)
    vWa = 176; vXa = 184; vDW = 188; vDX = 189; vSt = 190; vT = 191
    a("s_cmp_ge_u32 s2, 256")
    a("s_cbranch_scc1 L_k3_end")
    stamp(a, 0)
    a("s_load_dwordx2 s[8:9], s[0:1], 48")
    a(f"v_lshrrev_b32 v{vT+1}, 6, v0")
    a(f"v_and_b32 v0, 63, v0")
    a(f"v_readfirstlane_b32 s10, v{vT+1}")
    a("s_and_b32 s11, s2, 7")
    a("s_lshr_b32 s12, s2, 3")
    a("s_lshr_b32 s13, s12, 3")
    a("s_lshl_b32 s11, s11, 2")
    a("s_add_u32 s11, s11, s13")
    a("s_bfe_u32 s13, s12, 0x10002")
    a("s_and_b32 s14, s12, 3")
    a("s_and_b32 s15, s10, 3")
    a(f"s_mul_i32 s40, s11, {G.WF_K}")
    a(f"s_mul_i32 s20, s14, {G.WF_DQ}")
    a("s_add_u32 s40, s40, s20")
    if G.WF_BASE: a(f"s_add_u32 s40, s40, {G.WF_BASE}")
    a(f"s_mul_i32 s41, s11, {G.XF_K}")
    a(f"s_mul_i32 s20, s13, {G.XF_B}")
    a("s_add_u32 s41, s41, s20")
    a(f"s_add_u32 s41, s41, {G.XF_BASE}")
    a("s_lshl_b32 s42, s10, 11")
    a("s_mul_i32 s43, s10, 2688")
    a(f"v_lshlrev_b32 v{vDW}, 4, v0")
    a(f"v_add_u32 v{vDX}, s43, v{vDW}")
    a(f"v_add_u32 v{vDW}, s42, v{vDW}")
    a("s_add_u32 s43, s43, 16384")
    a("s_mov_b32 s44, -1")
    a("s_mov_b32 s45, 0xff")
    g = vT + 2; c16 = vT + 3; t0 = vT + 4; t1 = vT + 5; t2 = vT + 6
    a(f"v_lshrrev_b32 v{g}, 4, v0")
    a(f"v_and_b32 v{c16}, 15, v0")
    a(f"v_bfe_u32 v{t0}, v{c16}, 3, 1")
    a(f"v_mul_u32_u24 v{t0}, 3, v{t0}")
    a(f"v_xor_b32 v{t0}, v{t0}, v{g}")
    a(f"v_lshlrev_b32 v{t0}, 4, v{t0}")
    a(f"v_lshl_add_u32 v{vXa}, v{c16}, 6, v{t0}")
    for st in range(1, 4):
        a(f"v_add_u32 v{vXa+st}, {st*STAGE}, v{vXa}")
    a(f"v_lshrrev_b32 v{t0}, 2, v{c16}")
    a(f"v_and_b32 v{t1}, 1, v{g}")
    a(f"v_lshl_or_b32 v{t1}, v{t1}, 2, v{t0}")
    a(f"v_lshl_add_u32 v{t0}, v{g}, 3, v{t0}")
    a(f"v_lshlrev_b32 v{t0}, 8, v{t0}")
    a(f"v_and_b32 v{t2}, 3, v{c16}")
    a(f"v_lshl_add_u32 v{t0}, v{t2}, 3, v{t0}")
    a("s_lshl_b32 s20, s15, 1")
    for t in range(2):
        if t: a("s_add_u32 s20, s20, 1")
        a(f"v_xor_b32 v{t2}, s20, v{t1}")
        a(f"v_lshl_add_u32 v{vWa+t}, v{t2}, 5, v{t0}")
        for st in range(1, 4):
            a(f"v_add_u32 v{vWa+st*2+t}, {st*STAGE}, v{vWa+t}")
    a(f"s_mov_b32 s21, {G.YF_ROW}")
    a(f"v_mul_u32_u24 v{vSt}, s21, v{c16}")
    a(f"v_lshl_add_u32 v{vSt}, v{g}, 4, v{vSt}")
    a("s_lshl_b32 s20, s15, 6")
    a(f"v_add_u32 v{vSt}, s20, v{vSt}")
    a(f"v_cmp_gt_u32 vcc, 7, v{c16}")
    a(f"v_mov_b32 v{vT}, 0x80000000")
    a(f"v_cndmask_b32 v{vT}, v{vT}, v{vSt}, vcc")
    a(f"s_mul_i32 s48, s11, {2*G.YF_J}")
    a(f"s_mul_i32 s20, s13, {G.YF_B}")
    a("s_add_u32 s48, s48, s20")
    a("s_lshl_b32 s20, s14, 8")
    a("s_add_u32 s48, s48, s20")
    a(f"s_add_u32 s48, s48, {G.YF_BASE}")
    a("s_waitcnt lgkmcnt(0)")
    G.make_srd(a, 16, 8, 9, G.WS_BYTES)
    a("s_cmp_ge_u32 s10, 4")
    a("s_cbranch_scc1 L_k3_mh1")
    gen_variant(a, 0, cfg)
    a.label("L_k3_mh1")
    gen_variant(a, 1, cfg)
    a.label("L_k3_end")
    a("s_endpgm")
    return name, a.lines, 200, (256, 512, LDS_BYTES)
```

```python
from asmlib import *
import gen as G
from gen_k3 import LQ, STAGE, NSTAGE, LDS_BYTES

T = 11
ACC = 0
WA = 176; WB = 192; NW = 208
XR = 216
vWa = 248; vXa = 250; vSt = 251; vSt2 = 252; vT = 253

def acc(i, c, t): return ACC + ((i * 2 + c) * 2 + t) * 4
def wf(p, which): return (WA if p == 0 else WB) + which * 4
def nw(t): return NW + 4 * t
def xr(slot, c): return XR + slot * 8 + c * 4
def mf(d, A, B): return f"v_mfma_f32_16x16x32_bf16 v[{d}:{d+3}], v[{A}:{A+3}], v[{B}:{B+3}], v[{d}:{d+3}]"

def gemm_wave(a, cfg):
    lq = LQ(a)
    def x_read(step, i, slot):
        for c in range(2):
            r = xr(slot, c)
            off = 16384 + c * (G.ROWS * 64) + i * 1024
            a(f"ds_read_b128 v[{r}:{r+3}], v{vXa} offset:{off}")
            lq.issue(('x', step, i))
    def w_read(step, c):
        p = step & 1
        for t in range(2):
            r = wf(p, c * 2 + t)
            for e in range(2):
                a(f"ds_read_b64_tr_b16 v[{r+2*e}:{r+2*e+1}], v{vWa+t} offset:{c*8192+e*1024}")
                lq.issue(('w', step))
    def w_xor(step):
        p = step & 1
        return [f"v_xor_b32 v{nw(t)+e}, 0x80008000, v{wf(p,2+t)+e}" for t in range(2) for e in range(4)]
    def bump(reg, step):
        d = STAGE if step % NSTAGE else -(NSTAGE - 1) * STAGE
        a(f"v_add_u32 v{reg}, {d & 0xffffffff:#x}, v{reg}")
    def step_code(s, tau0, barrier, nxt):
        p = s & 1
        if barrier:
            if G.CFG.get('gstamp'):
                a("s_memrealtime s[70:71]"); a("s_waitcnt lgkmcnt(0)")
                a("s_mov_b32 m0, s72"); a("v_writelane_b32 v255, s70, m0"); a("s_add_u32 s72, s72, 1")
            a("s_barrier")
            if G.CFG.get('gstamp'):
                a("s_memrealtime s[70:71]"); a("s_waitcnt lgkmcnt(0)")
                a("s_mov_b32 m0, s72"); a("v_writelane_b32 v255, s70, m0"); a("s_add_u32 s72, s72, 1")
        for i in range(T):
            tau = tau0 + i
            slot = tau % 4
            lq.wait(('x', s, i))
            ms = [mf(acc(i,0,0), wf(p,0), xr(slot,0)), mf(acc(i,0,1), wf(p,1), xr(slot,0)),
                  mf(acc(i,1,0), nw(0), xr(slot,0)), mf(acc(i,1,1), nw(1), xr(slot,0)),
                  mf(acc(i,0,0), wf(p,2), xr(slot,1)), mf(acc(i,0,1), wf(p,3), xr(slot,1)),
                  mf(acc(i,1,0), wf(p,0), xr(slot,1)), mf(acc(i,1,1), wf(p,1), xr(slot,1))]
            xors = None
            for m in range(8):
                a(ms[m])
                if m == 0:
                    if i + 2 < T: x_read(s, i + 2, (tau + 2) % 4)
                    elif nxt:
                        if i + 2 == T: bump(vXa, s + 1)
                        x_read(s + 1, i + 2 - T, (tau + 2) % 4)
                if nxt and i == T - 5 and m == 4:
                    bump(vWa, s + 1); bump(vWa + 1, s + 1)
                if m == 3 and nxt and i == T - 4: w_read(s + 1, 0)
                if m == 3 and nxt and i == T - 3: w_read(s + 1, 1)
                if nxt and i == T - 1:
                    if m == 3:
                        lq.wait(('w', s + 1))
                        xors = w_xor(s + 1)
                    if xors and m >= 3:
                        for _ in range(2):
                            if xors: a(xors.pop(0))
            if xors:
                for x in xors: a(x)
    if G.CFG.get('gstamp'):
        a("s_mov_b32 s72, 0"); a("v_mov_b32 v255, 0")
    for r in range(T * 16): a(f"v_mov_b32 v{ACC+r}, 0")
    a("s_barrier")
    w_read(0, 0); w_read(0, 1)
    x_read(0, 0, 0); x_read(0, 1, 1)
    lq.wait(('w', 0))
    for x in w_xor(0): a(x)
    a("s_mov_b32 s46, 7")
    a.label("L_g_loop")
    q0 = list(lq.q)
    for u in range(4):
        step_code(u, u * T, True, True)
    q1 = [(t[0], t[1] - 4) + tuple(t[2:]) for t in lq.q]
    assert q0[len(q0)-len(q1):] == q1, (q0, q1)
    a("s_sub_u32 s46, s46, 1")
    a("s_cmp_lg_u32 s46, 0")
    a("s_cbranch_scc1 L_g_loop")
    lq.q = [(t[0], t[1] + 24) + tuple(t[2:]) for t in lq.q]
    step_code(28, 0 * T, True, True)
    step_code(29, 1 * T, True, True)
    step_code(30, 2 * T, True, True)
    step_code(31, 3 * T, False, False)
    a("s_nop 7")
    for i in range(T):
        for c in range(2):
            d = acc(i, c, 0); d1 = acc(i, c, 1)
            a(f"v_cvt_pk_bf16_f32 v{d}, v{d}, v{d+1}")
            a(f"v_cvt_pk_bf16_f32 v{d+1}, v{d+2}, v{d+3}")
            a(f"v_cvt_pk_bf16_f32 v{d+2}, v{d1}, v{d1+1}")
            a(f"v_cvt_pk_bf16_f32 v{d+3}, v{d1+2}, v{d1+3}")
            off = c * G.YF_J + i * 16 * G.YF_ROW
            a(f"s_add_u32 s47, s48, {off}")
            vs = vSt2 if i == T - 1 else vSt
            a(f"buffer_store_dwordx4 v[{d}:{d+3}], v{vs}, s[16:19], s47 offen {G.CFG['k3_st']}")
    if G.CFG.get('gstamp'):
        a("s_lshl_b32 s73, s2, 2"); a("s_add_u32 s73, s73, s15"); a("s_lshl_b32 s73, s73, 10")
        a(f"s_add_u32 s73, s73, {212 << 20}")
        a("v_mbcnt_lo_u32_b32 v254, -1, 0")
        a("v_mbcnt_hi_u32_b32 v254, -1, v254")
        a("v_lshlrev_b32 v254, 2, v254")
        a("buffer_store_dword v255, v254, s[16:19], s73 offen")
    a("s_endpgm")

def helper_wave(a, cfg):
    vDW = 1; vDX = 2
    sWo, sXo, sLW, sLX = 40, 41, 42, 43
    def dma(buf):
        a(f"s_add_u32 m0, s{sLW}, {buf*STAGE}")
        for j in range(4):
            a(f"buffer_load_dwordx4 v{vDW}, s[16:19], s{sWo} offen offset:{j*1024} lds")
        a(f"s_add_u32 s{sWo}, s{sWo}, {G.WF_KS}")
        a(f"s_add_u32 m0, s{sLX}, {buf*STAGE}")
        for j in range(4):
            a(f"buffer_load_dwordx4 v{vDX}, s[16:19], s{sXo} offen offset:{j*1024} lds")
        a(f"s_add_u32 m0, s{sLX}, {buf*STAGE+4096}")
        a(f"s_add_u32 s49, s{sXo}, 4096")
        a(f"buffer_load_dwordx4 v{vDX}, s[16:19], s49 offen lds")
        a("s_mov_b64 exec, 0xffff")
        a(f"buffer_load_dwordx4 v{vDX}, s[16:19], s49 offen offset:1024 lds")
        a("s_mov_b64 exec, -1")
        a(f"s_add_u32 s{sXo}, s{sXo}, {G.XF_KS}")
    for st in range(3): dma(st)
    a("s_waitcnt vmcnt(20)")
    a("s_barrier")
    a("s_mov_b32 s46, 7")
    a.label("L_h_loop")
    for u in range(4):
        a("s_waitcnt vmcnt(10)")
        a("s_barrier")
        dma((u + 3) % NSTAGE)
    a("s_sub_u32 s46, s46, 1")
    a("s_cmp_lg_u32 s46, 0")
    a("s_cbranch_scc1 L_h_loop")
    a("s_waitcnt vmcnt(10)"); a("s_barrier"); dma((28 + 3) % NSTAGE)
    a("s_waitcnt vmcnt(10)"); a("s_barrier")
    a("s_waitcnt vmcnt(0)"); a("s_barrier")
    a("s_endpgm")

def gen_k3b(cfg=None):
    a = Asm()
    name = 'gemm_kernel'
    G.kernel_header(a, name)
    a("s_cmp_ge_u32 s2, 256")
    a("s_cbranch_scc1 L_k3_end")
    a("s_load_dwordx2 s[8:9], s[0:1], 48")
    a(f"v_lshrrev_b32 v{vT}, 6, v0")
    a(f"v_and_b32 v0, 63, v0")
    a(f"v_readfirstlane_b32 s10, v{vT}")
    a("s_and_b32 s11, s2, 7")
    a("s_lshr_b32 s12, s2, 3")
    a("s_lshr_b32 s13, s12, 3")
    a("s_lshl_b32 s11, s11, 2")
    a("s_add_u32 s11, s11, s13")
    a("s_bfe_u32 s13, s12, 0x10002")
    a("s_and_b32 s14, s12, 3")
    a("s_and_b32 s15, s10, 3")
    a("s_waitcnt lgkmcnt(0)")
    G.make_srd(a, 16, 8, 9, G.WS_BYTES)
    a("s_cmp_ge_u32 s10, 4")
    a("s_cbranch_scc1 L_k3_helper")
    g = vT; c16 = vT + 1; t0 = vT + 2; t1 = XR; t2 = XR + 1
    a(f"v_lshrrev_b32 v{g}, 4, v0")
    a(f"v_and_b32 v{c16}, 15, v0")
    a(f"v_bfe_u32 v{t0}, v{c16}, 3, 1")
    a(f"v_mul_u32_u24 v{t0}, 3, v{t0}")
    a(f"v_xor_b32 v{t0}, v{t0}, v{g}")
    a(f"v_lshlrev_b32 v{t0}, 4, v{t0}")
    a(f"v_lshl_add_u32 v{vXa}, v{c16}, 6, v{t0}")
    a(f"v_lshrrev_b32 v{t0}, 2, v{c16}")
    a(f"v_and_b32 v{t1}, 1, v{g}")
    a(f"v_lshl_or_b32 v{t1}, v{t1}, 2, v{t0}")
    a(f"v_lshl_add_u32 v{t0}, v{g}, 3, v{t0}")
    a(f"v_lshlrev_b32 v{t0}, 8, v{t0}")
    a(f"v_and_b32 v{t2}, 3, v{c16}")
    a(f"v_lshl_add_u32 v{t0}, v{t2}, 3, v{t0}")
    a("s_lshl_b32 s20, s15, 1")
    for t in range(2):
        if t: a("s_add_u32 s20, s20, 1")
        a(f"v_xor_b32 v{t2}, s20, v{t1}")
        a(f"v_lshl_add_u32 v{vWa+t}, v{t2}, 5, v{t0}")
    a(f"s_mov_b32 s21, {G.YF_ROW}")
    a(f"v_mul_u32_u24 v{vSt}, s21, v{c16}")
    a(f"v_lshl_add_u32 v{vSt}, v{g}, 4, v{vSt}")
    a("s_lshl_b32 s20, s15, 6")
    a(f"v_add_u32 v{vSt}, s20, v{vSt}")
    a(f"v_cmp_gt_u32 vcc, 7, v{c16}")
    a(f"v_mov_b32 v{vSt2}, 0x80000000")
    a(f"v_cndmask_b32 v{vSt2}, v{vSt2}, v{vSt}, vcc")
    a(f"s_mul_i32 s48, s11, {2*G.YF_J}")
    a(f"s_mul_i32 s20, s13, {G.YF_B}")
    a("s_add_u32 s48, s48, s20")
    a("s_lshl_b32 s20, s14, 8")
    a("s_add_u32 s48, s48, s20")
    a(f"s_add_u32 s48, s48, {G.YF_BASE}")
    gemm_wave(a, cfg)
    a.label("L_k3_helper")
    a(f"s_mul_i32 s40, s11, {G.WF_K}")
    a(f"s_mul_i32 s20, s14, {G.WF_DQ}")
    a("s_add_u32 s40, s40, s20")
    if G.WF_BASE: a(f"s_add_u32 s40, s40, {G.WF_BASE}")
    a(f"s_mul_i32 s41, s11, {G.XF_K}")
    a(f"s_mul_i32 s20, s13, {G.XF_B}")
    a("s_add_u32 s41, s41, s20")
    a(f"s_add_u32 s41, s41, {G.XF_BASE}")
    a("s_lshl_b32 s42, s15, 12")
    a("s_mul_i32 s43, s15, 5376")
    a("v_lshlrev_b32 v1, 4, v0")
    a("v_add_u32 v2, s43, v1")
    a("v_add_u32 v1, s42, v1")
    a("s_add_u32 s43, s43, 16384")
    a("s_cmp_ge_u32 s2, 8"); a("s_cbranch_scc1 L_nozero")
    a("s_cmp_lg_u32 s15, 0"); a("s_cbranch_scc1 L_nozero")
    a(f"s_mul_i32 s20, s2, {G.CNT_STRIDE}"); a(f"s_add_u32 s20, s20, {G.CNT_BASE}")
    a("v_mov_b32 v3, 0"); a("v_lshlrev_b32 v4, 2, v0")
    a("buffer_store_dword v3, v4, s[16:19], s20 offen")
    a.label("L_nozero")
    helper_wave(a, cfg)
    a.label("L_k3_end")
    a("s_endpgm")
    return name, a.lines, 256, (256, 512, LDS_BYTES)
```

```python
from asmlib import *
import gen as G
from gen_k3 import STAGE, NSTAGE, LDS_BYTES
import gen_k3b as K3
from gen_k123 import VQ, Null, FLAG_BASE, SPIN_MAX, XF2_K, XF_KP, XF2_B

vDW, vDX, vL, vSt, vZ, vTag, vPA = 1, 2, 3, 4, 5, 6, 7
vP = 8; vNon = 19
vT = 12
AF = 20
FR = 52
ACC = 116
OUT = 148
RAW = 164
sWo, sXo, sLW, sLX = 40, 41, 42, 43
sLd, sStb, sFl, sPl, sNon = 50, 51, 52, 53, 54

def helper_code(a_real, kind, cfg):
    table = {}
    for final in (False, True):
        a = a_real if final else Null()
        vq = VQ(a, table, not final)
        emit_helper(a, vq, kind, cfg)

def emit_helper(a, vq, kind, cfg):
    sc = cfg.get('st_flags', 'sc1'); ldf = cfg.get('dma_flags', '')
    c0 = cfg['c0']; NI = 8 - c0
    ldist = cfg.get('ldist', [6, 5, 5, 0])
    def lab(n): return f"L_{kind}_{n}"
    def stamp():
        if not cfg.get('hstamp'): return
        a("s_memrealtime s[70:71]"); a("s_waitcnt lgkmcnt(0)")
        a("s_mov_b32 m0, s72"); a("v_writelane_b32 v250, s70, m0"); a("s_add_u32 s72, s72, 1")
    fidx = [None]
    def fs():
        if not cfg.get('hstamp') or fidx[0] is None: return
        a("s_memrealtime s[70:71]"); a("s_waitcnt lgkmcnt(0)")
        a(f"v_writelane_b32 v251, s70, {fidx[0]}")
        fidx[0] += 1
    def dma(step):
        buf = step % NSTAGE
        tag = ('dma', step)
        a(f"s_add_u32 m0, s{sLW}, {buf*STAGE}")
        for j in range(4):
            a(f"buffer_load_dwordx4 v{vDW}, s[16:19], s{sWo} offen offset:{j*1024} {ldf} lds"); vq.issue(tag)
        a(f"s_add_u32 s{sWo}, s{sWo}, {G.WF_KS}")
        a(f"s_add_u32 m0, s{sLX}, {buf*STAGE}")
        for j in range(4):
            if j: a(f"s_add_u32 s49, s{sXo}, {1024*j}")
            a(f"buffer_load_dwordx4 v{vDX}, s[16:19], s{49 if j else sXo} offen offset:{j*1024} {ldf} lds"); vq.issue(tag)
        a(f"s_add_u32 m0, s{sLX}, {buf*STAGE+4096}")
        a(f"s_add_u32 s49, s{sXo}, 8192")
        a(f"buffer_load_dwordx4 v{vDX}, s[16:19], s49 offen {ldf} lds"); vq.issue(tag)
        a(f"s_add_u32 s49, s{sXo}, {8192+1024}")
        a("s_mov_b64 exec, 0xffff")
        a(f"buffer_load_dwordx4 v{vDX}, s[16:19], s49 offen offset:1024 {ldf} lds"); vq.issue(tag)
        a("s_mov_b64 exec, -1")
        adv = 64 if (step & 1) == 0 else (XF_KP - 64)
        a(f"s_add_u32 s{sXo}, s{sXo}, {adv}")
    def loads(c, n0, n1):
        if kind == 'I': return
        tag = ('ld', c)
        for n in range(n0, n1):
            if kind == 'X':
                s, i = n >> 3, n & 7
                r = RAW + 4 * n
                a(f"s_add_u32 s55, s{sLd}, {(32*s+i)*2048}")
                a(f"buffer_load_dwordx4 v[{r}:{r+3}], v{vL}, s[20:23], s55 offen"); vq.issue(tag)
            else:
                i, hf = n >> 1, n & 1
                r = RAW + 4 * i + 2 * hf
                if hf == 0 or n == n0: a(f"s_add_u32 s55, s{sLd}, {i << 20}")
                a(f"buffer_load_dwordx2 v[{r}:{r+1}], v{vL}, s[20:23], s55 offen offset:{16*hf}"); vq.issue(tag)
        if n1 == 16:
            a(f"s_add_u32 s{sLd}, s{sLd}, {256 if kind == 'X' else 128*1024}")
    def perms(c, site):
        if kind == 'I': return
        vq.wait(('ld', c), site)
        ns = 2 if kind == 'X' else 1
        for s in range(ns):
            for dd in range(8):
                q = dd >> 1; h = dd & 1
                for e in range(4):
                    r0 = RAW + 4 * (8 * s + 2 * e) + q
                    r1 = RAW + 4 * (8 * s + 2 * e + 1) + q
                    a(f"v_perm_b32 v{FR+(s*8+dd)*4+e}, v{r1}, v{r0}, s{30+h}")
    def comp_o(c, o):
        if kind == 'I': return
        ns = 2 if kind == 'X' else 1
        for s in range(ns):
            for dd in range(8):
                d = ACC + 4 * dd
                A = AF + 4 * (2 * o + s) if kind == 'X' else AF + 4 * o
                B = FR + (s * 8 + dd) * 4
                cc = "0" if s == 0 else f"v[{d}:{d+3}]"
                a(f"v_mfma_f32_16x16x32_bf16 v[{d}:{d+3}], v[{A}:{A+3}], v[{B}:{B+3}], {cc}")
        fs()
        for rp in range(4):
            for q in range(4):
                a(f"v_cvt_pk_bf16_f32 v{OUT+4*rp+q}, v{ACC+8*q+rp}, v{ACC+8*q+4+rp}")
        fs()
        for rp in range(4):
            if kind == 'X': off = (8 * o + (rp >> 1)) * XF2_K + (rp & 1) * (G.ROWS * 128)
            else: off = (8 * o + (rp >> 1)) * G.WF_K + (rp & 1) * 8192
            a(f"s_add_u32 s55, s{sStb}, {off}")
            r = OUT + 4 * rp
            a(f"buffer_store_dwordx4 v[{r}:{r+3}], v{vSt}, s[16:19], s55 offen {sc}"); vq.issue(('st', c))
        if o == 3:
            a(f"s_add_u32 s{sStb}, s{sStb}, {2*XF_KP if kind == 'X' else 4*G.WF_KS}")
    def get_nonce():
        vq.wait(('non', 0), 'non')
        a(f"s_mov_b32 s57, {SPIN_MAX}")
        a.label(lab("non"))
        a(f"v_readfirstlane_b32 s{sNon}, v{vNon}")
        a(f"s_cmp_lg_u32 s{sNon}, 0")
        a(f"s_cbranch_scc1 {lab('nonok')}")
        a("s_sub_u32 s57, s57, 1")
        a("s_cmp_eq_u32 s57, 0")
        a(f"s_cbranch_scc1 {lab('nonok')}")
        a(f"buffer_load_dword v{vNon}, v{vZ}, s[24:27], 0 offen sc1")
        a("s_waitcnt vmcnt(0)")
        a(f"s_branch {lab('non')}")
        a.label(lab("nonok"))
        a(f"s_add_u32 s56, s{sNon}, {c0}")
        a(f"v_mov_b32 v{vTag}, s56")
    def F(c, site):
        if kind != 'I': vq.wait(('st', c), site)
        a("s_mov_b64 exec, 1")
        a(f"buffer_store_dword v{vTag}, v{vZ}, s[16:19], s{sFl} offen sc1"); vq.issue(('fl', c))
        a("s_mov_b64 exec, -1")
        a(f"v_add_u32 v{vTag}, 1, v{vTag}")
        a(f"s_add_u32 s{sFl}, s{sFl}, 4096")
    def poll_issue(c):
        a(f"buffer_load_dwordx4 v[{vP}:{vP+3}], v{vPA}, s[16:19], s{sPl} offen sc1"); vq.issue(('pl', c))
    def check(c, site):
        vq.wait(('pl', c), site)
        a(f"s_mov_b32 s57, {SPIN_MAX}")
        a.label(lab(f"chk_{site}"))
        a(f"v_xor_b32 v{vT}, s56, v{vP}")
        a(f"v_xor_b32 v{vT+1}, s56, v{vP+1}")
        a(f"v_xor_b32 v{vT+2}, s56, v{vP+2}")
        a(f"v_xor_b32 v{vT+3}, s56, v{vP+3}")
        a(f"v_or3_b32 v{vT}, v{vT}, v{vT+1}, v{vT+2}")
        a(f"v_or_b32 v{vT}, v{vT}, v{vT+3}")
        a(f"v_cmp_ne_u32 vcc, 0, v{vT}")
        a("s_cmp_eq_u64 vcc, 0")
        a(f"s_cbranch_scc1 {lab(f'ok_{site}')}")
        a("s_sub_u32 s57, s57, 1")
        a("s_cmp_eq_u32 s57, 0")
        a(f"s_cbranch_scc1 {lab(f'ok_{site}')}")
        a(f"buffer_load_dwordx4 v[{vP}:{vP+3}], v{vPA}, s[16:19], s{sPl} offen sc1")
        a("s_waitcnt vmcnt(0)")
        a(f"s_branch {lab(f'chk_{site}')}")
        a.label(lab(f"ok_{site}"))
        if cfg.get('hstamp'):
            a(f"s_sub_u32 s73, s56, s{sNon}"); a(f"s_sub_u32 s74, {SPIN_MAX}, s57")
            a("s_mov_b32 m0, s73"); a("v_writelane_b32 v252, s74, m0")
        a("s_add_u32 s56, s56, 1")
        a(f"s_add_u32 s{sPl}, s{sPl}, 4096")
    def B(s):
        stamp()
        vq.wait(('dma', s + 1), f"b{s}")
        a("s_barrier")
        stamp()
    if cfg.get('hstamp'):
        a("s_mov_b32 s72, 0"); a("v_mov_b32 v250, 0"); a("v_mov_b32 v251, 0"); a("v_mov_b32 v252, 0")
    dma(0); dma(1); dma(2)
    a(f"buffer_load_dword v{vNon}, v{vZ}, s[24:27], 0 offen sc1"); vq.issue(('non', 0))
    loads(c0, 0, 16)
    tables(a, kind)
    vq.wait(('dma', 0), 'pd0')
    a("s_barrier")
    cum = [0]
    for x in ldist: cum.append(cum[-1] + x)
    for s in range(32):
        P, ph = s >> 2, s & 3
        if s <= 30: B(s)
        fidx[0] = {5: 8, 6: 16, 7: 24, 9: 32}.get(s)
        fs()
        cp = (s + 4) >> 2 if (s & 3) == 0 else None
        do_poll = cp is not None and c0 <= cp <= 7
        if do_poll: poll_issue(cp)
        if s + 3 <= 31: dma(s + 3)
        fs()
        if ph == 0:
            if 1 <= P <= NI: comp_o(c0 + P - 1, 3)
        else:
            if P < NI:
                c = c0 + P
                if ph == 1: perms(c, f"l{c}")
                fs()
                comp_o(c, ph - 1)
                fs()
                if P + 1 < NI: loads(c + 1, cum[ph - 1], cum[ph])
                fs()
        if s == 1: get_nonce()
        if ph == 2 and 1 <= P <= NI: F(c0 + P - 1, f"f{P}")
        if do_poll: check(cp, f"c{cp}")
    if cfg.get('hstamp'):
        a("s_lshl_b32 s73, s2, 2"); a("s_add_u32 s73, s73, s15"); a("s_lshl_b32 s73, s73, 10")
        a(f"s_add_u32 s73, s73, {210 << 20}")
        a("v_lshlrev_b32 v249, 2, v0")
        a("buffer_store_dword v250, v249, s[16:19], s73 offen")
        a("buffer_store_dword v251, v249, s[16:19], s73 offen offset:256")
        a("buffer_store_dword v252, v249, s[16:19], s73 offen offset:512")
    a("s_endpgm")

def tables(a, kind):
    if kind == 'I': return
    vR, vG, vA0, vC, vA, vN = vT, vT + 1, vT + 2, vT + 3, vT + 4, vT + 5
    P = ACC
    a(f"v_and_b32 v{vR}, 15, v0")
    a(f"v_lshrrev_b32 v{vG}, 4, v0")
    a(f"v_lshrrev_b32 v{vA0}, 2, v{vR}")
    a(f"v_lshlrev_b32 v{vA0}, 1, v{vA0}")
    a(f"v_bfe_u32 v{vC}, v{vR}, 1, 1")
    a(f"v_add_u32 v{vA0}, v{vA0}, v{vC}")
    a(f"v_lshl_add_u32 v{vA0}, v{vA0}, 1, 1")
    a(f"v_and_b32 v{vC}, 1, v{vR}")
    a(f"v_lshlrev_b32 v{vC}, 5, v{vC}")
    if kind == 'W':
        a(f"v_cmp_lt_u32 s[58:59], 1, v{vG}")
    for o in range(4):
        a(f"v_add_u32 v{vA}, {16*o}, v{vA0}")
        for s_ in range(2 if kind == 'X' else 1):
            if kind == 'X':
                a(f"v_lshlrev_b32 v{vN}, 3, v{vG}")
                if s_: a(f"v_add_u32 v{vN}, 32, v{vN}")
            else:
                a(f"v_and_b32 v{vN}, 1, v{vG}")
                a(f"v_lshlrev_b32 v{vN}, 3, v{vN}")
            a(f"v_mad_u32_u24 v{P}, v{vA}, v{vN}, v{vC}")
            for e in range(1, 8):
                a(f"v_add_u32 v{P+e}, v{P+e-1}, v{vA}")
            dst = AF + 4 * (2 * o + s_) if kind == 'X' else AF + 4 * o
            G.cos_table(a, None, [P + e for e in range(8)], dst, P + 8, lo_sel=(58 if kind == 'W' else None))

def gen_k3h(cfg=None):
    cfg = cfg or G.CFG
    c0 = cfg['c0']
    a = Asm()
    name = 'gemm_kernel'
    G.kernel_header(a, name)
    vTT = K3.vT
    a("s_cmp_ge_u32 s2, 256")
    a("s_cbranch_scc1 L_k3_end")
    a("s_load_dwordx4 s[4:7], s[0:1], 0")
    a("s_load_dwordx4 s[60:63], s[0:1], 40")
    a(f"v_lshrrev_b32 v{vTT}, 6, v0")
    a(f"v_and_b32 v0, 63, v0")
    a(f"v_readfirstlane_b32 s10, v{vTT}")
    a("s_and_b32 s11, s2, 7")
    a("s_lshr_b32 s12, s2, 3")
    a("s_lshr_b32 s13, s12, 3")
    a("s_lshl_b32 s11, s11, 2")
    a("s_add_u32 s11, s11, s13")
    a("s_bfe_u32 s13, s12, 0x10002")
    a("s_and_b32 s14, s12, 3")
    a("s_and_b32 s15, s10, 3")
    a("s_waitcnt lgkmcnt(0)")
    G.make_srd(a, 16, 62, 63, G.WS_BYTES)
    a("s_cmp_ge_u32 s10, 4")
    a("s_cbranch_scc1 L_k3_helper")
    vT_ = K3.vT; XR = K3.XR; vXa = K3.vXa; vWa = K3.vWa; vS = K3.vSt; vS2 = K3.vSt2
    g = vT_; c16 = vT_ + 1; t0 = vT_ + 2; t1 = XR; t2 = XR + 1
    a(f"v_lshrrev_b32 v{g}, 4, v0")
    a(f"v_and_b32 v{c16}, 15, v0")
    a(f"v_bfe_u32 v{t0}, v{c16}, 3, 1")
    a(f"v_mul_u32_u24 v{t0}, 3, v{t0}")
    a(f"v_xor_b32 v{t0}, v{t0}, v{g}")
    a(f"v_lshlrev_b32 v{t0}, 4, v{t0}")
    a(f"v_lshl_add_u32 v{vXa}, v{c16}, 6, v{t0}")
    a(f"v_lshrrev_b32 v{t0}, 2, v{c16}")
    a(f"v_and_b32 v{t1}, 1, v{g}")
    a(f"v_lshl_or_b32 v{t1}, v{t1}, 2, v{t0}")
    a(f"v_lshl_add_u32 v{t0}, v{g}, 3, v{t0}")
    a(f"v_lshlrev_b32 v{t0}, 8, v{t0}")
    a(f"v_and_b32 v{t2}, 3, v{c16}")
    a(f"v_lshl_add_u32 v{t0}, v{t2}, 3, v{t0}")
    a("s_lshl_b32 s20, s15, 1")
    for t in range(2):
        if t: a("s_add_u32 s20, s20, 1")
        a(f"v_xor_b32 v{t2}, s20, v{t1}")
        a(f"v_lshl_add_u32 v{vWa+t}, v{t2}, 5, v{t0}")
    a(f"s_mov_b32 s21, {G.YF_ROW}")
    a(f"v_mul_u32_u24 v{vS}, s21, v{c16}")
    a(f"v_lshl_add_u32 v{vS}, v{g}, 4, v{vS}")
    a("s_lshl_b32 s20, s15, 6")
    a(f"v_add_u32 v{vS}, s20, v{vS}")
    a(f"v_cmp_gt_u32 vcc, 7, v{c16}")
    a(f"v_mov_b32 v{vS2}, 0x80000000")
    a(f"v_cndmask_b32 v{vS2}, v{vS2}, v{vS}, vcc")
    a(f"s_mul_i32 s48, s11, {2*G.YF_J}")
    a(f"s_mul_i32 s20, s13, {G.YF_B}")
    a("s_add_u32 s48, s48, s20")
    a("s_lshl_b32 s20, s14, 8")
    a("s_add_u32 s48, s48, s20")
    a(f"s_add_u32 s48, s48, {G.YF_BASE}")
    K3.gemm_wave(a, cfg)
    a.label("L_k3_helper")
    if cfg.get('hprio'): a(f"s_setprio {cfg['hprio']}")
    a(f"s_mul_i32 s40, s11, {G.WF_K}")
    a(f"s_mul_i32 s20, s14, {G.WF_DQ}")
    a("s_add_u32 s40, s40, s20")
    if G.WF_BASE: a(f"s_add_u32 s40, s40, {G.WF_BASE}")
    a(f"s_mul_i32 s41, s11, {XF2_K}")
    a(f"s_mul_i32 s20, s13, {XF2_B}")
    a("s_add_u32 s41, s41, s20")
    a(f"s_add_u32 s41, s41, {G.XF_BASE}")
    a("s_lshl_b32 s42, s15, 12")
    a("s_mul_i32 s43, s15, 5376")
    a(f"v_lshlrev_b32 v{vPA}, 4, v0")
    a(f"v_lshrrev_b32 v{vDX}, 2, v0")
    a(f"v_lshlrev_b32 v{vDX}, 7, v{vDX}")
    a(f"v_and_b32 v{vT}, 3, v0")
    a(f"v_lshl_add_u32 v{vDX}, v{vT}, 4, v{vDX}")
    a("s_lshl_b32 s20, s43, 1")
    a(f"v_add_u32 v{vDX}, s20, v{vDX}")
    a(f"v_add_u32 v{vDW}, s42, v{vPA}")
    a("s_add_u32 s43, s43, 16384")
    a(f"v_mov_b32 v{vZ}, 0")
    a("s_mov_b32 s30, 0x05040100")
    a("s_mov_b32 s31, 0x07060302")
    G.make_srd(a, 24, 60, 61, 256)
    a("s_lshl_b32 s20, s2, 2")
    a("s_add_u32 s20, s20, s15")
    a("s_lshl_b32 s52, s20, 2")
    a(f"s_add_u32 s52, s52, {FLAG_BASE + c0*4096}")
    a("s_lshl_b32 s53, s15, 10")
    a(f"s_add_u32 s53, s53, {FLAG_BASE + c0*4096}")
    a("s_cmp_lg_u32 s20, 0")
    a("s_cbranch_scc1 L_nononce")
    a("s_memrealtime s[64:65]")
    a("s_waitcnt lgkmcnt(0)")
    a("s_or_b32 s64, s64, 1")
    a(f"v_mov_b32 v{vTag}, s64")
    a("s_mov_b64 exec, 1")
    a(f"buffer_store_dword v{vTag}, v{vZ}, s[24:27], 0 offen sc1")
    a("s_mov_b64 exec, -1")
    a.label("L_nononce")
    a(f"v_and_b32 v{vT}, 15, v0")
    a(f"v_lshrrev_b32 v{vT+1}, 4, v0")
    a("s_cmp_ge_u32 s15, 2")
    a("s_cbranch_scc1 L_setup_w")
    a("s_lshl_b32 s69, s15, 8")
    a("s_add_u32 s69, s69, s2")
    a("s_cmp_ge_u32 s69, 336")
    a("s_cbranch_scc1 L_kind_I")
    a(f"s_cmp_ge_u32 s69, {G.ROWS}")
    a("s_cselect_b32 s66, 1, 0")
    a(f"s_mul_i32 s67, s66, {G.ROWS}")
    a("s_sub_u32 s67, s69, s67")
    a(f"s_mul_i32 s68, s66, {G.X_BYTES_B}")
    a("s_add_u32 s4, s4, s68")
    a("s_addc_u32 s5, s5, 0")
    a(f"s_mul_i32 s50, s67, {48*2048}")
    a(f"s_add_u32 s50, s50, {c0*256}")
    a(f"s_mul_i32 s51, s66, {XF2_B}")
    a(f"s_lshl_b32 s68, s67, 7")
    a("s_add_u32 s51, s51, s68")
    a(f"s_add_u32 s51, s51, {G.XF_BASE + c0*2*XF_KP}")
    a("s_bfe_u32 s68, s67, 0x10003")
    a("s_mul_i32 s68, s68, 3")
    G.make_srd(a, 20, 4, 5, G.X_BYTES_B)
    a(f"v_lshlrev_b32 v{vL}, 14, v{vT+1}")
    a(f"v_lshl_add_u32 v{vL}, v{vT}, 4, v{vL}")
    a(f"v_and_b32 v{vT+2}, 3, v{vT}")
    a(f"v_xor_b32 v{vT+2}, s68, v{vT+2}")
    a(f"v_lshlrev_b32 v{vT+2}, 4, v{vT+2}")
    a(f"v_bfe_u32 v{vT+3}, v{vT}, 2, 1")
    a(f"v_lshl_add_u32 v{vT+2}, v{vT+3}, 6, v{vT+2}")
    a(f"v_lshrrev_b32 v{vT+3}, 3, v{vT}")
    a(f"s_mov_b32 s55, {XF_KP}")
    a(f"v_mad_u32_u24 v{vT+2}, v{vT+3}, s55, v{vT+2}")
    a(f"s_mov_b32 s55, {2*XF2_K}")
    a(f"v_mad_u32_u24 v{vSt}, v{vT+1}, s55, v{vT+2}")
    helper_code(a, 'X', cfg)
    a.label("L_setup_w")
    a("s_lshl_b32 s69, s2, 1")
    a("s_add_u32 s69, s69, s15")
    a("s_sub_u32 s69, s69, 2")
    a("s_and_b32 s66, s69, 3")
    a("s_lshr_b32 s67, s69, 2")
    G.make_srd(a, 20, 6, 7, G.W_BYTES)
    a("s_lshl_b32 s50, s67, 10")
    a("s_lshl_b32 s68, s66, 8")
    a("s_add_u32 s50, s50, s68")
    a(f"s_add_u32 s50, s50, {c0*128*1024}")
    a(f"v_and_b32 v{vT+2}, 1, v{vT+1}")
    a(f"v_lshlrev_b32 v{vL}, 23, v{vT+2}")
    a(f"v_lshrrev_b32 v{vT+2}, 2, v{vT}")
    a(f"v_lshl_add_u32 v{vL}, v{vT+2}, 6, v{vL}")
    a(f"v_and_b32 v{vT+2}, 1, v{vT}")
    a(f"v_lshl_add_u32 v{vL}, v{vT+2}, 5, v{vL}")
    a(f"v_bfe_u32 v{vT+2}, v{vT}, 1, 1")
    a(f"v_lshl_add_u32 v{vL}, v{vT+2}, 3, v{vL}")
    a("s_and_b32 s68, s67, 3")
    a("s_bfe_u32 s55, s67, 0x10003")
    a("s_lshl_b32 s55, s55, 2")
    a("s_or_b32 s68, s68, s55")
    a("s_lshl_b32 s68, s68, 1")
    a(f"v_xor_b32 v{vT+2}, s68, v{vT}")
    a(f"v_lshlrev_b32 v{vT+2}, 4, v{vT+2}")
    a(f"s_mov_b32 s55, {2*G.WF_K}")
    a(f"v_mul_u32_u24 v{vSt}, s55, v{vT+1}")
    a(f"v_add_u32 v{vSt}, v{vSt}, v{vT+2}")
    a(f"s_mul_i32 s51, s66, {G.WF_DQ}")
    a("s_lshr_b32 s68, s67, 5")
    a(f"s_mul_i32 s68, s68, {G.WF_KS}")
    a("s_add_u32 s51, s51, s68")
    a("s_and_b32 s68, s67, 31")
    a("s_lshl_b32 s68, s68, 8")
    a("s_add_u32 s51, s51, s68")
    a(f"s_add_u32 s51, s51, {G.WF_BASE + c0*4*G.WF_KS}")
    helper_code(a, 'W', cfg)
    a.label("L_kind_I")
    helper_code(a, 'I', cfg)
    a.label("L_k3_end")
    a("s_endpgm")
    return name, a.lines, 256, (256, 512, LDS_BYTES)
```

```python
from asmlib import *
import gen as G
from gen_k3 import STAGE, NSTAGE, LDS_BYTES
import gen_k3b as K3
from gen_k123 import VQ, Null, FLAG_BASE, SPIN_MAX, XF2_K, XF_KP, XF2_B

vDW, vDX, vL, vSt, vZ, vTag, vPA = 1, 2, 3, 4, 5, 6, 7
vP = 8; vNon = 19
vT = 12
AF = 20
FR = 52
ACC = 116
OUT = 148
RAW = 164
sWo, sXo, sLW, sLX = 40, 41, 42, 43
sLd, sStb, sFl, sPl, sNon = 50, 51, 52, 53, 54

def helper_code(a_real, kind, cfg):
    table = {}
    for final in (False, True):
        a = a_real if final else Null()
        vq = VQ(a, table, not final)
        emit_helper(a, vq, kind, cfg)

def emit_helper(a, vq, kind, cfg):
    sc = cfg.get('st_flags', 'sc1'); ldf = cfg.get('dma_flags', '')
    c0 = cfg['c0']; NI = 8 - c0
    ldist = cfg.get('ldist', [6, 5, 5, 0])
    def lab(n): return f"L_{kind}_{n}"
    def stamp():
        if not cfg.get('hstamp'): return
        a("s_memrealtime s[70:71]"); a("s_waitcnt lgkmcnt(0)")
        a("s_mov_b32 m0, s72"); a("v_writelane_b32 v250, s70, m0"); a("s_add_u32 s72, s72, 1")
    fidx = [None]
    def fs():
        if not cfg.get('hstamp') or fidx[0] is None: return
        a("s_memrealtime s[70:71]"); a("s_waitcnt lgkmcnt(0)")
        a(f"v_writelane_b32 v251, s70, {fidx[0]}")
        fidx[0] += 1
    def dma(step):
        buf = step % NSTAGE
        tag = ('dma', step)
        a(f"s_add_u32 m0, s{sLW}, {buf*STAGE}")
        for j in range(4):
            a(f"buffer_load_dwordx4 v{vDW}, s[16:19], s{sWo} offen offset:{j*1024} {ldf} lds"); vq.issue(tag)
        a(f"s_add_u32 s{sWo}, s{sWo}, {G.WF_KS}")
        a(f"s_add_u32 m0, s{sLX}, {buf*STAGE}")
        for j in range(4):
            if j: a(f"s_add_u32 s49, s{sXo}, {1024*j}")
            a(f"buffer_load_dwordx4 v{vDX}, s[16:19], s{49 if j else sXo} offen offset:{j*1024} {ldf} lds"); vq.issue(tag)
        a(f"s_add_u32 m0, s{sLX}, {buf*STAGE+4096}")
        a(f"s_add_u32 s49, s{sXo}, 8192")
        a(f"buffer_load_dwordx4 v{vDX}, s[16:19], s49 offen {ldf} lds"); vq.issue(tag)
        a(f"s_add_u32 s49, s{sXo}, {8192+1024}")
        a("s_mov_b64 exec, 0xffff")
        a(f"buffer_load_dwordx4 v{vDX}, s[16:19], s49 offen offset:1024 {ldf} lds"); vq.issue(tag)
        a("s_mov_b64 exec, -1")
        adv = 64 if (step & 1) == 0 else (XF_KP - 64)
        a(f"s_add_u32 s{sXo}, s{sXo}, {adv}")
    def loads(c, n0, n1):
        pass
        tag = ('ld', c)
        for n in range(n0, n1):
            i, hf = n >> 1, n & 1
            r = RAW + 4 * i + 2 * hf
            if hf == 0 or n == n0: a(f"s_add_u32 s55, s{sLd}, {i << 20}")
            if not cfg.get('ab_nold'):
                a(f"buffer_load_dwordx2 v[{r}:{r+1}], v{vL}, s[20:23], s55 offen offset:{16*hf}"); vq.issue(tag)
        if n1 == 16:
            a(f"s_add_u32 s{sLd}, s{sLd}, {2*128*1024}")
    def perms(c, site):
        pass
        vq.wait(('ld', c), site)
        ns = 1
        for s in range(ns):
            for dd in range(8):
                q = dd >> 1; h = dd & 1
                for e in range(4):
                    r0 = RAW + 4 * (8 * s + 2 * e) + q
                    r1 = RAW + 4 * (8 * s + 2 * e + 1) + q
                    a(f"v_perm_b32 v{FR+(s*8+dd)*4+e}, v{r1}, v{r0}, s{30+h}")
    def comp_o(c, o):
        pass
        ns = 1
        for s in range(ns):
            for dd in range(8):
                d = ACC + 4 * dd
                A = AF + 4 * o
                B = FR + (s * 8 + dd) * 4
                cc = "0" if s == 0 else f"v[{d}:{d+3}]"
                a(f"v_mfma_f32_16x16x32_bf16 v[{d}:{d+3}], v[{A}:{A+3}], v[{B}:{B+3}], {cc}")
        fs()
        for rp in range(4):
            for q in range(4):
                a(f"v_cvt_pk_bf16_f32 v{OUT+4*rp+q}, v{ACC+8*q+rp}, v{ACC+8*q+4+rp}")
        fs()
        for rp in range(4):
            off = (8 * o + (rp >> 1)) * G.WF_K + (rp & 1) * 8192
            a(f"s_add_u32 s55, s{sStb}, {off}")
            r = OUT + 4 * rp
            if not cfg.get('ab_nost'):
                a(f"buffer_store_dwordx4 v[{r}:{r+3}], v{vSt}, s[16:19], s55 offen {sc}"); vq.issue(('st', c))
        if o == 3:
            a(f"s_add_u32 s{sStb}, s{sStb}, {2*4*G.WF_KS}")
    def get_nonce():
        vq.wait(('non', 0), 'non')
        a(f"s_mov_b32 s57, {SPIN_MAX}")
        a.label(lab("non"))
        a(f"v_readfirstlane_b32 s{sNon}, v{vNon}")
        a(f"s_cmp_lg_u32 s{sNon}, 0")
        a(f"s_cbranch_scc1 {lab('nonok')}")
        a("s_sub_u32 s57, s57, 1")
        a("s_cmp_eq_u32 s57, 0")
        a(f"s_cbranch_scc1 {lab('nonok')}")
        a(f"buffer_load_dword v{vNon}, v{vZ}, s[24:27], 0 offen sc1")
        a("s_waitcnt vmcnt(0)")
        a(f"s_branch {lab('non')}")
        a.label(lab("nonok"))
        a(f"s_add_u32 s56, s{sNon}, {c0}")
        a(f"s_add_u32 s57, s56, {0 if kind == 'A' else 1}")
        a(f"v_mov_b32 v{vTag}, s57")
    def F(c, site):
        vq.wait(('st', c), site)
        a("s_mov_b64 exec, 1")
        a(f"buffer_store_dword v{vTag}, v{vZ}, s[16:19], s{sFl} offen sc1"); vq.issue(('fl', c))
        a("s_mov_b64 exec, -1")
        a(f"v_add_u32 v{vTag}, 2, v{vTag}")
        a(f"s_add_u32 s{sFl}, s{sFl}, 8192")
    def poll_issue(c):
        a(f"buffer_load_dwordx2 v[{vP}:{vP+1}], v{vPA}, s[16:19], s{sPl} offen sc1"); vq.issue(('pl', c))
    def check(c, site):
        vq.wait(('pl', c), site)
        a(f"s_mov_b32 s57, {SPIN_MAX}")
        a.label(lab(f"chk_{site}"))
        a(f"v_xor_b32 v{vT}, s56, v{vP}")
        a(f"v_xor_b32 v{vT+1}, s56, v{vP+1}")
        a(f"v_or_b32 v{vT}, v{vT}, v{vT+1}")
        a(f"v_cmp_ne_u32 vcc, 0, v{vT}")
        a("s_cmp_eq_u64 vcc, 0")
        a(f"s_cbranch_scc1 {lab(f'ok_{site}')}")
        a("s_sub_u32 s57, s57, 1")
        a("s_cmp_eq_u32 s57, 0")
        a(f"s_cbranch_scc1 {lab(f'ok_{site}')}")
        a(f"buffer_load_dwordx2 v[{vP}:{vP+1}], v{vPA}, s[16:19], s{sPl} offen sc1")
        a("s_waitcnt vmcnt(0)")
        a(f"s_branch {lab(f'chk_{site}')}")
        a.label(lab(f"ok_{site}"))
        if cfg.get('hstamp'):
            a(f"s_sub_u32 s73, s56, s{sNon}"); a(f"s_sub_u32 s74, {SPIN_MAX}, s57")
            a("s_mov_b32 m0, s73"); a("v_writelane_b32 v252, s74, m0")
        a("s_add_u32 s56, s56, 1")
        a(f"s_add_u32 s{sPl}, s{sPl}, 4096")
    def B(s):
        stamp()
        vq.wait(('dma', s + 1), f"b{s}")
        a("s_barrier")
        stamp()
    grp = 0 if kind == 'A' else 1
    mine = [c for c in range(c0, 8) if (c - c0) % 2 == grp]
    if cfg.get('hstamp'):
        a("s_mov_b32 s72, 0"); a("v_mov_b32 v250, 0"); a("v_mov_b32 v251, 0"); a("v_mov_b32 v252, 0")
    dma(0); dma(1); dma(2)
    a(f"buffer_load_dword v{vNon}, v{vZ}, s[24:27], 0 offen sc1"); vq.issue(('non', 0))
    if grp == 0: loads(mine[0], 0, 16)
    tables(a, 'W')
    vq.wait(('dma', 0), 'pd0')
    a("s_barrier")
    for s in range(32):
        if s <= 30: B(s)
        fidx[0] = {5: 8, 6: 16, 7: 24, 9: 32}.get(s)
        fs()
        cp = (s + 4) >> 2 if (s & 3) == 0 else None
        do_poll = cp is not None and c0 <= cp <= 7
        if do_poll: poll_issue(cp)
        if s + 3 <= 31: dma(s + 3)
        fs()
        for c in mine:
            t = s - 4 * (c - c0)
            if t == 0: perms(c, f"l{c}")
            if 0 <= t <= 3: comp_o(c, t)
            if -4 <= t <= -2 and s >= 0:
                rng = {-4: (0, 6), -3: (6, 11), -2: (11, 16)}[t]
                loads(c, *rng)
            if t == 5: F(c, f"f{c}")
        fs(); fs(); fs()
        if s == 1: get_nonce()
        if do_poll: check(cp, f"c{cp}")
    if cfg.get('hstamp'):
        a("s_lshl_b32 s73, s2, 2"); a("s_add_u32 s73, s73, s15"); a("s_lshl_b32 s73, s73, 10")
        a(f"s_add_u32 s73, s73, {210 << 20}")
        a("v_lshlrev_b32 v249, 2, v0")
        a("buffer_store_dword v250, v249, s[16:19], s73 offen")
        a("buffer_store_dword v251, v249, s[16:19], s73 offen offset:256")
        a("buffer_store_dword v252, v249, s[16:19], s73 offen offset:512")
    a("s_endpgm")

def tables(a, kind):
    pass
    vR, vG, vA0, vC, vA, vN = vT, vT + 1, vT + 2, vT + 3, vT + 4, vT + 5
    P = ACC
    a(f"v_and_b32 v{vR}, 15, v0")
    a(f"v_lshrrev_b32 v{vG}, 4, v0")
    a(f"v_lshrrev_b32 v{vA0}, 2, v{vR}")
    a(f"v_lshlrev_b32 v{vA0}, 1, v{vA0}")
    a(f"v_bfe_u32 v{vC}, v{vR}, 1, 1")
    a(f"v_add_u32 v{vA0}, v{vA0}, v{vC}")
    a(f"v_lshl_add_u32 v{vA0}, v{vA0}, 1, 1")
    a(f"v_and_b32 v{vC}, 1, v{vR}")
    a(f"v_lshlrev_b32 v{vC}, 5, v{vC}")
    if kind == 'W':
        a(f"v_cmp_lt_u32 s[58:59], 1, v{vG}")
    for o in range(4):
        a(f"v_add_u32 v{vA}, {16*o}, v{vA0}")
        for s_ in range(2 if kind == 'X' else 1):
            if kind == 'X':
                a(f"v_lshlrev_b32 v{vN}, 3, v{vG}")
                if s_: a(f"v_add_u32 v{vN}, 32, v{vN}")
            else:
                a(f"v_and_b32 v{vN}, 1, v{vG}")
                a(f"v_lshlrev_b32 v{vN}, 3, v{vN}")
            a(f"v_mad_u32_u24 v{P}, v{vA}, v{vN}, v{vC}")
            for e in range(1, 8):
                a(f"v_add_u32 v{P+e}, v{P+e-1}, v{vA}")
            dst = AF + 4 * (2 * o + s_) if kind == 'X' else AF + 4 * o
            G.cos_table(a, None, [P + e for e in range(8)], dst, P + 8, lo_sel=(58 if kind == 'W' else None))

def gen_k3w(cfg=None):
    cfg = cfg or G.CFG
    c0 = cfg['c0']
    a = Asm()
    name = 'gemm_kernel'
    G.kernel_header(a, name)
    vTT = K3.vT
    a("s_cmp_ge_u32 s2, 256")
    a("s_cbranch_scc1 L_k3_end")
    a("s_load_dwordx4 s[4:7], s[0:1], 0")
    a("s_load_dwordx4 s[60:63], s[0:1], 40")
    a(f"v_lshrrev_b32 v{vTT}, 6, v0")
    a(f"v_and_b32 v0, 63, v0")
    a(f"v_readfirstlane_b32 s10, v{vTT}")
    a("s_and_b32 s11, s2, 7")
    a("s_lshr_b32 s12, s2, 3")
    a("s_lshr_b32 s13, s12, 3")
    a("s_lshl_b32 s11, s11, 2")
    a("s_add_u32 s11, s11, s13")
    a("s_bfe_u32 s13, s12, 0x10002")
    a("s_and_b32 s14, s12, 3")
    a("s_and_b32 s15, s10, 3")
    a("s_waitcnt lgkmcnt(0)")
    G.make_srd(a, 16, 62, 63, G.WS_BYTES)
    a("s_cmp_ge_u32 s10, 4")
    a("s_cbranch_scc1 L_k3_helper")
    vT_ = K3.vT; XR = K3.XR; vXa = K3.vXa; vWa = K3.vWa; vS = K3.vSt; vS2 = K3.vSt2
    g = vT_; c16 = vT_ + 1; t0 = vT_ + 2; t1 = XR; t2 = XR + 1
    a(f"v_lshrrev_b32 v{g}, 4, v0")
    a(f"v_and_b32 v{c16}, 15, v0")
    a(f"v_bfe_u32 v{t0}, v{c16}, 3, 1")
    a(f"v_mul_u32_u24 v{t0}, 3, v{t0}")
    a(f"v_xor_b32 v{t0}, v{t0}, v{g}")
    a(f"v_lshlrev_b32 v{t0}, 4, v{t0}")
    a(f"v_lshl_add_u32 v{vXa}, v{c16}, 6, v{t0}")
    a(f"v_lshrrev_b32 v{t0}, 2, v{c16}")
    a(f"v_and_b32 v{t1}, 1, v{g}")
    a(f"v_lshl_or_b32 v{t1}, v{t1}, 2, v{t0}")
    a(f"v_lshl_add_u32 v{t0}, v{g}, 3, v{t0}")
    a(f"v_lshlrev_b32 v{t0}, 8, v{t0}")
    a(f"v_and_b32 v{t2}, 3, v{c16}")
    a(f"v_lshl_add_u32 v{t0}, v{t2}, 3, v{t0}")
    a("s_lshl_b32 s20, s15, 1")
    for t in range(2):
        if t: a("s_add_u32 s20, s20, 1")
        a(f"v_xor_b32 v{t2}, s20, v{t1}")
        a(f"v_lshl_add_u32 v{vWa+t}, v{t2}, 5, v{t0}")
    a(f"s_mov_b32 s21, {G.YF_ROW}")
    a(f"v_mul_u32_u24 v{vS}, s21, v{c16}")
    a(f"v_lshl_add_u32 v{vS}, v{g}, 4, v{vS}")
    a("s_lshl_b32 s20, s15, 6")
    a(f"v_add_u32 v{vS}, s20, v{vS}")
    a(f"v_cmp_gt_u32 vcc, 7, v{c16}")
    a(f"v_mov_b32 v{vS2}, 0x80000000")
    a(f"v_cndmask_b32 v{vS2}, v{vS2}, v{vS}, vcc")
    a(f"s_mul_i32 s48, s11, {2*G.YF_J}")
    a(f"s_mul_i32 s20, s13, {G.YF_B}")
    a("s_add_u32 s48, s48, s20")
    a("s_lshl_b32 s20, s14, 8")
    a("s_add_u32 s48, s48, s20")
    a(f"s_add_u32 s48, s48, {G.YF_BASE}")
    K3.gemm_wave(a, cfg)
    a.label("L_k3_helper")
    if cfg.get('hprio'): a(f"s_setprio {cfg['hprio']}")
    a(f"s_mul_i32 s40, s11, {G.WF_K}")
    a(f"s_mul_i32 s20, s14, {G.WF_DQ}")
    a("s_add_u32 s40, s40, s20")
    if G.WF_BASE: a(f"s_add_u32 s40, s40, {G.WF_BASE}")
    a(f"s_mul_i32 s41, s11, {XF2_K}")
    a(f"s_mul_i32 s20, s13, {XF2_B}")
    a("s_add_u32 s41, s41, s20")
    a(f"s_add_u32 s41, s41, {G.XF_BASE}")
    a("s_lshl_b32 s42, s15, 12")
    a("s_mul_i32 s43, s15, 5376")
    a(f"v_lshlrev_b32 v{vPA}, 4, v0")
    a(f"v_lshrrev_b32 v{vDX}, 2, v0")
    a(f"v_lshlrev_b32 v{vDX}, 7, v{vDX}")
    a(f"v_and_b32 v{vT}, 3, v0")
    a(f"v_lshl_add_u32 v{vDX}, v{vT}, 4, v{vDX}")
    a("s_lshl_b32 s20, s43, 1")
    a(f"v_add_u32 v{vDX}, s20, v{vDX}")
    a(f"v_add_u32 v{vDW}, s42, v{vPA}")
    a("s_add_u32 s43, s43, 16384")
    a(f"v_mov_b32 v{vZ}, 0")
    a("s_mov_b32 s30, 0x05040100")
    a("s_mov_b32 s31, 0x07060302")
    G.make_srd(a, 24, 60, 61, 256)
    a("s_lshl_b32 s69, s2, 1")
    a("s_and_b32 s20, s15, 1")
    a("s_add_u32 s69, s69, s20")
    a("s_lshr_b32 s65, s15, 1")
    a("s_lshl_b32 s52, s69, 2")
    a("s_lshl_b32 s20, s65, 12")
    a("s_add_u32 s52, s52, s20")
    a(f"s_add_u32 s52, s52, {FLAG_BASE + c0*4096}")
    a("s_lshl_b32 s53, s15, 9")
    a(f"s_add_u32 s53, s53, {FLAG_BASE + c0*4096}")
    a(f"v_lshlrev_b32 v{vPA}, 3, v0")
    a("s_lshl_b32 s20, s2, 2")
    a("s_add_u32 s20, s20, s15")
    a("s_cmp_lg_u32 s20, 0")
    a("s_cbranch_scc1 L_nononce")
    a("s_memrealtime s[76:77]")
    a("s_waitcnt lgkmcnt(0)")
    a("s_or_b32 s76, s76, 1")
    a(f"v_mov_b32 v{vTag}, s76")
    a("s_mov_b64 exec, 1")
    a(f"buffer_store_dword v{vTag}, v{vZ}, s[24:27], 0 offen sc1")
    a("s_mov_b64 exec, -1")
    a.label("L_nononce")
    a(f"v_and_b32 v{vT}, 15, v0")
    a(f"v_lshrrev_b32 v{vT+1}, 4, v0")
    a("s_and_b32 s66, s69, 3")
    a("s_lshr_b32 s67, s69, 2")
    G.make_srd(a, 20, 6, 7, G.W_BYTES)
    a("s_lshl_b32 s50, s67, 10")
    a("s_lshl_b32 s68, s66, 8")
    a("s_add_u32 s50, s50, s68")
    a(f"s_add_u32 s50, s50, {c0*128*1024}")
    a("s_lshl_b32 s68, s65, 17")
    a("s_add_u32 s50, s50, s68")
    a(f"v_and_b32 v{vT+2}, 1, v{vT+1}")
    a(f"v_lshlrev_b32 v{vL}, 23, v{vT+2}")
    a(f"v_lshrrev_b32 v{vT+2}, 2, v{vT}")
    a(f"v_lshl_add_u32 v{vL}, v{vT+2}, 6, v{vL}")
    a(f"v_and_b32 v{vT+2}, 1, v{vT}")
    a(f"v_lshl_add_u32 v{vL}, v{vT+2}, 5, v{vL}")
    a(f"v_bfe_u32 v{vT+2}, v{vT}, 1, 1")
    a(f"v_lshl_add_u32 v{vL}, v{vT+2}, 3, v{vL}")
    a("s_and_b32 s68, s67, 3")
    a("s_bfe_u32 s55, s67, 0x10003")
    a("s_lshl_b32 s55, s55, 2")
    a("s_or_b32 s68, s68, s55")
    a("s_lshl_b32 s68, s68, 1")
    a(f"v_xor_b32 v{vT+2}, s68, v{vT}")
    a(f"v_lshlrev_b32 v{vT+2}, 4, v{vT+2}")
    a(f"s_mov_b32 s55, {2*G.WF_K}")
    a(f"v_mul_u32_u24 v{vSt}, s55, v{vT+1}")
    a(f"v_add_u32 v{vSt}, v{vSt}, v{vT+2}")
    a(f"s_mul_i32 s51, s66, {G.WF_DQ}")
    a("s_lshr_b32 s68, s67, 5")
    a(f"s_mul_i32 s68, s68, {G.WF_KS}")
    a("s_add_u32 s51, s51, s68")
    a("s_and_b32 s68, s67, 31")
    a("s_lshl_b32 s68, s68, 8")
    a("s_add_u32 s51, s51, s68")
    a(f"s_add_u32 s51, s51, {G.WF_BASE + c0*4*G.WF_KS}")
    a(f"s_mul_i32 s68, s65, {4*G.WF_KS}")
    a("s_add_u32 s51, s51, s68")
    a("s_cmp_ge_u32 s15, 2")
    a("s_cbranch_scc1 L_kind_B")
    helper_code(a, 'A', cfg)
    a.label("L_kind_B")
    helper_code(a, 'B', cfg)
    a.label("L_k3_end")
    a("s_endpgm")
    return name, a.lines, 256, (256, 512, LDS_BYTES)
```

```python
from asmlib import *
import gen as G

RAW = 0
AF = 64
BF = 88
ACC = 104
VT = 200
VTID4 = 214

def common(a, tag, ngrp_wg):
    vLane = VT; vR = VT+1; vG = VT+2; vOff = VT+3; vT0 = VT+4
    a(f"s_cmp_ge_u32 s2, {2*G.NGRP*4}")
    a(f"s_cbranch_scc1 L_{tag}_end")
    a("s_load_dwordx4 s[4:7], s[0:1], 16")
    a("s_load_dwordx2 s[8:9], s[0:1], 48")
    a("s_load_dwordx2 s[28:29], s[0:1], 32")
    a(f"v_lshlrev_b32 v{VTID4}, 2, v0")
    a(f"v_and_b32 v{vLane}, 63, v0")
    a(f"v_lshrrev_b32 v{vT0}, 6, v0")
    a(f"v_and_b32 v{vR}, 15, v{vLane}")
    a(f"v_readfirstlane_b32 s10, v{vT0}")
    a(f"v_lshrrev_b32 v{vG}, 4, v{vLane}")
    a("s_mov_b32 s30, 0x05040100")
    a("s_mov_b32 s31, 0x07060302")
    a("s_and_b32 s13, s2, 3")
    a("s_lshr_b32 s12, s2, 2")
    a(f"s_cmp_ge_u32 s12, {G.NGRP}")
    a("s_cselect_b32 s11, 1, 0")
    a(f"s_mul_i32 s15, s11, {G.NGRP}")
    a("s_sub_u32 s12, s12, s15")
    a("s_lshl_b32 s14, s12, 2")
    a("s_add_u32 s14, s14, s10")
    a("s_waitcnt lgkmcnt(0)")
    G.make_srd(a, 16, 8, 9, G.WS_BYTES)
    a(f"s_mov_b32 s24, {8*G.YF_J}")
    a(f"v_mul_u32_u24 v{vOff}, s24, v{vG}")
    a(f"v_lshl_add_u32 v{vOff}, v{vR}, 4, v{vOff}")
    a(f"s_mul_i32 s24, s11, {G.YF_B}")
    a(f"s_mul_i32 s25, s14, {G.YF_ROW}")
    a("s_add_u32 s24, s24, s25")
    a("s_lshl_b32 s25, s13, 8")
    a("s_add_u32 s24, s24, s25")
    a(f"s_add_u32 s24, s24, {G.YF_BASE}")
    for s in range(2):
        for i in range(8):
            r = RAW + 4 * (8 * s + i)
            a(f"s_add_u32 s25, s24, {(32*s+i)*G.YF_J}")
            a(f"buffer_load_dwordx4 v[{r}:{r+3}], v{vOff}, s[16:19], s25 offen")
    a.c("G table: wave w<3 -> o = w")
    a("s_cmp_ge_u32 s10, 3")
    a(f"s_cbranch_scc1 L_{tag}_notab")
    vN = vT0; vA = vT0+1; vP = BF
    a("s_lshl_b32 s25, s10, 4")
    a(f"v_add_u32 v{vN}, s25, v{vR}")
    for s in range(2):
        a(f"v_lshlrev_b32 v{vA}, 3, v{vG}")
        a(f"v_add_u32 v{vA}, {32*s+1}, v{vA}")
        for e2 in range(4):
            a(f"v_mul_u32_u24 v{vP+2*e2}, v{vA}, v{vN}")
            a(f"v_add_u32 v{vP+2*e2+1}, 32, v{vP+2*e2}")
            if e2 < 3: a(f"v_add_u32 v{vA}, 2, v{vA}")
        G.cos_table(a, None, [vP+e for e in range(8)], ACC, ACC+4, scale="0x3d000000")
        a("s_lshl_b32 s25, s10, 11")
        a(f"v_lshlrev_b32 v{vT0+3}, 4, v{vLane}")
        a(f"v_add_u32 v{vT0+3}, s25, v{vT0+3}")
        a(f"ds_write_b128 v{vT0+3}, v[{ACC}:{ACC+3}] offset:{s*1024}")
    a.label(f"L_{tag}_notab")
    return dict(vLane=vLane, vR=vR, vG=vG, vOff=vOff, vT0=vT0)

def read_tables(a, R):
    vT0 = R['vT0']
    a(f"v_lshlrev_b32 v{vT0+3}, 4, v{R['vLane']}")
    for o in range(3):
        for s in range(2):
            r = AF + 4 * (2 * o + s)
            a(f"ds_read_b128 v[{r}:{r+3}], v{vT0+3} offset:{(2*o+s)*1024}")

def transform(a):
    def perms(q):
        for s in range(2):
            for h in range(2):
                for e in range(4):
                    d = BF + (s * 2 + h) * 4 + e
                    r0 = RAW + 4 * (8 * s + 2 * e) + q
                    r1 = RAW + 4 * (8 * s + 2 * e + 1) + q
                    a(f"v_perm_b32 v{d}, v{r1}, v{r0}, s{30+h}")
    for q in range(4):
        perms(q)
        for s in range(2):
            for o in range(3):
                for h in range(2):
                    dd = 2 * q + h
                    d = ACC + (o * 8 + dd) * 4
                    A = AF + 4 * (2 * o + s)
                    B = BF + (s * 2 + h) * 4
                    c = "0" if s == 0 else f"v[{d}:{d+3}]"
                    a(f"v_mfma_f32_16x16x32_bf16 v[{d}:{d+3}], v[{A}:{A+3}], v[{B}:{B+3}], {c}")

def hreg(o, dd, rp): return ACC + (o * 8 + dd) * 4 + rp

def gen_k4(cfg=None):
    a = Asm()
    name = 'stats_kernel'
    G.kernel_header(a, name)
    R = common(a, 'k4', 1)
    vLane, vR, vG, vT0 = R['vLane'], R['vR'], R['vG'], R['vT0']
    a("s_waitcnt lgkmcnt(0)")
    a("s_barrier")
    read_tables(a, R)
    S1 = RAW; S2 = RAW + 8
    a(f"s_cmp_ge_u32 s14, {G.NBLK}")
    a("s_cbranch_scc1 L_k4_zero")
    a("s_waitcnt lgkmcnt(0)")
    a(f"s_cmp_lg_u32 s14, {G.NBLK-1}")
    a("s_cbranch_scc1 L_k4_full")
    lastn = G.L_OUT - 48 * (G.NBLK - 1)
    for o in range(3):
        nvalid = lastn - 16 * o
        a(f"v_cmp_gt_i32 vcc, {max(nvalid,0)}, v{vR}")
        for r in range(8):
            a(f"v_cndmask_b32 v{AF+8*o+r}, 0, v{AF+8*o+r}, vcc")
    a.label("L_k4_full")
    a("s_waitcnt vmcnt(0)")
    transform(a)
    a("s_nop 7")
    for dd in range(8):
        first = True
        for o in range(3):
            for rp in range(4):
                h = hreg(o, dd, rp)
                if first:
                    a(f"v_mul_f32 v{S2+dd}, v{h}, v{h}")
                    a(f"v_mov_b32 v{S1+dd}, v{h}")
                    first = False
                else:
                    a(f"v_fmac_f32 v{S2+dd}, v{h}, v{h}")
                    a(f"v_add_f32 v{S1+dd}, v{S1+dd}, v{h}")
    a("s_branch L_k4_red")
    a.label("L_k4_zero")
    a("s_waitcnt vmcnt(0) lgkmcnt(0)")
    for r in range(16): a(f"v_mov_b32 v{RAW+r}, 0")
    a.label("L_k4_red")
    a("s_lshl_b32 s25, s10, 12")
    a(f"v_lshlrev_b32 v{vT0}, 10, v{vG}")
    a(f"v_lshl_add_u32 v{vT0}, v{vR}, 5, v{vT0}")
    a(f"v_add_u32 v{vT0}, s25, v{vT0}")
    a(f"ds_write_b128 v{vT0}, v[{S1}:{S1+3}] offset:8192")
    a(f"ds_write_b128 v{vT0}, v[{S1+4}:{S1+7}] offset:{8192+16}")
    a(f"ds_write_b128 v{vT0}, v[{S2}:{S2+3}] offset:{8192+512}")
    a(f"ds_write_b128 v{vT0}, v[{S2+4}:{S2+7}] offset:{8192+512+16}")
    a("s_waitcnt lgkmcnt(0)")
    a("s_barrier")
    for p in range(16):
        a(f"ds_read_b32 v{RAW+16+p}, v{VTID4} offset:{8192+p*1024}")
    a("s_waitcnt lgkmcnt(0)")
    for p in range(1, 16):
        a(f"v_add_f32 v{RAW+16}, v{RAW+16}, v{RAW+16+p}")
    a(f"s_mul_i32 s24, s11, {4*G.NGRP}")
    a(f"s_mul_i32 s25, s13, {G.NGRP}")
    a("s_add_u32 s24, s24, s25")
    a("s_add_u32 s24, s24, s12")
    a("s_lshl_b32 s24, s24, 10")
    a(f"s_add_u32 s24, s24, {G.PART_BASE}")
    a(f"buffer_store_dword v{RAW+16}, v{VTID4}, s[16:19], s24 offen")
    a.label("L_k4_end")
    a("s_endpgm")
    return name, a.lines, 216, (2 * G.NGRP * 4, 256, 8192 + 16384)

def gen_k5(cfg=None):
    a = Asm()
    name = 'final_kernel'
    G.kernel_header(a, name)
    R = common(a, 'k5', 1)
    vLane, vR, vG, vT0 = R['vLane'], R['vR'], R['vG'], R['vT0']
    PT = ACC + 8
    a(f"s_mul_i32 s24, s11, {4*G.NGRP}")
    a(f"s_mul_i32 s25, s13, {G.NGRP}")
    a("s_add_u32 s24, s24, s25")
    a("s_lshl_b32 s24, s24, 10")
    a(f"s_add_u32 s24, s24, {G.PART_BASE}")
    vTid4 = VTID4
    for p in range(G.NGRP):
        if p % 4 == 0 and p: a("s_add_u32 s24, s24, 4096")
        a(f"buffer_load_dword v{PT+p}, v{vTid4}, s[16:19], s24 offen offset:{(p%4)*1024}")
    G.make_srd(a, 20, 4, 5, 1024)
    G.make_srd(a, 36, 6, 7, 1024)
    a(f"v_lshlrev_b32 v{vT0+6}, 4, v{vR}")
    a("s_lshl_b32 s25, s13, 8")
    GB = ACC + 56
    a(f"buffer_load_dwordx4 v[{GB}:{GB+3}], v{vT0+6}, s[20:23], s25 offen")
    a(f"buffer_load_dwordx4 v[{GB+4}:{GB+7}], v{vT0+6}, s[36:39], s25 offen")
    a("s_waitcnt vmcnt(2)")
    vals = [PT + p for p in range(G.NGRP)]
    while len(vals) > 1:
        nv = []
        for i in range(0, len(vals) - 1, 2):
            a(f"v_add_f32 v{vals[i]}, v{vals[i]}, v{vals[i+1]}")
            nv.append(vals[i])
        if len(vals) & 1: nv.append(vals[-1])
        vals = nv
    a(f"ds_write_b32 v{vTid4}, v{vals[0]} offset:8192")
    a("s_waitcnt lgkmcnt(0)")
    a("s_barrier")
    read_tables(a, R)
    ST = ACC + 64
    a(f"v_lshlrev_b32 v{vT0+6}, 5, v{vR}")
    a(f"ds_read_b128 v[{ST}:{ST+3}], v{vT0+6} offset:8192")
    a(f"ds_read_b128 v[{ST+4}:{ST+7}], v{vT0+6} offset:{8192+16}")
    a(f"ds_read_b128 v[{ST+8}:{ST+11}], v{vT0+6} offset:{8192+512}")
    a(f"ds_read_b128 v[{ST+12}:{ST+15}], v{vT0+6} offset:{8192+512+16}")
    a(f"s_cmp_ge_u32 s14, {G.NBLK}")
    a("s_cbranch_scc1 L_k5_end")
    a("s_waitcnt vmcnt(0) lgkmcnt(0)")
    PA = VT + 16; PB = VT + 24
    invL = "0x%08x" % __import__('struct').unpack('<I', __import__('struct').pack('<f', 1.0 / G.L_OUT))[0]
    a(f"s_mov_b32 s24, {invL}")
    a("s_mov_b32 s25, 0x3727c5ac")
    for dd in range(8):
        mu = ST + dd; m2 = ST + 8 + dd
        a(f"v_mul_f32 v{mu}, s24, v{mu}")
        a(f"v_mul_f32 v{m2}, s24, v{m2}")
        a(f"v_fma_f32 v{m2}, -v{mu}, v{mu}, v{m2}")
        a(f"v_max_f32 v{m2}, 0, v{m2}")
        a(f"v_add_f32 v{m2}, s25, v{m2}")
        a(f"v_rsq_f32 v{m2}, v{m2}")
        gsrc = GB + (dd >> 1); bsrc = GB + 4 + (dd >> 1)
        if dd & 1:
            a(f"v_and_b32 v{PA+dd}, 0xffff0000, v{gsrc}")
            a(f"v_and_b32 v{PB+dd}, 0xffff0000, v{bsrc}")
        else:
            a(f"v_lshlrev_b32 v{PA+dd}, 16, v{gsrc}")
            a(f"v_lshlrev_b32 v{PB+dd}, 16, v{bsrc}")
        a(f"v_mul_f32 v{PA+dd}, v{PA+dd}, v{m2}")
        a(f"v_fma_f32 v{PB+dd}, -v{mu}, v{PA+dd}, v{PB+dd}")
    transform(a)
    a("s_nop 7")
    a(f"s_mul_i32 s24, s11, {G.OUT_B}")
    a("s_add_u32 s28, s28, s24")
    a("s_addc_u32 s29, s29, 0")
    G.make_srd(a, 32, 28, 29, G.OUT_B)
    vO = vT0 + 6
    a("s_mul_i32 s24, s14, %d" % (48 * 1024))
    a("s_lshl_b32 s25, s13, 8")
    a("s_add_u32 s24, s24, s25")
    a(f"v_lshlrev_b32 v{vO}, 12, v{vG}")
    a(f"v_lshl_add_u32 v{vO}, v{vR}, 4, v{vO}")
    a(f"v_add_u32 v{vO}, s24, v{vO}")
    import math, struct
    c0 = -2.0 * math.log2(math.e) * math.sqrt(2.0 / math.pi); c1 = c0 * 0.044715
    f2h = lambda x: "0x%08x" % struct.unpack('<I', struct.pack('<f', x))[0]
    a(f"s_mov_b32 s26, {f2h(c1)}")
    a(f"v_mov_b32 v{vT0+7}, {f2h(c0)}")
    T0 = RAW
    for o in range(3):
        for rp in range(4):
            ob = RAW + 16 + 4 * ((o * 4 + rp) % 8)
            for dd in range(8):
                h = hreg(o, dd, rp); t = T0 + dd
                a(f"v_fma_f32 v{h}, v{h}, v{PA+dd}, v{PB+dd}")
            for dd in range(8):
                h = hreg(o, dd, rp); t = T0 + dd
                a(f"v_mul_f32 v{t}, v{h}, v{h}")
            for dd in range(8):
                h = hreg(o, dd, rp); t = T0 + dd
                a(f"v_fma_f32 v{t}, v{t}, s26, v{vT0+7}")
            for dd in range(8):
                h = hreg(o, dd, rp); t = T0 + dd
                a(f"v_mul_f32 v{t}, v{t}, v{h}")
            for dd in range(8):
                t = T0 + dd
                a(f"v_exp_f32 v{t}, v{t}")
            for dd in range(8):
                t = T0 + dd
                a(f"v_add_f32 v{t}, 1.0, v{t}")
            for dd in range(8):
                t = T0 + dd
                a(f"v_rcp_f32 v{t}, v{t}")
            for dd in range(8):
                h = hreg(o, dd, rp); t = T0 + dd
                a(f"v_mul_f32 v{t}, v{t}, v{h}")
            for q in range(4):
                a(f"v_cvt_pk_bf16_f32 v{ob+q}, v{T0+2*q}, v{T0+2*q+1}")
            row = 16 * o + rp
            a(f"v_add_u32 v{vT0+8}, {row*1024}, v{vO}")
            a(f"buffer_store_dwordx4 v[{ob}:{ob+3}], v{vT0+8}, s[32:35], 0 offen {G.CFG['k5_st']}")
    a.label("L_k5_end")
    a("s_endpgm")
    return name, a.lines, 232, (2 * G.NGRP * 4, 256, 8192 + 1024)

def gen_k45f(cfg=None):
    import math, struct
    f2h = lambda x: "0x%08x" % struct.unpack('<I', struct.pack('<f', x))[0]
    a = Asm()
    def st(i):
        if G.CFG.get('fstamp'):
            a("s_memrealtime s[70:71]"); a("s_waitcnt lgkmcnt(0)"); a(f"v_writelane_b32 v244, s70, {i}")
    name = 'final_kernel'
    G.kernel_header(a, name)
    st(0)
    R = common(a, 'k45', 1)
    st(1)
    vLane, vR, vG, vT0 = R['vLane'], R['vR'], R['vG'], R['vT0']
    GB = 232
    G.make_srd(a, 20, 4, 5, 1024)
    G.make_srd(a, 36, 6, 7, 1024)
    a(f"v_lshlrev_b32 v{vT0+6}, 4, v{vR}")
    a("s_lshl_b32 s25, s13, 8")
    a(f"buffer_load_dwordx4 v[{GB}:{GB+3}], v{vT0+6}, s[20:23], s25 offen")
    a(f"buffer_load_dwordx4 v[{GB+4}:{GB+7}], v{vT0+6}, s[36:39], s25 offen")
    a("s_waitcnt lgkmcnt(0)")
    a("s_barrier")
    read_tables(a, R)
    PA = VT + 16; PB = VT + 24
    S1 = PA; S2 = PB
    a(f"s_cmp_ge_u32 s14, {G.NBLK}")
    a("s_cbranch_scc1 L_k45_zero")
    a("s_waitcnt lgkmcnt(0)")
    a(f"s_cmp_lg_u32 s14, {G.NBLK-1}")
    a("s_cbranch_scc1 L_k45_full")
    lastn = G.L_OUT - 48 * (G.NBLK - 1)
    for o in range(3):
        nvalid = lastn - 16 * o
        a(f"v_cmp_gt_i32 vcc, {max(nvalid,0)}, v{vR}")
        for r in range(8):
            a(f"v_cndmask_b32 v{AF+8*o+r}, 0, v{AF+8*o+r}, vcc")
    a.label("L_k45_full")
    a("s_waitcnt vmcnt(2)")
    st(2)
    transform(a)
    st(3)
    a("s_nop 7")
    for dd in range(8):
        first = True
        for o in range(3):
            for rp in range(4):
                h = hreg(o, dd, rp)
                if first:
                    a(f"v_mul_f32 v{S2+dd}, v{h}, v{h}")
                    a(f"v_mov_b32 v{S1+dd}, v{h}")
                    first = False
                else:
                    a(f"v_fmac_f32 v{S2+dd}, v{h}, v{h}")
                    a(f"v_add_f32 v{S1+dd}, v{S1+dd}, v{h}")
    a("s_branch L_k45_red")
    a.label("L_k45_zero")
    a("s_waitcnt vmcnt(0) lgkmcnt(0)")
    for r in range(8):
        a(f"v_mov_b32 v{S1+r}, 0"); a(f"v_mov_b32 v{S2+r}, 0")
    a.label("L_k45_red")
    st(4)
    a("s_lshl_b32 s25, s10, 12")
    a(f"v_lshlrev_b32 v{vT0}, 10, v{vG}")
    a(f"v_lshl_add_u32 v{vT0}, v{vR}, 5, v{vT0}")
    a(f"v_add_u32 v{vT0}, s25, v{vT0}")
    a(f"ds_write_b128 v{vT0}, v[{S1}:{S1+3}] offset:8192")
    a(f"ds_write_b128 v{vT0}, v[{S1+4}:{S1+7}] offset:{8192+16}")
    a(f"ds_write_b128 v{vT0}, v[{S2}:{S2+3}] offset:{8192+512}")
    a(f"ds_write_b128 v{vT0}, v[{S2+4}:{S2+7}] offset:{8192+512+16}")
    a("s_waitcnt lgkmcnt(0)")
    a("s_barrier")
    for p in range(16):
        a(f"ds_read_b32 v{RAW+16+p}, v{VTID4} offset:{8192+p*1024}")
    a("s_waitcnt lgkmcnt(0)")
    for p in range(1, 16):
        a(f"v_add_f32 v{RAW+16}, v{RAW+16}, v{RAW+16+p}")
    a(f"s_mul_i32 s24, s11, {4*G.NGRP}")
    a(f"s_mul_i32 s25, s13, {G.NGRP}")
    a("s_add_u32 s24, s24, s25")
    a("s_lshl_b32 s26, s24, 10")
    a(f"s_add_u32 s26, s26, {G.PART_BASE}")
    a("s_lshl_b32 s24, s12, 10")
    a("s_add_u32 s24, s24, s26")
    a(f"buffer_store_dword v{RAW+16}, v{VTID4}, s[16:19], s24 offen sc1")
    st(5)
    a("s_waitcnt vmcnt(0)")
    st(6)
    a("s_barrier")
    a("s_lshl_b32 s27, s11, 2")
    a("s_add_u32 s27, s27, s13")
    a(f"s_mul_i32 s27, s27, {G.CNT_STRIDE}")
    a(f"s_add_u32 s27, s27, {G.CNT_BASE}")
    a("s_cmp_lg_u32 s10, 0")
    a("s_cbranch_scc1 L_k45_wait")
    a(f"v_mov_b32 v{RAW}, 1")
    a(f"v_mov_b32 v{RAW+1}, 0")
    a("s_mov_b64 exec, 1")
    a(f"buffer_atomic_add v{RAW}, v{RAW+1}, s[16:19], s27 offen sc1")
    a("s_mov_b64 exec, -1")
    a(f"s_mov_b32 s33, {1 << 16}")
    a.label("L_k45_poll")
    if G.CFG.get('k45_sleep'): a(f"s_sleep {G.CFG['k45_sleep']}")
    a(f"buffer_load_dword v{RAW+2}, v{RAW+1}, s[16:19], s27 offen sc1")
    a("s_waitcnt vmcnt(0)")
    a(f"v_readfirstlane_b32 s34, v{RAW+2}")
    a(f"s_cmp_ge_u32 s34, {G.NGRP}")
    a("s_cbranch_scc1 L_k45_wait")
    a("s_sub_u32 s33, s33, 1")
    a("s_cmp_lg_u32 s33, 0")
    a("s_cbranch_scc1 L_k45_poll")
    a.label("L_k45_wait")
    st(7)
    a("s_barrier")
    st(8)
    PT = RAW
    for p in range(G.NGRP):
        if p % 4 == 0 and p: a("s_add_u32 s26, s26, 4096")
        a(f"buffer_load_dword v{PT+p}, v{VTID4}, s[16:19], s26 offen offset:{(p%4)*1024} sc1")
    a("s_waitcnt vmcnt(0)")
    vals = [PT + p for p in range(G.NGRP)]
    while len(vals) > 1:
        nv = []
        for i in range(0, len(vals) - 1, 2):
            a(f"v_add_f32 v{vals[i]}, v{vals[i]}, v{vals[i+1]}")
            nv.append(vals[i])
        if len(vals) & 1: nv.append(vals[-1])
        vals = nv
    st(9)
    a(f"ds_write_b32 v{VTID4}, v{vals[0]} offset:{8192+16384}")
    a("s_waitcnt lgkmcnt(0)")
    a("s_barrier")
    a(f"s_cmp_ge_u32 s14, {G.NBLK}")
    a("s_cbranch_scc1 L_k45_end")
    ST = RAW + 44
    a(f"v_lshlrev_b32 v{vT0+6}, 5, v{vR}")
    o0 = 8192 + 16384
    a(f"ds_read_b128 v[{ST}:{ST+3}], v{vT0+6} offset:{o0}")
    a(f"ds_read_b128 v[{ST+4}:{ST+7}], v{vT0+6} offset:{o0+16}")
    a(f"ds_read_b128 v[{ST+8}:{ST+11}], v{vT0+6} offset:{o0+512}")
    a(f"ds_read_b128 v[{ST+12}:{ST+15}], v{vT0+6} offset:{o0+512+16}")
    a(f"s_mov_b32 s24, {f2h(1.0 / G.L_OUT)}")
    a("s_mov_b32 s25, 0x3727c5ac")
    a("s_waitcnt lgkmcnt(0)")
    for dd in range(8):
        mu = ST + dd; m2 = ST + 8 + dd
        a(f"v_mul_f32 v{mu}, s24, v{mu}")
        a(f"v_mul_f32 v{m2}, s24, v{m2}")
        a(f"v_fma_f32 v{m2}, -v{mu}, v{mu}, v{m2}")
        a(f"v_max_f32 v{m2}, 0, v{m2}")
        a(f"v_add_f32 v{m2}, s25, v{m2}")
        a(f"v_rsq_f32 v{m2}, v{m2}")
        gsrc = GB + (dd >> 1); bsrc = GB + 4 + (dd >> 1)
        if dd & 1:
            a(f"v_and_b32 v{PA+dd}, 0xffff0000, v{gsrc}")
            a(f"v_and_b32 v{PB+dd}, 0xffff0000, v{bsrc}")
        else:
            a(f"v_lshlrev_b32 v{PA+dd}, 16, v{gsrc}")
            a(f"v_lshlrev_b32 v{PB+dd}, 16, v{bsrc}")
        a(f"v_mul_f32 v{PA+dd}, v{PA+dd}, v{m2}")
        a(f"v_fma_f32 v{PB+dd}, -v{mu}, v{PA+dd}, v{PB+dd}")
    st(10)
    a(f"s_mul_i32 s24, s11, {G.OUT_B}")
    a("s_add_u32 s28, s28, s24")
    a("s_addc_u32 s29, s29, 0")
    G.make_srd(a, 32, 28, 29, G.OUT_B)
    vO = vT0 + 6
    a("s_mul_i32 s24, s14, %d" % (48 * 1024))
    a("s_lshl_b32 s25, s13, 8")
    a("s_add_u32 s24, s24, s25")
    a(f"v_lshlrev_b32 v{vO}, 12, v{vG}")
    a(f"v_lshl_add_u32 v{vO}, v{vR}, 4, v{vO}")
    a(f"v_add_u32 v{vO}, s24, v{vO}")
    c0 = -2.0 * math.log2(math.e) * math.sqrt(2.0 / math.pi); c1 = c0 * 0.044715
    a(f"s_mov_b32 s26, {f2h(c1)}")
    a(f"v_mov_b32 v{vT0+7}, {f2h(c0)}")
    T0 = RAW
    for o in range(3):
        for rp in range(4):
            ob = RAW + 16 + 4 * ((o * 4 + rp) % 8)
            for dd in range(8):
                h = hreg(o, dd, rp); a(f"v_fma_f32 v{h}, v{h}, v{PA+dd}, v{PB+dd}")
            for dd in range(8):
                h = hreg(o, dd, rp); a(f"v_mul_f32 v{T0+dd}, v{h}, v{h}")
            for dd in range(8):
                a(f"v_fma_f32 v{T0+dd}, v{T0+dd}, s26, v{vT0+7}")
            for dd in range(8):
                h = hreg(o, dd, rp); a(f"v_mul_f32 v{T0+dd}, v{T0+dd}, v{h}")
            for dd in range(8): a(f"v_exp_f32 v{T0+dd}, v{T0+dd}")
            for dd in range(8): a(f"v_add_f32 v{T0+dd}, 1.0, v{T0+dd}")
            for dd in range(8): a(f"v_rcp_f32 v{T0+dd}, v{T0+dd}")
            for dd in range(8):
                h = hreg(o, dd, rp); a(f"v_mul_f32 v{T0+dd}, v{T0+dd}, v{h}")
            for q in range(4):
                a(f"v_cvt_pk_bf16_f32 v{ob+q}, v{T0+2*q}, v{T0+2*q+1}")
            row = 16 * o + rp
            a(f"v_add_u32 v{vT0+8}, {row*1024}, v{vO}")
            a(f"buffer_store_dwordx4 v[{ob}:{ob+3}], v{vT0+8}, s[32:35], 0 offen {G.CFG['k5_st']}")
    st(11)
    if G.CFG.get('fstamp'):
        a("s_waitcnt vmcnt(0)")
        st(12)
        a("s_lshl_b32 s73, s2, 2"); a("s_add_u32 s73, s73, s10"); a("s_lshl_b32 s73, s73, 8")
        a(f"s_add_u32 s73, s73, {214 << 20}")
        a(f"v_lshlrev_b32 v245, 2, v{vLane}")
        a("buffer_store_dword v244, v245, s[16:19], s73 offen")
    a.label("L_k45_end")
    a("s_endpgm")
    return name, a.lines, 248 if G.CFG.get('fstamp') else 240, (2 * G.NGRP * 4, 256, 8192 + 16384 + 1024)
```

```python
import sys, os
sys.path.insert(0, os.path.dirname(os.path.abspath(__file__)))
from asmlib import *

NAME = 'standalone__self_sup_conv_stem_wavlm__speech'

L_OUT = 7985
NBLK = 167
ROWS = 168
X_BYTES_B = 8000 * 2048
W_BYTES = 31 * 524288
WS_BYTES = 268435456
WF_BASE = 0
WF_K = 4 * 32 * 16384
XF_BASE = 64 << 20
XF_TILE = 2 * ROWS * 64
XF_B = 32 * XF_TILE
XF_K = 2 * XF_B
YF_BASE = 112 << 20
YF_B = 176 * 1024
YF_J = 2 * YF_B
PART_BASE = 140 << 20
NGRP = 42
CNT_BASE = 141 << 20
CNT_STRIDE = 8192 + 256
OUT_B = L_OUT * 1024

import json
CFG = dict(
    k3_nodma=False,
    k3_nomfma=False,
    k3_stamp=False,
    k3b=True,
    k45f=True,
    k45_sleep=8,
    k12_st='sc1',
    k3_st='sc1',
    k5_st='',
    half=False,
    wfuse=False,
    c0=4,
    ldist=[6,5,5,0],
    xfull=True,
    layout=2,
    ypad=256,
    fused=False,
    hprio=0,
    st_flags='sc1',
    dma_flags='',
    timeline=False,
    k3_nolds=False,
)
CFG.update(json.loads(os.environ.get('GENCFG', '{}')))
if CFG['layout'] == 2:
    WF_K = 16384; WF_KS = 32 * 16384; WF_DQ = 32 * WF_KS
    XF_K = XF_TILE; XF_KS = 32 * XF_TILE; XF_B = 32 * XF_KS
    YF_J = 1024; YF_ROW = 65536 + CFG['ypad']; YF_B = 176 * YF_ROW
else:
    WF_KS = 16384; WF_DQ = 32 * 16384; XF_KS = XF_TILE; YF_ROW = 1024

def kernel_header(a, name):
    a(f".globl {name}")
    a(".p2align 8")
    a(f".type {name},@function")
    a.label(name)

def kernel_desc(name, vgpr, sgpr=96, accum=None):
    accum = accum or ((vgpr + 3) // 4 * 4)
    return f""".amdhsa_kernel {name}
  .amdhsa_next_free_vgpr {vgpr}
  .amdhsa_next_free_sgpr {sgpr}
  .amdhsa_accum_offset {accum}
  .amdhsa_group_segment_fixed_size 0
  .amdhsa_kernarg_size 56
  .amdhsa_user_sgpr_count 2
  .amdhsa_user_sgpr_kernarg_segment_ptr 1
  .amdhsa_system_sgpr_workgroup_id_x 1
  .amdhsa_float_denorm_mode_32 3
.end_amdhsa_kernel
"""

def make_srd(a, s, base_lo, base_hi, size):
    a(f"s_mov_b32 s{s}, s{base_lo}")
    a(f"s_and_b32 s{s+1}, s{base_hi}, 0xffff")
    a(f"s_mov_b32 s{s+2}, {size}")
    a(f"s_mov_b32 s{s+3}, 0x00020000")

def cos_table(a, vp0, vstep_list, dst, tmp, scale=None, lo_sel=None):
    for e in range(8):
        r = vstep_list[e]
        a(f"v_and_b32 v{r}, 127, v{r}")
        a(f"v_cvt_f32_u32 v{r}, v{r}")
        a(f"v_mul_f32 v{r}, 0x3c000000, v{r}")
        a(f"v_cos_f32 v{r}, v{r}")
    if scale is not None:
        for e in range(8):
            r = vstep_list[e]
            a(f"v_mul_f32 v{r}, {scale}, v{r}")
    for e2 in range(4):
        r0, r1 = vstep_list[2*e2], vstep_list[2*e2+1]
        a(f"v_cvt_pk_bf16_f32 v{dst+e2}, v{r0}, v{r1}")
    if lo_sel is not None:
        for e2 in range(4):
            r0, r1 = vstep_list[2*e2], vstep_list[2*e2+1]
            a(f"v_lshlrev_b32 v{tmp}, 16, v{dst+e2}")
            a(f"v_and_b32 v{tmp+1}, 0xffff0000, v{dst+e2}")
            a(f"v_sub_f32 v{r0}, v{r0}, v{tmp}")
            a(f"v_sub_f32 v{r1}, v{r1}, v{tmp+1}")
            a(f"v_cvt_pk_bf16_f32 v{tmp}, v{r0}, v{r1}")
            a(f"v_cndmask_b32 v{dst+e2}, v{dst+e2}, v{tmp}, s[{lo_sel}:{lo_sel+1}]")

def gen_k12():
    a = Asm()
    name = 'xform_kernel'
    kernel_header(a, name)
    NCG = CFG['c0'] if CFG['half'] else 8
    XFULL = CFG['half'] or CFG['wfuse']
    XF2_K = 2 * XF_TILE; XF_KP = 32 * XF2_K; XF2_B = 16 * XF_KP
    NX = 2 * NGRP * NCG
    NW = 128 * (CFG['c0'] if CFG['wfuse'] else NCG)
    RAW = 0
    AF = 64
    BF = 96
    ACC = 112
    VT = 144
    vLane = VT; vR = VT+1; vG = VT+2; vOff = VT+3; vSt = VT+4; vT0 = VT+5
    NV = 160
    a("s_cmp_ge_u32 s2, %d" % (NX + NW))
    a("s_cbranch_scc1 L_k12_end")
    a("s_load_dwordx4 s[4:7], s[0:1], 0")
    a("s_load_dwordx2 s[8:9], s[0:1], 48")
    a(f"v_and_b32 v{vLane}, 63, v0")
    a(f"v_lshrrev_b32 v{vT0}, 6, v0")
    a(f"v_and_b32 v{vR}, 15, v{vLane}")
    a(f"v_readfirstlane_b32 s10, v{vT0}")
    a(f"v_lshrrev_b32 v{vG}, 4, v{vLane}")
    a("s_mov_b32 s30, 0x05040100")
    a("s_mov_b32 s31, 0x07060302")
    a("s_waitcnt lgkmcnt(0)")
    make_srd(a, 16, 8, 9, WS_BYTES)
    a("s_cmp_ge_u32 s2, %d" % NX)
    a("s_cbranch_scc1 L_k12_w")
    a.c("X item: b, cg, grp")
    a(f"s_cmp_ge_u32 s2, {NGRP*NCG}")
    a("s_cselect_b32 s11, 1, 0")
    a(f"s_mul_i32 s12, s11, {NGRP*NCG}")
    a("s_sub_u32 s12, s2, s12")
    a(f"s_mul_hi_u32 s14, s12, {((1 << 32) + NCG - 1) // NCG if NCG > 1 else 0}")
    a(f"s_mul_i32 s13, s14, {NCG}")
    a("s_sub_u32 s13, s12, s13")
    a("s_lshl_b32 s14, s14, 2")
    a("s_add_u32 s14, s14, s10")
    a(f"s_mul_i32 s15, s11, {X_BYTES_B}")
    a("s_add_u32 s4, s4, s15")
    a("s_addc_u32 s5, s5, 0")
    make_srd(a, 12+8, 4, 5, X_BYTES_B)
    a("s_mul_i32 s15, s14, %d" % (48 * 2048))
    a("s_lshl_b32 s24, s13, 8")
    a("s_add_u32 s15, s15, s24")
    a(f"v_lshlrev_b32 v{vOff}, 14, v{vG}")
    a(f"v_lshl_add_u32 v{vOff}, v{vR}, 4, v{vOff}")
    a(f"v_add_u32 v{vOff}, s15, v{vOff}")
    for s in range(2):
        for i in range(8):
            off = (32 * s + i) * 2048
            if off == 0:
                a(f"buffer_load_dwordx4 v[{RAW}:{RAW+3}], v{vOff}, s[20:23], 0 offen")
            else:
                a(f"v_add_u32 v{vT0}, {off}, v{vOff}")
                r = RAW + 4 * (8 * s + i)
                a(f"buffer_load_dwordx4 v[{r}:{r+3}], v{vT0}, s[20:23], 0 offen")
    a.c("table generation: wave w -> o = w, s = 0,1")
    vA = vT0; vC = vT0+1; vP = BF
    a(f"v_lshrrev_b32 v{vA}, 2, v{vR}")
    a(f"v_lshlrev_b32 v{vA}, 1, v{vA}")
    a(f"v_bfe_u32 v{vC}, v{vR}, 1, 1")
    a(f"v_add_u32 v{vA}, v{vA}, v{vC}")
    a("s_lshl_b32 s24, s10, 3")
    a(f"v_add_u32 v{vA}, s24, v{vA}")
    a(f"v_lshl_add_u32 v{vA}, v{vA}, 1, 1")
    a(f"v_and_b32 v{vC}, 1, v{vR}")
    a(f"v_lshlrev_b32 v{vC}, 5, v{vC}")
    for s in range(2):
        a(f"v_lshlrev_b32 v{vT0+2}, 3, v{vG}")
        if s: a(f"v_add_u32 v{vT0+2}, 32, v{vT0+2}")
        a(f"v_mad_u32_u24 v{vP}, v{vA}, v{vT0+2}, v{vC}")
        for e in range(1, 8):
            a(f"v_add_u32 v{vP+e}, v{vP+e-1}, v{vA}")
        cos_table(a, None, [vP+e for e in range(8)], ACC, ACC+4)
        a("s_lshl_b32 s24, s10, 11")
        a(f"v_lshlrev_b32 v{vT0+3}, 4, v{vLane}")
        a(f"v_add_u32 v{vT0+3}, s24, v{vT0+3}")
        a(f"ds_write_b128 v{vT0+3}, v[{ACC}:{ACC+3}] offset:{s*1024}")
    a("s_waitcnt lgkmcnt(0)")
    a("s_barrier")
    a(f"v_lshlrev_b32 v{vT0+3}, 4, v{vLane}")
    for o in range(4):
        for s in range(2):
            r = AF + 4 * (2 * o + s)
            a(f"ds_read_b128 v[{r}:{r+3}], v{vT0+3} offset:{(2*o+s)*1024}")
    a("s_bfe_u32 s24, s14, 0x10003")
    a("s_mul_i32 s24, s24, 3")
    a(f"v_and_b32 v{vT0}, 3, v{vR}")
    a(f"v_xor_b32 v{vT0}, s24, v{vT0}")
    a(f"v_lshlrev_b32 v{vT0}, 4, v{vT0}")
    if XFULL:
        a(f"v_bfe_u32 v{vT0+1}, v{vR}, 2, 1")
        a(f"v_lshl_add_u32 v{vT0}, v{vT0+1}, 6, v{vT0}")
        a(f"v_lshrrev_b32 v{vT0+1}, 3, v{vR}")
        a(f"s_mov_b32 s24, {XF_KP}")
    else:
        a(f"v_lshrrev_b32 v{vT0+1}, 2, v{vR}")
        a(f"s_mov_b32 s24, {XF_KS}")
    a(f"v_mad_u32_u24 v{vT0}, v{vT0+1}, s24, v{vT0}")
    a(f"s_mov_b32 s24, {2*(XF2_K if XFULL else XF_K)}")
    a(f"v_mad_u32_u24 v{vSt}, v{vG}, s24, v{vT0}")
    a(f"s_mul_i32 s24, s11, {XF2_B if XFULL else XF_B}")
    a(f"s_mul_i32 s25, s13, {2*XF_KP if XFULL else 4*XF_KS}")
    a("s_add_u32 s24, s24, s25")
    a(f"s_lshl_b32 s25, s14, {7 if XFULL else 6}")
    a("s_add_u32 s24, s24, s25")
    a(f"s_add_u32 s24, s24, {XF_BASE}")
    a("s_waitcnt vmcnt(0) lgkmcnt(0)")
    def perms(q):
        for s in range(2):
            for h in range(2):
                for e in range(4):
                    d = BF + (s * 2 + h) * 4 + e
                    r0 = RAW + 4 * (8 * s + 2 * e) + q
                    r1 = RAW + 4 * (8 * s + 2 * e + 1) + q
                    a(f"v_perm_b32 v{d}, v{r1}, v{r0}, s{30+h}")
    def mfmas():
        for s in range(2):
            for o in range(4):
                for h in range(2):
                    d = ACC + (o * 2 + h) * 4
                    A = AF + 4 * (2 * o + s)
                    B = BF + (s * 2 + h) * 4
                    c = "0" if s == 0 else f"v[{d}:{d+3}]"
                    a(f"v_mfma_f32_16x16x32_bf16 v[{d}:{d+3}], v[{A}:{A+3}], v[{B}:{B+3}], {c}")
    def cvts(q):
        for o in range(4):
            for rp in range(4):
                d = RAW + 4 * (4 * o + rp) + q
                a(f"v_cvt_pk_bf16_f32 v{d}, v{ACC+(o*2)*4+rp}, v{ACC+(o*2+1)*4+rp}")
    perms(0)
    for q in range(4):
        mfmas()
        if q < 3: perms(q + 1)
        cvts(q)
    for o in range(4):
        for rp in range(4):
            off = (8 * o + (rp >> 1)) * XF_K + (rp & 1) * (ROWS * 64)
            if XFULL: off = (8 * o + (rp >> 1)) * XF2_K + (rp & 1) * (ROWS * 128)
            a(f"s_add_u32 s25, s24, {off}")
            r = RAW + 4 * (4 * o + rp)
            a(f"buffer_store_dwordx4 v[{r}:{r+3}], v{vSt}, s[16:19], s25 offen {CFG['k12_st']}")
    a("s_endpgm")
    a.label("L_k12_w")
    a(f"s_sub_u32 s12, s2, {NX}")
    a("s_and_b32 s13, s12, 3")
    a("s_lshr_b32 s14, s12, 2")
    a("s_lshl_b32 s14, s14, 2")
    a("s_add_u32 s14, s14, s10")
    make_srd(a, 20, 6, 7, W_BYTES)
    a(f"v_and_b32 v{vT0}, 1, v{vG}")
    a(f"v_lshlrev_b32 v{vOff}, 23, v{vT0}")
    a(f"v_lshrrev_b32 v{vT0}, 2, v{vR}")
    a(f"v_lshl_add_u32 v{vOff}, v{vT0}, 6, v{vOff}")
    a(f"v_and_b32 v{vT0}, 1, v{vR}")
    a(f"v_lshl_add_u32 v{vOff}, v{vT0}, 5, v{vOff}")
    a(f"v_bfe_u32 v{vT0}, v{vR}, 1, 1")
    a(f"v_lshl_add_u32 v{vOff}, v{vT0}, 3, v{vOff}")
    a("s_lshl_b32 s15, s14, 10")
    a("s_lshl_b32 s24, s13, 8")
    a("s_add_u32 s15, s15, s24")
    a(f"v_add_u32 v{vOff}, s15, v{vOff}")
    for i in range(8):
        r = RAW + 4 * i
        if i == 0:
            src = vOff
        else:
            a(f"v_add_u32 v{vT0}, {i << 20}, v{vOff}")
            src = vT0
        a(f"buffer_load_dwordx2 v[{r}:{r+1}], v{src}, s[20:23], 0 offen")
        a(f"buffer_load_dwordx2 v[{r+2}:{r+3}], v{src}, s[20:23], 0 offen offset:16")
    a.c("table: wave w -> o = w")
    vA = vT0; vC = vT0+1; vP = BF
    a(f"v_lshrrev_b32 v{vA}, 2, v{vR}")
    a(f"v_lshlrev_b32 v{vA}, 1, v{vA}")
    a(f"v_bfe_u32 v{vC}, v{vR}, 1, 1")
    a(f"v_add_u32 v{vA}, v{vA}, v{vC}")
    a("s_lshl_b32 s24, s10, 3")
    a(f"v_add_u32 v{vA}, s24, v{vA}")
    a(f"v_lshl_add_u32 v{vA}, v{vA}, 1, 1")
    a(f"v_and_b32 v{vC}, 1, v{vR}")
    a(f"v_lshlrev_b32 v{vC}, 5, v{vC}")
    a(f"v_and_b32 v{vT0+2}, 1, v{vG}")
    a(f"v_lshlrev_b32 v{vT0+2}, 3, v{vT0+2}")
    a(f"v_mad_u32_u24 v{vP}, v{vA}, v{vT0+2}, v{vC}")
    for e in range(1, 8):
        a(f"v_add_u32 v{vP+e}, v{vP+e-1}, v{vA}")
    a(f"v_cmp_lt_u32 s[26:27], 1, v{vG}")
    cos_table(a, None, [vP+e for e in range(8)], ACC, ACC+4, lo_sel=26)
    a("s_lshl_b32 s24, s10, 10")
    a(f"v_lshlrev_b32 v{vT0+3}, 4, v{vLane}")
    a(f"v_add_u32 v{vT0+3}, s24, v{vT0+3}")
    a(f"ds_write_b128 v{vT0+3}, v[{ACC}:{ACC+3}]")
    a("s_waitcnt lgkmcnt(0)")
    a("s_barrier")
    a(f"v_lshlrev_b32 v{vT0+3}, 4, v{vLane}")
    for o in range(4):
        r = AF + 4 * o
        a(f"ds_read_b128 v[{r}:{r+3}], v{vT0+3} offset:{o*1024}")
    a("s_and_b32 s24, s14, 3")
    a("s_bfe_u32 s25, s14, 0x10003")
    a("s_lshl_b32 s25, s25, 2")
    a("s_or_b32 s24, s24, s25")
    a("s_lshl_b32 s24, s24, 1")
    a(f"v_xor_b32 v{vT0}, s24, v{vR}")
    a(f"v_lshlrev_b32 v{vT0}, 4, v{vT0}")
    a(f"s_mov_b32 s25, {2*WF_K}")
    a(f"v_mul_u32_u24 v{vSt}, s25, v{vG}")
    a(f"v_add_u32 v{vSt}, v{vSt}, v{vT0}")
    a(f"s_mul_i32 s24, s13, {WF_DQ}")
    a("s_lshr_b32 s25, s14, 5")
    a(f"s_mul_i32 s25, s25, {WF_KS}")
    a("s_add_u32 s24, s24, s25")
    a("s_and_b32 s25, s14, 31")
    a("s_lshl_b32 s25, s25, 8")
    a("s_add_u32 s24, s24, s25")
    if WF_BASE: a(f"s_add_u32 s24, s24, {WF_BASE}")
    a("s_waitcnt vmcnt(0) lgkmcnt(0)")
    OUT = 32
    FR = 32
    for dd in range(8):
        q = dd >> 1; h = dd & 1
        for e in range(4):
            r0 = RAW + 4 * (2 * e) + q
            r1 = RAW + 4 * (2 * e + 1) + q
            a(f"v_perm_b32 v{FR+4*dd+e}, v{r1}, v{r0}, s{30+h}")
    for o in range(4):
        A = AF + 4 * o
        for dd in range(8):
            d = ACC + 4 * dd
            a(f"v_mfma_f32_16x16x32_bf16 v[{d}:{d+3}], v[{A}:{A+3}], v[{FR+4*dd}:{FR+4*dd+3}], 0")
        ob = RAW + 16 * (o & 1)
        for rp in range(4):
            for q in range(4):
                a(f"v_cvt_pk_bf16_f32 v{ob+4*rp+q}, v{ACC+8*q+rp}, v{ACC+8*q+4+rp}")
        for rp in range(4):
            off = (8 * o + (rp >> 1)) * WF_K + (rp & 1) * 8192
            a(f"s_add_u32 s25, s24, {off}")
            r = ob + 4 * rp
            a(f"buffer_store_dwordx4 v[{r}:{r+3}], v{vSt}, s[16:19], s25 offen {CFG['k12_st']}")
    a.label("L_k12_end")
    a("s_endpgm")
    return name, a.lines, NV, (NX + NW, 256, 16384)

STAMP_BASE = 200 << 20
def add_timeline(name, lines, kidx):
    out = []
    started = False
    n = 0
    for l in lines:
        t = l.strip()
        out.append(l)
        if not started and t == name + ':':
            out.append("    s_memrealtime s[92:93]")
            out.append("    v_lshrrev_b32 v1, 6, v0")
            out.append("    s_nop 1")
            out.append("    v_readfirstlane_b32 s91, v1")
            out.append("    s_waitcnt lgkmcnt(0)")
            started = True
        if t == 's_endpgm':
            out.pop()
            n += 1
            out.append("    s_waitcnt vmcnt(0) lgkmcnt(0)")
            out.append("    s_memrealtime s[94:95]")
            out.append("    s_load_dwordx2 s[80:81], s[0:1], 48")
            out.append("    s_mov_b64 exec, -1")
            out.append("    s_waitcnt lgkmcnt(0)")
            out.append("    s_mov_b32 s84, s80"); out.append("    s_and_b32 s85, s81, 0xffff")
            out.append(f"    s_mov_b32 s86, {WS_BYTES}"); out.append("    s_mov_b32 s87, 0x00020000")
            out.append("    s_lshl_b32 s88, s2, 4"); out.append("    s_add_u32 s88, s88, s91"); out.append("    s_lshl_b32 s88, s88, 4")
            out.append(f"    s_add_u32 s88, s88, {STAMP_BASE + kidx * (1 << 20)}")
            out.append("    v_mov_b32 v0, s92"); out.append("    v_mov_b32 v1, s93"); out.append("    v_mov_b32 v2, s94"); out.append("    v_mov_b32 v3, s95")
            out.append("    v_mov_b32 v4, 0")
            out.append("    buffer_store_dwordx4 v[0:3], v4, s[84:87], s88 offen")
            out.append("    s_endpgm")
    return out

def build(kernels):
    if CFG['timeline']:
        kernels = [(n, add_timeline(n, l, i), nv, g) for i, (n, l, nv, g) in enumerate(kernels)]
    hdr = open(os.path.join(os.path.dirname(os.path.abspath(__file__)), '..', NAME + '.s.ref')).read().split('\n')
    out = []
    for l in hdr:
        if l.startswith('; Override launch') or l.startswith('; grid=ceil') or l.startswith('; @launch'): continue
        if l.startswith(';'): out.append(l)
        else: break
    for (name, lines, nv, (g, blk, lds)) in kernels:
        out.append(f"; @launch kernel={name} grid=({g},1,1) block=({blk},1,1) lds={lds}")
    out.append('.amdgcn_target "amdgcn-amd-amdhsa--gfx950"')
    out.append('.text')
    for (name, lines, nv, _) in kernels:
        out += hazard_pass(lines)
    out.append('.section .rodata,"a"')
    for (name, lines, nv, _) in kernels:
        out.append('.p2align 6')
        out.append(kernel_desc(name, nv))
    return '\n'.join(out) + '\n'

if __name__ == '__main__':
    from gen_k3 import gen_k3
    from gen_k45 import gen_k4, gen_k5
    from gen_k3b import gen_k3b
    from gen_k123 import gen_k123
    from gen_k3h import gen_k3h
    from gen_k3w import gen_k3w
    if CFG['wfuse']:
        ks = [gen_k12(), gen_k3w(), gen_k4(), gen_k5()]
    elif CFG['half']:
        ks = [gen_k12(), gen_k3h(), gen_k4(), gen_k5()]
    elif CFG['fused']:
        ks = [gen_k123(), gen_k4(), gen_k5()]
    else:
        ks = [gen_k12(), gen_k3b() if CFG['k3b'] else gen_k3(), gen_k4(), gen_k5()]
    if CFG['k45f']:
        from gen_k45 import gen_k45f
        ks = ks[:-2] + [gen_k45f()]
    dst = sys.argv[1] if len(sys.argv) > 1 else os.path.join(os.path.dirname(os.path.abspath(__file__)), '..', NAME + '.s')
    open(dst, 'w').write(build(ks))
    print('wrote', dst)
```

```python
from asmlib import *
import gen as G

def gen_k12p(cfg=None):
    cfg = cfg or G.CFG
    a = Asm()
    name = 'xform_kernel'
    G.kernel_header(a, name)
    NX = 2 * G.NGRP * 8
    NW = 1024
    NWG = cfg.get('k12_nwg', 768)
    WNODUP = cfg.get('w_nodup', True)
    st = cfg['k12_st']
    RAW = 0; AF = 64; BF = 96; ACC = 112; VT = 144
    vLane = VT; vR = VT+1; vG = VT+2; vOff = VT+3; vSt = VT+4; vT0 = VT+5
    vNext = VT + 13; vZ = VT + 14; vL16 = VT + 15
    NV = 160
    a(f"s_cmp_ge_u32 s2, {NWG}")
    a("s_cbranch_scc1 L_k12_end")
    a("s_load_dwordx4 s[4:7], s[0:1], 0")
    a("s_load_dwordx4 s[36:39], s[0:1], 40")
    a(f"v_and_b32 v{vLane}, 63, v0")
    a(f"v_lshrrev_b32 v{vT0}, 6, v0")
    a(f"v_and_b32 v{vR}, 15, v{vLane}")
    a(f"v_readfirstlane_b32 s10, v{vT0}")
    a(f"v_lshrrev_b32 v{vG}, 4, v{vLane}")
    a(f"v_lshlrev_b32 v{vL16}, 4, v{vLane}")
    a(f"v_mov_b32 v{vZ}, 0")
    a("s_mov_b32 s30, 0x05040100")
    a("s_mov_b32 s31, 0x07060302")
    a("s_mov_b32 s32, 0x01000100")
    a("s_mov_b32 s33, 0x03020302")
    a("s_mov_b32 s40, s2")
    a("s_mov_b32 s41, 0")
    a("s_waitcnt lgkmcnt(0)")
    G.make_srd(a, 16, 38, 39, G.WS_BYTES)
    G.make_srd(a, 44, 36, 37, 256)
    vA = vT0; vC = vT0+1; vP = BF
    a(f"v_lshrrev_b32 v{vA}, 2, v{vR}")
    a(f"v_lshlrev_b32 v{vA}, 1, v{vA}")
    a(f"v_bfe_u32 v{vC}, v{vR}, 1, 1")
    a(f"v_add_u32 v{vA}, v{vA}, v{vC}")
    a("s_lshl_b32 s24, s10, 3")
    a(f"v_add_u32 v{vA}, s24, v{vA}")
    a(f"v_lshl_add_u32 v{vA}, v{vA}, 1, 1")
    a(f"v_and_b32 v{vC}, 1, v{vR}")
    a(f"v_lshlrev_b32 v{vC}, 5, v{vC}")
    for s in range(2):
        a(f"v_lshlrev_b32 v{vT0+2}, 3, v{vG}")
        if s: a(f"v_add_u32 v{vT0+2}, 32, v{vT0+2}")
        a(f"v_mad_u32_u24 v{vP}, v{vA}, v{vT0+2}, v{vC}")
        for e in range(1, 8): a(f"v_add_u32 v{vP+e}, v{vP+e-1}, v{vA}")
        G.cos_table(a, None, [vP+e for e in range(8)], ACC, ACC+4)
        a("s_lshl_b32 s24, s10, 11")
        a(f"v_add_u32 v{vT0+3}, s24, v{vL16}")
        a(f"ds_write_b128 v{vT0+3}, v[{ACC}:{ACC+3}] offset:{s*1024}")
    if WNODUP:
        a(f"v_lshlrev_b32 v{vT0+2}, 2, v{vG}")
        a(f"v_mad_u32_u24 v{vP}, v{vA}, v{vT0+2}, v{vC}")
        for e in range(1, 4): a(f"v_add_u32 v{vP+e}, v{vP+e-1}, v{vA}")
        for e in range(4):
            r = vP + e
            a(f"v_and_b32 v{r}, 127, v{r}"); a(f"v_cvt_f32_u32 v{r}, v{r}"); a(f"v_mul_f32 v{r}, 0x3c000000, v{r}"); a(f"v_cos_f32 v{r}, v{r}")
        for e in range(4):
            r = vP + e
            a(f"v_cvt_pk_bf16_f32 v{ACC+4}, v{r}, v{r}")
            a(f"v_lshlrev_b32 v{ACC+5}, 16, v{ACC+4}")
            a(f"v_sub_f32 v{ACC+5}, v{r}, v{ACC+5}")
            a(f"v_cvt_pk_bf16_f32 v{ACC+5}, v{ACC+5}, v{ACC+5}")
            a(f"v_perm_b32 v{ACC+e}, v{ACC+5}, v{ACC+4}, s30")
    else:
        a(f"v_and_b32 v{vT0+2}, 1, v{vG}")
        a(f"v_lshlrev_b32 v{vT0+2}, 3, v{vT0+2}")
        a(f"v_mad_u32_u24 v{vP}, v{vA}, v{vT0+2}, v{vC}")
        for e in range(1, 8): a(f"v_add_u32 v{vP+e}, v{vP+e-1}, v{vA}")
        a(f"v_cmp_lt_u32 s[26:27], 1, v{vG}")
        G.cos_table(a, None, [vP+e for e in range(8)], ACC, ACC+4, lo_sel=26)
    a("s_lshl_b32 s24, s10, 10")
    a(f"v_add_u32 v{vT0+3}, s24, v{vL16}")
    a(f"ds_write_b128 v{vT0+3}, v[{ACC}:{ACC+3}] offset:8192")
    a("s_waitcnt lgkmcnt(0)")
    a("s_barrier")
    a.label("L_k12_loop")
    a(f"s_cmp_ge_u32 s40, {NX}")
    a("s_cbranch_scc1 L_k12_w")
    def publish_next():
        a("s_cmp_lg_u32 s10, 0")
        a(f"s_cbranch_scc1 L_pub_{publish_next.n}")
        a(f"v_mov_b32 v{vNext}, 1")
        a("s_mov_b64 exec, 1")
        a(f"buffer_atomic_add v{vNext}, v{vZ}, s[44:47], 0 offen sc0 sc1")
        a("s_mov_b64 exec, -1")
        a.label(f"L_pub_{publish_next.n}")
        publish_next.n += 1
    publish_next.n = 0
    a("s_cmp_ge_u32 s40, 336")
    a("s_cselect_b32 s11, 1, 0")
    a("s_mul_i32 s12, s11, 336")
    a("s_sub_u32 s12, s40, s12")
    a("s_and_b32 s13, s12, 7")
    a("s_lshr_b32 s14, s12, 3")
    a("s_lshl_b32 s14, s14, 2")
    a("s_add_u32 s14, s14, s10")
    a(f"s_mul_i32 s15, s11, {G.X_BYTES_B}")
    a("s_add_u32 s34, s4, s15")
    a("s_addc_u32 s35, s5, 0")
    G.make_srd(a, 20, 34, 35, G.X_BYTES_B)
    a("s_mul_i32 s15, s14, %d" % (48 * 2048))
    a("s_lshl_b32 s24, s13, 8")
    a("s_add_u32 s15, s15, s24")
    a(f"v_lshlrev_b32 v{vOff}, 14, v{vG}")
    a(f"v_lshl_add_u32 v{vOff}, v{vR}, 4, v{vOff}")
    for s in range(2):
        for i in range(8):
            r = RAW + 4 * (8 * s + i)
            a(f"s_add_u32 s25, s15, {(32*s+i)*2048}")
            a(f"buffer_load_dwordx4 v[{r}:{r+3}], v{vOff}, s[20:23], s25 offen {cfg.get('k12_ld', '')}")
    for o in range(4):
        for s in range(2):
            r = AF + 4 * (2 * o + s)
            a(f"ds_read_b128 v[{r}:{r+3}], v{vL16} offset:{(2*o+s)*1024}")
    a("s_bfe_u32 s24, s14, 0x10003")
    a("s_mul_i32 s24, s24, 3")
    a(f"v_and_b32 v{vT0}, 3, v{vR}")
    a(f"v_xor_b32 v{vT0}, s24, v{vT0}")
    a(f"v_lshlrev_b32 v{vT0}, 4, v{vT0}")
    a(f"v_lshrrev_b32 v{vT0+1}, 2, v{vR}")
    a(f"s_mov_b32 s24, {G.XF_KS}")
    a(f"v_mad_u32_u24 v{vT0}, v{vT0+1}, s24, v{vT0}")
    a(f"s_mov_b32 s24, {2*G.XF_K}")
    a(f"v_mad_u32_u24 v{vSt}, v{vG}, s24, v{vT0}")
    a(f"s_mul_i32 s24, s11, {G.XF_B}")
    a(f"s_mul_i32 s25, s13, {4*G.XF_KS}")
    a("s_add_u32 s24, s24, s25")
    a("s_lshl_b32 s25, s14, 6")
    a("s_add_u32 s24, s24, s25")
    a(f"s_add_u32 s24, s24, {G.XF_BASE}")
    a("s_waitcnt vmcnt(0) lgkmcnt(0)")
    publish_next()
    def perms(q):
        for s in range(2):
            for h in range(2):
                for e in range(4):
                    d = BF + (s * 2 + h) * 4 + e
                    a(f"v_perm_b32 v{d}, v{RAW + 4*(8*s+2*e+1) + q}, v{RAW + 4*(8*s+2*e) + q}, s{30+h}")
    def mfmas():
        for s in range(2):
            for o in range(4):
                for h in range(2):
                    d = ACC + (o * 2 + h) * 4
                    A = AF + 4 * (2 * o + s); B = BF + (s * 2 + h) * 4
                    c = "0" if s == 0 else f"v[{d}:{d+3}]"
                    a(f"v_mfma_f32_16x16x32_bf16 v[{d}:{d+3}], v[{A}:{A+3}], v[{B}:{B+3}], {c}")
    def cvts(q):
        for o in range(4):
            for rp in range(4):
                a(f"v_cvt_pk_bf16_f32 v{RAW + 4*(4*o+rp) + q}, v{ACC+(o*2)*4+rp}, v{ACC+(o*2+1)*4+rp}")
    perms(0)
    for q in range(4):
        mfmas()
        if q < 3: perms(q + 1)
        cvts(q)
    for o in range(4):
        for rp in range(4):
            off = (8 * o + (rp >> 1)) * G.XF_K + (rp & 1) * (G.ROWS * 64)
            a(f"s_add_u32 s25, s24, {off}")
            r = RAW + 4 * (4 * o + rp)
            a(f"buffer_store_dwordx4 v[{r}:{r+3}], v{vSt}, s[16:19], s25 offen {st}")
    a("s_branch L_k12_next")
    a.label("L_k12_w")
    a(f"s_sub_u32 s12, s40, {NX}")
    a("s_and_b32 s13, s12, 3")
    a("s_lshr_b32 s14, s12, 2")
    a("s_lshl_b32 s14, s14, 2")
    a("s_add_u32 s14, s14, s10")
    G.make_srd(a, 20, 6, 7, G.W_BYTES)
    if WNODUP:
        a(f"v_lshlrev_b32 v{vOff}, 22, v{vG}")
    else:
        a(f"v_and_b32 v{vT0}, 1, v{vG}")
        a(f"v_lshlrev_b32 v{vOff}, 23, v{vT0}")
    a(f"v_lshrrev_b32 v{vT0}, 2, v{vR}")
    a(f"v_lshl_add_u32 v{vOff}, v{vT0}, 6, v{vOff}")
    a(f"v_and_b32 v{vT0}, 1, v{vR}")
    a(f"v_lshl_add_u32 v{vOff}, v{vT0}, 5, v{vOff}")
    a(f"v_bfe_u32 v{vT0}, v{vR}, 1, 1")
    a(f"v_lshl_add_u32 v{vOff}, v{vT0}, 3, v{vOff}")
    a("s_lshl_b32 s15, s14, 10")
    a("s_lshl_b32 s24, s13, 8")
    a("s_add_u32 s15, s15, s24")
    for i in range(4 if WNODUP else 8):
        r = RAW + 4 * i
        a(f"s_add_u32 s25, s15, {i << 20}")
        a(f"buffer_load_dwordx2 v[{r}:{r+1}], v{vOff}, s[20:23], s25 offen {cfg.get('k12_ld', '')}")
        a(f"buffer_load_dwordx2 v[{r+2}:{r+3}], v{vOff}, s[20:23], s25 offen offset:16 {cfg.get('k12_ld', '')}")
    for o in range(4):
        r = AF + 4 * o
        a(f"ds_read_b128 v[{r}:{r+3}], v{vL16} offset:{8192+o*1024}")
    a("s_and_b32 s24, s14, 3")
    a("s_bfe_u32 s25, s14, 0x10003")
    a("s_lshl_b32 s25, s25, 2")
    a("s_or_b32 s24, s24, s25")
    a("s_lshl_b32 s24, s24, 1")
    a(f"v_xor_b32 v{vT0}, s24, v{vR}")
    a(f"v_lshlrev_b32 v{vT0}, 4, v{vT0}")
    a(f"s_mov_b32 s25, {2*G.WF_K}")
    a(f"v_mul_u32_u24 v{vSt}, s25, v{vG}")
    a(f"v_add_u32 v{vSt}, v{vSt}, v{vT0}")
    a(f"s_mul_i32 s24, s13, {G.WF_DQ}")
    a("s_lshr_b32 s25, s14, 5")
    a(f"s_mul_i32 s25, s25, {G.WF_KS}")
    a("s_add_u32 s24, s24, s25")
    a("s_and_b32 s25, s14, 31")
    a("s_lshl_b32 s25, s25, 8")
    a("s_add_u32 s24, s24, s25")
    if G.WF_BASE: a(f"s_add_u32 s24, s24, {G.WF_BASE}")
    a("s_waitcnt vmcnt(0) lgkmcnt(0)")
    publish_next()
    FR = 32
    for dd in range(8):
        q = dd >> 1; h = dd & 1
        for e in range(4):
            if WNODUP:
                a(f"v_perm_b32 v{FR+4*dd+e}, v{RAW+4*e+q}, v{RAW+4*e+q}, s{32+h}")
            else:
                a(f"v_perm_b32 v{FR+4*dd+e}, v{RAW+4*(2*e+1)+q}, v{RAW+4*(2*e)+q}, s{30+h}")
    for o in range(4):
        A = AF + 4 * o
        for dd in range(8):
            d = ACC + 4 * dd
            a(f"v_mfma_f32_16x16x32_bf16 v[{d}:{d+3}], v[{A}:{A+3}], v[{FR+4*dd}:{FR+4*dd+3}], 0")
        ob = RAW + 16 * (o & 1)
        for rp in range(4):
            for q in range(4):
                a(f"v_cvt_pk_bf16_f32 v{ob+4*rp+q}, v{ACC+8*q+rp}, v{ACC+8*q+4+rp}")
        for rp in range(4):
            off = (8 * o + (rp >> 1)) * G.WF_K + (rp & 1) * 8192
            a(f"s_add_u32 s25, s24, {off}")
            r = ob + 4 * rp
            a(f"buffer_store_dwordx4 v[{r}:{r+3}], v{vSt}, s[16:19], s25 offen {st}")
    a.label("L_k12_next")
    a("s_cmp_lg_u32 s10, 0")
    a("s_cbranch_scc1 L_k12_nopub")
    a("s_waitcnt vmcnt(16)")
    a(f"v_add_u32 v{vNext}, {NWG}, v{vNext}")
    a(f"v_mov_b32 v{vT0}, s41")
    a("s_mov_b64 exec, 1")
    a(f"ds_write_b32 v{vT0}, v{vNext} offset:12288")
    a("s_mov_b64 exec, -1")
    a.label("L_k12_nopub")
    a("s_waitcnt lgkmcnt(0)")
    a("s_barrier")
    a(f"v_mov_b32 v{vT0}, s41")
    a(f"ds_read_b32 v{vT0+1}, v{vT0} offset:12288")
    a("s_xor_b32 s41, s41, 4")
    a("s_waitcnt lgkmcnt(0)")
    a(f"v_readfirstlane_b32 s40, v{vT0+1}")
    a(f"s_cmp_lt_u32 s40, {NX + NW}")
    a("s_cbranch_scc1 L_k12_loop")
    a.label("L_k12_end")
    a("s_endpgm")
    return name, a.lines, NV, (NWG, 256, 12288 + 64)
```

```python
from asmlib import *
import gen as G

def gen_k12q(cfg=None):
    cfg = cfg or G.CFG
    a = Asm()
    name = 'xform_kernel'
    G.kernel_header(a, name)
    NX = 2 * G.NGRP * 8
    NW = 1024
    NT = NX + NW
    NWG = cfg.get('k12_nwg', 256)
    st = cfg['k12_st']; ld = cfg.get('k12_ld', '')
    BUF = [0, 64]; AF = 128; BF = 160; ACC = 176; VT = 208
    vLane = VT; vR = VT+1; vG = VT+2; vOff = VT+3; vSt = VT+4; vT0 = VT+5
    vNext = VT + 13; vZ = VT + 14; vL16 = VT + 15
    vXo = VT + 16; vWo = VT + 17; vXs = VT + 18; vWs = VT + 19
    NV = 232
    sCur, sNxt = 40, 42
    a(f"s_cmp_ge_u32 s2, {NWG}")
    a("s_cbranch_scc1 L_k12_end")
    a("s_load_dwordx4 s[4:7], s[0:1], 0")
    a("s_load_dwordx4 s[36:39], s[0:1], 40")
    a(f"v_and_b32 v{vLane}, 63, v0")
    a(f"v_lshrrev_b32 v{vT0}, 6, v0")
    a(f"v_and_b32 v{vR}, 15, v{vLane}")
    a(f"v_readfirstlane_b32 s10, v{vT0}")
    a(f"v_lshrrev_b32 v{vG}, 4, v{vLane}")
    a(f"v_lshlrev_b32 v{vL16}, 4, v{vLane}")
    a(f"v_mov_b32 v{vZ}, 0")
    a("s_mov_b32 s30, 0x05040100")
    a("s_mov_b32 s31, 0x07060302")
    a("s_mov_b32 s32, 0x01000100")
    a("s_mov_b32 s33, 0x03020302")
    a(f"s_mov_b32 s{sCur}, s2")
    a(f"s_add_u32 s{sNxt}, s2, {NWG}")
    a("s_mov_b32 s41, 0")
    remap_later = True
    a("s_mov_b32 s43, 0")
    a(f"v_lshlrev_b32 v{vXo}, 14, v{vG}")
    a(f"v_lshl_add_u32 v{vXo}, v{vR}, 4, v{vXo}")
    a(f"v_lshlrev_b32 v{vWo}, 22, v{vG}")
    a(f"v_lshrrev_b32 v{vT0}, 2, v{vR}")
    a(f"v_lshl_add_u32 v{vWo}, v{vT0}, 6, v{vWo}")
    a(f"v_and_b32 v{vT0}, 1, v{vR}")
    a(f"v_lshl_add_u32 v{vWo}, v{vT0}, 5, v{vWo}")
    a(f"v_bfe_u32 v{vT0}, v{vR}, 1, 1")
    a(f"v_lshl_add_u32 v{vWo}, v{vT0}, 3, v{vWo}")
    a(f"v_lshrrev_b32 v{vT0}, 2, v{vR}")
    a(f"s_mov_b32 s24, {G.XF_KS}")
    a(f"v_mul_u32_u24 v{vXs}, s24, v{vT0}")
    a(f"s_mov_b32 s24, {2*G.XF_K}")
    a(f"v_mad_u32_u24 v{vXs}, v{vG}, s24, v{vXs}")
    a(f"s_mov_b32 s24, {2*G.WF_K}")
    a(f"v_mul_u32_u24 v{vWs}, s24, v{vG}")
    a("s_waitcnt lgkmcnt(0)")
    G.make_srd(a, 16, 38, 39, G.WS_BYTES)
    G.make_srd(a, 44, 36, 37, 256)
    uid = [0]
    MIX = cfg.get('k12_mix')
    def remap(sr):
        if not MIX: return
        u = uid[0]; uid[0] += 1
        if MIX >= 3:
            a(f"s_cmp_ge_u32 s{sr}, {2*NX}")
            a(f"s_cbranch_scc1 L_rm{u}")
            a(f"s_lshr_b32 s28, s{sr}, 1")
            a(f"s_add_u32 s29, s28, {NX}")
            a(f"s_bitcmp1_b32 s{sr}, 0")
            if MIX == 3: a(f"s_cselect_b32 s{sr}, s29, s28")
            else: a(f"s_cselect_b32 s{sr}, s28, s29")
            a.label(f"L_rm{u}")
            return
        a(f"s_cmp_ge_u32 s{sr}, 1680")
        a(f"s_cbranch_scc1 L_rm{u}")
        a(f"s_mul_i32 s26, s{sr}, 52429")
        a("s_lshr_b32 s26, s26, 18")
        a("s_mul_i32 s27, s26, 5")
        a(f"s_sub_u32 s27, s{sr}, s27")
        if MIX == 1:
            a("s_lshl_b32 s28, s26, 1"); a("s_add_u32 s28, s28, s27")
            a("s_mul_i32 s29, s26, 3"); a("s_add_u32 s29, s29, s27"); a(f"s_add_u32 s29, s29, {NX-2}")
            a("s_cmp_lt_u32 s27, 2")
        else:
            a("s_lshr_b32 s28, s27, 1"); a("s_lshl_b32 s29, s26, 1"); a("s_add_u32 s28, s28, s29")
            a("s_add_u32 s29, s27, 1"); a("s_lshr_b32 s29, s29, 1"); a("s_mul_i32 s27, s26, 3") if False else None
            a("s_mul_i32 s35, s26, 3"); a("s_add_u32 s29, s29, s35"); a(f"s_add_u32 s29, s29, {NX}")
            a("s_sub_u32 s29, s29, 0")
            a("s_bitcmp1_b32 s27, 0")
        a(f"s_cselect_b32 s{sr}, s28, s29")
        a.label(f"L_rm{u}")
    def issue_loads(sIdx, buf):
        u = uid[0]; uid[0] += 1
        a(f"s_cmp_ge_u32 s{sIdx}, {NT}")
        a(f"s_cbranch_scc1 L_ld_done{u}")
        a(f"s_cmp_ge_u32 s{sIdx}, {NX}")
        a(f"s_cbranch_scc1 L_ld_w{u}")
        a(f"s_cmp_ge_u32 s{sIdx}, 336")
        a("s_cselect_b32 s11, 1, 0")
        a("s_mul_i32 s12, s11, 336")
        a(f"s_sub_u32 s12, s{sIdx}, s12")
        a("s_and_b32 s13, s12, 7")
        a("s_lshr_b32 s14, s12, 3")
        a("s_lshl_b32 s14, s14, 2")
        a("s_add_u32 s14, s14, s10")
        a(f"s_mul_i32 s15, s11, {G.X_BYTES_B}")
        a("s_add_u32 s34, s4, s15")
        a("s_addc_u32 s35, s5, 0")
        G.make_srd(a, 20, 34, 35, G.X_BYTES_B)
        a("s_mul_i32 s15, s14, %d" % (48 * 2048))
        a("s_lshl_b32 s24, s13, 8")
        a("s_add_u32 s15, s15, s24")
        for s in range(2):
            for i in range(8):
                r = buf + 4 * (8 * s + i)
                a(f"s_add_u32 s25, s15, {(32*s+i)*2048}")
                a(f"buffer_load_dwordx4 v[{r}:{r+3}], v{vXo}, s[20:23], s25 offen {ld}")
        a(f"s_branch L_ld_done{u}")
        a.label(f"L_ld_w{u}")
        a(f"s_sub_u32 s12, s{sIdx}, {NX}")
        a("s_and_b32 s13, s12, 3")
        a("s_lshr_b32 s14, s12, 2")
        a("s_lshl_b32 s14, s14, 2")
        a("s_add_u32 s14, s14, s10")
        G.make_srd(a, 20, 6, 7, G.W_BYTES)
        a("s_lshl_b32 s15, s14, 10")
        a("s_lshl_b32 s24, s13, 8")
        a("s_add_u32 s15, s15, s24")
        for i in range(4):
            r = buf + 4 * i
            a(f"s_add_u32 s25, s15, {i << 20}")
            a(f"buffer_load_dwordx2 v[{r}:{r+1}], v{vWo}, s[20:23], s25 offen {ld}")
            a(f"buffer_load_dwordx2 v[{r+2}:{r+3}], v{vWo}, s[20:23], s25 offen offset:16 {ld}")
        a.label(f"L_ld_done{u}")
    remap(sCur); remap(sNxt)
    issue_loads(sCur, BUF[0])
    vA = vT0; vC = vT0+1; vP = BF
    a(f"v_lshrrev_b32 v{vA}, 2, v{vR}")
    a(f"v_lshlrev_b32 v{vA}, 1, v{vA}")
    a(f"v_bfe_u32 v{vC}, v{vR}, 1, 1")
    a(f"v_add_u32 v{vA}, v{vA}, v{vC}")
    a("s_lshl_b32 s24, s10, 3")
    a(f"v_add_u32 v{vA}, s24, v{vA}")
    a(f"v_lshl_add_u32 v{vA}, v{vA}, 1, 1")
    a(f"v_and_b32 v{vC}, 1, v{vR}")
    a(f"v_lshlrev_b32 v{vC}, 5, v{vC}")
    for s in range(2):
        a(f"v_lshlrev_b32 v{vT0+2}, 3, v{vG}")
        if s: a(f"v_add_u32 v{vT0+2}, 32, v{vT0+2}")
        a(f"v_mad_u32_u24 v{vP}, v{vA}, v{vT0+2}, v{vC}")
        for e in range(1, 8): a(f"v_add_u32 v{vP+e}, v{vP+e-1}, v{vA}")
        G.cos_table(a, None, [vP+e for e in range(8)], ACC, ACC+4)
        a("s_lshl_b32 s24, s10, 11")
        a(f"v_add_u32 v{vT0+3}, s24, v{vL16}")
        a(f"ds_write_b128 v{vT0+3}, v[{ACC}:{ACC+3}] offset:{s*1024}")
    a(f"v_lshlrev_b32 v{vT0+2}, 2, v{vG}")
    a(f"v_mad_u32_u24 v{vP}, v{vA}, v{vT0+2}, v{vC}")
    for e in range(1, 4): a(f"v_add_u32 v{vP+e}, v{vP+e-1}, v{vA}")
    for e in range(4):
        r = vP + e
        a(f"v_and_b32 v{r}, 127, v{r}"); a(f"v_cvt_f32_u32 v{r}, v{r}"); a(f"v_mul_f32 v{r}, 0x3c000000, v{r}"); a(f"v_cos_f32 v{r}, v{r}")
    for e in range(4):
        r = vP + e
        a(f"v_cvt_pk_bf16_f32 v{ACC+4}, v{r}, v{r}")
        a(f"v_lshlrev_b32 v{ACC+5}, 16, v{ACC+4}")
        a(f"v_sub_f32 v{ACC+5}, v{r}, v{ACC+5}")
        a(f"v_cvt_pk_bf16_f32 v{ACC+5}, v{ACC+5}, v{ACC+5}")
        a(f"v_perm_b32 v{ACC+e}, v{ACC+5}, v{ACC+4}, s30")
    a("s_lshl_b32 s24, s10, 10")
    a(f"v_add_u32 v{vT0+3}, s24, v{vL16}")
    a(f"ds_write_b128 v{vT0+3}, v[{ACC}:{ACC+3}] offset:8192")
    a("s_waitcnt lgkmcnt(0)")
    a("s_barrier")
    a.label("L_k12_loop")
    for p in range(2):
        buf = BUF[p]; nbuf = BUF[p ^ 1]
        a("s_cmp_lg_u32 s10, 0")
        a(f"s_cbranch_scc1 L_nofetch{p}")
        a(f"v_mov_b32 v{vNext}, 1")
        a("s_mov_b64 exec, 1")
        a(f"buffer_atomic_add v{vNext}, v{vZ}, s[44:47], 0 offen sc0 sc1")
        a("s_mov_b64 exec, -1")
        a.label(f"L_nofetch{p}")
        issue_loads(sNxt, nbuf)
        def counted(tag, base):
            a(f"s_cmp_ge_u32 s{sNxt}, {NT}")
            a(f"s_cbranch_scc1 L_w0_{tag}")
            a(f"s_cmp_ge_u32 s{sNxt}, {NX}")
            a(f"s_cbranch_scc1 L_w8_{tag}")
            a(f"s_waitcnt vmcnt({base+16})")
            a(f"s_branch L_wd_{tag}")
            a.label(f"L_w8_{tag}")
            a(f"s_waitcnt vmcnt({base+8})")
            a(f"s_branch L_wd_{tag}")
            a.label(f"L_w0_{tag}")
            a(f"s_waitcnt vmcnt({base})")
            a.label(f"L_wd_{tag}")
        if p == 0:
            a("s_cmp_lg_u32 s43, 0")
            a("s_cbranch_scc1 L_notfirst")
            counted("f", 0)
            a("s_mov_b32 s43, 1")
            a("s_branch L_wfin")
            a.label("L_notfirst")
            counted("a0", 16)
            a.label("L_wfin")
        else:
            counted("a1", 16)
        a(f"s_cmp_ge_u32 s{sCur}, {NX}")
        a(f"s_cbranch_scc1 L_cw{p}")
        a(f"s_cmp_ge_u32 s{sCur}, 336")
        a("s_cselect_b32 s11, 1, 0")
        a("s_mul_i32 s12, s11, 336")
        a(f"s_sub_u32 s12, s{sCur}, s12")
        a("s_and_b32 s13, s12, 7")
        a("s_lshr_b32 s14, s12, 3")
        a("s_lshl_b32 s14, s14, 2")
        a("s_add_u32 s14, s14, s10")
        for o in range(4):
            for s in range(2):
                r = AF + 4 * (2 * o + s)
                a(f"ds_read_b128 v[{r}:{r+3}], v{vL16} offset:{(2*o+s)*1024}")
        a("s_bfe_u32 s24, s14, 0x10003")
        a("s_mul_i32 s24, s24, 3")
        a(f"v_and_b32 v{vT0}, 3, v{vR}")
        a(f"v_xor_b32 v{vT0}, s24, v{vT0}")
        a(f"v_lshl_add_u32 v{vSt}, v{vT0}, 4, v{vXs}")
        a(f"s_mul_i32 s24, s11, {G.XF_B}")
        a(f"s_mul_i32 s25, s13, {4*G.XF_KS}")
        a("s_add_u32 s24, s24, s25")
        a("s_lshl_b32 s25, s14, 6")
        a("s_add_u32 s24, s24, s25")
        a(f"s_add_u32 s24, s24, {G.XF_BASE}")
        def perms(q):
            for s in range(2):
                for h in range(2):
                    for e in range(4):
                        d = BF + (s * 2 + h) * 4 + e
                        a(f"v_perm_b32 v{d}, v{buf + 4*(8*s+2*e+1) + q}, v{buf + 4*(8*s+2*e) + q}, s{30+h}")
        def mfmas():
            for s in range(2):
                for o in range(4):
                    for h in range(2):
                        d = ACC + (o * 2 + h) * 4
                        A = AF + 4 * (2 * o + s); B = BF + (s * 2 + h) * 4
                        c = "0" if s == 0 else f"v[{d}:{d+3}]"
                        a(f"v_mfma_f32_16x16x32_bf16 v[{d}:{d+3}], v[{A}:{A+3}], v[{B}:{B+3}], {c}")
        def cvts(q):
            for o in range(4):
                for rp in range(4):
                    a(f"v_cvt_pk_bf16_f32 v{buf + 4*(4*o+rp) + q}, v{ACC+(o*2)*4+rp}, v{ACC+(o*2+1)*4+rp}")
        perms(0)
        a("s_waitcnt lgkmcnt(0)")
        for q in range(4):
            mfmas()
            if q < 3: perms(q + 1)
            cvts(q)
        for o in range(4):
            for rp in range(4):
                off = (8 * o + (rp >> 1)) * G.XF_K + (rp & 1) * (G.ROWS * 64)
                a(f"s_add_u32 s25, s24, {off}")
                r = buf + 4 * (4 * o + rp)
                a(f"buffer_store_dwordx4 v[{r}:{r+3}], v{vSt}, s[16:19], s25 offen {st}")
        a(f"s_branch L_next{p}")
        a.label(f"L_cw{p}")
        a(f"s_sub_u32 s12, s{sCur}, {NX}")
        a("s_and_b32 s13, s12, 3")
        a("s_lshr_b32 s14, s12, 2")
        a("s_lshl_b32 s14, s14, 2")
        a("s_add_u32 s14, s14, s10")
        for o in range(4):
            r = AF + 4 * o
            a(f"ds_read_b128 v[{r}:{r+3}], v{vL16} offset:{8192+o*1024}")
        a("s_and_b32 s24, s14, 3")
        a("s_bfe_u32 s25, s14, 0x10003")
        a("s_lshl_b32 s25, s25, 2")
        a("s_or_b32 s24, s24, s25")
        a("s_lshl_b32 s24, s24, 1")
        a(f"v_xor_b32 v{vT0}, s24, v{vR}")
        a(f"v_lshl_add_u32 v{vSt}, v{vT0}, 4, v{vWs}")
        a(f"s_mul_i32 s24, s13, {G.WF_DQ}")
        a("s_lshr_b32 s25, s14, 5")
        a(f"s_mul_i32 s25, s25, {G.WF_KS}")
        a("s_add_u32 s24, s24, s25")
        a("s_and_b32 s25, s14, 31")
        a("s_lshl_b32 s25, s25, 8")
        a("s_add_u32 s24, s24, s25")
        if G.WF_BASE: a(f"s_add_u32 s24, s24, {G.WF_BASE}")
        FR = buf + 16
        for dd in range(8):
            q = dd >> 1; h = dd & 1
            for e in range(4):
                a(f"v_perm_b32 v{FR+4*dd+e}, v{buf+4*e+q}, v{buf+4*e+q}, s{32+h}")
        a("s_waitcnt lgkmcnt(0)")
        for o in range(4):
            A = AF + 4 * o
            for dd in range(8):
                d = ACC + 4 * dd
                a(f"v_mfma_f32_16x16x32_bf16 v[{d}:{d+3}], v[{A}:{A+3}], v[{FR+4*dd}:{FR+4*dd+3}], 0")
            ob = (buf if (o & 1) == 0 else buf + 48)
            for rp in range(4):
                for q in range(4):
                    a(f"v_cvt_pk_bf16_f32 v{ob+4*rp+q}, v{ACC+8*q+rp}, v{ACC+8*q+4+rp}")
            for rp in range(4):
                off = (8 * o + (rp >> 1)) * G.WF_K + (rp & 1) * 8192
                a(f"s_add_u32 s25, s24, {off}")
                r = ob + 4 * rp
                a(f"buffer_store_dwordx4 v[{r}:{r+3}], v{vSt}, s[16:19], s25 offen {st}")
        a.label(f"L_next{p}")
        a("s_cmp_lg_u32 s10, 0")
        a(f"s_cbranch_scc1 L_pub{p}")
        counted(f"p{p}", 16)
        a(f"v_add_u32 v{vNext}, {2*NWG}, v{vNext}")
        a(f"v_mov_b32 v{vT0}, s41")
        a("s_mov_b64 exec, 1")
        a(f"ds_write_b32 v{vT0}, v{vNext} offset:12288")
        a("s_mov_b64 exec, -1")
        a.label(f"L_pub{p}")
        a("s_waitcnt lgkmcnt(0)")
        a("s_barrier")
        a(f"v_mov_b32 v{vT0}, s41")
        a(f"ds_read_b32 v{vT0+1}, v{vT0} offset:12288")
        a("s_xor_b32 s41, s41, 4")
        a(f"s_mov_b32 s{sCur}, s{sNxt}")
        a("s_waitcnt lgkmcnt(0)")
        a(f"v_readfirstlane_b32 s{sNxt}, v{vT0+1}")
        remap(sNxt)
        a(f"s_cmp_ge_u32 s{sCur}, {NT}")
        a("s_cbranch_scc1 L_k12_end")
    a("s_branch L_k12_loop")
    a.label("L_k12_end")
    a("s_endpgm")
    return name, a.lines, NV, (NWG, 256, 12288 + 64)
```

```python
from asmlib import *
import gen as G
from gen_k3 import LQ, NSTAGE
XC = 11264
STAGE = 16384 + 2 * XC
LDS_BYTES = STAGE * NSTAGE

T = 11
ACC = 0
WA = 176; WB = 192; NW = 208
XR = 216
vWa = 248; vXa = 250; vSt = 251; vSt2 = 252; vT = 253

def acc(i, c, t): return ACC + ((i * 2 + c) * 2 + t) * 4 if i < 10 else ACC + 160 + 4 * c
def wf(p, which): return (WA if p == 0 else WB) + which * 4
def nw(t): return NW + 4 * t
def xr(slot, c): return XR + slot * 8 + c * 4
def mf(d, A, B): return f"v_mfma_f32_16x16x32_bf16 v[{d}:{d+3}], v[{A}:{A+3}], v[{B}:{B+3}], v[{d}:{d+3}]"

def gemm_wave(a, cfg):
    lq = LQ(a)
    def x_read(step, i, slot):
        for c in range(2):
            r = xr(slot, c)
            off = 16384 + c * XC + i * 1024
            a(f"ds_read_b128 v[{r}:{r+3}], v{vXa} offset:{off}")
            lq.issue(('x', step, i))
    def w_read(step, c):
        p = step & 1
        for t in range(2):
            r = wf(p, c * 2 + t)
            for e in range(2):
                a(f"ds_read_b64_tr_b16 v[{r+2*e}:{r+2*e+1}], v{vWa+t} offset:{c*8192+e*1024}")
                lq.issue(('w', step))
    def w_xor(step):
        p = step & 1
        return [f"v_xor_b32 v{nw(t)+e}, 0x80008000, v{wf(p,2+t)+e}" for t in range(2) for e in range(4)]
    def bump(reg, step):
        d = STAGE if step % NSTAGE else -(NSTAGE - 1) * STAGE
        a(f"v_add_u32 v{reg}, {d & 0xffffffff:#x}, v{reg}")
    def step_code(s, tau0, barrier, nxt):
        p = s & 1
        if barrier:
            if G.CFG.get('gstamp'):
                a("s_memrealtime s[70:71]"); a("s_waitcnt lgkmcnt(0)")
                a("s_mov_b32 m0, s72"); a("v_writelane_b32 v255, s70, m0"); a("s_add_u32 s72, s72, 1")
            a("s_barrier")
            if G.CFG.get('gstamp'):
                a("s_memrealtime s[70:71]"); a("s_waitcnt lgkmcnt(0)")
                a("s_mov_b32 m0, s72"); a("v_writelane_b32 v255, s70, m0"); a("s_add_u32 s72, s72, 1")
        for i in range(T):
            tau = tau0 + i
            slot = tau % 4
            lq.wait(('x', s, i))
            if i < 10:
                ms = [mf(acc(i,0,0), wf(p,0), xr(slot,0)), mf(acc(i,0,1), wf(p,1), xr(slot,0)),
                      mf(acc(i,1,0), nw(0), xr(slot,0)), mf(acc(i,1,1), nw(1), xr(slot,0)),
                      mf(acc(i,0,0), wf(p,2), xr(slot,1)), mf(acc(i,0,1), wf(p,3), xr(slot,1)),
                      mf(acc(i,1,0), wf(p,0), xr(slot,1)), mf(acc(i,1,1), wf(p,1), xr(slot,1))]
            else:
                ms = [mf(acc(i,0,0), wf(p,0), xr(slot,0)), mf(acc(i,1,0), nw(0), xr(slot,0)),
                      mf(acc(i,0,0), wf(p,2), xr(slot,1)), mf(acc(i,1,0), wf(p,0), xr(slot,1))]
            xors = []
            for m in range(len(ms)):
                a(ms[m])
                if m == 0:
                    if i + 2 < T: x_read(s, i + 2, (tau + 2) % 4)
                    elif nxt:
                        if i + 2 == T: bump(vXa, s + 1)
                        x_read(s + 1, i + 2 - T, (tau + 2) % 4)
                if nxt and i == T - 6 and m == 4:
                    bump(vWa, s + 1); bump(vWa + 1, s + 1)
                if m == 3 and nxt and i == T - 5: w_read(s + 1, 0)
                if m == 3 and nxt and i == T - 4: w_read(s + 1, 1)
                if nxt and i == T - 2 and m == 4:
                    lq.wait(('w', s + 1))
                    xors = w_xor(s + 1)[4:]
                if nxt and i == T - 1 and m == 1:
                    xors = w_xor(s + 1)[:4]
                for _ in range(2):
                    if xors: a(xors.pop(0))
            for x in xors: a(x)
    if G.CFG.get('gstamp'):
        a("s_mov_b32 s72, 0"); a("v_mov_b32 v255, 0")
    for r in range(168): a(f"v_mov_b32 v{ACC+r}, 0")
    a("s_barrier")
    w_read(0, 0); w_read(0, 1)
    x_read(0, 0, 0); x_read(0, 1, 1)
    lq.wait(('w', 0))
    for x in w_xor(0): a(x)
    a("s_mov_b32 s46, 7")
    a.label("L_g_loop")
    q0 = list(lq.q)
    for u in range(4):
        step_code(u, u * T, True, True)
    q1 = [(t[0], t[1] - 4) + tuple(t[2:]) for t in lq.q]
    assert q0[len(q0)-len(q1):] == q1, (q0, q1)
    a("s_sub_u32 s46, s46, 1")
    a("s_cmp_lg_u32 s46, 0")
    a("s_cbranch_scc1 L_g_loop")
    lq.q = [(t[0], t[1] + 24) + tuple(t[2:]) for t in lq.q]
    step_code(28, 0 * T, True, True)
    step_code(29, 1 * T, True, True)
    if not G.CFG.get('k3_tail', True):
        step_code(30, 2 * T, True, True)
        step_code(31, 3 * T, False, False)
        a("s_nop 7")
    else:
        a("s_barrier")
    NW2 = 168; vXb = 253
    def epi_list(i, bb):
        l = []
        if i < 10:
            for c in range(2):
                dA = acc(i, c, bb); dB = acc(i, c, 1 - bb)
                l += [f"v_cvt_pk_bf16_f32 v{dA}, v{dA}, v{dA+1}", f"v_cvt_pk_bf16_f32 v{dA+1}, v{dA+2}, v{dA+3}",
                      f"v_cvt_pk_bf16_f32 v{dA+2}, v{dB}, v{dB+1}", f"v_cvt_pk_bf16_f32 v{dA+3}, v{dB+2}, v{dB+3}",
                      f"s_add_u32 s47, s48, {c * G.YF_J + i * 16 * G.YF_ROW}",
                      f"buffer_store_dwordx4 v[{dA}:{dA+3}], v{vSt}, s[16:19], s47 offen {G.CFG['k3_st']}"]
        else:
            for c in range(2):
                d = acc(10, c, 0)
                l += [f"v_cvt_pk_bf16_f32 v{d}, v{d}, v{d+1}", f"v_cvt_pk_bf16_f32 v{d+1}, v{d+2}, v{d+3}",
                      f"s_add_u32 s47, s49, {c * G.YF_J}",
                      f"buffer_store_dwordx2 v[{d}:{d+1}], v{vSt2}, s[16:19], s47 offen {G.CFG['k3_st']}"]
        return l
    q_save = list(lq.q)
    for bb in range(2):
        if bb == 0:
            a("s_cmp_lg_u32 s13, 0"); a("s_cbranch_scc1 L_epi_b1")
        else:
            a.label("L_epi_b1")
        if not G.CFG.get('k3_tail', True):
            for i in range(T):
                for ins in epi_list(i, bb): a(ins)
        else:
            lq.q = list(q_save)
            bump(vWa, 31); bump(vWa + 1, 31)
            a(f"v_add_u32 v{vXb}, {STAGE}, v{vXa}")
            w_read(31, 0); w_read(31, 1)
            items = [(30, 0), (30, 1)]
            for i in range(T):
                if i + 2 < T: items.append((30, i + 2))
                items.append((31, i))
            def x_read2(step, i, slot):
                for c in range(2):
                    r = xr(slot, c)
                    off = 16384 + c * XC + i * 1024
                    a(f"ds_read_b128 v[{r}:{r+3}], v{vXa if step == 30 else vXb} offset:{off}")
                    lq.issue(('x', step, i))
            pend = []
            xored = False
            for n, (st, i) in enumerate(items):
                slot = (2 * T + n) % 4
                p = st & 1
                nwf = (lambda t: nw(t)) if st == 30 else (lambda t: NW2 + 4 * t)
                if st == 31 and not xored:
                    lq.wait(('w', 31))
                    for t in range(2):
                        for e in range(4): a(f"v_xor_b32 v{NW2+4*t+e}, 0x80008000, v{wf(1,2+t)+e}")
                    xored = True
                lq.wait(('x', st, i))
                if i < 10:
                    ms = [mf(acc(i,0,0), wf(p,0), xr(slot,0)), mf(acc(i,0,1), wf(p,1), xr(slot,0)),
                          mf(acc(i,1,0), nwf(0), xr(slot,0)), mf(acc(i,1,1), nwf(1), xr(slot,0)),
                          mf(acc(i,0,0), wf(p,2), xr(slot,1)), mf(acc(i,0,1), wf(p,3), xr(slot,1)),
                          mf(acc(i,1,0), wf(p,0), xr(slot,1)), mf(acc(i,1,1), wf(p,1), xr(slot,1))]
                else:
                    ms = [mf(acc(i,0,0), wf(p,0), xr(slot,0)), mf(acc(i,1,0), nwf(0), xr(slot,0)),
                          mf(acc(i,0,0), wf(p,2), xr(slot,1)), mf(acc(i,1,0), wf(p,0), xr(slot,1))]
                for m in range(len(ms)):
                    a(ms[m])
                    if m == 0 and n + 2 < len(items): x_read2(items[n + 2][0], items[n + 2][1], (2 * T + n + 2) % 4)
                    if m >= 1:
                        for _ in range(2):
                            if pend and pend[0][0] <= n - 1: a(pend.pop(0)[1])
                if st == 31:
                    pend += [(n + 1, ins) for ins in epi_list(i, bb)]
            a("s_nop 7")
            for _, ins in pend: a(ins)
        if bb == 0: a("s_branch L_epi_done")
    a.label("L_epi_done")
    if G.CFG.get('gstamp'):
        a("s_lshl_b32 s73, s2, 2"); a("s_add_u32 s73, s73, s15"); a("s_lshl_b32 s73, s73, 10")
        a(f"s_add_u32 s73, s73, {212 << 20}")
        a("v_mbcnt_lo_u32_b32 v254, -1, 0")
        a("v_mbcnt_hi_u32_b32 v254, -1, v254")
        a("v_lshlrev_b32 v254, 2, v254")
        a("buffer_store_dword v255, v254, s[16:19], s73 offen")
    a("s_endpgm")

def helper_wave(a, cfg):
    vDW = 1; vDX = 2
    sWo, sXo, sLW, sLX = 40, 41, 42, 43
    vD6 = 5; sX6 = 44
    def dma(buf):
        a(f"s_add_u32 m0, s{sLW}, {buf*STAGE}")
        for j in range(4):
            a(f"buffer_load_dwordx4 v{vDW}, s[16:19], s{sWo} offen offset:{j*1024} lds")
        a(f"s_add_u32 s{sWo}, s{sWo}, {G.WF_KS}")
        a(f"s_add_u32 m0, s{sLX}, {buf*STAGE}")
        for j in range(4):
            a(f"buffer_load_dwordx4 v{vDX}, s[16:19], s{sXo} offen offset:{j*1024} lds")
        a(f"s_add_u32 m0, s{sLX}, {buf*STAGE+4096}")
        a(f"s_add_u32 s49, s{sXo}, 4096")
        a(f"buffer_load_dwordx4 v{vDX}, s[16:19], s49 offen lds")
        a("s_mov_b64 exec, s[50:51]")
        a(f"buffer_load_dwordx4 v{vD6}, s[16:19], s{sX6} offen offset:1024 lds")
        a("s_mov_b64 exec, -1")
        a(f"s_add_u32 s{sXo}, s{sXo}, {G.XF_KS}")
        a(f"s_add_u32 s{sX6}, s{sX6}, {G.XF_KS}")
    for st in range(3): dma(st)
    a("s_waitcnt vmcnt(20)")
    a("s_barrier")
    a("s_mov_b32 s46, 7")
    a.label("L_h_loop")
    for u in range(4):
        a("s_waitcnt vmcnt(10)")
        a("s_barrier")
        dma((u + 3) % NSTAGE)
    a("s_sub_u32 s46, s46, 1")
    a("s_cmp_lg_u32 s46, 0")
    a("s_cbranch_scc1 L_h_loop")
    a("s_waitcnt vmcnt(10)"); a("s_barrier"); dma((28 + 3) % NSTAGE)
    a("s_waitcnt vmcnt(10)"); a("s_barrier")
    a("s_waitcnt vmcnt(0)"); a("s_barrier")
    a("s_endpgm")

def gen_k3c(cfg=None):
    a = Asm()
    name = 'gemm_kernel'
    G.kernel_header(a, name)
    a("s_cmp_ge_u32 s2, 256")
    a("s_cbranch_scc1 L_k3_end")
    a("s_load_dwordx2 s[8:9], s[0:1], 48")
    a(f"v_lshrrev_b32 v{vT}, 6, v0")
    a(f"v_and_b32 v0, 63, v0")
    a(f"v_readfirstlane_b32 s10, v{vT}")
    a("s_and_b32 s11, s2, 7")
    a("s_lshr_b32 s12, s2, 3")
    a("s_lshr_b32 s13, s12, 3")
    a("s_lshl_b32 s11, s11, 2")
    a("s_add_u32 s11, s11, s13")
    a("s_bfe_u32 s13, s12, 0x10002")
    a("s_and_b32 s14, s12, 3")
    a("s_and_b32 s15, s10, 3")
    a("s_waitcnt lgkmcnt(0)")
    G.make_srd(a, 16, 8, 9, G.WS_BYTES)
    a("s_cmp_ge_u32 s10, 4")
    a("s_cbranch_scc1 L_k3_helper")
    g = vT; c16 = vT + 1; t0 = vT + 2; t1 = XR; t2 = XR + 1
    a(f"v_lshrrev_b32 v{g}, 4, v0")
    a(f"v_and_b32 v{c16}, 15, v0")
    a(f"v_bfe_u32 v{t0}, v{c16}, 3, 1")
    a(f"v_mul_u32_u24 v{t0}, 3, v{t0}")
    a(f"v_xor_b32 v{t0}, v{t0}, v{g}")
    a(f"v_lshlrev_b32 v{t0}, 4, v{t0}")
    a(f"v_lshl_add_u32 v{vXa}, v{c16}, 6, v{t0}")
    a(f"v_lshrrev_b32 v{t0}, 2, v{c16}")
    a(f"v_and_b32 v{t1}, 1, v{g}")
    a(f"v_lshl_or_b32 v{t1}, v{t1}, 2, v{t0}")
    a(f"v_lshl_add_u32 v{t0}, v{g}, 3, v{t0}")
    a(f"v_lshlrev_b32 v{t0}, 8, v{t0}")
    a(f"v_and_b32 v{t2}, 3, v{c16}")
    a(f"v_lshl_add_u32 v{t0}, v{t2}, 3, v{t0}")
    a("s_lshl_b32 s20, s15, 1")
    a("s_add_u32 s20, s20, s13")
    for t in range(2):
        if t: a("s_xor_b32 s20, s20, 1")
        a(f"v_xor_b32 v{t2}, s20, v{t1}")
        a(f"v_lshl_add_u32 v{vWa+t}, v{t2}, 5, v{t0}")
    a(f"s_mov_b32 s21, {G.YF_ROW}")
    a(f"v_mul_u32_u24 v{vSt}, s21, v{c16}")
    a(f"v_lshl_add_u32 v{vSt}, v{g}, 4, v{vSt}")
    a("s_lshl_b32 s23, s15, 6")
    a(f"v_add_u32 v{vSt}, s23, v{vSt}")
    a(f"v_and_b32 v{t0}, 7, v{c16}")
    a(f"v_mul_u32_u24 v{vSt2}, s21, v{t0}")
    a(f"v_lshrrev_b32 v{t1}, 3, v{c16}")
    a(f"v_xor_b32 v{t1}, s13, v{t1}")
    a(f"s_mov_b32 s22, {G.YF_B}")
    a(f"v_mul_lo_u32 v{t1}, v{t1}, s22")
    a(f"v_add_u32 v{vSt2}, v{vSt2}, v{t1}")
    a(f"v_lshl_add_u32 v{vSt2}, v{g}, 4, v{vSt2}")
    a("s_lshl_b32 s22, s13, 3")
    a("s_add_u32 s22, s22, s23")
    a(f"v_add_u32 v{vSt2}, s22, v{vSt2}")
    a(f"v_cmp_gt_u32 vcc, 7, v{t0}")
    a(f"v_mov_b32 v{t1}, 0x80000000")
    a(f"v_cndmask_b32 v{vSt2}, v{t1}, v{vSt2}, vcc")
    a(f"s_mul_i32 s48, s11, {2*G.YF_J}")
    a("s_lshl_b32 s20, s14, 8")
    a("s_add_u32 s48, s48, s20")
    a(f"s_add_u32 s48, s48, {G.YF_BASE}")
    a(f"s_add_u32 s49, s48, {160*G.YF_ROW}")
    a(f"s_mul_i32 s20, s13, {G.YF_B}")
    a("s_add_u32 s48, s48, s20")
    gemm_wave(a, cfg)
    a.label("L_k3_helper")
    a(f"s_mul_i32 s40, s11, {G.WF_K}")
    a(f"s_mul_i32 s20, s14, {G.WF_DQ}")
    a("s_add_u32 s40, s40, s20")
    if G.WF_BASE: a(f"s_add_u32 s40, s40, {G.WF_BASE}")
    a(f"s_mul_i32 s41, s11, {G.XF_K}")
    a(f"s_mul_i32 s20, s13, {G.XF_B}")
    a("s_add_u32 s41, s41, s20")
    a(f"s_add_u32 s41, s41, {G.XF_BASE}")
    a("s_lshl_b32 s42, s15, 12")
    a("s_mul_i32 s43, s15, 5632")
    a("s_lshr_b32 s20, s15, 1")
    a("s_lshl_b32 s21, s20, 9")
    a("s_sub_u32 s21, s43, s21")
    a("v_lshlrev_b32 v1, 4, v0")
    a("v_add_u32 v2, s21, v1")
    a("s_add_u32 s22, s21, 4096")
    a("v_add_u32 v5, s22, v1")
    a("s_mov_b32 s44, s41")
    a("s_bitcmp1_b32 s15, 0")
    a("s_cbranch_scc0 L_six_even")
    a(f"s_mul_i32 s22, s20, 10752")
    a(f"s_add_u32 s22, s22, {10240-1024}")
    a("v_lshrrev_b32 v5, 2, v0"); a("v_lshlrev_b32 v5, 6, v5")
    a("v_and_b32 v3, 3, v0"); a("v_xor_b32 v3, 3, v3"); a("v_lshl_add_u32 v5, v3, 4, v5")
    a("v_add_u32 v5, s22, v5")
    a(f"s_mul_i32 s44, s11, {G.XF_K}")
    a("s_xor_b32 s22, s13, 1")
    a(f"s_mul_i32 s22, s22, {G.XF_B}")
    a("s_add_u32 s44, s44, s22")
    a(f"s_add_u32 s44, s44, {G.XF_BASE}")
    a.label("L_six_even")
    a("s_mov_b32 s50, -1"); a("s_mov_b32 s51, 0")
    a("v_add_u32 v1, s42, v1")
    a("s_add_u32 s43, s43, 16384")
    a("s_cmp_ge_u32 s2, 8"); a("s_cbranch_scc1 L_nozero")
    a("s_cmp_lg_u32 s15, 0"); a("s_cbranch_scc1 L_nozero")
    a(f"s_mul_i32 s20, s2, {G.CNT_STRIDE}"); a(f"s_add_u32 s20, s20, {G.CNT_BASE}")
    a("v_mov_b32 v3, 0"); a("v_lshlrev_b32 v4, 2, v0")
    a("buffer_store_dword v3, v4, s[16:19], s20 offen")
    a.label("L_nozero")
    helper_wave(a, cfg)
    a.label("L_k3_end")
    a("s_endpgm")
    return name, a.lines, 256, (256, 512, LDS_BYTES)
```

```python
from asmlib import *
import gen as G

RAW = 0
AF = 64
BF = 88
ACC = 104
VT = 200
VTID4 = 214

def common(a, tag, ngrp_wg, WPG=4):
    vLane = VT; vR = VT+1; vG = VT+2; vOff = VT+3; vT0 = VT+4
    NG = 168 // WPG
    a(f"s_cmp_ge_u32 s2, {2*NG*4}")
    a(f"s_cbranch_scc1 L_{tag}_end")
    a("s_load_dwordx4 s[4:7], s[0:1], 16")
    a("s_load_dwordx2 s[8:9], s[0:1], 48")
    a("s_load_dwordx2 s[28:29], s[0:1], 32")
    a(f"v_lshlrev_b32 v{VTID4}, 2, v0")
    a(f"v_and_b32 v{vLane}, 63, v0")
    a(f"v_lshrrev_b32 v{vT0}, 6, v0")
    a(f"v_and_b32 v{vR}, 15, v{vLane}")
    a(f"v_readfirstlane_b32 s10, v{vT0}")
    a(f"v_lshrrev_b32 v{vG}, 4, v{vLane}")
    a("s_mov_b32 s30, 0x05040100")
    a("s_mov_b32 s31, 0x07060302")
    a("s_and_b32 s13, s2, 3")
    a("s_lshr_b32 s12, s2, 2")
    a(f"s_cmp_ge_u32 s12, {NG}")
    a("s_cselect_b32 s11, 1, 0")
    a(f"s_mul_i32 s15, s11, {NG}")
    a("s_sub_u32 s12, s12, s15")
    a(f"s_mul_i32 s14, s12, {WPG}")
    a("s_add_u32 s14, s14, s10")
    a("s_waitcnt lgkmcnt(0)")
    G.make_srd(a, 16, 8, 9, G.WS_BYTES)
    a(f"s_mov_b32 s24, {8*G.YF_J}")
    a(f"v_mul_u32_u24 v{vOff}, s24, v{vG}")
    a(f"v_lshl_add_u32 v{vOff}, v{vR}, 4, v{vOff}")
    a(f"s_mul_i32 s24, s11, {G.YF_B}")
    a(f"s_mul_i32 s25, s14, {G.YF_ROW}")
    a("s_add_u32 s24, s24, s25")
    a("s_lshl_b32 s25, s13, 8")
    a("s_add_u32 s24, s24, s25")
    a(f"s_add_u32 s24, s24, {G.YF_BASE}")
    for s in range(2):
        for i in range(8):
            r = RAW + 4 * (8 * s + i)
            a(f"s_add_u32 s25, s24, {(32*s+i)*G.YF_J}")
            a(f"buffer_load_dwordx4 v[{r}:{r+3}], v{vOff}, s[16:19], s25 offen")
    a.c("G table: wave w<3 -> o = w")
    a("s_cmp_ge_u32 s10, 3")
    a(f"s_cbranch_scc1 L_{tag}_notab")
    vN = vT0; vA = vT0+1; vP = BF
    a("s_lshl_b32 s25, s10, 4")
    a(f"v_add_u32 v{vN}, s25, v{vR}")
    for s in range(2):
        a(f"v_lshlrev_b32 v{vA}, 3, v{vG}")
        a(f"v_add_u32 v{vA}, {32*s+1}, v{vA}")
        for e2 in range(4):
            a(f"v_mul_u32_u24 v{vP+2*e2}, v{vA}, v{vN}")
            a(f"v_add_u32 v{vP+2*e2+1}, 32, v{vP+2*e2}")
            if e2 < 3: a(f"v_add_u32 v{vA}, 2, v{vA}")
        G.cos_table(a, None, [vP+e for e in range(8)], ACC, ACC+4, scale="0x3d000000")
        a("s_lshl_b32 s25, s10, 11")
        a(f"v_lshlrev_b32 v{vT0+3}, 4, v{vLane}")
        a(f"v_add_u32 v{vT0+3}, s25, v{vT0+3}")
        a(f"ds_write_b128 v{vT0+3}, v[{ACC}:{ACC+3}] offset:{s*1024}")
    a.label(f"L_{tag}_notab")
    return dict(vLane=vLane, vR=vR, vG=vG, vOff=vOff, vT0=vT0)

def read_tables(a, R):
    vT0 = R['vT0']
    a(f"v_lshlrev_b32 v{vT0+3}, 4, v{R['vLane']}")
    for o in range(3):
        for s in range(2):
            r = AF + 4 * (2 * o + s)
            a(f"ds_read_b128 v[{r}:{r+3}], v{vT0+3} offset:{(2*o+s)*1024}")

def transform(a):
    def perms(q):
        for s in range(2):
            for h in range(2):
                for e in range(4):
                    d = BF + (s * 2 + h) * 4 + e
                    r0 = RAW + 4 * (8 * s + 2 * e) + q
                    r1 = RAW + 4 * (8 * s + 2 * e + 1) + q
                    a(f"v_perm_b32 v{d}, v{r1}, v{r0}, s{30+h}")
    for q in range(4):
        perms(q)
        for s in range(2):
            for o in range(3):
                for h in range(2):
                    dd = 2 * q + h
                    d = ACC + (o * 8 + dd) * 4
                    A = AF + 4 * (2 * o + s)
                    B = BF + (s * 2 + h) * 4
                    c = "0" if s == 0 else f"v[{d}:{d+3}]"
                    a(f"v_mfma_f32_16x16x32_bf16 v[{d}:{d+3}], v[{A}:{A+3}], v[{B}:{B+3}], {c}")

def hreg(o, dd, rp): return ACC + (o * 8 + dd) * 4 + rp

def gen_k4(cfg=None):
    a = Asm()
    name = 'stats_kernel'
    G.kernel_header(a, name)
    R = common(a, 'k4', 1)
    vLane, vR, vG, vT0 = R['vLane'], R['vR'], R['vG'], R['vT0']
    a("s_waitcnt lgkmcnt(0)")
    a("s_barrier")
    read_tables(a, R)
    S1 = RAW; S2 = RAW + 8
    a(f"s_cmp_ge_u32 s14, {G.NBLK}")
    a("s_cbranch_scc1 L_k4_zero")
    a("s_waitcnt lgkmcnt(0)")
    a(f"s_cmp_lg_u32 s14, {G.NBLK-1}")
    a("s_cbranch_scc1 L_k4_full")
    lastn = G.L_OUT - 48 * (G.NBLK - 1)
    for o in range(3):
        nvalid = lastn - 16 * o
        a(f"v_cmp_gt_i32 vcc, {max(nvalid,0)}, v{vR}")
        for r in range(8):
            a(f"v_cndmask_b32 v{AF+8*o+r}, 0, v{AF+8*o+r}, vcc")
    a.label("L_k4_full")
    a("s_waitcnt vmcnt(0)")
    transform(a)
    a("s_nop 7")
    for dd in range(8):
        first = True
        for o in range(3):
            for rp in range(4):
                h = hreg(o, dd, rp)
                if first:
                    a(f"v_mul_f32 v{S2+dd}, v{h}, v{h}")
                    a(f"v_mov_b32 v{S1+dd}, v{h}")
                    first = False
                else:
                    a(f"v_fmac_f32 v{S2+dd}, v{h}, v{h}")
                    a(f"v_add_f32 v{S1+dd}, v{S1+dd}, v{h}")
    a("s_branch L_k4_red")
    a.label("L_k4_zero")
    a("s_waitcnt vmcnt(0) lgkmcnt(0)")
    for r in range(16): a(f"v_mov_b32 v{RAW+r}, 0")
    a.label("L_k4_red")
    a("s_lshl_b32 s25, s10, 12")
    a(f"v_lshlrev_b32 v{vT0}, 10, v{vG}")
    a(f"v_lshl_add_u32 v{vT0}, v{vR}, 5, v{vT0}")
    a(f"v_add_u32 v{vT0}, s25, v{vT0}")
    a(f"ds_write_b128 v{vT0}, v[{S1}:{S1+3}] offset:8192")
    a(f"ds_write_b128 v{vT0}, v[{S1+4}:{S1+7}] offset:{8192+16}")
    a(f"ds_write_b128 v{vT0}, v[{S2}:{S2+3}] offset:{8192+512}")
    a(f"ds_write_b128 v{vT0}, v[{S2+4}:{S2+7}] offset:{8192+512+16}")
    a("s_waitcnt lgkmcnt(0)")
    a("s_barrier")
    for p in range(16):
        a(f"ds_read_b32 v{RAW+16+p}, v{VTID4} offset:{8192+p*1024}")
    a("s_waitcnt lgkmcnt(0)")
    for p in range(1, 16):
        a(f"v_add_f32 v{RAW+16}, v{RAW+16}, v{RAW+16+p}")
    a(f"s_mul_i32 s24, s11, {4*G.NGRP}")
    a(f"s_mul_i32 s25, s13, {G.NGRP}")
    a("s_add_u32 s24, s24, s25")
    a("s_add_u32 s24, s24, s12")
    a("s_lshl_b32 s24, s24, 10")
    a(f"s_add_u32 s24, s24, {G.PART_BASE}")
    a(f"buffer_store_dword v{RAW+16}, v{VTID4}, s[16:19], s24 offen")
    a.label("L_k4_end")
    a("s_endpgm")
    return name, a.lines, 216, (2 * G.NGRP * 4, 256, 8192 + 16384)

def gen_k5(cfg=None):
    a = Asm()
    name = 'final_kernel'
    G.kernel_header(a, name)
    R = common(a, 'k5', 1)
    vLane, vR, vG, vT0 = R['vLane'], R['vR'], R['vG'], R['vT0']
    PT = ACC + 8
    a(f"s_mul_i32 s24, s11, {4*G.NGRP}")
    a(f"s_mul_i32 s25, s13, {G.NGRP}")
    a("s_add_u32 s24, s24, s25")
    a("s_lshl_b32 s24, s24, 10")
    a(f"s_add_u32 s24, s24, {G.PART_BASE}")
    vTid4 = VTID4
    for p in range(G.NGRP):
        if p % 4 == 0 and p: a("s_add_u32 s24, s24, 4096")
        a(f"buffer_load_dword v{PT+p}, v{vTid4}, s[16:19], s24 offen offset:{(p%4)*1024}")
    G.make_srd(a, 20, 4, 5, 1024)
    G.make_srd(a, 36, 6, 7, 1024)
    a(f"v_lshlrev_b32 v{vT0+6}, 4, v{vR}")
    a("s_lshl_b32 s25, s13, 8")
    GB = ACC + 56
    a(f"buffer_load_dwordx4 v[{GB}:{GB+3}], v{vT0+6}, s[20:23], s25 offen")
    a(f"buffer_load_dwordx4 v[{GB+4}:{GB+7}], v{vT0+6}, s[36:39], s25 offen")
    a("s_waitcnt vmcnt(2)")
    vals = [PT + p for p in range(G.NGRP)]
    while len(vals) > 1:
        nv = []
        for i in range(0, len(vals) - 1, 2):
            a(f"v_add_f32 v{vals[i]}, v{vals[i]}, v{vals[i+1]}")
            nv.append(vals[i])
        if len(vals) & 1: nv.append(vals[-1])
        vals = nv
    a(f"ds_write_b32 v{vTid4}, v{vals[0]} offset:8192")
    a("s_waitcnt lgkmcnt(0)")
    a("s_barrier")
    read_tables(a, R)
    ST = ACC + 64
    a(f"v_lshlrev_b32 v{vT0+6}, 5, v{vR}")
    a(f"ds_read_b128 v[{ST}:{ST+3}], v{vT0+6} offset:8192")
    a(f"ds_read_b128 v[{ST+4}:{ST+7}], v{vT0+6} offset:{8192+16}")
    a(f"ds_read_b128 v[{ST+8}:{ST+11}], v{vT0+6} offset:{8192+512}")
    a(f"ds_read_b128 v[{ST+12}:{ST+15}], v{vT0+6} offset:{8192+512+16}")
    a(f"s_cmp_ge_u32 s14, {G.NBLK}")
    a("s_cbranch_scc1 L_k5_end")
    a("s_waitcnt vmcnt(0) lgkmcnt(0)")
    PA = VT + 16; PB = VT + 24
    invL = "0x%08x" % __import__('struct').unpack('<I', __import__('struct').pack('<f', 1.0 / G.L_OUT))[0]
    a(f"s_mov_b32 s24, {invL}")
    a("s_mov_b32 s25, 0x3727c5ac")
    for dd in range(8):
        mu = ST + dd; m2 = ST + 8 + dd
        a(f"v_mul_f32 v{mu}, s24, v{mu}")
        a(f"v_mul_f32 v{m2}, s24, v{m2}")
        a(f"v_fma_f32 v{m2}, -v{mu}, v{mu}, v{m2}")
        a(f"v_max_f32 v{m2}, 0, v{m2}")
        a(f"v_add_f32 v{m2}, s25, v{m2}")
        a(f"v_rsq_f32 v{m2}, v{m2}")
        gsrc = GB + (dd >> 1); bsrc = GB + 4 + (dd >> 1)
        if dd & 1:
            a(f"v_and_b32 v{PA+dd}, 0xffff0000, v{gsrc}")
            a(f"v_and_b32 v{PB+dd}, 0xffff0000, v{bsrc}")
        else:
            a(f"v_lshlrev_b32 v{PA+dd}, 16, v{gsrc}")
            a(f"v_lshlrev_b32 v{PB+dd}, 16, v{bsrc}")
        a(f"v_mul_f32 v{PA+dd}, v{PA+dd}, v{m2}")
        a(f"v_fma_f32 v{PB+dd}, -v{mu}, v{PA+dd}, v{PB+dd}")
    transform(a)
    a("s_nop 7")
    a(f"s_mul_i32 s24, s11, {G.OUT_B}")
    a("s_add_u32 s28, s28, s24")
    a("s_addc_u32 s29, s29, 0")
    G.make_srd(a, 32, 28, 29, G.OUT_B)
    vO = vT0 + 6
    a("s_mul_i32 s24, s14, %d" % (48 * 1024))
    a("s_lshl_b32 s25, s13, 8")
    a("s_add_u32 s24, s24, s25")
    a(f"v_lshlrev_b32 v{vO}, 12, v{vG}")
    a(f"v_lshl_add_u32 v{vO}, v{vR}, 4, v{vO}")
    a(f"v_add_u32 v{vO}, s24, v{vO}")
    import math, struct
    c0 = -2.0 * math.log2(math.e) * math.sqrt(2.0 / math.pi); c1 = c0 * 0.044715
    f2h = lambda x: "0x%08x" % struct.unpack('<I', struct.pack('<f', x))[0]
    a(f"s_mov_b32 s26, {f2h(c1)}")
    a(f"v_mov_b32 v{vT0+7}, {f2h(c0)}")
    T0 = RAW
    for o in range(3):
        for rp in range(4):
            ob = RAW + 16 + 4 * ((o * 4 + rp) % 8)
            for dd in range(8):
                h = hreg(o, dd, rp); t = T0 + dd
                a(f"v_fma_f32 v{h}, v{h}, v{PA+dd}, v{PB+dd}")
            for dd in range(8):
                h = hreg(o, dd, rp); t = T0 + dd
                a(f"v_mul_f32 v{t}, v{h}, v{h}")
            for dd in range(8):
                h = hreg(o, dd, rp); t = T0 + dd
                a(f"v_fma_f32 v{t}, v{t}, s26, v{vT0+7}")
            for dd in range(8):
                h = hreg(o, dd, rp); t = T0 + dd
                a(f"v_mul_f32 v{t}, v{t}, v{h}")
            for dd in range(8):
                t = T0 + dd
                a(f"v_exp_f32 v{t}, v{t}")
            for dd in range(8):
                t = T0 + dd
                a(f"v_add_f32 v{t}, 1.0, v{t}")
            for dd in range(8):
                t = T0 + dd
                a(f"v_rcp_f32 v{t}, v{t}")
            for dd in range(8):
                h = hreg(o, dd, rp); t = T0 + dd
                a(f"v_mul_f32 v{t}, v{t}, v{h}")
            for q in range(4):
                a(f"v_cvt_pk_bf16_f32 v{ob+q}, v{T0+2*q}, v{T0+2*q+1}")
            row = 16 * o + rp
            a(f"v_add_u32 v{vT0+8}, {row*1024}, v{vO}")
            a(f"buffer_store_dwordx4 v[{ob}:{ob+3}], v{vT0+8}, s[32:35], 0 offen {G.CFG['k5_st']}")
    a.label("L_k5_end")
    a("s_endpgm")
    return name, a.lines, 232, (2 * G.NGRP * 4, 256, 8192 + 1024)

def gen_k45f(cfg=None):
    import math, struct
    f2h = lambda x: "0x%08x" % struct.unpack('<I', struct.pack('<f', x))[0]
    a = Asm()
    def st(i):
        if G.CFG.get('fstamp'):
            a("s_memrealtime s[70:71]"); a("s_waitcnt lgkmcnt(0)"); a(f"v_writelane_b32 v244, s70, {i}")
    name = 'final_kernel'
    G.kernel_header(a, name)
    st(0)
    WPG = G.CFG['k45_wpg']; NG = 168 // WPG
    R = common(a, 'k45', 1, WPG)
    st(1)
    vLane, vR, vG, vT0 = R['vLane'], R['vR'], R['vG'], R['vT0']
    GB = 232
    G.make_srd(a, 20, 4, 5, 1024)
    G.make_srd(a, 36, 6, 7, 1024)
    a(f"v_lshlrev_b32 v{vT0+6}, 4, v{vR}")
    a("s_lshl_b32 s25, s13, 8")
    a(f"buffer_load_dwordx4 v[{GB}:{GB+3}], v{vT0+6}, s[20:23], s25 offen")
    a(f"buffer_load_dwordx4 v[{GB+4}:{GB+7}], v{vT0+6}, s[36:39], s25 offen")
    a("s_waitcnt lgkmcnt(0)")
    a("s_barrier")
    read_tables(a, R)
    PA = VT + 16; PB = VT + 24
    S1 = PA; S2 = PB
    a(f"s_cmp_ge_u32 s14, {G.NBLK}")
    a("s_cbranch_scc1 L_k45_zero")
    a("s_waitcnt lgkmcnt(0)")
    a(f"s_cmp_lg_u32 s14, {G.NBLK-1}")
    a("s_cbranch_scc1 L_k45_full")
    lastn = G.L_OUT - 48 * (G.NBLK - 1)
    for o in range(3):
        nvalid = lastn - 16 * o
        a(f"v_cmp_gt_i32 vcc, {max(nvalid,0)}, v{vR}")
        for r in range(8):
            a(f"v_cndmask_b32 v{AF+8*o+r}, 0, v{AF+8*o+r}, vcc")
    a.label("L_k45_full")
    a("s_waitcnt vmcnt(2)")
    st(2)
    transform(a)
    st(3)
    a("s_nop 7")
    for dd in range(8):
        first = True
        for o in range(3):
            for rp in range(4):
                h = hreg(o, dd, rp)
                if first:
                    a(f"v_mul_f32 v{S2+dd}, v{h}, v{h}")
                    a(f"v_mov_b32 v{S1+dd}, v{h}")
                    first = False
                else:
                    a(f"v_fmac_f32 v{S2+dd}, v{h}, v{h}")
                    a(f"v_add_f32 v{S1+dd}, v{S1+dd}, v{h}")
    a("s_branch L_k45_red")
    a.label("L_k45_zero")
    a("s_waitcnt vmcnt(0) lgkmcnt(0)")
    for r in range(8):
        a(f"v_mov_b32 v{S1+r}, 0"); a(f"v_mov_b32 v{S2+r}, 0")
    a.label("L_k45_red")
    st(4)
    a("s_lshl_b32 s25, s10, 12")
    a(f"v_lshlrev_b32 v{vT0}, 10, v{vG}")
    a(f"v_lshl_add_u32 v{vT0}, v{vR}, 5, v{vT0}")
    a(f"v_add_u32 v{vT0}, s25, v{vT0}")
    a(f"ds_write_b128 v{vT0}, v[{S1}:{S1+3}] offset:8192")
    a(f"ds_write_b128 v{vT0}, v[{S1+4}:{S1+7}] offset:{8192+16}")
    a(f"ds_write_b128 v{vT0}, v[{S2}:{S2+3}] offset:{8192+512}")
    a(f"ds_write_b128 v{vT0}, v[{S2+4}:{S2+7}] offset:{8192+512+16}")
    a("s_waitcnt lgkmcnt(0)")
    a("s_barrier")
    a("s_cmp_ge_u32 s10, 4")
    a("s_cbranch_scc1 L_k45_nored")
    for p in range(4 * WPG):
        a(f"ds_read_b32 v{RAW+16+p}, v{VTID4} offset:{8192+p*1024}")
    a("s_waitcnt lgkmcnt(0)")
    for p in range(1, 4 * WPG):
        a(f"v_add_f32 v{RAW+16}, v{RAW+16}, v{RAW+16+p}")
    a.label("L_k45_nored")
    a(f"s_mul_i32 s24, s11, {4*NG}")
    a(f"s_mul_i32 s25, s13, {NG}")
    a("s_add_u32 s24, s24, s25")
    a("s_lshl_b32 s26, s24, 10")
    a(f"s_add_u32 s26, s26, {G.PART_BASE}")
    a("s_lshl_b32 s24, s12, 10")
    a("s_add_u32 s24, s24, s26")
    a("s_cmp_ge_u32 s10, 4")
    a("s_cbranch_scc1 L_k45_nost")
    a(f"buffer_store_dword v{RAW+16}, v{VTID4}, s[16:19], s24 offen sc1")
    a.label("L_k45_nost")
    st(5)
    a("s_waitcnt vmcnt(0)")
    st(6)
    a("s_barrier")
    a("s_lshl_b32 s27, s11, 2")
    a("s_add_u32 s27, s27, s13")
    a(f"s_mul_i32 s27, s27, {G.CNT_STRIDE}")
    a(f"s_add_u32 s27, s27, {G.CNT_BASE}")
    a("s_cmp_lg_u32 s10, 0")
    a("s_cbranch_scc1 L_k45_wait")
    a(f"v_mov_b32 v{RAW}, 1")
    a(f"v_mov_b32 v{RAW+1}, 0")
    a("s_mov_b64 exec, 1")
    a(f"buffer_atomic_add v{RAW}, v{RAW+1}, s[16:19], s27 offen sc1")
    a("s_mov_b64 exec, -1")
    a(f"s_mov_b32 s33, {1 << 16}")
    a.label("L_k45_poll")
    if G.CFG.get('k45_sleep'): a(f"s_sleep {G.CFG['k45_sleep']}")
    a(f"buffer_load_dword v{RAW+2}, v{RAW+1}, s[16:19], s27 offen sc1")
    a("s_waitcnt vmcnt(0)")
    a(f"v_readfirstlane_b32 s34, v{RAW+2}")
    a(f"s_cmp_ge_u32 s34, {NG}")
    a("s_cbranch_scc1 L_k45_wait")
    a("s_sub_u32 s33, s33, 1")
    a("s_cmp_lg_u32 s33, 0")
    a("s_cbranch_scc1 L_k45_poll")
    a.label("L_k45_wait")
    st(7)
    a("s_barrier")
    st(8)
    PT = RAW
    a("s_cmp_ge_u32 s10, 4")
    a("s_cbranch_scc1 L_k45_nosum")
    for p in range(NG):
        if p % 4 == 0 and p: a("s_add_u32 s26, s26, 4096")
        a(f"buffer_load_dword v{PT+p}, v{VTID4}, s[16:19], s26 offen offset:{(p%4)*1024} sc1")
    a("s_waitcnt vmcnt(0)")
    vals = [PT + p for p in range(NG)]
    while len(vals) > 1:
        nv = []
        for i in range(0, len(vals) - 1, 2):
            a(f"v_add_f32 v{vals[i]}, v{vals[i]}, v{vals[i+1]}")
            nv.append(vals[i])
        if len(vals) & 1: nv.append(vals[-1])
        vals = nv
    st(9)
    a(f"ds_write_b32 v{VTID4}, v{vals[0]} offset:{8192+WPG*4096}")
    a.label("L_k45_nosum")
    a("s_waitcnt lgkmcnt(0)")
    a("s_barrier")
    a(f"s_cmp_ge_u32 s14, {G.NBLK}")
    a("s_cbranch_scc1 L_k45_end")
    ST = RAW + 44
    a(f"v_lshlrev_b32 v{vT0+6}, 5, v{vR}")
    o0 = 8192 + WPG * 4096
    a(f"ds_read_b128 v[{ST}:{ST+3}], v{vT0+6} offset:{o0}")
    a(f"ds_read_b128 v[{ST+4}:{ST+7}], v{vT0+6} offset:{o0+16}")
    a(f"ds_read_b128 v[{ST+8}:{ST+11}], v{vT0+6} offset:{o0+512}")
    a(f"ds_read_b128 v[{ST+12}:{ST+15}], v{vT0+6} offset:{o0+512+16}")
    a(f"s_mov_b32 s24, {f2h(1.0 / G.L_OUT)}")
    a("s_mov_b32 s25, 0x3727c5ac")
    a("s_waitcnt lgkmcnt(0)")
    for dd in range(8):
        mu = ST + dd; m2 = ST + 8 + dd
        a(f"v_mul_f32 v{mu}, s24, v{mu}")
        a(f"v_mul_f32 v{m2}, s24, v{m2}")
        a(f"v_fma_f32 v{m2}, -v{mu}, v{mu}, v{m2}")
        a(f"v_max_f32 v{m2}, 0, v{m2}")
        a(f"v_add_f32 v{m2}, s25, v{m2}")
        a(f"v_rsq_f32 v{m2}, v{m2}")
        gsrc = GB + (dd >> 1); bsrc = GB + 4 + (dd >> 1)
        if dd & 1:
            a(f"v_and_b32 v{PA+dd}, 0xffff0000, v{gsrc}")
            a(f"v_and_b32 v{PB+dd}, 0xffff0000, v{bsrc}")
        else:
            a(f"v_lshlrev_b32 v{PA+dd}, 16, v{gsrc}")
            a(f"v_lshlrev_b32 v{PB+dd}, 16, v{bsrc}")
        a(f"v_mul_f32 v{PA+dd}, v{PA+dd}, v{m2}")
        a(f"v_fma_f32 v{PB+dd}, -v{mu}, v{PA+dd}, v{PB+dd}")
    st(10)
    a(f"s_mul_i32 s24, s11, {G.OUT_B}")
    a("s_add_u32 s28, s28, s24")
    a("s_addc_u32 s29, s29, 0")
    G.make_srd(a, 32, 28, 29, G.OUT_B)
    vO = vT0 + 6
    a("s_mul_i32 s24, s14, %d" % (48 * 1024))
    a("s_lshl_b32 s25, s13, 8")
    a("s_add_u32 s24, s24, s25")
    a(f"v_lshlrev_b32 v{vO}, 12, v{vG}")
    a(f"v_lshl_add_u32 v{vO}, v{vR}, 4, v{vO}")
    a(f"v_add_u32 v{vO}, s24, v{vO}")
    c0 = -2.0 * math.log2(math.e) * math.sqrt(2.0 / math.pi); c1 = c0 * 0.044715
    a(f"s_mov_b32 s26, {f2h(c1)}")
    a(f"v_mov_b32 v{vT0+7}, {f2h(c0)}")
    T0 = RAW
    for o in range(3):
        for rp in range(4):
            ob = RAW + 16 + 4 * ((o * 4 + rp) % 8)
            for dd in range(8):
                h = hreg(o, dd, rp); a(f"v_fma_f32 v{h}, v{h}, v{PA+dd}, v{PB+dd}")
            for dd in range(8):
                h = hreg(o, dd, rp); a(f"v_mul_f32 v{T0+dd}, v{h}, v{h}")
            for dd in range(8):
                a(f"v_fma_f32 v{T0+dd}, v{T0+dd}, s26, v{vT0+7}")
            for dd in range(8):
                h = hreg(o, dd, rp); a(f"v_mul_f32 v{T0+dd}, v{T0+dd}, v{h}")
            for dd in range(8): a(f"v_exp_f32 v{T0+dd}, v{T0+dd}")
            for dd in range(8): a(f"v_add_f32 v{T0+dd}, 1.0, v{T0+dd}")
            for dd in range(8): a(f"v_rcp_f32 v{T0+dd}, v{T0+dd}")
            for dd in range(8):
                h = hreg(o, dd, rp); a(f"v_mul_f32 v{T0+dd}, v{T0+dd}, v{h}")
            for q in range(4):
                a(f"v_cvt_pk_bf16_f32 v{ob+q}, v{T0+2*q}, v{T0+2*q+1}")
            row = 16 * o + rp
            a(f"v_add_u32 v{vT0+8}, {row*1024}, v{vO}")
            a(f"buffer_store_dwordx4 v[{ob}:{ob+3}], v{vT0+8}, s[32:35], 0 offen {G.CFG['k5_st']}")
    st(11)
    if G.CFG.get('fstamp'):
        a("s_waitcnt vmcnt(0)")
        st(12)
        a("s_lshl_b32 s73, s2, 3"); a("s_add_u32 s73, s73, s10"); a("s_lshl_b32 s73, s73, 8")
        a(f"s_add_u32 s73, s73, {214 << 20}")
        a(f"v_lshlrev_b32 v245, 2, v{vLane}")
        a("buffer_store_dword v244, v245, s[16:19], s73 offen")
    a.label("L_k45_end")
    a("s_endpgm")
    return name, a.lines, 248 if G.CFG.get('fstamp') else 240, (2 * NG * 4, 64 * WPG, 8192 + WPG * 4096 + 1024)
```

```python
import sys, os
sys.path.insert(0, os.path.dirname(os.path.abspath(__file__)))
from asmlib import *

NAME = 'standalone__self_sup_conv_stem_wavlm__speech'

L_OUT = 7985
NBLK = 167
ROWS = 168
X_BYTES_B = 8000 * 2048
W_BYTES = 31 * 524288
WS_BYTES = 268435456
WF_BASE = 0
WF_K = 4 * 32 * 16384
XF_BASE = 64 << 20
XF_TILE = 2 * ROWS * 64
XF_B = 32 * XF_TILE
XF_K = 2 * XF_B
YF_BASE = 112 << 20
YF_B = 176 * 1024
YF_J = 2 * YF_B
PART_BASE = 140 << 20
NGRP = 42
CNT_BASE = 141 << 20
CNT_STRIDE = 8192 + 256
OUT_B = L_OUT * 1024

import json
CFG = dict(
    k3_nodma=False,
    k3_nomfma=False,
    k3_stamp=False,
    k3b=True,
    k3c=True,
    k12p=False,
    k12q=True,
    k12_nwg=256,
    w_nodup=True,
    k45f=True,
    k45_sleep=8,
    k45_wpg=6,
    k12_st='sc1',
    k3_st='sc1',
    k5_st='sc1',
    half=False,
    wfuse=False,
    c0=4,
    ldist=[6,5,5,0],
    xfull=True,
    layout=2,
    ypad=256,
    fused=False,
    hprio=0,
    st_flags='sc1',
    dma_flags='',
    timeline=False,
    k3_nolds=False,
)
CFG.update(json.loads(os.environ.get('GENCFG', '{}')))
if CFG['layout'] == 2:
    WF_K = 16384; WF_KS = 32 * 16384; WF_DQ = 32 * WF_KS
    XF_K = XF_TILE; XF_KS = 32 * XF_TILE; XF_B = 32 * XF_KS
    YF_J = 1024; YF_ROW = 65536 + CFG['ypad']; YF_B = 176 * YF_ROW
else:
    WF_KS = 16384; WF_DQ = 32 * 16384; XF_KS = XF_TILE; YF_ROW = 1024

def kernel_header(a, name):
    a(f".globl {name}")
    a(".p2align 8")
    a(f".type {name},@function")
    a.label(name)

def kernel_desc(name, vgpr, sgpr=96, accum=None):
    accum = accum or ((vgpr + 3) // 4 * 4)
    return f""".amdhsa_kernel {name}
  .amdhsa_next_free_vgpr {vgpr}
  .amdhsa_next_free_sgpr {sgpr}
  .amdhsa_accum_offset {accum}
  .amdhsa_group_segment_fixed_size 0
  .amdhsa_kernarg_size 56
  .amdhsa_user_sgpr_count 2
  .amdhsa_user_sgpr_kernarg_segment_ptr 1
  .amdhsa_system_sgpr_workgroup_id_x 1
  .amdhsa_float_denorm_mode_32 3
.end_amdhsa_kernel
"""

def make_srd(a, s, base_lo, base_hi, size):
    a(f"s_mov_b32 s{s}, s{base_lo}")
    a(f"s_and_b32 s{s+1}, s{base_hi}, 0xffff")
    a(f"s_mov_b32 s{s+2}, {size}")
    a(f"s_mov_b32 s{s+3}, 0x00020000")

def cos_table(a, vp0, vstep_list, dst, tmp, scale=None, lo_sel=None):
    for e in range(8):
        r = vstep_list[e]
        a(f"v_and_b32 v{r}, 127, v{r}")
        a(f"v_cvt_f32_u32 v{r}, v{r}")
        a(f"v_mul_f32 v{r}, 0x3c000000, v{r}")
        a(f"v_cos_f32 v{r}, v{r}")
    if scale is not None:
        for e in range(8):
            r = vstep_list[e]
            a(f"v_mul_f32 v{r}, {scale}, v{r}")
    for e2 in range(4):
        r0, r1 = vstep_list[2*e2], vstep_list[2*e2+1]
        a(f"v_cvt_pk_bf16_f32 v{dst+e2}, v{r0}, v{r1}")
    if lo_sel is not None:
        for e2 in range(4):
            r0, r1 = vstep_list[2*e2], vstep_list[2*e2+1]
            a(f"v_lshlrev_b32 v{tmp}, 16, v{dst+e2}")
            a(f"v_and_b32 v{tmp+1}, 0xffff0000, v{dst+e2}")
            a(f"v_sub_f32 v{r0}, v{r0}, v{tmp}")
            a(f"v_sub_f32 v{r1}, v{r1}, v{tmp+1}")
            a(f"v_cvt_pk_bf16_f32 v{tmp}, v{r0}, v{r1}")
            a(f"v_cndmask_b32 v{dst+e2}, v{dst+e2}, v{tmp}, s[{lo_sel}:{lo_sel+1}]")

def gen_k12():
    a = Asm()
    name = 'xform_kernel'
    kernel_header(a, name)
    NCG = CFG['c0'] if CFG['half'] else 8
    XFULL = CFG['half'] or CFG['wfuse']
    XF2_K = 2 * XF_TILE; XF_KP = 32 * XF2_K; XF2_B = 16 * XF_KP
    NX = 2 * NGRP * NCG
    NW = 128 * (CFG['c0'] if CFG['wfuse'] else NCG)
    RAW = 0
    AF = 64
    BF = 96
    ACC = 112
    VT = 144
    vLane = VT; vR = VT+1; vG = VT+2; vOff = VT+3; vSt = VT+4; vT0 = VT+5
    NV = 160
    a("s_cmp_ge_u32 s2, %d" % (NX + NW))
    a("s_cbranch_scc1 L_k12_end")
    a("s_load_dwordx4 s[4:7], s[0:1], 0")
    a("s_load_dwordx2 s[8:9], s[0:1], 48")
    a(f"v_and_b32 v{vLane}, 63, v0")
    a(f"v_lshrrev_b32 v{vT0}, 6, v0")
    a(f"v_and_b32 v{vR}, 15, v{vLane}")
    a(f"v_readfirstlane_b32 s10, v{vT0}")
    a(f"v_lshrrev_b32 v{vG}, 4, v{vLane}")
    a("s_mov_b32 s30, 0x05040100")
    a("s_mov_b32 s31, 0x07060302")
    a("s_waitcnt lgkmcnt(0)")
    make_srd(a, 16, 8, 9, WS_BYTES)
    a("s_cmp_ge_u32 s2, %d" % NX)
    a("s_cbranch_scc1 L_k12_w")
    a.c("X item: b, cg, grp")
    a(f"s_cmp_ge_u32 s2, {NGRP*NCG}")
    a("s_cselect_b32 s11, 1, 0")
    a(f"s_mul_i32 s12, s11, {NGRP*NCG}")
    a("s_sub_u32 s12, s2, s12")
    a(f"s_mul_hi_u32 s14, s12, {((1 << 32) + NCG - 1) // NCG if NCG > 1 else 0}")
    a(f"s_mul_i32 s13, s14, {NCG}")
    a("s_sub_u32 s13, s12, s13")
    a("s_lshl_b32 s14, s14, 2")
    a("s_add_u32 s14, s14, s10")
    a(f"s_mul_i32 s15, s11, {X_BYTES_B}")
    a("s_add_u32 s4, s4, s15")
    a("s_addc_u32 s5, s5, 0")
    make_srd(a, 12+8, 4, 5, X_BYTES_B)
    a("s_mul_i32 s15, s14, %d" % (48 * 2048))
    a("s_lshl_b32 s24, s13, 8")
    a("s_add_u32 s15, s15, s24")
    a(f"v_lshlrev_b32 v{vOff}, 14, v{vG}")
    a(f"v_lshl_add_u32 v{vOff}, v{vR}, 4, v{vOff}")
    a(f"v_add_u32 v{vOff}, s15, v{vOff}")
    for s in range(2):
        for i in range(8):
            off = (32 * s + i) * 2048
            if off == 0:
                a(f"buffer_load_dwordx4 v[{RAW}:{RAW+3}], v{vOff}, s[20:23], 0 offen")
            else:
                a(f"v_add_u32 v{vT0}, {off}, v{vOff}")
                r = RAW + 4 * (8 * s + i)
                a(f"buffer_load_dwordx4 v[{r}:{r+3}], v{vT0}, s[20:23], 0 offen")
    a.c("table generation: wave w -> o = w, s = 0,1")
    vA = vT0; vC = vT0+1; vP = BF
    a(f"v_lshrrev_b32 v{vA}, 2, v{vR}")
    a(f"v_lshlrev_b32 v{vA}, 1, v{vA}")
    a(f"v_bfe_u32 v{vC}, v{vR}, 1, 1")
    a(f"v_add_u32 v{vA}, v{vA}, v{vC}")
    a("s_lshl_b32 s24, s10, 3")
    a(f"v_add_u32 v{vA}, s24, v{vA}")
    a(f"v_lshl_add_u32 v{vA}, v{vA}, 1, 1")
    a(f"v_and_b32 v{vC}, 1, v{vR}")
    a(f"v_lshlrev_b32 v{vC}, 5, v{vC}")
    for s in range(2):
        a(f"v_lshlrev_b32 v{vT0+2}, 3, v{vG}")
        if s: a(f"v_add_u32 v{vT0+2}, 32, v{vT0+2}")
        a(f"v_mad_u32_u24 v{vP}, v{vA}, v{vT0+2}, v{vC}")
        for e in range(1, 8):
            a(f"v_add_u32 v{vP+e}, v{vP+e-1}, v{vA}")
        cos_table(a, None, [vP+e for e in range(8)], ACC, ACC+4)
        a("s_lshl_b32 s24, s10, 11")
        a(f"v_lshlrev_b32 v{vT0+3}, 4, v{vLane}")
        a(f"v_add_u32 v{vT0+3}, s24, v{vT0+3}")
        a(f"ds_write_b128 v{vT0+3}, v[{ACC}:{ACC+3}] offset:{s*1024}")
    a("s_waitcnt lgkmcnt(0)")
    a("s_barrier")
    a(f"v_lshlrev_b32 v{vT0+3}, 4, v{vLane}")
    for o in range(4):
        for s in range(2):
            r = AF + 4 * (2 * o + s)
            a(f"ds_read_b128 v[{r}:{r+3}], v{vT0+3} offset:{(2*o+s)*1024}")
    a("s_bfe_u32 s24, s14, 0x10003")
    a("s_mul_i32 s24, s24, 3")
    a(f"v_and_b32 v{vT0}, 3, v{vR}")
    a(f"v_xor_b32 v{vT0}, s24, v{vT0}")
    a(f"v_lshlrev_b32 v{vT0}, 4, v{vT0}")
    if XFULL:
        a(f"v_bfe_u32 v{vT0+1}, v{vR}, 2, 1")
        a(f"v_lshl_add_u32 v{vT0}, v{vT0+1}, 6, v{vT0}")
        a(f"v_lshrrev_b32 v{vT0+1}, 3, v{vR}")
        a(f"s_mov_b32 s24, {XF_KP}")
    else:
        a(f"v_lshrrev_b32 v{vT0+1}, 2, v{vR}")
        a(f"s_mov_b32 s24, {XF_KS}")
    a(f"v_mad_u32_u24 v{vT0}, v{vT0+1}, s24, v{vT0}")
    a(f"s_mov_b32 s24, {2*(XF2_K if XFULL else XF_K)}")
    a(f"v_mad_u32_u24 v{vSt}, v{vG}, s24, v{vT0}")
    a(f"s_mul_i32 s24, s11, {XF2_B if XFULL else XF_B}")
    a(f"s_mul_i32 s25, s13, {2*XF_KP if XFULL else 4*XF_KS}")
    a("s_add_u32 s24, s24, s25")
    a(f"s_lshl_b32 s25, s14, {7 if XFULL else 6}")
    a("s_add_u32 s24, s24, s25")
    a(f"s_add_u32 s24, s24, {XF_BASE}")
    a("s_waitcnt vmcnt(0) lgkmcnt(0)")
    def perms(q):
        for s in range(2):
            for h in range(2):
                for e in range(4):
                    d = BF + (s * 2 + h) * 4 + e
                    r0 = RAW + 4 * (8 * s + 2 * e) + q
                    r1 = RAW + 4 * (8 * s + 2 * e + 1) + q
                    a(f"v_perm_b32 v{d}, v{r1}, v{r0}, s{30+h}")
    def mfmas():
        for s in range(2):
            for o in range(4):
                for h in range(2):
                    d = ACC + (o * 2 + h) * 4
                    A = AF + 4 * (2 * o + s)
                    B = BF + (s * 2 + h) * 4
                    c = "0" if s == 0 else f"v[{d}:{d+3}]"
                    a(f"v_mfma_f32_16x16x32_bf16 v[{d}:{d+3}], v[{A}:{A+3}], v[{B}:{B+3}], {c}")
    def cvts(q):
        for o in range(4):
            for rp in range(4):
                d = RAW + 4 * (4 * o + rp) + q
                a(f"v_cvt_pk_bf16_f32 v{d}, v{ACC+(o*2)*4+rp}, v{ACC+(o*2+1)*4+rp}")
    perms(0)
    for q in range(4):
        mfmas()
        if q < 3: perms(q + 1)
        cvts(q)
    for o in range(4):
        for rp in range(4):
            off = (8 * o + (rp >> 1)) * XF_K + (rp & 1) * (ROWS * 64)
            if XFULL: off = (8 * o + (rp >> 1)) * XF2_K + (rp & 1) * (ROWS * 128)
            a(f"s_add_u32 s25, s24, {off}")
            r = RAW + 4 * (4 * o + rp)
            a(f"buffer_store_dwordx4 v[{r}:{r+3}], v{vSt}, s[16:19], s25 offen {CFG['k12_st']}")
    a("s_endpgm")
    a.label("L_k12_w")
    a(f"s_sub_u32 s12, s2, {NX}")
    a("s_and_b32 s13, s12, 3")
    a("s_lshr_b32 s14, s12, 2")
    a("s_lshl_b32 s14, s14, 2")
    a("s_add_u32 s14, s14, s10")
    make_srd(a, 20, 6, 7, W_BYTES)
    a(f"v_and_b32 v{vT0}, 1, v{vG}")
    a(f"v_lshlrev_b32 v{vOff}, 23, v{vT0}")
    a(f"v_lshrrev_b32 v{vT0}, 2, v{vR}")
    a(f"v_lshl_add_u32 v{vOff}, v{vT0}, 6, v{vOff}")
    a(f"v_and_b32 v{vT0}, 1, v{vR}")
    a(f"v_lshl_add_u32 v{vOff}, v{vT0}, 5, v{vOff}")
    a(f"v_bfe_u32 v{vT0}, v{vR}, 1, 1")
    a(f"v_lshl_add_u32 v{vOff}, v{vT0}, 3, v{vOff}")
    a("s_lshl_b32 s15, s14, 10")
    a("s_lshl_b32 s24, s13, 8")
    a("s_add_u32 s15, s15, s24")
    a(f"v_add_u32 v{vOff}, s15, v{vOff}")
    for i in range(8):
        r = RAW + 4 * i
        if i == 0:
            src = vOff
        else:
            a(f"v_add_u32 v{vT0}, {i << 20}, v{vOff}")
            src = vT0
        a(f"buffer_load_dwordx2 v[{r}:{r+1}], v{src}, s[20:23], 0 offen")
        a(f"buffer_load_dwordx2 v[{r+2}:{r+3}], v{src}, s[20:23], 0 offen offset:16")
    a.c("table: wave w -> o = w")
    vA = vT0; vC = vT0+1; vP = BF
    a(f"v_lshrrev_b32 v{vA}, 2, v{vR}")
    a(f"v_lshlrev_b32 v{vA}, 1, v{vA}")
    a(f"v_bfe_u32 v{vC}, v{vR}, 1, 1")
    a(f"v_add_u32 v{vA}, v{vA}, v{vC}")
    a("s_lshl_b32 s24, s10, 3")
    a(f"v_add_u32 v{vA}, s24, v{vA}")
    a(f"v_lshl_add_u32 v{vA}, v{vA}, 1, 1")
    a(f"v_and_b32 v{vC}, 1, v{vR}")
    a(f"v_lshlrev_b32 v{vC}, 5, v{vC}")
    a(f"v_and_b32 v{vT0+2}, 1, v{vG}")
    a(f"v_lshlrev_b32 v{vT0+2}, 3, v{vT0+2}")
    a(f"v_mad_u32_u24 v{vP}, v{vA}, v{vT0+2}, v{vC}")
    for e in range(1, 8):
        a(f"v_add_u32 v{vP+e}, v{vP+e-1}, v{vA}")
    a(f"v_cmp_lt_u32 s[26:27], 1, v{vG}")
    cos_table(a, None, [vP+e for e in range(8)], ACC, ACC+4, lo_sel=26)
    a("s_lshl_b32 s24, s10, 10")
    a(f"v_lshlrev_b32 v{vT0+3}, 4, v{vLane}")
    a(f"v_add_u32 v{vT0+3}, s24, v{vT0+3}")
    a(f"ds_write_b128 v{vT0+3}, v[{ACC}:{ACC+3}]")
    a("s_waitcnt lgkmcnt(0)")
    a("s_barrier")
    a(f"v_lshlrev_b32 v{vT0+3}, 4, v{vLane}")
    for o in range(4):
        r = AF + 4 * o
        a(f"ds_read_b128 v[{r}:{r+3}], v{vT0+3} offset:{o*1024}")
    a("s_and_b32 s24, s14, 3")
    a("s_bfe_u32 s25, s14, 0x10003")
    a("s_lshl_b32 s25, s25, 2")
    a("s_or_b32 s24, s24, s25")
    a("s_lshl_b32 s24, s24, 1")
    a(f"v_xor_b32 v{vT0}, s24, v{vR}")
    a(f"v_lshlrev_b32 v{vT0}, 4, v{vT0}")
    a(f"s_mov_b32 s25, {2*WF_K}")
    a(f"v_mul_u32_u24 v{vSt}, s25, v{vG}")
    a(f"v_add_u32 v{vSt}, v{vSt}, v{vT0}")
    a(f"s_mul_i32 s24, s13, {WF_DQ}")
    a("s_lshr_b32 s25, s14, 5")
    a(f"s_mul_i32 s25, s25, {WF_KS}")
    a("s_add_u32 s24, s24, s25")
    a("s_and_b32 s25, s14, 31")
    a("s_lshl_b32 s25, s25, 8")
    a("s_add_u32 s24, s24, s25")
    if WF_BASE: a(f"s_add_u32 s24, s24, {WF_BASE}")
    a("s_waitcnt vmcnt(0) lgkmcnt(0)")
    OUT = 32
    FR = 32
    for dd in range(8):
        q = dd >> 1; h = dd & 1
        for e in range(4):
            r0 = RAW + 4 * (2 * e) + q
            r1 = RAW + 4 * (2 * e + 1) + q
            a(f"v_perm_b32 v{FR+4*dd+e}, v{r1}, v{r0}, s{30+h}")
    for o in range(4):
        A = AF + 4 * o
        for dd in range(8):
            d = ACC + 4 * dd
            a(f"v_mfma_f32_16x16x32_bf16 v[{d}:{d+3}], v[{A}:{A+3}], v[{FR+4*dd}:{FR+4*dd+3}], 0")
        ob = RAW + 16 * (o & 1)
        for rp in range(4):
            for q in range(4):
                a(f"v_cvt_pk_bf16_f32 v{ob+4*rp+q}, v{ACC+8*q+rp}, v{ACC+8*q+4+rp}")
        for rp in range(4):
            off = (8 * o + (rp >> 1)) * WF_K + (rp & 1) * 8192
            a(f"s_add_u32 s25, s24, {off}")
            r = ob + 4 * rp
            a(f"buffer_store_dwordx4 v[{r}:{r+3}], v{vSt}, s[16:19], s25 offen {CFG['k12_st']}")
    a.label("L_k12_end")
    a("s_endpgm")
    return name, a.lines, NV, (NX + NW, 256, 16384)

STAMP_BASE = 200 << 20
def add_timeline(name, lines, kidx):
    out = []
    started = False
    n = 0
    for l in lines:
        t = l.strip()
        out.append(l)
        if not started and t == name + ':':
            out.append("    s_memrealtime s[92:93]")
            out.append("    v_lshrrev_b32 v1, 6, v0")
            out.append("    s_nop 1")
            out.append("    v_readfirstlane_b32 s91, v1")
            out.append("    s_waitcnt lgkmcnt(0)")
            started = True
        if t == 's_endpgm':
            out.pop()
            n += 1
            out.append("    s_waitcnt vmcnt(0) lgkmcnt(0)")
            out.append("    s_memrealtime s[94:95]")
            out.append("    s_load_dwordx2 s[80:81], s[0:1], 48")
            out.append("    s_mov_b64 exec, -1")
            out.append("    s_waitcnt lgkmcnt(0)")
            out.append("    s_mov_b32 s84, s80"); out.append("    s_and_b32 s85, s81, 0xffff")
            out.append(f"    s_mov_b32 s86, {WS_BYTES}"); out.append("    s_mov_b32 s87, 0x00020000")
            out.append("    s_lshl_b32 s88, s2, 4"); out.append("    s_add_u32 s88, s88, s91"); out.append("    s_lshl_b32 s88, s88, 4")
            out.append(f"    s_add_u32 s88, s88, {STAMP_BASE + kidx * (1 << 20)}")
            out.append("    v_mov_b32 v0, s92"); out.append("    v_mov_b32 v1, s93"); out.append("    v_mov_b32 v2, s94"); out.append("    v_mov_b32 v3, s95")
            out.append("    v_mov_b32 v4, 0")
            out.append("    buffer_store_dwordx4 v[0:3], v4, s[84:87], s88 offen")
            out.append("    s_endpgm")
    return out

def build(kernels):
    if CFG['timeline']:
        kernels = [(n, add_timeline(n, l, i), nv, g) for i, (n, l, nv, g) in enumerate(kernels)]
    hdr = open(os.path.join(os.path.dirname(os.path.abspath(__file__)), '..', NAME + '.s.ref')).read().split('\n')
    out = []
    for l in hdr:
        if l.startswith('; Override launch') or l.startswith('; grid=ceil') or l.startswith('; @launch'): continue
        if l.startswith(';'): out.append(l)
        else: break
    for (name, lines, nv, (g, blk, lds)) in kernels:
        out.append(f"; @launch kernel={name} grid=({g},1,1) block=({blk},1,1) lds={lds}")
    out.append('.amdgcn_target "amdgcn-amd-amdhsa--gfx950"')
    out.append('.text')
    for (name, lines, nv, _) in kernels:
        out += hazard_pass(lines)
    out.append('.section .rodata,"a"')
    for (name, lines, nv, _) in kernels:
        out.append('.p2align 6')
        out.append(kernel_desc(name, nv))
    return '\n'.join(out) + '\n'

if __name__ == '__main__':
    from gen_k3 import gen_k3
    from gen_k45 import gen_k4, gen_k5
    from gen_k3b import gen_k3b
    from gen_k123 import gen_k123
    from gen_k3h import gen_k3h
    from gen_k3w import gen_k3w
    if CFG['wfuse']:
        ks = [gen_k12(), gen_k3w(), gen_k4(), gen_k5()]
    elif CFG['half']:
        ks = [gen_k12(), gen_k3h(), gen_k4(), gen_k5()]
    elif CFG['fused']:
        ks = [gen_k123(), gen_k4(), gen_k5()]
    else:
        ks = [gen_k12(), gen_k3b() if CFG['k3b'] else gen_k3(), gen_k4(), gen_k5()]
    if CFG['k12p']:
        from gen_k12p import gen_k12p
        ks[0] = gen_k12p()
    if CFG['k12q']:
        from gen_k12q import gen_k12q
        ks[0] = gen_k12q()
    if CFG['k3c']:
        from gen_k3c import gen_k3c
        ks[1] = gen_k3c()
    if CFG['k45f']:
        from gen_k45 import gen_k45f
        ks = ks[:-2] + [gen_k45f()]
    dst = sys.argv[1] if len(sys.argv) > 1 else os.path.join(os.path.dirname(os.path.abspath(__file__)), '..', NAME + '.s')
    open(dst, 'w').write(build(ks))
    print('wrote', dst)
```

```python
from asmlib import *
import gen as G
from gen_k3 import LQ, NSTAGE
XC = 11264
STAGE = 16384 + 2 * XC
LDS_BYTES = STAGE * NSTAGE

T = 11
ACC = 0
WA = 176; WB = 192; NW = 208
XR = 216
vWa = 248; vXa = 250; vSt = 251; vSt2 = 252; vT = 253

def acc(i, c, t): return ACC + ((i * 2 + c) * 2 + t) * 4 if i < 10 else ACC + 160 + 4 * c
def wf(p, which): return (WA if p == 0 else WB) + which * 4
def nw(t): return NW + 4 * t
def xr(slot, c): return XR + slot * 8 + c * 4
def mf(d, A, B): return f"v_mfma_f32_16x16x32_bf16 v[{d}:{d+3}], v[{A}:{A+3}], v[{B}:{B+3}], v[{d}:{d+3}]"

def gemm_wave(a, cfg):
    lq = LQ(a)
    def x_read(step, i, slot):
        for c in range(2):
            r = xr(slot, c)
            off = 16384 + c * XC + i * 1024
            a(f"ds_read_b128 v[{r}:{r+3}], v{vXa} offset:{off}")
            lq.issue(('x', step, i))
    def w_read(step, c):
        p = step & 1
        for t in range(2):
            r = wf(p, c * 2 + t)
            for e in range(2):
                a(f"ds_read_b64_tr_b16 v[{r+2*e}:{r+2*e+1}], v{vWa+t} offset:{c*8192+e*1024}")
                lq.issue(('w', step))
    def w_xor(step):
        p = step & 1
        return [f"v_xor_b32 v{nw(t)+e}, 0x80008000, v{wf(p,2+t)+e}" for t in range(2) for e in range(4)]
    def bump(reg, step):
        d = STAGE if step % NSTAGE else -(NSTAGE - 1) * STAGE
        a(f"v_add_u32 v{reg}, {d & 0xffffffff:#x}, v{reg}")
    def step_code(s, tau0, barrier, nxt):
        p = s & 1
        if barrier:
            if G.CFG.get('gstamp'):
                a("s_memrealtime s[70:71]"); a("s_waitcnt lgkmcnt(0)")
                a("s_mov_b32 m0, s72"); a("v_writelane_b32 v255, s70, m0"); a("s_add_u32 s72, s72, 1")
            a("s_barrier")
            if G.CFG.get('gstamp'):
                a("s_memrealtime s[70:71]"); a("s_waitcnt lgkmcnt(0)")
                a("s_mov_b32 m0, s72"); a("v_writelane_b32 v255, s70, m0"); a("s_add_u32 s72, s72, 1")
        for i in range(T):
            tau = tau0 + i
            slot = tau % 4
            lq.wait(('x', s, i))
            if i < 10:
                ms = [mf(acc(i,0,0), wf(p,0), xr(slot,0)), mf(acc(i,0,1), wf(p,1), xr(slot,0)),
                      mf(acc(i,1,0), nw(0), xr(slot,0)), mf(acc(i,1,1), nw(1), xr(slot,0)),
                      mf(acc(i,0,0), wf(p,2), xr(slot,1)), mf(acc(i,0,1), wf(p,3), xr(slot,1)),
                      mf(acc(i,1,0), wf(p,0), xr(slot,1)), mf(acc(i,1,1), wf(p,1), xr(slot,1))]
            else:
                ms = [mf(acc(i,0,0), wf(p,0), xr(slot,0)), mf(acc(i,1,0), nw(0), xr(slot,0)),
                      mf(acc(i,0,0), wf(p,2), xr(slot,1)), mf(acc(i,1,0), wf(p,0), xr(slot,1))]
            xors = []
            for m in range(len(ms)):
                a(ms[m])
                if m == 0:
                    if i + 2 < T: x_read(s, i + 2, (tau + 2) % 4)
                    elif nxt:
                        if i + 2 == T: bump(vXa, s + 1)
                        x_read(s + 1, i + 2 - T, (tau + 2) % 4)
                if nxt and i == T - 6 and m == 4:
                    bump(vWa, s + 1); bump(vWa + 1, s + 1)
                if m == 3 and nxt and i == T - 5: w_read(s + 1, 0)
                if m == 3 and nxt and i == T - 4: w_read(s + 1, 1)
                if nxt and i == T - 2 and m == 4:
                    lq.wait(('w', s + 1))
                    xors = w_xor(s + 1)[4:]
                if nxt and i == T - 1 and m == 1:
                    xors = w_xor(s + 1)[:4]
                for _ in range(2):
                    if xors: a(xors.pop(0))
            for x in xors: a(x)
    if G.CFG.get('gstamp'):
        a("s_mov_b32 s72, 0"); a("v_mov_b32 v255, 0")
    for r in range(168): a(f"v_mov_b32 v{ACC+r}, 0")
    a("s_barrier")
    w_read(0, 0); w_read(0, 1)
    x_read(0, 0, 0); x_read(0, 1, 1)
    lq.wait(('w', 0))
    for x in w_xor(0): a(x)
    a("s_mov_b32 s46, 7")
    a.label("L_g_loop")
    q0 = list(lq.q)
    for u in range(4):
        step_code(u, u * T, True, True)
    q1 = [(t[0], t[1] - 4) + tuple(t[2:]) for t in lq.q]
    assert q0[len(q0)-len(q1):] == q1, (q0, q1)
    a("s_sub_u32 s46, s46, 1")
    a("s_cmp_lg_u32 s46, 0")
    a("s_cbranch_scc1 L_g_loop")
    lq.q = [(t[0], t[1] + 24) + tuple(t[2:]) for t in lq.q]
    step_code(28, 0 * T, True, True)
    step_code(29, 1 * T, True, True)
    if not G.CFG.get('k3_tail', True):
        step_code(30, 2 * T, True, True)
        step_code(31, 3 * T, False, False)
        a("s_nop 7")
    else:
        a("s_barrier")
    NW2 = 168; vXb = 253
    def epi_list(i, bb):
        l = []
        if i < 10:
            for c in range(2):
                dA = acc(i, c, bb); dB = acc(i, c, 1 - bb)
                l += [f"v_cvt_pk_bf16_f32 v{dA}, v{dA}, v{dA+1}", f"v_cvt_pk_bf16_f32 v{dA+1}, v{dA+2}, v{dA+3}",
                      f"v_cvt_pk_bf16_f32 v{dA+2}, v{dB}, v{dB+1}", f"v_cvt_pk_bf16_f32 v{dA+3}, v{dB+2}, v{dB+3}",
                      f"s_add_u32 s47, s48, {c * G.YF_J + i * 16 * G.YF_ROW}",
                      f"buffer_store_dwordx4 v[{dA}:{dA+3}], v{vSt}, s[16:19], s47 offen {G.CFG['k3_st']}"]
        else:
            for c in range(2):
                d = acc(10, c, 0)
                l += [f"v_cvt_pk_bf16_f32 v{d}, v{d}, v{d+1}", f"v_cvt_pk_bf16_f32 v{d+1}, v{d+2}, v{d+3}",
                      f"s_add_u32 s47, s49, {c * G.YF_J}",
                      f"buffer_store_dwordx2 v[{d}:{d+1}], v{vSt2}, s[16:19], s47 offen {G.CFG['k3_st']}"]
        return l
    q_save = list(lq.q)
    for bb in range(2):
        if bb == 0:
            a("s_cmp_lg_u32 s13, 0"); a("s_cbranch_scc1 L_epi_b1")
        else:
            a.label("L_epi_b1")
        if not G.CFG.get('k3_tail', True):
            for i in range(T):
                for ins in epi_list(i, bb): a(ins)
        else:
            lq.q = list(q_save)
            bump(vWa, 31); bump(vWa + 1, 31)
            a(f"v_add_u32 v{vXb}, {STAGE}, v{vXa}")
            w_read(31, 0); w_read(31, 1)
            items = [(30, 0), (30, 1)]
            for i in range(T):
                if i + 2 < T: items.append((30, i + 2))
                items.append((31, i))
            def x_read2(step, i, slot):
                for c in range(2):
                    r = xr(slot, c)
                    off = 16384 + c * XC + i * 1024
                    a(f"ds_read_b128 v[{r}:{r+3}], v{vXa if step == 30 else vXb} offset:{off}")
                    lq.issue(('x', step, i))
            pend = []
            xored = False
            for n, (st, i) in enumerate(items):
                slot = (2 * T + n) % 4
                p = st & 1
                nwf = (lambda t: nw(t)) if st == 30 else (lambda t: NW2 + 4 * t)
                if st == 31 and not xored:
                    lq.wait(('w', 31))
                    for t in range(2):
                        for e in range(4): a(f"v_xor_b32 v{NW2+4*t+e}, 0x80008000, v{wf(1,2+t)+e}")
                    xored = True
                lq.wait(('x', st, i))
                if i < 10:
                    ms = [mf(acc(i,0,0), wf(p,0), xr(slot,0)), mf(acc(i,0,1), wf(p,1), xr(slot,0)),
                          mf(acc(i,1,0), nwf(0), xr(slot,0)), mf(acc(i,1,1), nwf(1), xr(slot,0)),
                          mf(acc(i,0,0), wf(p,2), xr(slot,1)), mf(acc(i,0,1), wf(p,3), xr(slot,1)),
                          mf(acc(i,1,0), wf(p,0), xr(slot,1)), mf(acc(i,1,1), wf(p,1), xr(slot,1))]
                else:
                    ms = [mf(acc(i,0,0), wf(p,0), xr(slot,0)), mf(acc(i,1,0), nwf(0), xr(slot,0)),
                          mf(acc(i,0,0), wf(p,2), xr(slot,1)), mf(acc(i,1,0), wf(p,0), xr(slot,1))]
                for m in range(len(ms)):
                    a(ms[m])
                    if m == 0 and n + 2 < len(items): x_read2(items[n + 2][0], items[n + 2][1], (2 * T + n + 2) % 4)
                    if m >= 1:
                        for _ in range(2):
                            if pend and pend[0][0] <= n - 1: a(pend.pop(0)[1])
                if st == 31:
                    pend += [(n + 1, ins) for ins in epi_list(i, bb)]
            a("s_nop 7")
            for _, ins in pend: a(ins)
        if bb == 0: a("s_branch L_epi_done")
    a.label("L_epi_done")
    if G.CFG.get('gstamp'):
        a("s_lshl_b32 s73, s2, 2"); a("s_add_u32 s73, s73, s15"); a("s_lshl_b32 s73, s73, 10")
        a(f"s_add_u32 s73, s73, {212 << 20}")
        a("v_mbcnt_lo_u32_b32 v254, -1, 0")
        a("v_mbcnt_hi_u32_b32 v254, -1, v254")
        a("v_lshlrev_b32 v254, 2, v254")
        a("buffer_store_dword v255, v254, s[16:19], s73 offen")
    a("s_endpgm")

def helper_wave(a, cfg):
    vDW = 1; vDX = 2
    sWo, sXo, sLW, sLX = 40, 41, 42, 43
    vD6 = 5; sX6 = 44
    def dma(buf):
        a(f"s_add_u32 m0, s{sLW}, {buf*STAGE}")
        for j in range(4):
            a(f"buffer_load_dwordx4 v{vDW}, s[16:19], s{sWo} offen offset:{j*1024} lds")
        a(f"s_add_u32 s{sWo}, s{sWo}, {G.WF_KS}")
        a(f"s_add_u32 m0, s{sLX}, {buf*STAGE}")
        for j in range(4):
            a(f"buffer_load_dwordx4 v{vDX}, s[16:19], s{sXo} offen offset:{j*1024} lds")
        a(f"s_add_u32 m0, s{sLX}, {buf*STAGE+4096}")
        a(f"s_add_u32 s49, s{sXo}, 4096")
        a(f"buffer_load_dwordx4 v{vDX}, s[16:19], s49 offen lds")
        a("s_mov_b64 exec, s[50:51]")
        a(f"buffer_load_dwordx4 v{vD6}, s[16:19], s{sX6} offen offset:1024 lds")
        a("s_mov_b64 exec, -1")
        a(f"s_add_u32 s{sXo}, s{sXo}, {G.XF_KS}")
        a(f"s_add_u32 s{sX6}, s{sX6}, {G.XF_KS}")
    for st in range(3): dma(st)
    a("s_waitcnt vmcnt(20)")
    a("s_barrier")
    a("s_mov_b32 s46, 7")
    a.label("L_h_loop")
    for u in range(4):
        a("s_waitcnt vmcnt(10)")
        a("s_barrier")
        dma((u + 3) % NSTAGE)
    a("s_sub_u32 s46, s46, 1")
    a("s_cmp_lg_u32 s46, 0")
    a("s_cbranch_scc1 L_h_loop")
    a("s_waitcnt vmcnt(10)"); a("s_barrier"); dma((28 + 3) % NSTAGE)
    a("s_waitcnt vmcnt(10)"); a("s_barrier")
    a("s_waitcnt vmcnt(0)"); a("s_barrier")
    a("s_endpgm")

def gen_k3c(cfg=None):
    a = Asm()
    name = 'gemm_kernel'
    G.kernel_header(a, name)
    a("s_cmp_ge_u32 s2, 256")
    a("s_cbranch_scc1 L_k3_end")
    a("s_load_dwordx2 s[8:9], s[0:1], 48")
    a(f"v_lshrrev_b32 v{vT}, 6, v0")
    a(f"v_and_b32 v0, 63, v0")
    a(f"v_readfirstlane_b32 s10, v{vT}")
    a("s_and_b32 s11, s2, 7")
    a("s_lshr_b32 s12, s2, 3")
    a("s_lshr_b32 s13, s12, 3")
    a("s_lshl_b32 s11, s11, 2")
    a("s_add_u32 s11, s11, s13")
    a("s_bfe_u32 s13, s12, 0x10002")
    a("s_and_b32 s14, s12, 3")
    a("s_and_b32 s15, s10, 3")
    a("s_waitcnt lgkmcnt(0)")
    G.make_srd(a, 16, 8, 9, G.WS_BYTES)
    a("s_cmp_ge_u32 s10, 4")
    a("s_cbranch_scc1 L_k3_helper")
    g = vT; c16 = vT + 1; t0 = vT + 2; t1 = XR; t2 = XR + 1
    a(f"v_lshrrev_b32 v{g}, 4, v0")
    a(f"v_and_b32 v{c16}, 15, v0")
    a(f"v_bfe_u32 v{t0}, v{c16}, 3, 1")
    a(f"v_mul_u32_u24 v{t0}, 3, v{t0}")
    a(f"v_xor_b32 v{t0}, v{t0}, v{g}")
    a(f"v_lshlrev_b32 v{t0}, 4, v{t0}")
    a(f"v_lshl_add_u32 v{vXa}, v{c16}, 6, v{t0}")
    a(f"v_lshrrev_b32 v{t0}, 2, v{c16}")
    a(f"v_and_b32 v{t1}, 1, v{g}")
    a(f"v_lshl_or_b32 v{t1}, v{t1}, 2, v{t0}")
    a(f"v_lshl_add_u32 v{t0}, v{g}, 3, v{t0}")
    a(f"v_lshlrev_b32 v{t0}, 8, v{t0}")
    a(f"v_and_b32 v{t2}, 3, v{c16}")
    a(f"v_lshl_add_u32 v{t0}, v{t2}, 3, v{t0}")
    a("s_lshl_b32 s20, s15, 1")
    a("s_add_u32 s20, s20, s13")
    for t in range(2):
        if t: a("s_xor_b32 s20, s20, 1")
        a(f"v_xor_b32 v{t2}, s20, v{t1}")
        a(f"v_lshl_add_u32 v{vWa+t}, v{t2}, 5, v{t0}")
    a(f"s_mov_b32 s21, {G.YF_ROW}")
    a(f"v_mul_u32_u24 v{vSt}, s21, v{c16}")
    a(f"v_lshl_add_u32 v{vSt}, v{g}, 4, v{vSt}")
    a("s_lshl_b32 s23, s15, 6")
    a(f"v_add_u32 v{vSt}, s23, v{vSt}")
    a(f"v_and_b32 v{t0}, 7, v{c16}")
    a(f"v_mul_u32_u24 v{vSt2}, s21, v{t0}")
    a(f"v_lshrrev_b32 v{t1}, 3, v{c16}")
    a(f"v_xor_b32 v{t1}, s13, v{t1}")
    a(f"s_mov_b32 s22, {G.YF_B}")
    a(f"v_mul_lo_u32 v{t1}, v{t1}, s22")
    a(f"v_add_u32 v{vSt2}, v{vSt2}, v{t1}")
    a(f"v_lshl_add_u32 v{vSt2}, v{g}, 4, v{vSt2}")
    a("s_lshl_b32 s22, s13, 3")
    a("s_add_u32 s22, s22, s23")
    a(f"v_add_u32 v{vSt2}, s22, v{vSt2}")
    a(f"v_cmp_gt_u32 vcc, 7, v{t0}")
    a(f"v_mov_b32 v{t1}, 0x80000000")
    a(f"v_cndmask_b32 v{vSt2}, v{t1}, v{vSt2}, vcc")
    a(f"s_mul_i32 s48, s11, {2*G.YF_J}")
    a("s_lshl_b32 s20, s14, 8")
    a("s_add_u32 s48, s48, s20")
    a(f"s_add_u32 s48, s48, {G.YF_BASE}")
    a(f"s_add_u32 s49, s48, {160*G.YF_ROW}")
    a(f"s_mul_i32 s20, s13, {G.YF_B}")
    a("s_add_u32 s48, s48, s20")
    gemm_wave(a, cfg)
    a.label("L_k3_helper")
    a(f"s_mul_i32 s40, s11, {G.WF_K}")
    a(f"s_mul_i32 s20, s14, {G.WF_DQ}")
    a("s_add_u32 s40, s40, s20")
    if G.WF_BASE: a(f"s_add_u32 s40, s40, {G.WF_BASE}")
    a(f"s_mul_i32 s41, s11, {G.XF_K}")
    a(f"s_mul_i32 s20, s13, {G.XF_B}")
    a("s_add_u32 s41, s41, s20")
    a(f"s_add_u32 s41, s41, {G.XF_BASE}")
    a("s_lshl_b32 s42, s15, 12")
    a("s_mul_i32 s43, s15, 5632")
    a("s_lshr_b32 s20, s15, 1")
    a("s_lshl_b32 s21, s20, 9")
    a("s_sub_u32 s21, s43, s21")
    a("v_lshlrev_b32 v1, 4, v0")
    a("v_add_u32 v2, s21, v1")
    a("s_add_u32 s22, s21, 4096")
    a("v_add_u32 v5, s22, v1")
    a("s_mov_b32 s44, s41")
    a("s_bitcmp1_b32 s15, 0")
    a("s_cbranch_scc0 L_six_even")
    a(f"s_mul_i32 s22, s20, 10752")
    a(f"s_add_u32 s22, s22, {10240-1024}")
    a("v_lshrrev_b32 v5, 2, v0"); a("v_lshlrev_b32 v5, 6, v5")
    a("v_and_b32 v3, 3, v0"); a("v_xor_b32 v3, 3, v3"); a("v_lshl_add_u32 v5, v3, 4, v5")
    a("v_add_u32 v5, s22, v5")
    a(f"s_mul_i32 s44, s11, {G.XF_K}")
    a("s_xor_b32 s22, s13, 1")
    a(f"s_mul_i32 s22, s22, {G.XF_B}")
    a("s_add_u32 s44, s44, s22")
    a(f"s_add_u32 s44, s44, {G.XF_BASE}")
    a.label("L_six_even")
    a("s_mov_b32 s50, -1"); a("s_mov_b32 s51, 0")
    a("v_add_u32 v1, s42, v1")
    a("s_add_u32 s43, s43, 16384")
    a("s_cmp_ge_u32 s2, 8"); a("s_cbranch_scc1 L_nozero")
    a("s_cmp_lg_u32 s15, 0"); a("s_cbranch_scc1 L_nozero")
    a(f"s_mul_i32 s20, s2, {G.CNT_STRIDE}"); a(f"s_add_u32 s20, s20, {G.CNT_BASE}")
    a("v_mov_b32 v3, 0"); a("v_lshlrev_b32 v4, 2, v0")
    a("buffer_store_dword v3, v4, s[16:19], s20 offen")
    a.label("L_nozero")
    a("s_cmp_ge_u32 s2, 224"); a("s_cbranch_scc1 L_nofill")
    a("s_cmp_lg_u32 s15, 1"); a("s_cbranch_scc1 L_nofill")
    a("s_lshl_b32 s20, s2, 10"); a(f"s_add_u32 s20, s20, {G.PART_BASE}")
    a("v_mov_b32 v8, -1"); a("v_mov_b32 v9, -1"); a("v_mov_b32 v10, -1"); a("v_mov_b32 v11, -1"); a("v_lshlrev_b32 v4, 4, v0")
    a("buffer_store_dwordx4 v[8:11], v4, s[16:19], s20 offen")
    a.label("L_nofill")
    helper_wave(a, cfg)
    a.label("L_k3_end")
    a("s_endpgm")
    return name, a.lines, 256, (256, 512, LDS_BYTES)
```

```python
from asmlib import *
import gen as G
import math, struct
f2h = lambda x: "0x%08x" % struct.unpack('<I', struct.pack('<f', x))[0]

RAW = 0
AF = 64
BF = 88
ACC = 104
VT = 200
NG = 28
L_TAB = 0; L_PART = 8192; L_SUM = L_PART + 6 * 4096; L_OFF = L_SUM + 1024
LDS = L_OFF + 6 * 8192

def hreg(o, dd, rp): return ACC + (o * 8 + dd) * 4 + rp

def gen_k45g(cfg=None):
    cfg = cfg or G.CFG
    a = Asm()
    def st(i):
        if cfg.get('fstamp'):
            a("s_memrealtime s[70:71]"); a("s_waitcnt lgkmcnt(0)"); a(f"v_writelane_b32 v244, s70, {i}")
    name = 'final_kernel'
    G.kernel_header(a, name)
    vLane = VT; vR = VT+1; vG = VT+2; vOff = VT+3; vT0 = VT+4
    VTID4 = 214; PA = 216; PB = 224; GB = 232
    st(0)
    a(f"s_cmp_ge_u32 s2, {2*NG*4}")
    a("s_cbranch_scc1 L_k45_end")
    a("s_load_dwordx2 s[8:9], s[0:1], 48")
    a("s_load_dwordx4 s[4:7], s[0:1], 16")
    a("s_load_dwordx2 s[28:29], s[0:1], 32")
    a(f"v_lshrrev_b32 v{vT0}, 6, v0")
    a(f"v_and_b32 v{vLane}, 63, v0")
    a(f"v_readfirstlane_b32 s10, v{vT0}")
    a(f"v_lshlrev_b32 v{VTID4}, 2, v0")
    a(f"v_and_b32 v{vR}, 15, v{vLane}")
    a(f"v_lshrrev_b32 v{vG}, 4, v{vLane}")
    a("s_and_b32 s13, s2, 3")
    a("s_lshr_b32 s12, s2, 2")
    a(f"s_cmp_ge_u32 s12, {NG}")
    a("s_cselect_b32 s11, 1, 0")
    a(f"s_mul_i32 s15, s11, {NG}")
    a("s_sub_u32 s12, s12, s15")
    a("s_mul_i32 s14, s12, 6")
    a("s_add_u32 s14, s14, s10")
    a(f"s_mov_b32 s24, {8*G.YF_J}")
    a(f"v_mul_u32_u24 v{vOff}, s24, v{vG}")
    a(f"v_lshl_add_u32 v{vOff}, v{vR}, 4, v{vOff}")
    a(f"s_mul_i32 s24, s11, {G.YF_B}")
    a(f"s_mul_i32 s25, s14, {G.YF_ROW}")
    a("s_add_u32 s24, s24, s25")
    a("s_lshl_b32 s25, s13, 8")
    a("s_add_u32 s24, s24, s25")
    a(f"s_add_u32 s24, s24, {G.YF_BASE}")
    a("s_mov_b32 s30, 0x05040100")
    a("s_mov_b32 s31, 0x07060302")
    a("s_waitcnt lgkmcnt(0)")
    G.make_srd(a, 16, 8, 9, G.WS_BYTES)
    a("s_cmp_ge_u32 s10, 6")
    a("s_cbranch_scc1 L_k45_gb")
    for s in range(2):
        for i in range(8):
            r = RAW + 4 * (8 * s + i)
            a(f"s_add_u32 s25, s24, {(32*s+i)*G.YF_J}")
            a(f"buffer_load_dwordx4 v[{r}:{r+3}], v{vOff}, s[16:19], s25 offen")
    vN = vT0; vA = vT0+1; vP = BF
    a("s_lshr_b32 s27, s10, 1")
    a("s_and_b32 s33, s10, 1")
    a("s_lshl_b32 s27, s27, 4")
    a(f"v_add_u32 v{vN}, s27, v{vR}")
    a("s_lshl_b32 s33, s33, 5")
    a("s_add_u32 s33, s33, 1")
    a(f"v_lshlrev_b32 v{vA}, 3, v{vG}")
    a(f"v_add_u32 v{vA}, s33, v{vA}")
    for e2 in range(4):
        a(f"v_mul_u32_u24 v{vP+2*e2}, v{vA}, v{vN}")
        a(f"v_add_u32 v{vP+2*e2+1}, 32, v{vP+2*e2}")
        if e2 < 3: a(f"v_add_u32 v{vA}, 2, v{vA}")
    G.cos_table(a, None, [vP+e for e in range(8)], ACC, ACC+4, scale="0x3d000000")
    a("s_lshl_b32 s26, s10, 10")
    a(f"v_lshlrev_b32 v{vT0+3}, 4, v{vLane}")
    a(f"v_add_u32 v{vT0+3}, s26, v{vT0+3}")
    a(f"ds_write_b128 v{vT0+3}, v[{ACC}:{ACC+3}] offset:{L_TAB}")
    a.label("L_k45_gb")
    G.make_srd(a, 20, 4, 5, 1024)
    G.make_srd(a, 36, 6, 7, 1024)
    a(f"v_lshlrev_b32 v{vT0+6}, 4, v{vR}")
    a("s_lshl_b32 s25, s13, 8")
    a(f"buffer_load_dwordx4 v[{GB}:{GB+3}], v{vT0+6}, s[20:23], s25 offen")
    a(f"buffer_load_dwordx4 v[{GB+4}:{GB+7}], v{vT0+6}, s[36:39], s25 offen")
    st(1)
    a("s_waitcnt lgkmcnt(0)")
    a("s_barrier")
    a("s_cmp_ge_u32 s10, 6")
    a("s_cbranch_scc1 L_k45_red2")
    a(f"v_lshlrev_b32 v{vT0+3}, 4, v{vLane}")
    for o in range(3):
        for s in range(2):
            r = AF + 4 * (2 * o + s)
            a(f"ds_read_b128 v[{r}:{r+3}], v{vT0+3} offset:{L_TAB+(2*o+s)*1024}")
    S1 = PA; S2 = PB
    a(f"s_cmp_ge_u32 s14, {G.NBLK}")
    a("s_cbranch_scc1 L_k45_zero")
    a("s_waitcnt lgkmcnt(0)")
    a(f"s_cmp_lg_u32 s14, {G.NBLK-1}")
    a("s_cbranch_scc1 L_k45_full")
    lastn = G.L_OUT - 48 * (G.NBLK - 1)
    for o in range(3):
        nvalid = lastn - 16 * o
        a(f"v_cmp_gt_i32 vcc, {max(nvalid,0)}, v{vR}")
        for r in range(8):
            a(f"v_cndmask_b32 v{AF+8*o+r}, 0, v{AF+8*o+r}, vcc")
    a.label("L_k45_full")
    a("s_waitcnt vmcnt(2)")
    st(2)
    for q in range(4):
        for s in range(2):
            for h in range(2):
                for e in range(4):
                    a(f"v_perm_b32 v{BF+(s*2+h)*4+e}, v{RAW+4*(8*s+2*e+1)+q}, v{RAW+4*(8*s+2*e)+q}, s{30+h}")
        for s in range(2):
            for o in range(3):
                for h in range(2):
                    d = ACC + (o * 8 + 2 * q + h) * 4
                    A = AF + 4 * (2 * o + s); B = BF + (s * 2 + h) * 4
                    c = "0" if s == 0 else f"v[{d}:{d+3}]"
                    a(f"v_mfma_f32_16x16x32_bf16 v[{d}:{d+3}], v[{A}:{A+3}], v[{B}:{B+3}], {c}")
    st(3)
    a("s_nop 7")
    for dd in range(8):
        first = True
        for o in range(3):
            for rp in range(4):
                h = hreg(o, dd, rp)
                if first:
                    a(f"v_mul_f32 v{S2+dd}, v{h}, v{h}"); a(f"v_mov_b32 v{S1+dd}, v{h}"); first = False
                else:
                    a(f"v_fmac_f32 v{S2+dd}, v{h}, v{h}"); a(f"v_add_f32 v{S1+dd}, v{S1+dd}, v{h}")
    a("s_branch L_k45_red")
    a.label("L_k45_zero")
    a("s_waitcnt vmcnt(0) lgkmcnt(0)")
    for r in range(8):
        a(f"v_mov_b32 v{S1+r}, 0"); a(f"v_mov_b32 v{S2+r}, 0")
    a.label("L_k45_red")
    st(4)
    a("s_lshl_b32 s25, s10, 12")
    a(f"v_lshlrev_b32 v{vT0}, 10, v{vG}")
    a(f"v_lshl_add_u32 v{vT0}, v{vR}, 5, v{vT0}")
    a(f"v_add_u32 v{vT0}, s25, v{vT0}")
    a(f"ds_write_b128 v{vT0}, v[{S1}:{S1+3}] offset:{L_PART}")
    a(f"ds_write_b128 v{vT0}, v[{S1+4}:{S1+7}] offset:{L_PART+16}")
    a(f"ds_write_b128 v{vT0}, v[{S2}:{S2+3}] offset:{L_PART+512}")
    a(f"ds_write_b128 v{vT0}, v[{S2+4}:{S2+7}] offset:{L_PART+512+16}")
    a("s_lshl_b32 s25, s10, 13")
    a(f"v_lshlrev_b32 v{vT0+1}, 4, v{vLane}")
    a(f"v_add_u32 v{vT0+1}, s25, v{vT0+1}")
    for dd in range(8):
        h = hreg(2, dd, 0)
        a(f"ds_write_b96 v{vT0+1}, v[{h}:{h+2}] offset:{L_OFF+dd*1024}")
    a.label("L_k45_red2")
    a("s_waitcnt lgkmcnt(0)")
    a("s_barrier")
    a(f"s_mul_i32 s24, s11, {4*NG}")
    a(f"s_mul_i32 s25, s13, {NG}")
    a("s_add_u32 s24, s24, s25")
    a("s_lshl_b32 s26, s24, 10")
    a(f"s_add_u32 s26, s26, {G.PART_BASE}")
    a("s_cmp_ge_u32 s10, 6")
    a("s_cbranch_scc1 L_k45_hread")
    a("s_cmp_ge_u32 s10, 4")
    a("s_cbranch_scc1 L_k45_sumdone")
    for p in range(24):
        a(f"ds_read_b32 v{RAW+16+p}, v{VTID4} offset:{L_PART+p*1024}")
    a("s_waitcnt lgkmcnt(0)")
    vals = [RAW + 16 + p for p in range(24)]
    while len(vals) > 1:
        nv = []
        for i in range(0, len(vals) - 1, 2):
            a(f"v_add_f32 v{vals[i]}, v{vals[i]}, v{vals[i+1]}"); nv.append(vals[i])
        if len(vals) & 1: nv.append(vals[-1])
        vals = nv
    a("s_lshl_b32 s24, s12, 10")
    a("s_add_u32 s24, s24, s26")
    a(f"buffer_store_dword v{vals[0]}, v{VTID4}, s[16:19], s24 offen sc1")
    st(5)
    PT = RAW
    a(f"s_mov_b32 s33, {1 << 14}")
    a.label("L_k45_poll")
    a("s_mov_b32 s27, s26")
    for p in range(NG):
        if p % 4 == 0 and p: a("s_add_u32 s27, s27, 4096")
        a(f"buffer_load_dword v{PT+p}, v{VTID4}, s[16:19], s27 offen offset:{(p%4)*1024} sc1")
    a("s_waitcnt vmcnt(0)")
    t = RAW + 32
    a(f"v_max3_u32 v{t}, v{PT}, v{PT+1}, v{PT+2}")
    for p in range(3, NG - 1, 2):
        a(f"v_max3_u32 v{t}, v{t}, v{PT+p}, v{PT+p+1}")
    a(f"v_max_u32 v{t}, v{t}, v{PT+NG-1}")
    a(f"v_cmp_eq_u32 vcc, -1, v{t}")
    a("s_cmp_eq_u64 vcc, 0")
    a("s_cbranch_scc1 L_k45_got")
    a("s_sub_u32 s33, s33, 1")
    a("s_cmp_eq_u32 s33, 0")
    a("s_cbranch_scc1 L_k45_got")
    if cfg.get('k45_sleep'): a(f"s_sleep {cfg['k45_sleep']}")
    a("s_branch L_k45_poll")
    a.label("L_k45_got")
    st(7)
    vals = [PT + p for p in range(NG)]
    while len(vals) > 1:
        nv = []
        for i in range(0, len(vals) - 1, 2):
            a(f"v_add_f32 v{vals[i]}, v{vals[i]}, v{vals[i+1]}"); nv.append(vals[i])
        if len(vals) & 1: nv.append(vals[-1])
        vals = nv
    a(f"ds_write_b32 v{VTID4}, v{vals[0]} offset:{L_SUM}")
    a("s_branch L_k45_sumdone")
    a.label("L_k45_hread")
    a("s_sub_u32 s25, s10, 6")
    a("s_mul_i32 s25, s25, 3")
    a("s_lshl_b32 s25, s25, 13")
    a(f"v_lshlrev_b32 v{vT0+1}, 4, v{vLane}")
    a(f"v_add_u32 v{vT0+1}, s25, v{vT0+1}")
    for j in range(3):
        for dd in range(8):
            h = hreg(j, dd, 0)
            a(f"ds_read_b96 v[{h}:{h+2}], v{vT0+1} offset:{L_OFF+j*8192+dd*1024}")
            if dd == 7: a("s_waitcnt lgkmcnt(0)")
    a.label("L_k45_sumdone")
    st(9)
    a("s_waitcnt lgkmcnt(0)")
    a("s_barrier")
    ST = RAW + 44
    a(f"v_lshlrev_b32 v{vT0+6}, 5, v{vR}")
    a(f"ds_read_b128 v[{ST}:{ST+3}], v{vT0+6} offset:{L_SUM}")
    a(f"ds_read_b128 v[{ST+4}:{ST+7}], v{vT0+6} offset:{L_SUM+16}")
    a(f"ds_read_b128 v[{ST+8}:{ST+11}], v{vT0+6} offset:{L_SUM+512}")
    a(f"ds_read_b128 v[{ST+12}:{ST+15}], v{vT0+6} offset:{L_SUM+512+16}")
    a(f"s_mov_b32 s24, {f2h(1.0 / G.L_OUT)}")
    a("s_mov_b32 s25, 0x3727c5ac")
    a("s_waitcnt vmcnt(0) lgkmcnt(0)")
    for dd in range(8):
        mu = ST + dd; m2 = ST + 8 + dd
        a(f"v_mul_f32 v{mu}, s24, v{mu}")
        a(f"v_mul_f32 v{m2}, s24, v{m2}")
        a(f"v_fma_f32 v{m2}, -v{mu}, v{mu}, v{m2}")
        a(f"v_max_f32 v{m2}, 0, v{m2}")
        a(f"v_add_f32 v{m2}, s25, v{m2}")
        a(f"v_rsq_f32 v{m2}, v{m2}")
        gsrc = GB + (dd >> 1); bsrc = GB + 4 + (dd >> 1)
        if dd & 1:
            a(f"v_and_b32 v{PA+dd}, 0xffff0000, v{gsrc}"); a(f"v_and_b32 v{PB+dd}, 0xffff0000, v{bsrc}")
        else:
            a(f"v_lshlrev_b32 v{PA+dd}, 16, v{gsrc}"); a(f"v_lshlrev_b32 v{PB+dd}, 16, v{bsrc}")
        a(f"v_mul_f32 v{PA+dd}, v{PA+dd}, v{m2}")
        a(f"v_fma_f32 v{PB+dd}, -v{mu}, v{PA+dd}, v{PB+dd}")
    a(f"s_mul_i32 s24, s11, {G.OUT_B}")
    a("s_add_u32 s28, s28, s24")
    a("s_addc_u32 s29, s29, 0")
    G.make_srd(a, 32, 28, 29, G.OUT_B)
    vO = vT0 + 6
    a("s_lshl_b32 s25, s13, 8")
    a(f"v_lshlrev_b32 v{vO}, 12, v{vG}")
    a(f"v_lshl_add_u32 v{vO}, v{vR}, 4, v{vO}")
    a(f"v_add_u32 v{vO}, s25, v{vO}")
    c0 = -2.0 * math.log2(math.e) * math.sqrt(2.0 / math.pi); c1 = c0 * 0.044715
    a(f"s_mov_b32 s26, {f2h(c1)}")
    a(f"v_mov_b32 v{vT0+7}, {f2h(c0)}")
    st(10)
    T0 = RAW
    cnt = [0]
    def gelu_row(regs, soff_imm):
        ob = RAW + 16 + 4 * (cnt[0] % 8); cnt[0] += 1
        for dd in range(8): a(f"v_fma_f32 v{regs[dd]}, v{regs[dd]}, v{PA+dd}, v{PB+dd}")
        for dd in range(8): a(f"v_mul_f32 v{T0+dd}, v{regs[dd]}, v{regs[dd]}")
        for dd in range(8): a(f"v_fma_f32 v{T0+dd}, v{T0+dd}, s26, v{vT0+7}")
        for dd in range(8): a(f"v_mul_f32 v{T0+dd}, v{T0+dd}, v{regs[dd]}")
        for dd in range(8): a(f"v_exp_f32 v{T0+dd}, v{T0+dd}")
        for dd in range(8): a(f"v_add_f32 v{T0+dd}, 1.0, v{T0+dd}")
        for dd in range(8): a(f"v_rcp_f32 v{T0+dd}, v{T0+dd}")
        for dd in range(8): a(f"v_mul_f32 v{T0+dd}, v{T0+dd}, v{regs[dd]}")
        for q in range(4): a(f"v_cvt_pk_bf16_f32 v{ob+q}, v{T0+2*q}, v{T0+2*q+1}")
        a(f"s_add_u32 s27, s24, {soff_imm}")
        a(f"buffer_store_dwordx4 v[{ob}:{ob+3}], v{vO}, s[32:35], s27 offen {cfg['k5_st']}")
    a("s_cmp_ge_u32 s10, 6")
    a("s_cbranch_scc1 L_k45_hgelu")
    a(f"s_cmp_ge_u32 s14, {G.NBLK}")
    a("s_cbranch_scc1 L_k45_fin")
    a("s_mul_i32 s24, s14, %d" % (48 * 1024))
    for o in range(3):
        for rp in range(4):
            if o == 2 and rp < 3: continue
            gelu_row([hreg(o, dd, rp) for dd in range(8)], (16 * o + rp) * 1024)
    a("s_branch L_k45_fin")
    a.label("L_k45_hgelu")
    a("s_sub_u32 s25, s10, 6")
    a("s_mul_i32 s25, s25, 3")
    a("s_mul_i32 s24, s12, 6")
    a("s_add_u32 s24, s24, s25")
    a("s_mul_i32 s24, s24, %d" % (48 * 1024))
    for j in range(3):
        for rp in range(3):
            gelu_row([hreg(j, dd, rp) for dd in range(8)], j * 48 * 1024 + (32 + rp) * 1024)
    a.label("L_k45_fin")
    st(11)
    if cfg.get('fstamp'):
        a("s_waitcnt vmcnt(0)")
        st(12)
        a("s_lshl_b32 s73, s2, 3"); a("s_add_u32 s73, s73, s10"); a("s_lshl_b32 s73, s73, 8")
        a(f"s_add_u32 s73, s73, {214 << 20}")
        a(f"v_lshlrev_b32 v245, 2, v{vLane}")
        a("buffer_store_dword v244, v245, s[16:19], s73 offen")
    a.label("L_k45_end")
    a("s_endpgm")
    return name, a.lines, 248 if cfg.get('fstamp') else 240, (2 * NG * 4, 512, LDS)
```

```python
import sys, os
sys.path.insert(0, os.path.dirname(os.path.abspath(__file__)))
from asmlib import *

NAME = 'standalone__self_sup_conv_stem_wavlm__speech'

L_OUT = 7985
NBLK = 167
ROWS = 168
X_BYTES_B = 8000 * 2048
W_BYTES = 31 * 524288
WS_BYTES = 268435456
WF_BASE = 0
WF_K = 4 * 32 * 16384
XF_BASE = 64 << 20
XF_TILE = 2 * ROWS * 64
XF_B = 32 * XF_TILE
XF_K = 2 * XF_B
YF_BASE = 112 << 20
YF_B = 176 * 1024
YF_J = 2 * YF_B
PART_BASE = 140 << 20
NGRP = 42
CNT_BASE = 141 << 20
CNT_STRIDE = 8192 + 256
OUT_B = L_OUT * 1024

import json
CFG = dict(
    k3_nodma=False,
    k3_nomfma=False,
    k3_stamp=False,
    k3b=True,
    k3c=True,
    k12p=False,
    k12q=True,
    k12_nwg=256,
    w_nodup=True,
    k45f=True,
    k45g=True,
    k45_sleep=2,
    k45_wpg=6,
    k12_st='sc1',
    k3_st='sc1',
    k5_st='sc1',
    half=False,
    wfuse=False,
    c0=4,
    ldist=[6,5,5,0],
    xfull=True,
    layout=2,
    ypad=256,
    fused=False,
    hprio=0,
    st_flags='sc1',
    dma_flags='',
    timeline=False,
    k3_nolds=False,
)
CFG.update(json.loads(os.environ.get('GENCFG', '{}')))
if CFG['layout'] == 2:
    WF_K = 16384; WF_KS = 32 * 16384; WF_DQ = 32 * WF_KS
    XF_K = XF_TILE; XF_KS = 32 * XF_TILE; XF_B = 32 * XF_KS
    YF_J = 1024; YF_ROW = 65536 + CFG['ypad']; YF_B = 176 * YF_ROW
else:
    WF_KS = 16384; WF_DQ = 32 * 16384; XF_KS = XF_TILE; YF_ROW = 1024

def kernel_header(a, name):
    a(f".globl {name}")
    a(".p2align 8")
    a(f".type {name},@function")
    a.label(name)

def kernel_desc(name, vgpr, sgpr=96, accum=None):
    accum = accum or ((vgpr + 3) // 4 * 4)
    return f""".amdhsa_kernel {name}
  .amdhsa_next_free_vgpr {vgpr}
  .amdhsa_next_free_sgpr {sgpr}
  .amdhsa_accum_offset {accum}
  .amdhsa_group_segment_fixed_size 0
  .amdhsa_kernarg_size 56
  .amdhsa_user_sgpr_count 2
  .amdhsa_user_sgpr_kernarg_segment_ptr 1
  .amdhsa_system_sgpr_workgroup_id_x 1
  .amdhsa_float_denorm_mode_32 3
.end_amdhsa_kernel
"""

def make_srd(a, s, base_lo, base_hi, size):
    a(f"s_mov_b32 s{s}, s{base_lo}")
    a(f"s_and_b32 s{s+1}, s{base_hi}, 0xffff")
    a(f"s_mov_b32 s{s+2}, {size}")
    a(f"s_mov_b32 s{s+3}, 0x00020000")

def cos_table(a, vp0, vstep_list, dst, tmp, scale=None, lo_sel=None):
    for e in range(8):
        r = vstep_list[e]
        a(f"v_and_b32 v{r}, 127, v{r}")
        a(f"v_cvt_f32_u32 v{r}, v{r}")
        a(f"v_mul_f32 v{r}, 0x3c000000, v{r}")
        a(f"v_cos_f32 v{r}, v{r}")
    if scale is not None:
        for e in range(8):
            r = vstep_list[e]
            a(f"v_mul_f32 v{r}, {scale}, v{r}")
    for e2 in range(4):
        r0, r1 = vstep_list[2*e2], vstep_list[2*e2+1]
        a(f"v_cvt_pk_bf16_f32 v{dst+e2}, v{r0}, v{r1}")
    if lo_sel is not None:
        for e2 in range(4):
            r0, r1 = vstep_list[2*e2], vstep_list[2*e2+1]
            a(f"v_lshlrev_b32 v{tmp}, 16, v{dst+e2}")
            a(f"v_and_b32 v{tmp+1}, 0xffff0000, v{dst+e2}")
            a(f"v_sub_f32 v{r0}, v{r0}, v{tmp}")
            a(f"v_sub_f32 v{r1}, v{r1}, v{tmp+1}")
            a(f"v_cvt_pk_bf16_f32 v{tmp}, v{r0}, v{r1}")
            a(f"v_cndmask_b32 v{dst+e2}, v{dst+e2}, v{tmp}, s[{lo_sel}:{lo_sel+1}]")

def gen_k12():
    a = Asm()
    name = 'xform_kernel'
    kernel_header(a, name)
    NCG = CFG['c0'] if CFG['half'] else 8
    XFULL = CFG['half'] or CFG['wfuse']
    XF2_K = 2 * XF_TILE; XF_KP = 32 * XF2_K; XF2_B = 16 * XF_KP
    NX = 2 * NGRP * NCG
    NW = 128 * (CFG['c0'] if CFG['wfuse'] else NCG)
    RAW = 0
    AF = 64
    BF = 96
    ACC = 112
    VT = 144
    vLane = VT; vR = VT+1; vG = VT+2; vOff = VT+3; vSt = VT+4; vT0 = VT+5
    NV = 160
    a("s_cmp_ge_u32 s2, %d" % (NX + NW))
    a("s_cbranch_scc1 L_k12_end")
    a("s_load_dwordx4 s[4:7], s[0:1], 0")
    a("s_load_dwordx2 s[8:9], s[0:1], 48")
    a(f"v_and_b32 v{vLane}, 63, v0")
    a(f"v_lshrrev_b32 v{vT0}, 6, v0")
    a(f"v_and_b32 v{vR}, 15, v{vLane}")
    a(f"v_readfirstlane_b32 s10, v{vT0}")
    a(f"v_lshrrev_b32 v{vG}, 4, v{vLane}")
    a("s_mov_b32 s30, 0x05040100")
    a("s_mov_b32 s31, 0x07060302")
    a("s_waitcnt lgkmcnt(0)")
    make_srd(a, 16, 8, 9, WS_BYTES)
    a("s_cmp_ge_u32 s2, %d" % NX)
    a("s_cbranch_scc1 L_k12_w")
    a.c("X item: b, cg, grp")
    a(f"s_cmp_ge_u32 s2, {NGRP*NCG}")
    a("s_cselect_b32 s11, 1, 0")
    a(f"s_mul_i32 s12, s11, {NGRP*NCG}")
    a("s_sub_u32 s12, s2, s12")
    a(f"s_mul_hi_u32 s14, s12, {((1 << 32) + NCG - 1) // NCG if NCG > 1 else 0}")
    a(f"s_mul_i32 s13, s14, {NCG}")
    a("s_sub_u32 s13, s12, s13")
    a("s_lshl_b32 s14, s14, 2")
    a("s_add_u32 s14, s14, s10")
    a(f"s_mul_i32 s15, s11, {X_BYTES_B}")
    a("s_add_u32 s4, s4, s15")
    a("s_addc_u32 s5, s5, 0")
    make_srd(a, 12+8, 4, 5, X_BYTES_B)
    a("s_mul_i32 s15, s14, %d" % (48 * 2048))
    a("s_lshl_b32 s24, s13, 8")
    a("s_add_u32 s15, s15, s24")
    a(f"v_lshlrev_b32 v{vOff}, 14, v{vG}")
    a(f"v_lshl_add_u32 v{vOff}, v{vR}, 4, v{vOff}")
    a(f"v_add_u32 v{vOff}, s15, v{vOff}")
    for s in range(2):
        for i in range(8):
            off = (32 * s + i) * 2048
            if off == 0:
                a(f"buffer_load_dwordx4 v[{RAW}:{RAW+3}], v{vOff}, s[20:23], 0 offen")
            else:
                a(f"v_add_u32 v{vT0}, {off}, v{vOff}")
                r = RAW + 4 * (8 * s + i)
                a(f"buffer_load_dwordx4 v[{r}:{r+3}], v{vT0}, s[20:23], 0 offen")
    a.c("table generation: wave w -> o = w, s = 0,1")
    vA = vT0; vC = vT0+1; vP = BF
    a(f"v_lshrrev_b32 v{vA}, 2, v{vR}")
    a(f"v_lshlrev_b32 v{vA}, 1, v{vA}")
    a(f"v_bfe_u32 v{vC}, v{vR}, 1, 1")
    a(f"v_add_u32 v{vA}, v{vA}, v{vC}")
    a("s_lshl_b32 s24, s10, 3")
    a(f"v_add_u32 v{vA}, s24, v{vA}")
    a(f"v_lshl_add_u32 v{vA}, v{vA}, 1, 1")
    a(f"v_and_b32 v{vC}, 1, v{vR}")
    a(f"v_lshlrev_b32 v{vC}, 5, v{vC}")
    for s in range(2):
        a(f"v_lshlrev_b32 v{vT0+2}, 3, v{vG}")
        if s: a(f"v_add_u32 v{vT0+2}, 32, v{vT0+2}")
        a(f"v_mad_u32_u24 v{vP}, v{vA}, v{vT0+2}, v{vC}")
        for e in range(1, 8):
            a(f"v_add_u32 v{vP+e}, v{vP+e-1}, v{vA}")
        cos_table(a, None, [vP+e for e in range(8)], ACC, ACC+4)
        a("s_lshl_b32 s24, s10, 11")
        a(f"v_lshlrev_b32 v{vT0+3}, 4, v{vLane}")
        a(f"v_add_u32 v{vT0+3}, s24, v{vT0+3}")
        a(f"ds_write_b128 v{vT0+3}, v[{ACC}:{ACC+3}] offset:{s*1024}")
    a("s_waitcnt lgkmcnt(0)")
    a("s_barrier")
    a(f"v_lshlrev_b32 v{vT0+3}, 4, v{vLane}")
    for o in range(4):
        for s in range(2):
            r = AF + 4 * (2 * o + s)
            a(f"ds_read_b128 v[{r}:{r+3}], v{vT0+3} offset:{(2*o+s)*1024}")
    a("s_bfe_u32 s24, s14, 0x10003")
    a("s_mul_i32 s24, s24, 3")
    a(f"v_and_b32 v{vT0}, 3, v{vR}")
    a(f"v_xor_b32 v{vT0}, s24, v{vT0}")
    a(f"v_lshlrev_b32 v{vT0}, 4, v{vT0}")
    if XFULL:
        a(f"v_bfe_u32 v{vT0+1}, v{vR}, 2, 1")
        a(f"v_lshl_add_u32 v{vT0}, v{vT0+1}, 6, v{vT0}")
        a(f"v_lshrrev_b32 v{vT0+1}, 3, v{vR}")
        a(f"s_mov_b32 s24, {XF_KP}")
    else:
        a(f"v_lshrrev_b32 v{vT0+1}, 2, v{vR}")
        a(f"s_mov_b32 s24, {XF_KS}")
    a(f"v_mad_u32_u24 v{vT0}, v{vT0+1}, s24, v{vT0}")
    a(f"s_mov_b32 s24, {2*(XF2_K if XFULL else XF_K)}")
    a(f"v_mad_u32_u24 v{vSt}, v{vG}, s24, v{vT0}")
    a(f"s_mul_i32 s24, s11, {XF2_B if XFULL else XF_B}")
    a(f"s_mul_i32 s25, s13, {2*XF_KP if XFULL else 4*XF_KS}")
    a("s_add_u32 s24, s24, s25")
    a(f"s_lshl_b32 s25, s14, {7 if XFULL else 6}")
    a("s_add_u32 s24, s24, s25")
    a(f"s_add_u32 s24, s24, {XF_BASE}")
    a("s_waitcnt vmcnt(0) lgkmcnt(0)")
    def perms(q):
        for s in range(2):
            for h in range(2):
                for e in range(4):
                    d = BF + (s * 2 + h) * 4 + e
                    r0 = RAW + 4 * (8 * s + 2 * e) + q
                    r1 = RAW + 4 * (8 * s + 2 * e + 1) + q
                    a(f"v_perm_b32 v{d}, v{r1}, v{r0}, s{30+h}")
    def mfmas():
        for s in range(2):
            for o in range(4):
                for h in range(2):
                    d = ACC + (o * 2 + h) * 4
                    A = AF + 4 * (2 * o + s)
                    B = BF + (s * 2 + h) * 4
                    c = "0" if s == 0 else f"v[{d}:{d+3}]"
                    a(f"v_mfma_f32_16x16x32_bf16 v[{d}:{d+3}], v[{A}:{A+3}], v[{B}:{B+3}], {c}")
    def cvts(q):
        for o in range(4):
            for rp in range(4):
                d = RAW + 4 * (4 * o + rp) + q
                a(f"v_cvt_pk_bf16_f32 v{d}, v{ACC+(o*2)*4+rp}, v{ACC+(o*2+1)*4+rp}")
    perms(0)
    for q in range(4):
        mfmas()
        if q < 3: perms(q + 1)
        cvts(q)
    for o in range(4):
        for rp in range(4):
            off = (8 * o + (rp >> 1)) * XF_K + (rp & 1) * (ROWS * 64)
            if XFULL: off = (8 * o + (rp >> 1)) * XF2_K + (rp & 1) * (ROWS * 128)
            a(f"s_add_u32 s25, s24, {off}")
            r = RAW + 4 * (4 * o + rp)
            a(f"buffer_store_dwordx4 v[{r}:{r+3}], v{vSt}, s[16:19], s25 offen {CFG['k12_st']}")
    a("s_endpgm")
    a.label("L_k12_w")
    a(f"s_sub_u32 s12, s2, {NX}")
    a("s_and_b32 s13, s12, 3")
    a("s_lshr_b32 s14, s12, 2")
    a("s_lshl_b32 s14, s14, 2")
    a("s_add_u32 s14, s14, s10")
    make_srd(a, 20, 6, 7, W_BYTES)
    a(f"v_and_b32 v{vT0}, 1, v{vG}")
    a(f"v_lshlrev_b32 v{vOff}, 23, v{vT0}")
    a(f"v_lshrrev_b32 v{vT0}, 2, v{vR}")
    a(f"v_lshl_add_u32 v{vOff}, v{vT0}, 6, v{vOff}")
    a(f"v_and_b32 v{vT0}, 1, v{vR}")
    a(f"v_lshl_add_u32 v{vOff}, v{vT0}, 5, v{vOff}")
    a(f"v_bfe_u32 v{vT0}, v{vR}, 1, 1")
    a(f"v_lshl_add_u32 v{vOff}, v{vT0}, 3, v{vOff}")
    a("s_lshl_b32 s15, s14, 10")
    a("s_lshl_b32 s24, s13, 8")
    a("s_add_u32 s15, s15, s24")
    a(f"v_add_u32 v{vOff}, s15, v{vOff}")
    for i in range(8):
        r = RAW + 4 * i
        if i == 0:
            src = vOff
        else:
            a(f"v_add_u32 v{vT0}, {i << 20}, v{vOff}")
            src = vT0
        a(f"buffer_load_dwordx2 v[{r}:{r+1}], v{src}, s[20:23], 0 offen")
        a(f"buffer_load_dwordx2 v[{r+2}:{r+3}], v{src}, s[20:23], 0 offen offset:16")
    a.c("table: wave w -> o = w")
    vA = vT0; vC = vT0+1; vP = BF
    a(f"v_lshrrev_b32 v{vA}, 2, v{vR}")
    a(f"v_lshlrev_b32 v{vA}, 1, v{vA}")
    a(f"v_bfe_u32 v{vC}, v{vR}, 1, 1")
    a(f"v_add_u32 v{vA}, v{vA}, v{vC}")
    a("s_lshl_b32 s24, s10, 3")
    a(f"v_add_u32 v{vA}, s24, v{vA}")
    a(f"v_lshl_add_u32 v{vA}, v{vA}, 1, 1")
    a(f"v_and_b32 v{vC}, 1, v{vR}")
    a(f"v_lshlrev_b32 v{vC}, 5, v{vC}")
    a(f"v_and_b32 v{vT0+2}, 1, v{vG}")
    a(f"v_lshlrev_b32 v{vT0+2}, 3, v{vT0+2}")
    a(f"v_mad_u32_u24 v{vP}, v{vA}, v{vT0+2}, v{vC}")
    for e in range(1, 8):
        a(f"v_add_u32 v{vP+e}, v{vP+e-1}, v{vA}")
    a(f"v_cmp_lt_u32 s[26:27], 1, v{vG}")
    cos_table(a, None, [vP+e for e in range(8)], ACC, ACC+4, lo_sel=26)
    a("s_lshl_b32 s24, s10, 10")
    a(f"v_lshlrev_b32 v{vT0+3}, 4, v{vLane}")
    a(f"v_add_u32 v{vT0+3}, s24, v{vT0+3}")
    a(f"ds_write_b128 v{vT0+3}, v[{ACC}:{ACC+3}]")
    a("s_waitcnt lgkmcnt(0)")
    a("s_barrier")
    a(f"v_lshlrev_b32 v{vT0+3}, 4, v{vLane}")
    for o in range(4):
        r = AF + 4 * o
        a(f"ds_read_b128 v[{r}:{r+3}], v{vT0+3} offset:{o*1024}")
    a("s_and_b32 s24, s14, 3")
    a("s_bfe_u32 s25, s14, 0x10003")
    a("s_lshl_b32 s25, s25, 2")
    a("s_or_b32 s24, s24, s25")
    a("s_lshl_b32 s24, s24, 1")
    a(f"v_xor_b32 v{vT0}, s24, v{vR}")
    a(f"v_lshlrev_b32 v{vT0}, 4, v{vT0}")
    a(f"s_mov_b32 s25, {2*WF_K}")
    a(f"v_mul_u32_u24 v{vSt}, s25, v{vG}")
    a(f"v_add_u32 v{vSt}, v{vSt}, v{vT0}")
    a(f"s_mul_i32 s24, s13, {WF_DQ}")
    a("s_lshr_b32 s25, s14, 5")
    a(f"s_mul_i32 s25, s25, {WF_KS}")
    a("s_add_u32 s24, s24, s25")
    a("s_and_b32 s25, s14, 31")
    a("s_lshl_b32 s25, s25, 8")
    a("s_add_u32 s24, s24, s25")
    if WF_BASE: a(f"s_add_u32 s24, s24, {WF_BASE}")
    a("s_waitcnt vmcnt(0) lgkmcnt(0)")
    OUT = 32
    FR = 32
    for dd in range(8):
        q = dd >> 1; h = dd & 1
        for e in range(4):
            r0 = RAW + 4 * (2 * e) + q
            r1 = RAW + 4 * (2 * e + 1) + q
            a(f"v_perm_b32 v{FR+4*dd+e}, v{r1}, v{r0}, s{30+h}")
    for o in range(4):
        A = AF + 4 * o
        for dd in range(8):
            d = ACC + 4 * dd
            a(f"v_mfma_f32_16x16x32_bf16 v[{d}:{d+3}], v[{A}:{A+3}], v[{FR+4*dd}:{FR+4*dd+3}], 0")
        ob = RAW + 16 * (o & 1)
        for rp in range(4):
            for q in range(4):
                a(f"v_cvt_pk_bf16_f32 v{ob+4*rp+q}, v{ACC+8*q+rp}, v{ACC+8*q+4+rp}")
        for rp in range(4):
            off = (8 * o + (rp >> 1)) * WF_K + (rp & 1) * 8192
            a(f"s_add_u32 s25, s24, {off}")
            r = ob + 4 * rp
            a(f"buffer_store_dwordx4 v[{r}:{r+3}], v{vSt}, s[16:19], s25 offen {CFG['k12_st']}")
    a.label("L_k12_end")
    a("s_endpgm")
    return name, a.lines, NV, (NX + NW, 256, 16384)

STAMP_BASE = 200 << 20
def add_timeline(name, lines, kidx):
    out = []
    started = False
    n = 0
    for l in lines:
        t = l.strip()
        out.append(l)
        if not started and t == name + ':':
            out.append("    s_memrealtime s[92:93]")
            out.append("    v_lshrrev_b32 v1, 6, v0")
            out.append("    s_nop 1")
            out.append("    v_readfirstlane_b32 s91, v1")
            out.append("    s_waitcnt lgkmcnt(0)")
            started = True
        if t == 's_endpgm':
            out.pop()
            n += 1
            out.append("    s_waitcnt vmcnt(0) lgkmcnt(0)")
            out.append("    s_memrealtime s[94:95]")
            out.append("    s_load_dwordx2 s[80:81], s[0:1], 48")
            out.append("    s_mov_b64 exec, -1")
            out.append("    s_waitcnt lgkmcnt(0)")
            out.append("    s_mov_b32 s84, s80"); out.append("    s_and_b32 s85, s81, 0xffff")
            out.append(f"    s_mov_b32 s86, {WS_BYTES}"); out.append("    s_mov_b32 s87, 0x00020000")
            out.append("    s_lshl_b32 s88, s2, 4"); out.append("    s_add_u32 s88, s88, s91"); out.append("    s_lshl_b32 s88, s88, 4")
            out.append(f"    s_add_u32 s88, s88, {STAMP_BASE + kidx * (1 << 20)}")
            out.append("    v_mov_b32 v0, s92"); out.append("    v_mov_b32 v1, s93"); out.append("    v_mov_b32 v2, s94"); out.append("    v_mov_b32 v3, s95")
            out.append("    v_mov_b32 v4, 0")
            out.append("    buffer_store_dwordx4 v[0:3], v4, s[84:87], s88 offen")
            out.append("    s_endpgm")
    return out

def build(kernels):
    if CFG['timeline']:
        kernels = [(n, add_timeline(n, l, i), nv, g) for i, (n, l, nv, g) in enumerate(kernels)]
    hdr = open(os.path.join(os.path.dirname(os.path.abspath(__file__)), '..', NAME + '.s.ref')).read().split('\n')
    out = []
    for l in hdr:
        if l.startswith('; Override launch') or l.startswith('; grid=ceil') or l.startswith('; @launch'): continue
        if l.startswith(';'): out.append(l)
        else: break
    for (name, lines, nv, (g, blk, lds)) in kernels:
        out.append(f"; @launch kernel={name} grid=({g},1,1) block=({blk},1,1) lds={lds}")
    out.append('.amdgcn_target "amdgcn-amd-amdhsa--gfx950"')
    out.append('.text')
    for (name, lines, nv, _) in kernels:
        out += hazard_pass(lines)
    out.append('.section .rodata,"a"')
    for (name, lines, nv, _) in kernels:
        out.append('.p2align 6')
        out.append(kernel_desc(name, nv))
    return '\n'.join(out) + '\n'

if __name__ == '__main__':
    from gen_k3 import gen_k3
    from gen_k45 import gen_k4, gen_k5
    from gen_k3b import gen_k3b
    from gen_k123 import gen_k123
    from gen_k3h import gen_k3h
    from gen_k3w import gen_k3w
    if CFG['wfuse']:
        ks = [gen_k12(), gen_k3w(), gen_k4(), gen_k5()]
    elif CFG['half']:
        ks = [gen_k12(), gen_k3h(), gen_k4(), gen_k5()]
    elif CFG['fused']:
        ks = [gen_k123(), gen_k4(), gen_k5()]
    else:
        ks = [gen_k12(), gen_k3b() if CFG['k3b'] else gen_k3(), gen_k4(), gen_k5()]
    if CFG['k12p']:
        from gen_k12p import gen_k12p
        ks[0] = gen_k12p()
    if CFG['k12q']:
        from gen_k12q import gen_k12q
        ks[0] = gen_k12q()
    if CFG['k3c']:
        from gen_k3c import gen_k3c
        ks[1] = gen_k3c()
    if CFG['k45g']:
        from gen_k45g import gen_k45g
        ks = ks[:-2] + [gen_k45g()]
    elif CFG['k45f']:
        from gen_k45 import gen_k45f
        ks = ks[:-2] + [gen_k45f()]
    dst = sys.argv[1] if len(sys.argv) > 1 else os.path.join(os.path.dirname(os.path.abspath(__file__)), '..', NAME + '.s')
    open(dst, 'w').write(build(ks))
    print('wrote', dst)
```

```python
from asmlib import *
import gen as G

def gen_k12q(cfg=None):
    cfg = cfg or G.CFG
    a = Asm()
    name = 'xform_kernel'
    G.kernel_header(a, name)
    NX = 2 * G.NGRP * 8
    NW = 1024
    NT = NX + NW
    NWG = cfg.get('k12_nwg', 256)
    st = cfg['k12_st']; ld = cfg.get('k12_ld', '')
    BUF = [0, 64]; AF = 128; BF = 160; ACC = 176; VT = 208
    vLane = VT; vR = VT+1; vG = VT+2; vOff = VT+3; vSt = VT+4; vT0 = VT+5
    vNext = VT + 13; vZ = VT + 14; vL16 = VT + 15
    vXo = VT + 16; vWo = VT + 17; vXs = VT + 18; vWs = VT + 19
    NV = 232
    sCur, sNxt = 40, 42
    a(f"s_cmp_ge_u32 s2, {NWG}")
    a("s_cbranch_scc1 L_k12_end")
    a("s_load_dwordx4 s[4:7], s[0:1], 0")
    a("s_load_dwordx4 s[36:39], s[0:1], 40")
    a(f"v_and_b32 v{vLane}, 63, v0")
    a(f"v_lshrrev_b32 v{vT0}, 6, v0")
    a(f"v_and_b32 v{vR}, 15, v{vLane}")
    a(f"v_readfirstlane_b32 s10, v{vT0}")
    a(f"v_lshrrev_b32 v{vG}, 4, v{vLane}")
    a(f"v_lshlrev_b32 v{vL16}, 4, v{vLane}")
    a(f"v_mov_b32 v{vZ}, 0")
    a("s_mov_b32 s30, 0x05040100")
    a("s_mov_b32 s31, 0x07060302")
    a("s_mov_b32 s32, 0x01000100")
    a("s_mov_b32 s33, 0x03020302")
    a(f"s_mov_b32 s{sCur}, s2")
    a(f"s_add_u32 s{sNxt}, s2, {NWG}")
    a("s_mov_b32 s41, 0")
    remap_later = True
    a("s_mov_b32 s43, 0")
    a(f"v_lshlrev_b32 v{vXo}, 14, v{vG}")
    a(f"v_lshl_add_u32 v{vXo}, v{vR}, 4, v{vXo}")
    a(f"v_lshlrev_b32 v{vWo}, 22, v{vG}")
    a(f"v_lshrrev_b32 v{vT0}, 2, v{vR}")
    a(f"v_lshl_add_u32 v{vWo}, v{vT0}, 6, v{vWo}")
    a(f"v_and_b32 v{vT0}, 1, v{vR}")
    a(f"v_lshl_add_u32 v{vWo}, v{vT0}, 5, v{vWo}")
    a(f"v_bfe_u32 v{vT0}, v{vR}, 1, 1")
    a(f"v_lshl_add_u32 v{vWo}, v{vT0}, 3, v{vWo}")
    a(f"v_lshrrev_b32 v{vT0}, 2, v{vR}")
    a(f"s_mov_b32 s24, {G.XF_KS}")
    a(f"v_mul_u32_u24 v{vXs}, s24, v{vT0}")
    a(f"s_mov_b32 s24, {2*G.XF_K}")
    a(f"v_mad_u32_u24 v{vXs}, v{vG}, s24, v{vXs}")
    a(f"s_mov_b32 s24, {2*G.WF_K}")
    a(f"v_mul_u32_u24 v{vWs}, s24, v{vG}")
    a("s_waitcnt lgkmcnt(0)")
    G.make_srd(a, 16, 38, 39, G.WS_BYTES)
    G.make_srd(a, 44, 36, 37, 256)
    uid = [0]
    MIX = cfg.get('k12_mix')
    def remap(sr):
        if not MIX: return
        u = uid[0]; uid[0] += 1
        if MIX >= 3:
            a(f"s_cmp_ge_u32 s{sr}, {2*NX}")
            a(f"s_cbranch_scc1 L_rm{u}")
            a(f"s_lshr_b32 s28, s{sr}, 1")
            a(f"s_add_u32 s29, s28, {NX}")
            a(f"s_bitcmp1_b32 s{sr}, 0")
            if MIX == 3: a(f"s_cselect_b32 s{sr}, s29, s28")
            else: a(f"s_cselect_b32 s{sr}, s28, s29")
            a.label(f"L_rm{u}")
            return
        a(f"s_cmp_ge_u32 s{sr}, 1680")
        a(f"s_cbranch_scc1 L_rm{u}")
        a(f"s_mul_i32 s26, s{sr}, 52429")
        a("s_lshr_b32 s26, s26, 18")
        a("s_mul_i32 s27, s26, 5")
        a(f"s_sub_u32 s27, s{sr}, s27")
        if MIX == 1:
            a("s_lshl_b32 s28, s26, 1"); a("s_add_u32 s28, s28, s27")
            a("s_mul_i32 s29, s26, 3"); a("s_add_u32 s29, s29, s27"); a(f"s_add_u32 s29, s29, {NX-2}")
            a("s_cmp_lt_u32 s27, 2")
        else:
            a("s_lshr_b32 s28, s27, 1"); a("s_lshl_b32 s29, s26, 1"); a("s_add_u32 s28, s28, s29")
            a("s_add_u32 s29, s27, 1"); a("s_lshr_b32 s29, s29, 1"); a("s_mul_i32 s27, s26, 3") if False else None
            a("s_mul_i32 s35, s26, 3"); a("s_add_u32 s29, s29, s35"); a(f"s_add_u32 s29, s29, {NX}")
            a("s_sub_u32 s29, s29, 0")
            a("s_bitcmp1_b32 s27, 0")
        a(f"s_cselect_b32 s{sr}, s28, s29")
        a.label(f"L_rm{u}")
    def issue_loads(sIdx, buf):
        u = uid[0]; uid[0] += 1
        a(f"s_cmp_ge_u32 s{sIdx}, {NT}")
        a(f"s_cbranch_scc1 L_ld_done{u}")
        a(f"s_cmp_ge_u32 s{sIdx}, {NX}")
        a(f"s_cbranch_scc1 L_ld_w{u}")
        a(f"s_cmp_ge_u32 s{sIdx}, 336")
        a("s_cselect_b32 s11, 1, 0")
        a("s_mul_i32 s12, s11, 336")
        a(f"s_sub_u32 s12, s{sIdx}, s12")
        a("s_and_b32 s13, s12, 7")
        a("s_lshr_b32 s14, s12, 3")
        a("s_lshl_b32 s14, s14, 2")
        a("s_add_u32 s14, s14, s10")
        a(f"s_mul_i32 s15, s11, {G.X_BYTES_B}")
        a("s_add_u32 s34, s4, s15")
        a("s_addc_u32 s35, s5, 0")
        G.make_srd(a, 20, 34, 35, G.X_BYTES_B)
        a("s_mul_i32 s15, s14, %d" % (48 * 2048))
        a("s_lshl_b32 s24, s13, 8")
        a("s_add_u32 s15, s15, s24")
        for s in range(2):
            for i in range(8):
                r = buf + 4 * (8 * s + i)
                a(f"s_add_u32 s25, s15, {(32*s+i)*2048}")
                a(f"buffer_load_dwordx4 v[{r}:{r+3}], v{vXo}, s[20:23], s25 offen {ld}")
        a(f"s_branch L_ld_done{u}")
        a.label(f"L_ld_w{u}")
        a(f"s_sub_u32 s12, s{sIdx}, {NX}")
        a("s_and_b32 s13, s12, 3")
        a("s_lshr_b32 s14, s12, 2")
        a("s_lshl_b32 s14, s14, 2")
        a("s_add_u32 s14, s14, s10")
        G.make_srd(a, 20, 6, 7, G.W_BYTES)
        a("s_lshl_b32 s15, s14, 10")
        a("s_lshl_b32 s24, s13, 8")
        a("s_add_u32 s15, s15, s24")
        for i in range(4):
            r = buf + 4 * i
            a(f"s_add_u32 s25, s15, {i << 20}")
            a(f"buffer_load_dwordx2 v[{r}:{r+1}], v{vWo}, s[20:23], s25 offen {ld}")
            a(f"buffer_load_dwordx2 v[{r+2}:{r+3}], v{vWo}, s[20:23], s25 offen offset:16 {ld}")
        a.label(f"L_ld_done{u}")
    remap(sCur); remap(sNxt)
    issue_loads(sCur, BUF[0])
    if cfg.get('pf_code'):
        a("s_cmp_ge_u32 s2, 8"); a("s_cbranch_scc1 L_nopf12")
        a("s_cmp_lg_u32 s10, 3"); a("s_cbranch_scc1 L_nopf12")
        G.prefetch_code(a, "k12", "xform_kernel", "L_code_end", 10, ACC + 8, sp=60)
        a.label("L_nopf12")
    vA = vT0; vC = vT0+1; vP = BF
    a(f"v_lshrrev_b32 v{vA}, 2, v{vR}")
    a(f"v_lshlrev_b32 v{vA}, 1, v{vA}")
    a(f"v_bfe_u32 v{vC}, v{vR}, 1, 1")
    a(f"v_add_u32 v{vA}, v{vA}, v{vC}")
    a("s_lshl_b32 s24, s10, 3")
    a(f"v_add_u32 v{vA}, s24, v{vA}")
    a(f"v_lshl_add_u32 v{vA}, v{vA}, 1, 1")
    a(f"v_and_b32 v{vC}, 1, v{vR}")
    a(f"v_lshlrev_b32 v{vC}, 5, v{vC}")
    for s in range(2):
        a(f"v_lshlrev_b32 v{vT0+2}, 3, v{vG}")
        if s: a(f"v_add_u32 v{vT0+2}, 32, v{vT0+2}")
        a(f"v_mad_u32_u24 v{vP}, v{vA}, v{vT0+2}, v{vC}")
        for e in range(1, 8): a(f"v_add_u32 v{vP+e}, v{vP+e-1}, v{vA}")
        G.cos_table(a, None, [vP+e for e in range(8)], ACC, ACC+4)
        a("s_lshl_b32 s24, s10, 11")
        a(f"v_add_u32 v{vT0+3}, s24, v{vL16}")
        a(f"ds_write_b128 v{vT0+3}, v[{ACC}:{ACC+3}] offset:{s*1024}")
    a(f"v_lshlrev_b32 v{vT0+2}, 2, v{vG}")
    a(f"v_mad_u32_u24 v{vP}, v{vA}, v{vT0+2}, v{vC}")
    for e in range(1, 4): a(f"v_add_u32 v{vP+e}, v{vP+e-1}, v{vA}")
    for e in range(4):
        r = vP + e
        a(f"v_and_b32 v{r}, 127, v{r}"); a(f"v_cvt_f32_u32 v{r}, v{r}"); a(f"v_mul_f32 v{r}, 0x3c000000, v{r}"); a(f"v_cos_f32 v{r}, v{r}")
    for e in range(4):
        r = vP + e
        a(f"v_cvt_pk_bf16_f32 v{ACC+4}, v{r}, v{r}")
        a(f"v_lshlrev_b32 v{ACC+5}, 16, v{ACC+4}")
        a(f"v_sub_f32 v{ACC+5}, v{r}, v{ACC+5}")
        a(f"v_cvt_pk_bf16_f32 v{ACC+5}, v{ACC+5}, v{ACC+5}")
        a(f"v_perm_b32 v{ACC+e}, v{ACC+5}, v{ACC+4}, s30")
    a("s_lshl_b32 s24, s10, 10")
    a(f"v_add_u32 v{vT0+3}, s24, v{vL16}")
    a(f"ds_write_b128 v{vT0+3}, v[{ACC}:{ACC+3}] offset:8192")
    a("s_waitcnt lgkmcnt(0)")
    a("s_barrier")
    a.label("L_k12_loop")
    for p in range(2):
        buf = BUF[p]; nbuf = BUF[p ^ 1]
        a("s_cmp_lg_u32 s10, 0")
        a(f"s_cbranch_scc1 L_nofetch{p}")
        a(f"v_mov_b32 v{vNext}, 1")
        a("s_mov_b64 exec, 1")
        a(f"buffer_atomic_add v{vNext}, v{vZ}, s[44:47], 0 offen sc0 sc1")
        a("s_mov_b64 exec, -1")
        a.label(f"L_nofetch{p}")
        issue_loads(sNxt, nbuf)
        def counted(tag, base):
            a(f"s_cmp_ge_u32 s{sNxt}, {NT}")
            a(f"s_cbranch_scc1 L_w0_{tag}")
            a(f"s_cmp_ge_u32 s{sNxt}, {NX}")
            a(f"s_cbranch_scc1 L_w8_{tag}")
            a(f"s_waitcnt vmcnt({base+16})")
            a(f"s_branch L_wd_{tag}")
            a.label(f"L_w8_{tag}")
            a(f"s_waitcnt vmcnt({base+8})")
            a(f"s_branch L_wd_{tag}")
            a.label(f"L_w0_{tag}")
            a(f"s_waitcnt vmcnt({base})")
            a.label(f"L_wd_{tag}")
        if p == 0:
            a("s_cmp_lg_u32 s43, 0")
            a("s_cbranch_scc1 L_notfirst")
            counted("f", 0)
            a("s_mov_b32 s43, 1")
            a("s_branch L_wfin")
            a.label("L_notfirst")
            counted("a0", 16)
            a.label("L_wfin")
        else:
            counted("a1", 16)
        a(f"s_cmp_ge_u32 s{sCur}, {NX}")
        a(f"s_cbranch_scc1 L_cw{p}")
        a(f"s_cmp_ge_u32 s{sCur}, 336")
        a("s_cselect_b32 s11, 1, 0")
        a("s_mul_i32 s12, s11, 336")
        a(f"s_sub_u32 s12, s{sCur}, s12")
        a("s_and_b32 s13, s12, 7")
        a("s_lshr_b32 s14, s12, 3")
        a("s_lshl_b32 s14, s14, 2")
        a("s_add_u32 s14, s14, s10")
        for o in range(4):
            for s in range(2):
                r = AF + 4 * (2 * o + s)
                a(f"ds_read_b128 v[{r}:{r+3}], v{vL16} offset:{(2*o+s)*1024}")
        a("s_bfe_u32 s24, s14, 0x10003")
        a("s_mul_i32 s24, s24, 3")
        a(f"v_and_b32 v{vT0}, 3, v{vR}")
        a(f"v_xor_b32 v{vT0}, s24, v{vT0}")
        a(f"v_lshl_add_u32 v{vSt}, v{vT0}, 4, v{vXs}")
        a(f"s_mul_i32 s24, s11, {G.XF_B}")
        a(f"s_mul_i32 s25, s13, {4*G.XF_KS}")
        a("s_add_u32 s24, s24, s25")
        a("s_lshl_b32 s25, s14, 6")
        a("s_add_u32 s24, s24, s25")
        a(f"s_add_u32 s24, s24, {G.XF_BASE}")
        def perms(q):
            for s in range(2):
                for h in range(2):
                    for e in range(4):
                        d = BF + (s * 2 + h) * 4 + e
                        a(f"v_perm_b32 v{d}, v{buf + 4*(8*s+2*e+1) + q}, v{buf + 4*(8*s+2*e) + q}, s{30+h}")
        def mfmas():
            for s in range(2):
                for o in range(4):
                    for h in range(2):
                        d = ACC + (o * 2 + h) * 4
                        A = AF + 4 * (2 * o + s); B = BF + (s * 2 + h) * 4
                        c = "0" if s == 0 else f"v[{d}:{d+3}]"
                        a(f"v_mfma_f32_16x16x32_bf16 v[{d}:{d+3}], v[{A}:{A+3}], v[{B}:{B+3}], {c}")
        def cvts(q):
            for o in range(4):
                for rp in range(4):
                    a(f"v_cvt_pk_bf16_f32 v{buf + 4*(4*o+rp) + q}, v{ACC+(o*2)*4+rp}, v{ACC+(o*2+1)*4+rp}")
        perms(0)
        a("s_waitcnt lgkmcnt(0)")
        for q in range(4):
            mfmas()
            if q < 3: perms(q + 1)
            cvts(q)
        for o in range(4):
            for rp in range(4):
                off = (8 * o + (rp >> 1)) * G.XF_K + (rp & 1) * (G.ROWS * 64)
                a(f"s_add_u32 s25, s24, {off}")
                r = buf + 4 * (4 * o + rp)
                a(f"buffer_store_dwordx4 v[{r}:{r+3}], v{vSt}, s[16:19], s25 offen {st}")
        a(f"s_branch L_next{p}")
        a.label(f"L_cw{p}")
        a(f"s_sub_u32 s12, s{sCur}, {NX}")
        a("s_and_b32 s13, s12, 3")
        a("s_lshr_b32 s14, s12, 2")
        a("s_lshl_b32 s14, s14, 2")
        a("s_add_u32 s14, s14, s10")
        for o in range(4):
            r = AF + 4 * o
            a(f"ds_read_b128 v[{r}:{r+3}], v{vL16} offset:{8192+o*1024}")
        a("s_and_b32 s24, s14, 3")
        a("s_bfe_u32 s25, s14, 0x10003")
        a("s_lshl_b32 s25, s25, 2")
        a("s_or_b32 s24, s24, s25")
        a("s_lshl_b32 s24, s24, 1")
        a(f"v_xor_b32 v{vT0}, s24, v{vR}")
        a(f"v_lshl_add_u32 v{vSt}, v{vT0}, 4, v{vWs}")
        a(f"s_mul_i32 s24, s13, {G.WF_DQ}")
        a("s_lshr_b32 s25, s14, 5")
        a(f"s_mul_i32 s25, s25, {G.WF_KS}")
        a("s_add_u32 s24, s24, s25")
        a("s_and_b32 s25, s14, 31")
        a("s_lshl_b32 s25, s25, 8")
        a("s_add_u32 s24, s24, s25")
        if G.WF_BASE: a(f"s_add_u32 s24, s24, {G.WF_BASE}")
        FR = buf + 16
        for dd in range(8):
            q = dd >> 1; h = dd & 1
            for e in range(4):
                a(f"v_perm_b32 v{FR+4*dd+e}, v{buf+4*e+q}, v{buf+4*e+q}, s{32+h}")
        a("s_waitcnt lgkmcnt(0)")
        for o in range(4):
            A = AF + 4 * o
            for dd in range(8):
                d = ACC + 4 * dd
                a(f"v_mfma_f32_16x16x32_bf16 v[{d}:{d+3}], v[{A}:{A+3}], v[{FR+4*dd}:{FR+4*dd+3}], 0")
            ob = (buf if (o & 1) == 0 else buf + 48)
            for rp in range(4):
                for q in range(4):
                    a(f"v_cvt_pk_bf16_f32 v{ob+4*rp+q}, v{ACC+8*q+rp}, v{ACC+8*q+4+rp}")
            for rp in range(4):
                off = (8 * o + (rp >> 1)) * G.WF_K + (rp & 1) * 8192
                a(f"s_add_u32 s25, s24, {off}")
                r = ob + 4 * rp
                a(f"buffer_store_dwordx4 v[{r}:{r+3}], v{vSt}, s[16:19], s25 offen {st}")
        a.label(f"L_next{p}")
        a("s_cmp_lg_u32 s10, 0")
        a(f"s_cbranch_scc1 L_pub{p}")
        counted(f"p{p}", 16)
        a(f"v_add_u32 v{vNext}, {2*NWG}, v{vNext}")
        a(f"v_mov_b32 v{vT0}, s41")
        a("s_mov_b64 exec, 1")
        a(f"ds_write_b32 v{vT0}, v{vNext} offset:12288")
        a("s_mov_b64 exec, -1")
        a.label(f"L_pub{p}")
        a("s_waitcnt lgkmcnt(0)")
        a("s_barrier")
        a(f"v_mov_b32 v{vT0}, s41")
        a(f"ds_read_b32 v{vT0+1}, v{vT0} offset:12288")
        a("s_xor_b32 s41, s41, 4")
        a(f"s_mov_b32 s{sCur}, s{sNxt}")
        a("s_waitcnt lgkmcnt(0)")
        a(f"v_readfirstlane_b32 s{sNxt}, v{vT0+1}")
        remap(sNxt)
        a(f"s_cmp_ge_u32 s{sCur}, {NT}")
        a("s_cbranch_scc1 L_k12_end")
    a("s_branch L_k12_loop")
    a.label("L_k12_end")
    a("s_endpgm")
    return name, a.lines, NV, (NWG, 256, 12288 + 64)
```

```python
from asmlib import *
import gen as G
from gen_k3 import LQ, NSTAGE
XC = 11264
STAGE = 16384 + 2 * XC
LDS_BYTES = STAGE * NSTAGE

T = 11
ACC = 0
WA = 176; WB = 192; NW = 208
XR = 216
vWa = 248; vXa = 250; vSt = 251; vSt2 = 252; vT = 253

def acc(i, c, t): return ACC + ((i * 2 + c) * 2 + t) * 4 if i < 10 else ACC + 160 + 4 * c
def wf(p, which): return (WA if p == 0 else WB) + which * 4
def nw(t): return NW + 4 * t
def xr(slot, c): return XR + slot * 8 + c * 4
def mf(d, A, B): return f"v_mfma_f32_16x16x32_bf16 v[{d}:{d+3}], v[{A}:{A+3}], v[{B}:{B+3}], v[{d}:{d+3}]"

def gemm_wave(a, cfg):
    lq = LQ(a)
    def x_read(step, i, slot):
        for c in range(2):
            r = xr(slot, c)
            off = 16384 + c * XC + i * 1024
            a(f"ds_read_b128 v[{r}:{r+3}], v{vXa} offset:{off}")
            lq.issue(('x', step, i))
    def w_read(step, c):
        p = step & 1
        for t in range(2):
            r = wf(p, c * 2 + t)
            for e in range(2):
                a(f"ds_read_b64_tr_b16 v[{r+2*e}:{r+2*e+1}], v{vWa+t} offset:{c*8192+e*1024}")
                lq.issue(('w', step))
    def w_xor(step):
        p = step & 1
        return [f"v_xor_b32 v{nw(t)+e}, 0x80008000, v{wf(p,2+t)+e}" for t in range(2) for e in range(4)]
    def bump(reg, step):
        d = STAGE if step % NSTAGE else -(NSTAGE - 1) * STAGE
        a(f"v_add_u32 v{reg}, {d & 0xffffffff:#x}, v{reg}")
    def step_code(s, tau0, barrier, nxt):
        p = s & 1
        if barrier:
            if G.CFG.get('gstamp'):
                a("s_memrealtime s[70:71]"); a("s_waitcnt lgkmcnt(0)")
                a("s_mov_b32 m0, s72"); a("v_writelane_b32 v255, s70, m0"); a("s_add_u32 s72, s72, 1")
            a("s_barrier")
            if G.CFG.get('gstamp'):
                a("s_memrealtime s[70:71]"); a("s_waitcnt lgkmcnt(0)")
                a("s_mov_b32 m0, s72"); a("v_writelane_b32 v255, s70, m0"); a("s_add_u32 s72, s72, 1")
        for i in range(T):
            tau = tau0 + i
            slot = tau % 4
            lq.wait(('x', s, i))
            if i < 10:
                ms = [mf(acc(i,0,0), wf(p,0), xr(slot,0)), mf(acc(i,0,1), wf(p,1), xr(slot,0)),
                      mf(acc(i,1,0), nw(0), xr(slot,0)), mf(acc(i,1,1), nw(1), xr(slot,0)),
                      mf(acc(i,0,0), wf(p,2), xr(slot,1)), mf(acc(i,0,1), wf(p,3), xr(slot,1)),
                      mf(acc(i,1,0), wf(p,0), xr(slot,1)), mf(acc(i,1,1), wf(p,1), xr(slot,1))]
            else:
                ms = [mf(acc(i,0,0), wf(p,0), xr(slot,0)), mf(acc(i,1,0), nw(0), xr(slot,0)),
                      mf(acc(i,0,0), wf(p,2), xr(slot,1)), mf(acc(i,1,0), wf(p,0), xr(slot,1))]
            xors = []
            for m in range(len(ms)):
                a(ms[m])
                if m == 0:
                    if i + 2 < T: x_read(s, i + 2, (tau + 2) % 4)
                    elif nxt:
                        if i + 2 == T: bump(vXa, s + 1)
                        x_read(s + 1, i + 2 - T, (tau + 2) % 4)
                if nxt and i == T - 6 and m == 4:
                    bump(vWa, s + 1); bump(vWa + 1, s + 1)
                if m == 3 and nxt and i == T - 5: w_read(s + 1, 0)
                if m == 3 and nxt and i == T - 4: w_read(s + 1, 1)
                if nxt and i == T - 2 and m == 4:
                    lq.wait(('w', s + 1))
                    xors = w_xor(s + 1)[4:]
                if nxt and i == T - 1 and m == 1:
                    xors = w_xor(s + 1)[:4]
                for _ in range(2):
                    if xors: a(xors.pop(0))
            for x in xors: a(x)
    if G.CFG.get('gstamp'):
        a("s_mov_b32 s72, 0"); a("v_mov_b32 v255, 0")
    for r in range(168): a(f"v_mov_b32 v{ACC+r}, 0")
    a("s_barrier")
    w_read(0, 0); w_read(0, 1)
    x_read(0, 0, 0); x_read(0, 1, 1)
    lq.wait(('w', 0))
    for x in w_xor(0): a(x)
    a("s_mov_b32 s46, 7")
    a.label("L_g_loop")
    q0 = list(lq.q)
    for u in range(4):
        step_code(u, u * T, True, True)
    q1 = [(t[0], t[1] - 4) + tuple(t[2:]) for t in lq.q]
    assert q0[len(q0)-len(q1):] == q1, (q0, q1)
    a("s_sub_u32 s46, s46, 1")
    a("s_cmp_lg_u32 s46, 0")
    a("s_cbranch_scc1 L_g_loop")
    lq.q = [(t[0], t[1] + 24) + tuple(t[2:]) for t in lq.q]
    step_code(28, 0 * T, True, True)
    step_code(29, 1 * T, True, True)
    if not G.CFG.get('k3_tail', True):
        step_code(30, 2 * T, True, True)
        step_code(31, 3 * T, False, False)
        a("s_nop 7")
    else:
        a("s_barrier")
    NW2 = 168; vXb = 253
    def epi_list(i, bb):
        l = []
        if i < 10:
            for c in range(2):
                dA = acc(i, c, bb); dB = acc(i, c, 1 - bb)
                l += [f"v_cvt_pk_bf16_f32 v{dA}, v{dA}, v{dA+1}", f"v_cvt_pk_bf16_f32 v{dA+1}, v{dA+2}, v{dA+3}",
                      f"v_cvt_pk_bf16_f32 v{dA+2}, v{dB}, v{dB+1}", f"v_cvt_pk_bf16_f32 v{dA+3}, v{dB+2}, v{dB+3}",
                      f"s_add_u32 s47, s48, {c * G.YF_J + i * 16 * G.YF_ROW}",
                      f"buffer_store_dwordx4 v[{dA}:{dA+3}], v{vSt}, s[16:19], s47 offen {G.CFG['k3_st']}"]
        else:
            for c in range(2):
                d = acc(10, c, 0)
                l += [f"v_cvt_pk_bf16_f32 v{d}, v{d}, v{d+1}", f"v_cvt_pk_bf16_f32 v{d+1}, v{d+2}, v{d+3}",
                      f"s_add_u32 s47, s49, {c * G.YF_J}",
                      f"buffer_store_dwordx2 v[{d}:{d+1}], v{vSt2}, s[16:19], s47 offen {G.CFG['k3_st']}"]
        return l
    q_save = list(lq.q)
    for bb in range(2):
        if bb == 0:
            a("s_cmp_lg_u32 s13, 0"); a("s_cbranch_scc1 L_epi_b1")
        else:
            a.label("L_epi_b1")
        if not G.CFG.get('k3_tail', True):
            for i in range(T):
                for ins in epi_list(i, bb): a(ins)
        else:
            lq.q = list(q_save)
            bump(vWa, 31); bump(vWa + 1, 31)
            a(f"v_add_u32 v{vXb}, {STAGE}, v{vXa}")
            w_read(31, 0); w_read(31, 1)
            items = [(30, 0), (30, 1)]
            for i in range(T):
                if i + 2 < T: items.append((30, i + 2))
                items.append((31, i))
            def x_read2(step, i, slot):
                for c in range(2):
                    r = xr(slot, c)
                    off = 16384 + c * XC + i * 1024
                    a(f"ds_read_b128 v[{r}:{r+3}], v{vXa if step == 30 else vXb} offset:{off}")
                    lq.issue(('x', step, i))
            pend = []
            xored = False
            for n, (st, i) in enumerate(items):
                slot = (2 * T + n) % 4
                p = st & 1
                nwf = (lambda t: nw(t)) if st == 30 else (lambda t: NW2 + 4 * t)
                if st == 31 and not xored:
                    lq.wait(('w', 31))
                    for t in range(2):
                        for e in range(4): a(f"v_xor_b32 v{NW2+4*t+e}, 0x80008000, v{wf(1,2+t)+e}")
                    xored = True
                lq.wait(('x', st, i))
                if i < 10:
                    ms = [mf(acc(i,0,0), wf(p,0), xr(slot,0)), mf(acc(i,0,1), wf(p,1), xr(slot,0)),
                          mf(acc(i,1,0), nwf(0), xr(slot,0)), mf(acc(i,1,1), nwf(1), xr(slot,0)),
                          mf(acc(i,0,0), wf(p,2), xr(slot,1)), mf(acc(i,0,1), wf(p,3), xr(slot,1)),
                          mf(acc(i,1,0), wf(p,0), xr(slot,1)), mf(acc(i,1,1), wf(p,1), xr(slot,1))]
                else:
                    ms = [mf(acc(i,0,0), wf(p,0), xr(slot,0)), mf(acc(i,1,0), nwf(0), xr(slot,0)),
                          mf(acc(i,0,0), wf(p,2), xr(slot,1)), mf(acc(i,1,0), wf(p,0), xr(slot,1))]
                for m in range(len(ms)):
                    a(ms[m])
                    if m == 0 and n + 2 < len(items): x_read2(items[n + 2][0], items[n + 2][1], (2 * T + n + 2) % 4)
                    if m >= 1:
                        for _ in range(2):
                            if pend and pend[0][0] <= n - 1: a(pend.pop(0)[1])
                if st == 31:
                    pend += [(n + 1, ins) for ins in epi_list(i, bb)]
            a("s_nop 7")
            for _, ins in pend: a(ins)
        if bb == 0: a("s_branch L_epi_done")
    a.label("L_epi_done")
    if G.CFG.get('gstamp'):
        a("s_lshl_b32 s73, s2, 2"); a("s_add_u32 s73, s73, s15"); a("s_lshl_b32 s73, s73, 10")
        a(f"s_add_u32 s73, s73, {212 << 20}")
        a("v_mbcnt_lo_u32_b32 v254, -1, 0")
        a("v_mbcnt_hi_u32_b32 v254, -1, v254")
        a("v_lshlrev_b32 v254, 2, v254")
        a("buffer_store_dword v255, v254, s[16:19], s73 offen")
    a("s_endpgm")

def helper_wave(a, cfg):
    vDW = 1; vDX = 2
    sWo, sXo, sLW, sLX = 40, 41, 42, 43
    vD6 = 5; sX6 = 44
    def dma(buf):
        a(f"s_add_u32 m0, s{sLW}, {buf*STAGE}")
        for j in range(4):
            a(f"buffer_load_dwordx4 v{vDW}, s[16:19], s{sWo} offen offset:{j*1024} lds")
        a(f"s_add_u32 s{sWo}, s{sWo}, {G.WF_KS}")
        a(f"s_add_u32 m0, s{sLX}, {buf*STAGE}")
        for j in range(4):
            a(f"buffer_load_dwordx4 v{vDX}, s[16:19], s{sXo} offen offset:{j*1024} lds")
        a(f"s_add_u32 m0, s{sLX}, {buf*STAGE+4096}")
        a(f"s_add_u32 s49, s{sXo}, 4096")
        a(f"buffer_load_dwordx4 v{vDX}, s[16:19], s49 offen lds")
        a("s_mov_b64 exec, s[50:51]")
        a(f"buffer_load_dwordx4 v{vD6}, s[16:19], s{sX6} offen offset:1024 lds")
        a("s_mov_b64 exec, -1")
        a(f"s_add_u32 s{sXo}, s{sXo}, {G.XF_KS}")
        a(f"s_add_u32 s{sX6}, s{sX6}, {G.XF_KS}")
    for st in range(3): dma(st)
    a("s_waitcnt vmcnt(20)")
    a("s_barrier")
    a("s_mov_b32 s46, 7")
    a.label("L_h_loop")
    for u in range(4):
        a("s_waitcnt vmcnt(10)")
        a("s_barrier")
        dma((u + 3) % NSTAGE)
    a("s_sub_u32 s46, s46, 1")
    a("s_cmp_lg_u32 s46, 0")
    a("s_cbranch_scc1 L_h_loop")
    a("s_waitcnt vmcnt(10)"); a("s_barrier"); dma((28 + 3) % NSTAGE)
    a("s_waitcnt vmcnt(10)"); a("s_barrier")
    a("s_waitcnt vmcnt(0)"); a("s_barrier")
    a("s_endpgm")

def gen_k3c(cfg=None):
    a = Asm()
    name = 'gemm_kernel'
    G.kernel_header(a, name)
    a("s_cmp_ge_u32 s2, 256")
    a("s_cbranch_scc1 L_k3_end")
    a("s_load_dwordx2 s[8:9], s[0:1], 48")
    a(f"v_lshrrev_b32 v{vT}, 6, v0")
    a(f"v_and_b32 v0, 63, v0")
    a(f"v_readfirstlane_b32 s10, v{vT}")
    a("s_and_b32 s11, s2, 7")
    a("s_lshr_b32 s12, s2, 3")
    a("s_lshr_b32 s13, s12, 3")
    a("s_lshl_b32 s11, s11, 2")
    a("s_add_u32 s11, s11, s13")
    a("s_bfe_u32 s13, s12, 0x10002")
    a("s_and_b32 s14, s12, 3")
    a("s_and_b32 s15, s10, 3")
    a("s_waitcnt lgkmcnt(0)")
    G.make_srd(a, 16, 8, 9, G.WS_BYTES)
    a("s_cmp_ge_u32 s10, 4")
    a("s_cbranch_scc1 L_k3_helper")
    g = vT; c16 = vT + 1; t0 = vT + 2; t1 = XR; t2 = XR + 1
    a(f"v_lshrrev_b32 v{g}, 4, v0")
    a(f"v_and_b32 v{c16}, 15, v0")
    a(f"v_bfe_u32 v{t0}, v{c16}, 3, 1")
    a(f"v_mul_u32_u24 v{t0}, 3, v{t0}")
    a(f"v_xor_b32 v{t0}, v{t0}, v{g}")
    a(f"v_lshlrev_b32 v{t0}, 4, v{t0}")
    a(f"v_lshl_add_u32 v{vXa}, v{c16}, 6, v{t0}")
    a(f"v_lshrrev_b32 v{t0}, 2, v{c16}")
    a(f"v_and_b32 v{t1}, 1, v{g}")
    a(f"v_lshl_or_b32 v{t1}, v{t1}, 2, v{t0}")
    a(f"v_lshl_add_u32 v{t0}, v{g}, 3, v{t0}")
    a(f"v_lshlrev_b32 v{t0}, 8, v{t0}")
    a(f"v_and_b32 v{t2}, 3, v{c16}")
    a(f"v_lshl_add_u32 v{t0}, v{t2}, 3, v{t0}")
    a("s_lshl_b32 s20, s15, 1")
    a("s_add_u32 s20, s20, s13")
    for t in range(2):
        if t: a("s_xor_b32 s20, s20, 1")
        a(f"v_xor_b32 v{t2}, s20, v{t1}")
        a(f"v_lshl_add_u32 v{vWa+t}, v{t2}, 5, v{t0}")
    a(f"s_mov_b32 s21, {G.YF_ROW}")
    a(f"v_mul_u32_u24 v{vSt}, s21, v{c16}")
    a(f"v_lshl_add_u32 v{vSt}, v{g}, 4, v{vSt}")
    a("s_lshl_b32 s23, s15, 6")
    a(f"v_add_u32 v{vSt}, s23, v{vSt}")
    a(f"v_and_b32 v{t0}, 7, v{c16}")
    a(f"v_mul_u32_u24 v{vSt2}, s21, v{t0}")
    a(f"v_lshrrev_b32 v{t1}, 3, v{c16}")
    a(f"v_xor_b32 v{t1}, s13, v{t1}")
    a(f"s_mov_b32 s22, {G.YF_B}")
    a(f"v_mul_lo_u32 v{t1}, v{t1}, s22")
    a(f"v_add_u32 v{vSt2}, v{vSt2}, v{t1}")
    a(f"v_lshl_add_u32 v{vSt2}, v{g}, 4, v{vSt2}")
    a("s_lshl_b32 s22, s13, 3")
    a("s_add_u32 s22, s22, s23")
    a(f"v_add_u32 v{vSt2}, s22, v{vSt2}")
    a(f"v_cmp_gt_u32 vcc, 7, v{t0}")
    a(f"v_mov_b32 v{t1}, 0x80000000")
    a(f"v_cndmask_b32 v{vSt2}, v{t1}, v{vSt2}, vcc")
    a(f"s_mul_i32 s48, s11, {2*G.YF_J}")
    a("s_lshl_b32 s20, s14, 8")
    a("s_add_u32 s48, s48, s20")
    a(f"s_add_u32 s48, s48, {G.YF_BASE}")
    a(f"s_add_u32 s49, s48, {160*G.YF_ROW}")
    a(f"s_mul_i32 s20, s13, {G.YF_B}")
    a("s_add_u32 s48, s48, s20")
    gemm_wave(a, cfg)
    a.label("L_k3_helper")
    a(f"s_mul_i32 s40, s11, {G.WF_K}")
    a(f"s_mul_i32 s20, s14, {G.WF_DQ}")
    a("s_add_u32 s40, s40, s20")
    if G.WF_BASE: a(f"s_add_u32 s40, s40, {G.WF_BASE}")
    a(f"s_mul_i32 s41, s11, {G.XF_K}")
    a(f"s_mul_i32 s20, s13, {G.XF_B}")
    a("s_add_u32 s41, s41, s20")
    a(f"s_add_u32 s41, s41, {G.XF_BASE}")
    a("s_lshl_b32 s42, s15, 12")
    a("s_mul_i32 s43, s15, 5632")
    a("s_lshr_b32 s20, s15, 1")
    a("s_lshl_b32 s21, s20, 9")
    a("s_sub_u32 s21, s43, s21")
    a("v_lshlrev_b32 v1, 4, v0")
    a("v_add_u32 v2, s21, v1")
    a("s_add_u32 s22, s21, 4096")
    a("v_add_u32 v5, s22, v1")
    a("s_mov_b32 s44, s41")
    a("s_bitcmp1_b32 s15, 0")
    a("s_cbranch_scc0 L_six_even")
    a(f"s_mul_i32 s22, s20, 10752")
    a(f"s_add_u32 s22, s22, {10240-1024}")
    a("v_lshrrev_b32 v5, 2, v0"); a("v_lshlrev_b32 v5, 6, v5")
    a("v_and_b32 v3, 3, v0"); a("v_xor_b32 v3, 3, v3"); a("v_lshl_add_u32 v5, v3, 4, v5")
    a("v_add_u32 v5, s22, v5")
    a(f"s_mul_i32 s44, s11, {G.XF_K}")
    a("s_xor_b32 s22, s13, 1")
    a(f"s_mul_i32 s22, s22, {G.XF_B}")
    a("s_add_u32 s44, s44, s22")
    a(f"s_add_u32 s44, s44, {G.XF_BASE}")
    a.label("L_six_even")
    a("s_mov_b32 s50, -1"); a("s_mov_b32 s51, 0")
    a("v_add_u32 v1, s42, v1")
    a("s_add_u32 s43, s43, 16384")
    a("s_cmp_ge_u32 s2, 8"); a("s_cbranch_scc1 L_nozero")
    a("s_cmp_lg_u32 s15, 0"); a("s_cbranch_scc1 L_nozero")
    a(f"s_mul_i32 s20, s2, {G.CNT_STRIDE}"); a(f"s_add_u32 s20, s20, {G.CNT_BASE}")
    a("v_mov_b32 v3, 0"); a("v_lshlrev_b32 v4, 2, v0")
    a("buffer_store_dword v3, v4, s[16:19], s20 offen")
    a.label("L_nozero")
    a("s_cmp_ge_u32 s2, 224"); a("s_cbranch_scc1 L_nofill")
    a("s_cmp_lg_u32 s15, 1"); a("s_cbranch_scc1 L_nofill")
    a("s_lshl_b32 s20, s2, 10"); a(f"s_add_u32 s20, s20, {G.PART_BASE}")
    a("v_mov_b32 v8, -1"); a("v_mov_b32 v9, -1"); a("v_mov_b32 v10, -1"); a("v_mov_b32 v11, -1"); a("v_lshlrev_b32 v4, 4, v0")
    a("buffer_store_dwordx4 v[8:11], v4, s[16:19], s20 offen")
    a.label("L_nofill")
    if G.CFG.get('pf_code'):
        a("s_cmp_ge_u32 s2, 8"); a("s_cbranch_scc1 L_nopf3")
        a("s_cmp_lg_u32 s15, 3"); a("s_cbranch_scc1 L_nopf3")
        G.prefetch_code(a, "k3", "gemm_kernel", "final_kernel", 4, 12, sp=60)
        a.label("L_nopf3")
    helper_wave(a, cfg)
    a.label("L_k3_end")
    a("s_endpgm")
    return name, a.lines, 256, (256, 512, LDS_BYTES)
```

```python
from asmlib import *
import gen as G
import math, struct
f2h = lambda x: "0x%08x" % struct.unpack('<I', struct.pack('<f', x))[0]

RAW = 0
AF = 64
BF = 88
ACC = 104
VT = 200
NG = 28
L_TAB = 0; L_PART = 8192; L_SUM = L_PART + 6 * 4096; L_OFF = L_SUM + 1024
LDS = L_OFF + 6 * 8192

def hreg(o, dd, rp): return ACC + (o * 8 + dd) * 4 + rp

def gen_k45g(cfg=None):
    cfg = cfg or G.CFG
    a = Asm()
    def st(i):
        if cfg.get('fstamp'):
            a("s_memrealtime s[70:71]"); a("s_waitcnt lgkmcnt(0)"); a(f"v_writelane_b32 v244, s70, {i}")
    name = 'final_kernel'
    G.kernel_header(a, name)
    vLane = VT; vR = VT+1; vG = VT+2; vOff = VT+3; vT0 = VT+4
    VTID4 = 214; PA = 216; PB = 224; GB = 232
    st(0)
    a(f"s_cmp_ge_u32 s2, {2*NG*4}")
    a("s_cbranch_scc1 L_k45_end")
    a("s_load_dwordx2 s[8:9], s[0:1], 48")
    a("s_load_dwordx4 s[4:7], s[0:1], 16")
    a("s_load_dwordx2 s[28:29], s[0:1], 32")
    a(f"v_lshrrev_b32 v{vT0}, 6, v0")
    a(f"v_and_b32 v{vLane}, 63, v0")
    a(f"v_readfirstlane_b32 s10, v{vT0}")
    a(f"v_lshlrev_b32 v{VTID4}, 2, v0")
    a(f"v_and_b32 v{vR}, 15, v{vLane}")
    a(f"v_lshrrev_b32 v{vG}, 4, v{vLane}")
    a("s_and_b32 s13, s2, 3")
    a("s_lshr_b32 s12, s2, 2")
    a(f"s_cmp_ge_u32 s12, {NG}")
    a("s_cselect_b32 s11, 1, 0")
    a(f"s_mul_i32 s15, s11, {NG}")
    a("s_sub_u32 s12, s12, s15")
    a("s_mul_i32 s14, s12, 6")
    a("s_add_u32 s14, s14, s10")
    a(f"s_mov_b32 s24, {8*G.YF_J}")
    a(f"v_mul_u32_u24 v{vOff}, s24, v{vG}")
    a(f"v_lshl_add_u32 v{vOff}, v{vR}, 4, v{vOff}")
    a(f"s_mul_i32 s24, s11, {G.YF_B}")
    a(f"s_mul_i32 s25, s14, {G.YF_ROW}")
    a("s_add_u32 s24, s24, s25")
    a("s_lshl_b32 s25, s13, 8")
    a("s_add_u32 s24, s24, s25")
    a(f"s_add_u32 s24, s24, {G.YF_BASE}")
    a("s_mov_b32 s30, 0x05040100")
    a("s_mov_b32 s31, 0x07060302")
    a("s_waitcnt lgkmcnt(0)")
    G.make_srd(a, 16, 8, 9, G.WS_BYTES)
    a("s_cmp_ge_u32 s10, 6")
    a("s_cbranch_scc1 L_k45_gb")
    for s in range(2):
        for i in range(8):
            r = RAW + 4 * (8 * s + i)
            a(f"s_add_u32 s25, s24, {(32*s+i)*G.YF_J}")
            a(f"buffer_load_dwordx4 v[{r}:{r+3}], v{vOff}, s[16:19], s25 offen")
    vN = vT0; vA = vT0+1; vP = BF
    a("s_lshr_b32 s27, s10, 1")
    a("s_and_b32 s33, s10, 1")
    a("s_lshl_b32 s27, s27, 4")
    a(f"v_add_u32 v{vN}, s27, v{vR}")
    a("s_lshl_b32 s33, s33, 5")
    a("s_add_u32 s33, s33, 1")
    a(f"v_lshlrev_b32 v{vA}, 3, v{vG}")
    a(f"v_add_u32 v{vA}, s33, v{vA}")
    for e2 in range(4):
        a(f"v_mul_u32_u24 v{vP+2*e2}, v{vA}, v{vN}")
        a(f"v_add_u32 v{vP+2*e2+1}, 32, v{vP+2*e2}")
        if e2 < 3: a(f"v_add_u32 v{vA}, 2, v{vA}")
    G.cos_table(a, None, [vP+e for e in range(8)], ACC, ACC+4, scale="0x3d000000")
    a("s_lshl_b32 s26, s10, 10")
    a(f"v_lshlrev_b32 v{vT0+3}, 4, v{vLane}")
    a(f"v_add_u32 v{vT0+3}, s26, v{vT0+3}")
    a(f"ds_write_b128 v{vT0+3}, v[{ACC}:{ACC+3}] offset:{L_TAB}")
    a.label("L_k45_gb")
    if cfg.get('pf_code'):
        a("s_cmp_ge_u32 s2, 8"); a("s_cbranch_scc1 L_nopf45")
        a("s_cmp_lg_u32 s10, 7"); a("s_cbranch_scc1 L_nopf45")
        G.prefetch_code(a, "k45", "final_kernel", "L_code_end", 3, ACC + 8, sp=60)
        a.label("L_nopf45")
    G.make_srd(a, 20, 4, 5, 1024)
    G.make_srd(a, 36, 6, 7, 1024)
    a(f"v_lshlrev_b32 v{vT0+6}, 4, v{vR}")
    a("s_lshl_b32 s25, s13, 8")
    a(f"buffer_load_dwordx4 v[{GB}:{GB+3}], v{vT0+6}, s[20:23], s25 offen")
    a(f"buffer_load_dwordx4 v[{GB+4}:{GB+7}], v{vT0+6}, s[36:39], s25 offen")
    st(1)
    a("s_waitcnt lgkmcnt(0)")
    a("s_barrier")
    a("s_cmp_ge_u32 s10, 6")
    a("s_cbranch_scc1 L_k45_red2")
    a(f"v_lshlrev_b32 v{vT0+3}, 4, v{vLane}")
    for o in range(3):
        for s in range(2):
            r = AF + 4 * (2 * o + s)
            a(f"ds_read_b128 v[{r}:{r+3}], v{vT0+3} offset:{L_TAB+(2*o+s)*1024}")
    S1 = PA; S2 = PB
    a(f"s_cmp_ge_u32 s14, {G.NBLK}")
    a("s_cbranch_scc1 L_k45_zero")
    a("s_waitcnt lgkmcnt(0)")
    a(f"s_cmp_lg_u32 s14, {G.NBLK-1}")
    a("s_cbranch_scc1 L_k45_full")
    lastn = G.L_OUT - 48 * (G.NBLK - 1)
    for o in range(3):
        nvalid = lastn - 16 * o
        a(f"v_cmp_gt_i32 vcc, {max(nvalid,0)}, v{vR}")
        for r in range(8):
            a(f"v_cndmask_b32 v{AF+8*o+r}, 0, v{AF+8*o+r}, vcc")
    a.label("L_k45_full")
    a("s_waitcnt vmcnt(2)")
    st(2)
    for q in range(4):
        for s in range(2):
            for h in range(2):
                for e in range(4):
                    a(f"v_perm_b32 v{BF+(s*2+h)*4+e}, v{RAW+4*(8*s+2*e+1)+q}, v{RAW+4*(8*s+2*e)+q}, s{30+h}")
        for s in range(2):
            for o in range(3):
                for h in range(2):
                    d = ACC + (o * 8 + 2 * q + h) * 4
                    A = AF + 4 * (2 * o + s); B = BF + (s * 2 + h) * 4
                    c = "0" if s == 0 else f"v[{d}:{d+3}]"
                    a(f"v_mfma_f32_16x16x32_bf16 v[{d}:{d+3}], v[{A}:{A+3}], v[{B}:{B+3}], {c}")
    st(3)
    a("s_nop 7")
    for dd in range(8):
        first = True
        for o in range(3):
            for rp in range(4):
                h = hreg(o, dd, rp)
                if first:
                    a(f"v_mul_f32 v{S2+dd}, v{h}, v{h}"); a(f"v_mov_b32 v{S1+dd}, v{h}"); first = False
                else:
                    a(f"v_fmac_f32 v{S2+dd}, v{h}, v{h}"); a(f"v_add_f32 v{S1+dd}, v{S1+dd}, v{h}")
    a("s_branch L_k45_red")
    a.label("L_k45_zero")
    a("s_waitcnt vmcnt(0) lgkmcnt(0)")
    for r in range(8):
        a(f"v_mov_b32 v{S1+r}, 0"); a(f"v_mov_b32 v{S2+r}, 0")
    a.label("L_k45_red")
    st(4)
    a("s_lshl_b32 s25, s10, 12")
    a(f"v_lshlrev_b32 v{vT0}, 10, v{vG}")
    a(f"v_lshl_add_u32 v{vT0}, v{vR}, 5, v{vT0}")
    a(f"v_add_u32 v{vT0}, s25, v{vT0}")
    a(f"ds_write_b128 v{vT0}, v[{S1}:{S1+3}] offset:{L_PART}")
    a(f"ds_write_b128 v{vT0}, v[{S1+4}:{S1+7}] offset:{L_PART+16}")
    a(f"ds_write_b128 v{vT0}, v[{S2}:{S2+3}] offset:{L_PART+512}")
    a(f"ds_write_b128 v{vT0}, v[{S2+4}:{S2+7}] offset:{L_PART+512+16}")
    a("s_lshl_b32 s25, s10, 13")
    a(f"v_lshlrev_b32 v{vT0+1}, 4, v{vLane}")
    a(f"v_add_u32 v{vT0+1}, s25, v{vT0+1}")
    for dd in range(8):
        h = hreg(2, dd, 0)
        a(f"ds_write_b96 v{vT0+1}, v[{h}:{h+2}] offset:{L_OFF+dd*1024}")
    a.label("L_k45_red2")
    a("s_waitcnt lgkmcnt(0)")
    a("s_barrier")
    a(f"s_mul_i32 s24, s11, {4*NG}")
    a(f"s_mul_i32 s25, s13, {NG}")
    a("s_add_u32 s24, s24, s25")
    a("s_lshl_b32 s26, s24, 10")
    a(f"s_add_u32 s26, s26, {G.PART_BASE}")
    a("s_cmp_ge_u32 s10, 6")
    a("s_cbranch_scc1 L_k45_hread")
    a("s_cmp_ge_u32 s10, 4")
    a("s_cbranch_scc1 L_k45_sumdone")
    for p in range(24):
        a(f"ds_read_b32 v{RAW+16+p}, v{VTID4} offset:{L_PART+p*1024}")
    a("s_waitcnt lgkmcnt(0)")
    vals = [RAW + 16 + p for p in range(24)]
    while len(vals) > 1:
        nv = []
        for i in range(0, len(vals) - 1, 2):
            a(f"v_add_f32 v{vals[i]}, v{vals[i]}, v{vals[i+1]}"); nv.append(vals[i])
        if len(vals) & 1: nv.append(vals[-1])
        vals = nv
    a("s_lshl_b32 s24, s12, 10")
    a("s_add_u32 s24, s24, s26")
    a(f"buffer_store_dword v{vals[0]}, v{VTID4}, s[16:19], s24 offen sc1")
    st(5)
    PT = RAW
    a(f"s_mov_b32 s33, {1 << 14}")
    a.label("L_k45_poll")
    a("s_mov_b32 s27, s26")
    for p in range(NG):
        if p % 4 == 0 and p: a("s_add_u32 s27, s27, 4096")
        a(f"buffer_load_dword v{PT+p}, v{VTID4}, s[16:19], s27 offen offset:{(p%4)*1024} sc1")
    a("s_waitcnt vmcnt(0)")
    t = RAW + 32
    a(f"v_max3_u32 v{t}, v{PT}, v{PT+1}, v{PT+2}")
    for p in range(3, NG - 1, 2):
        a(f"v_max3_u32 v{t}, v{t}, v{PT+p}, v{PT+p+1}")
    a(f"v_max_u32 v{t}, v{t}, v{PT+NG-1}")
    a(f"v_cmp_eq_u32 vcc, -1, v{t}")
    a("s_cmp_eq_u64 vcc, 0")
    a("s_cbranch_scc1 L_k45_got")
    a("s_sub_u32 s33, s33, 1")
    a("s_cmp_eq_u32 s33, 0")
    a("s_cbranch_scc1 L_k45_got")
    if cfg.get('k45_sleep'): a(f"s_sleep {cfg['k45_sleep']}")
    a("s_branch L_k45_poll")
    a.label("L_k45_got")
    st(7)
    vals = [PT + p for p in range(NG)]
    while len(vals) > 1:
        nv = []
        for i in range(0, len(vals) - 1, 2):
            a(f"v_add_f32 v{vals[i]}, v{vals[i]}, v{vals[i+1]}"); nv.append(vals[i])
        if len(vals) & 1: nv.append(vals[-1])
        vals = nv
    a(f"ds_write_b32 v{VTID4}, v{vals[0]} offset:{L_SUM}")
    a("s_branch L_k45_sumdone")
    a.label("L_k45_hread")
    a("s_waitcnt vmcnt(0)")
    a("s_sub_u32 s25, s10, 6")
    a("s_mul_i32 s25, s25, 3")
    a("s_lshl_b32 s25, s25, 13")
    a(f"v_lshlrev_b32 v{vT0+1}, 4, v{vLane}")
    a(f"v_add_u32 v{vT0+1}, s25, v{vT0+1}")
    for j in range(3):
        for dd in range(8):
            h = hreg(j, dd, 0)
            a(f"ds_read_b96 v[{h}:{h+2}], v{vT0+1} offset:{L_OFF+j*8192+dd*1024}")
            if dd == 7: a("s_waitcnt lgkmcnt(0)")
    a.label("L_k45_sumdone")
    st(9)
    a("s_waitcnt lgkmcnt(0)")
    a("s_barrier")
    ST = RAW + 44
    a(f"v_lshlrev_b32 v{vT0+6}, 5, v{vR}")
    a(f"ds_read_b128 v[{ST}:{ST+3}], v{vT0+6} offset:{L_SUM}")
    a(f"ds_read_b128 v[{ST+4}:{ST+7}], v{vT0+6} offset:{L_SUM+16}")
    a(f"ds_read_b128 v[{ST+8}:{ST+11}], v{vT0+6} offset:{L_SUM+512}")
    a(f"ds_read_b128 v[{ST+12}:{ST+15}], v{vT0+6} offset:{L_SUM+512+16}")
    a(f"s_mov_b32 s24, {f2h(1.0 / G.L_OUT)}")
    a("s_mov_b32 s25, 0x3727c5ac")
    a("s_waitcnt vmcnt(0) lgkmcnt(0)")
    for dd in range(8):
        mu = ST + dd; m2 = ST + 8 + dd
        a(f"v_mul_f32 v{mu}, s24, v{mu}")
        a(f"v_mul_f32 v{m2}, s24, v{m2}")
        a(f"v_fma_f32 v{m2}, -v{mu}, v{mu}, v{m2}")
        a(f"v_max_f32 v{m2}, 0, v{m2}")
        a(f"v_add_f32 v{m2}, s25, v{m2}")
        a(f"v_rsq_f32 v{m2}, v{m2}")
        gsrc = GB + (dd >> 1); bsrc = GB + 4 + (dd >> 1)
        if dd & 1:
            a(f"v_and_b32 v{PA+dd}, 0xffff0000, v{gsrc}"); a(f"v_and_b32 v{PB+dd}, 0xffff0000, v{bsrc}")
        else:
            a(f"v_lshlrev_b32 v{PA+dd}, 16, v{gsrc}"); a(f"v_lshlrev_b32 v{PB+dd}, 16, v{bsrc}")
        a(f"v_mul_f32 v{PA+dd}, v{PA+dd}, v{m2}")
        a(f"v_fma_f32 v{PB+dd}, -v{mu}, v{PA+dd}, v{PB+dd}")
    a(f"s_mul_i32 s24, s11, {G.OUT_B}")
    a("s_add_u32 s28, s28, s24")
    a("s_addc_u32 s29, s29, 0")
    G.make_srd(a, 32, 28, 29, G.OUT_B)
    vO = vT0 + 6
    a("s_lshl_b32 s25, s13, 8")
    a(f"v_lshlrev_b32 v{vO}, 12, v{vG}")
    a(f"v_lshl_add_u32 v{vO}, v{vR}, 4, v{vO}")
    a(f"v_add_u32 v{vO}, s25, v{vO}")
    c0 = -2.0 * math.log2(math.e) * math.sqrt(2.0 / math.pi); c1 = c0 * 0.044715
    a(f"s_mov_b32 s26, {f2h(c1)}")
    a(f"v_mov_b32 v{vT0+7}, {f2h(c0)}")
    st(10)
    T0 = RAW
    cnt = [0]
    def gelu_row(regs, soff_imm):
        ob = RAW + 16 + 4 * (cnt[0] % 8); cnt[0] += 1
        for dd in range(8): a(f"v_fma_f32 v{regs[dd]}, v{regs[dd]}, v{PA+dd}, v{PB+dd}")
        for dd in range(8): a(f"v_mul_f32 v{T0+dd}, v{regs[dd]}, v{regs[dd]}")
        for dd in range(8): a(f"v_fma_f32 v{T0+dd}, v{T0+dd}, s26, v{vT0+7}")
        for dd in range(8): a(f"v_mul_f32 v{T0+dd}, v{T0+dd}, v{regs[dd]}")
        for dd in range(8): a(f"v_exp_f32 v{T0+dd}, v{T0+dd}")
        for dd in range(8): a(f"v_add_f32 v{T0+dd}, 1.0, v{T0+dd}")
        for dd in range(8): a(f"v_rcp_f32 v{T0+dd}, v{T0+dd}")
        for dd in range(8): a(f"v_mul_f32 v{T0+dd}, v{T0+dd}, v{regs[dd]}")
        for q in range(4): a(f"v_cvt_pk_bf16_f32 v{ob+q}, v{T0+2*q}, v{T0+2*q+1}")
        a(f"s_add_u32 s27, s24, {soff_imm}")
        a(f"buffer_store_dwordx4 v[{ob}:{ob+3}], v{vO}, s[32:35], s27 offen {cfg['k5_st']}")
    a("s_cmp_ge_u32 s10, 6")
    a("s_cbranch_scc1 L_k45_hgelu")
    a(f"s_cmp_ge_u32 s14, {G.NBLK}")
    a("s_cbranch_scc1 L_k45_fin")
    a("s_mul_i32 s24, s14, %d" % (48 * 1024))
    for o in range(3):
        for rp in range(4):
            if o == 2 and rp < 3: continue
            gelu_row([hreg(o, dd, rp) for dd in range(8)], (16 * o + rp) * 1024)
    a("s_branch L_k45_fin")
    a.label("L_k45_hgelu")
    a("s_sub_u32 s25, s10, 6")
    a("s_mul_i32 s25, s25, 3")
    a("s_mul_i32 s24, s12, 6")
    a("s_add_u32 s24, s24, s25")
    a("s_mul_i32 s24, s24, %d" % (48 * 1024))
    for j in range(3):
        for rp in range(3):
            gelu_row([hreg(j, dd, rp) for dd in range(8)], j * 48 * 1024 + (32 + rp) * 1024)
    a.label("L_k45_fin")
    st(11)
    if cfg.get('fstamp'):
        a("s_waitcnt vmcnt(0)")
        st(12)
        a("s_lshl_b32 s73, s2, 3"); a("s_add_u32 s73, s73, s10"); a("s_lshl_b32 s73, s73, 8")
        a(f"s_add_u32 s73, s73, {214 << 20}")
        a(f"v_lshlrev_b32 v245, 2, v{vLane}")
        a("buffer_store_dword v244, v245, s[16:19], s73 offen")
    a.label("L_k45_end")
    a("s_endpgm")
    return name, a.lines, 248 if cfg.get('fstamp') else 240, (2 * NG * 4, 512, LDS)
```

```python
import sys, os
sys.path.insert(0, os.path.dirname(os.path.abspath(__file__)))
from asmlib import *

NAME = 'standalone__self_sup_conv_stem_wavlm__speech'

L_OUT = 7985
NBLK = 167
ROWS = 168
X_BYTES_B = 8000 * 2048
W_BYTES = 31 * 524288
WS_BYTES = 268435456
WF_BASE = 0
WF_K = 4 * 32 * 16384
XF_BASE = 64 << 20
XF_TILE = 2 * ROWS * 64
XF_B = 32 * XF_TILE
XF_K = 2 * XF_B
YF_BASE = 112 << 20
YF_B = 176 * 1024
YF_J = 2 * YF_B
PART_BASE = 140 << 20
NGRP = 42
CNT_BASE = 141 << 20
CNT_STRIDE = 8192 + 256
OUT_B = L_OUT * 1024

import json
CFG = dict(
    k3_nodma=False,
    k3_nomfma=False,
    k3_stamp=False,
    k3b=True,
    k3c=True,
    k12p=False,
    k12q=True,
    k12_nwg=256,
    w_nodup=True,
    k45f=True,
    k45g=True,
    pf_code=False,
    k45_sleep=2,
    k45_wpg=6,
    k12_st='sc1',
    k3_st='sc1',
    k5_st='sc1',
    half=False,
    wfuse=False,
    c0=4,
    ldist=[6,5,5,0],
    xfull=True,
    layout=2,
    ypad=256,
    fused=False,
    hprio=0,
    st_flags='sc1',
    dma_flags='',
    timeline=False,
    k3_nolds=False,
)
CFG.update(json.loads(os.environ.get('GENCFG', '{}')))
if CFG['layout'] == 2:
    WF_K = 16384; WF_KS = 32 * 16384; WF_DQ = 32 * WF_KS
    XF_K = XF_TILE; XF_KS = 32 * XF_TILE; XF_B = 32 * XF_KS
    YF_J = 1024; YF_ROW = 65536 + CFG['ypad']; YF_B = 176 * YF_ROW
else:
    WF_KS = 16384; WF_DQ = 32 * 16384; XF_KS = XF_TILE; YF_ROW = 1024

def kernel_header(a, name):
    a(f".globl {name}")
    a(".p2align 8")
    a(f".type {name},@function")
    a.label(name)

def kernel_desc(name, vgpr, sgpr=96, accum=None):
    accum = accum or ((vgpr + 3) // 4 * 4)
    return f""".amdhsa_kernel {name}
  .amdhsa_next_free_vgpr {vgpr}
  .amdhsa_next_free_sgpr {sgpr}
  .amdhsa_accum_offset {accum}
  .amdhsa_group_segment_fixed_size 0
  .amdhsa_kernarg_size 56
  .amdhsa_user_sgpr_count 2
  .amdhsa_user_sgpr_kernarg_segment_ptr 1
  .amdhsa_system_sgpr_workgroup_id_x 1
  .amdhsa_float_denorm_mode_32 3
.end_amdhsa_kernel
"""

def prefetch_code(a, tag, start, end, nloads, v, sp=50):
    a(f"s_getpc_b64 s[{sp}:{sp+1}]")
    a.label(f"L_pf_{tag}")
    a(f"s_sub_u32 s{sp}, s{sp}, L_pf_{tag}-{start}")
    a(f"s_subb_u32 s{sp+1}, s{sp+1}, 0")
    a(f"v_mbcnt_lo_u32_b32 v{v}, -1, 0")
    a(f"v_mbcnt_hi_u32_b32 v{v}, -1, v{v}")
    a(f"v_lshlrev_b32 v{v}, 6, v{v}")
    for j in range(nloads):
        a(f"v_add_u32 v{v+1}, {j*4096}, v{v}")
        a(f"v_min_u32 v{v+1}, {end}-{start}-4, v{v+1}")
        a(f"v_mov_b32 v{v+3}, s{sp+1}")
        a(f"v_add_co_u32 v{v+2}, vcc, s{sp}, v{v+1}")
        a(f"v_addc_co_u32 v{v+3}, vcc, 0, v{v+3}, vcc")
        a(f"global_load_dword v{v+4}, v[{v+2}:{v+3}], off")

def make_srd(a, s, base_lo, base_hi, size):
    a(f"s_mov_b32 s{s}, s{base_lo}")
    a(f"s_and_b32 s{s+1}, s{base_hi}, 0xffff")
    a(f"s_mov_b32 s{s+2}, {size}")
    a(f"s_mov_b32 s{s+3}, 0x00020000")

def cos_table(a, vp0, vstep_list, dst, tmp, scale=None, lo_sel=None):
    for e in range(8):
        r = vstep_list[e]
        a(f"v_and_b32 v{r}, 127, v{r}")
        a(f"v_cvt_f32_u32 v{r}, v{r}")
        a(f"v_mul_f32 v{r}, 0x3c000000, v{r}")
        a(f"v_cos_f32 v{r}, v{r}")
    if scale is not None:
        for e in range(8):
            r = vstep_list[e]
            a(f"v_mul_f32 v{r}, {scale}, v{r}")
    for e2 in range(4):
        r0, r1 = vstep_list[2*e2], vstep_list[2*e2+1]
        a(f"v_cvt_pk_bf16_f32 v{dst+e2}, v{r0}, v{r1}")
    if lo_sel is not None:
        for e2 in range(4):
            r0, r1 = vstep_list[2*e2], vstep_list[2*e2+1]
            a(f"v_lshlrev_b32 v{tmp}, 16, v{dst+e2}")
            a(f"v_and_b32 v{tmp+1}, 0xffff0000, v{dst+e2}")
            a(f"v_sub_f32 v{r0}, v{r0}, v{tmp}")
            a(f"v_sub_f32 v{r1}, v{r1}, v{tmp+1}")
            a(f"v_cvt_pk_bf16_f32 v{tmp}, v{r0}, v{r1}")
            a(f"v_cndmask_b32 v{dst+e2}, v{dst+e2}, v{tmp}, s[{lo_sel}:{lo_sel+1}]")

def gen_k12():
    a = Asm()
    name = 'xform_kernel'
    kernel_header(a, name)
    NCG = CFG['c0'] if CFG['half'] else 8
    XFULL = CFG['half'] or CFG['wfuse']
    XF2_K = 2 * XF_TILE; XF_KP = 32 * XF2_K; XF2_B = 16 * XF_KP
    NX = 2 * NGRP * NCG
    NW = 128 * (CFG['c0'] if CFG['wfuse'] else NCG)
    RAW = 0
    AF = 64
    BF = 96
    ACC = 112
    VT = 144
    vLane = VT; vR = VT+1; vG = VT+2; vOff = VT+3; vSt = VT+4; vT0 = VT+5
    NV = 160
    a("s_cmp_ge_u32 s2, %d" % (NX + NW))
    a("s_cbranch_scc1 L_k12_end")
    a("s_load_dwordx4 s[4:7], s[0:1], 0")
    a("s_load_dwordx2 s[8:9], s[0:1], 48")
    a(f"v_and_b32 v{vLane}, 63, v0")
    a(f"v_lshrrev_b32 v{vT0}, 6, v0")
    a(f"v_and_b32 v{vR}, 15, v{vLane}")
    a(f"v_readfirstlane_b32 s10, v{vT0}")
    a(f"v_lshrrev_b32 v{vG}, 4, v{vLane}")
    a("s_mov_b32 s30, 0x05040100")
    a("s_mov_b32 s31, 0x07060302")
    a("s_waitcnt lgkmcnt(0)")
    make_srd(a, 16, 8, 9, WS_BYTES)
    a("s_cmp_ge_u32 s2, %d" % NX)
    a("s_cbranch_scc1 L_k12_w")
    a.c("X item: b, cg, grp")
    a(f"s_cmp_ge_u32 s2, {NGRP*NCG}")
    a("s_cselect_b32 s11, 1, 0")
    a(f"s_mul_i32 s12, s11, {NGRP*NCG}")
    a("s_sub_u32 s12, s2, s12")
    a(f"s_mul_hi_u32 s14, s12, {((1 << 32) + NCG - 1) // NCG if NCG > 1 else 0}")
    a(f"s_mul_i32 s13, s14, {NCG}")
    a("s_sub_u32 s13, s12, s13")
    a("s_lshl_b32 s14, s14, 2")
    a("s_add_u32 s14, s14, s10")
    a(f"s_mul_i32 s15, s11, {X_BYTES_B}")
    a("s_add_u32 s4, s4, s15")
    a("s_addc_u32 s5, s5, 0")
    make_srd(a, 12+8, 4, 5, X_BYTES_B)
    a("s_mul_i32 s15, s14, %d" % (48 * 2048))
    a("s_lshl_b32 s24, s13, 8")
    a("s_add_u32 s15, s15, s24")
    a(f"v_lshlrev_b32 v{vOff}, 14, v{vG}")
    a(f"v_lshl_add_u32 v{vOff}, v{vR}, 4, v{vOff}")
    a(f"v_add_u32 v{vOff}, s15, v{vOff}")
    for s in range(2):
        for i in range(8):
            off = (32 * s + i) * 2048
            if off == 0:
                a(f"buffer_load_dwordx4 v[{RAW}:{RAW+3}], v{vOff}, s[20:23], 0 offen")
            else:
                a(f"v_add_u32 v{vT0}, {off}, v{vOff}")
                r = RAW + 4 * (8 * s + i)
                a(f"buffer_load_dwordx4 v[{r}:{r+3}], v{vT0}, s[20:23], 0 offen")
    a.c("table generation: wave w -> o = w, s = 0,1")
    vA = vT0; vC = vT0+1; vP = BF
    a(f"v_lshrrev_b32 v{vA}, 2, v{vR}")
    a(f"v_lshlrev_b32 v{vA}, 1, v{vA}")
    a(f"v_bfe_u32 v{vC}, v{vR}, 1, 1")
    a(f"v_add_u32 v{vA}, v{vA}, v{vC}")
    a("s_lshl_b32 s24, s10, 3")
    a(f"v_add_u32 v{vA}, s24, v{vA}")
    a(f"v_lshl_add_u32 v{vA}, v{vA}, 1, 1")
    a(f"v_and_b32 v{vC}, 1, v{vR}")
    a(f"v_lshlrev_b32 v{vC}, 5, v{vC}")
    for s in range(2):
        a(f"v_lshlrev_b32 v{vT0+2}, 3, v{vG}")
        if s: a(f"v_add_u32 v{vT0+2}, 32, v{vT0+2}")
        a(f"v_mad_u32_u24 v{vP}, v{vA}, v{vT0+2}, v{vC}")
        for e in range(1, 8):
            a(f"v_add_u32 v{vP+e}, v{vP+e-1}, v{vA}")
        cos_table(a, None, [vP+e for e in range(8)], ACC, ACC+4)
        a("s_lshl_b32 s24, s10, 11")
        a(f"v_lshlrev_b32 v{vT0+3}, 4, v{vLane}")
        a(f"v_add_u32 v{vT0+3}, s24, v{vT0+3}")
        a(f"ds_write_b128 v{vT0+3}, v[{ACC}:{ACC+3}] offset:{s*1024}")
    a("s_waitcnt lgkmcnt(0)")
    a("s_barrier")
    a(f"v_lshlrev_b32 v{vT0+3}, 4, v{vLane}")
    for o in range(4):
        for s in range(2):
            r = AF + 4 * (2 * o + s)
            a(f"ds_read_b128 v[{r}:{r+3}], v{vT0+3} offset:{(2*o+s)*1024}")
    a("s_bfe_u32 s24, s14, 0x10003")
    a("s_mul_i32 s24, s24, 3")
    a(f"v_and_b32 v{vT0}, 3, v{vR}")
    a(f"v_xor_b32 v{vT0}, s24, v{vT0}")
    a(f"v_lshlrev_b32 v{vT0}, 4, v{vT0}")
    if XFULL:
        a(f"v_bfe_u32 v{vT0+1}, v{vR}, 2, 1")
        a(f"v_lshl_add_u32 v{vT0}, v{vT0+1}, 6, v{vT0}")
        a(f"v_lshrrev_b32 v{vT0+1}, 3, v{vR}")
        a(f"s_mov_b32 s24, {XF_KP}")
    else:
        a(f"v_lshrrev_b32 v{vT0+1}, 2, v{vR}")
        a(f"s_mov_b32 s24, {XF_KS}")
    a(f"v_mad_u32_u24 v{vT0}, v{vT0+1}, s24, v{vT0}")
    a(f"s_mov_b32 s24, {2*(XF2_K if XFULL else XF_K)}")
    a(f"v_mad_u32_u24 v{vSt}, v{vG}, s24, v{vT0}")
    a(f"s_mul_i32 s24, s11, {XF2_B if XFULL else XF_B}")
    a(f"s_mul_i32 s25, s13, {2*XF_KP if XFULL else 4*XF_KS}")
    a("s_add_u32 s24, s24, s25")
    a(f"s_lshl_b32 s25, s14, {7 if XFULL else 6}")
    a("s_add_u32 s24, s24, s25")
    a(f"s_add_u32 s24, s24, {XF_BASE}")
    a("s_waitcnt vmcnt(0) lgkmcnt(0)")
    def perms(q):
        for s in range(2):
            for h in range(2):
                for e in range(4):
                    d = BF + (s * 2 + h) * 4 + e
                    r0 = RAW + 4 * (8 * s + 2 * e) + q
                    r1 = RAW + 4 * (8 * s + 2 * e + 1) + q
                    a(f"v_perm_b32 v{d}, v{r1}, v{r0}, s{30+h}")
    def mfmas():
        for s in range(2):
            for o in range(4):
                for h in range(2):
                    d = ACC + (o * 2 + h) * 4
                    A = AF + 4 * (2 * o + s)
                    B = BF + (s * 2 + h) * 4
                    c = "0" if s == 0 else f"v[{d}:{d+3}]"
                    a(f"v_mfma_f32_16x16x32_bf16 v[{d}:{d+3}], v[{A}:{A+3}], v[{B}:{B+3}], {c}")
    def cvts(q):
        for o in range(4):
            for rp in range(4):
                d = RAW + 4 * (4 * o + rp) + q
                a(f"v_cvt_pk_bf16_f32 v{d}, v{ACC+(o*2)*4+rp}, v{ACC+(o*2+1)*4+rp}")
    perms(0)
    for q in range(4):
        mfmas()
        if q < 3: perms(q + 1)
        cvts(q)
    for o in range(4):
        for rp in range(4):
            off = (8 * o + (rp >> 1)) * XF_K + (rp & 1) * (ROWS * 64)
            if XFULL: off = (8 * o + (rp >> 1)) * XF2_K + (rp & 1) * (ROWS * 128)
            a(f"s_add_u32 s25, s24, {off}")
            r = RAW + 4 * (4 * o + rp)
            a(f"buffer_store_dwordx4 v[{r}:{r+3}], v{vSt}, s[16:19], s25 offen {CFG['k12_st']}")
    a("s_endpgm")
    a.label("L_k12_w")
    a(f"s_sub_u32 s12, s2, {NX}")
    a("s_and_b32 s13, s12, 3")
    a("s_lshr_b32 s14, s12, 2")
    a("s_lshl_b32 s14, s14, 2")
    a("s_add_u32 s14, s14, s10")
    make_srd(a, 20, 6, 7, W_BYTES)
    a(f"v_and_b32 v{vT0}, 1, v{vG}")
    a(f"v_lshlrev_b32 v{vOff}, 23, v{vT0}")
    a(f"v_lshrrev_b32 v{vT0}, 2, v{vR}")
    a(f"v_lshl_add_u32 v{vOff}, v{vT0}, 6, v{vOff}")
    a(f"v_and_b32 v{vT0}, 1, v{vR}")
    a(f"v_lshl_add_u32 v{vOff}, v{vT0}, 5, v{vOff}")
    a(f"v_bfe_u32 v{vT0}, v{vR}, 1, 1")
    a(f"v_lshl_add_u32 v{vOff}, v{vT0}, 3, v{vOff}")
    a("s_lshl_b32 s15, s14, 10")
    a("s_lshl_b32 s24, s13, 8")
    a("s_add_u32 s15, s15, s24")
    a(f"v_add_u32 v{vOff}, s15, v{vOff}")
    for i in range(8):
        r = RAW + 4 * i
        if i == 0:
            src = vOff
        else:
            a(f"v_add_u32 v{vT0}, {i << 20}, v{vOff}")
            src = vT0
        a(f"buffer_load_dwordx2 v[{r}:{r+1}], v{src}, s[20:23], 0 offen")
        a(f"buffer_load_dwordx2 v[{r+2}:{r+3}], v{src}, s[20:23], 0 offen offset:16")
    a.c("table: wave w -> o = w")
    vA = vT0; vC = vT0+1; vP = BF
    a(f"v_lshrrev_b32 v{vA}, 2, v{vR}")
    a(f"v_lshlrev_b32 v{vA}, 1, v{vA}")
    a(f"v_bfe_u32 v{vC}, v{vR}, 1, 1")
    a(f"v_add_u32 v{vA}, v{vA}, v{vC}")
    a("s_lshl_b32 s24, s10, 3")
    a(f"v_add_u32 v{vA}, s24, v{vA}")
    a(f"v_lshl_add_u32 v{vA}, v{vA}, 1, 1")
    a(f"v_and_b32 v{vC}, 1, v{vR}")
    a(f"v_lshlrev_b32 v{vC}, 5, v{vC}")
    a(f"v_and_b32 v{vT0+2}, 1, v{vG}")
    a(f"v_lshlrev_b32 v{vT0+2}, 3, v{vT0+2}")
    a(f"v_mad_u32_u24 v{vP}, v{vA}, v{vT0+2}, v{vC}")
    for e in range(1, 8):
        a(f"v_add_u32 v{vP+e}, v{vP+e-1}, v{vA}")
    a(f"v_cmp_lt_u32 s[26:27], 1, v{vG}")
    cos_table(a, None, [vP+e for e in range(8)], ACC, ACC+4, lo_sel=26)
    a("s_lshl_b32 s24, s10, 10")
    a(f"v_lshlrev_b32 v{vT0+3}, 4, v{vLane}")
    a(f"v_add_u32 v{vT0+3}, s24, v{vT0+3}")
    a(f"ds_write_b128 v{vT0+3}, v[{ACC}:{ACC+3}]")
    a("s_waitcnt lgkmcnt(0)")
    a("s_barrier")
    a(f"v_lshlrev_b32 v{vT0+3}, 4, v{vLane}")
    for o in range(4):
        r = AF + 4 * o
        a(f"ds_read_b128 v[{r}:{r+3}], v{vT0+3} offset:{o*1024}")
    a("s_and_b32 s24, s14, 3")
    a("s_bfe_u32 s25, s14, 0x10003")
    a("s_lshl_b32 s25, s25, 2")
    a("s_or_b32 s24, s24, s25")
    a("s_lshl_b32 s24, s24, 1")
    a(f"v_xor_b32 v{vT0}, s24, v{vR}")
    a(f"v_lshlrev_b32 v{vT0}, 4, v{vT0}")
    a(f"s_mov_b32 s25, {2*WF_K}")
    a(f"v_mul_u32_u24 v{vSt}, s25, v{vG}")
    a(f"v_add_u32 v{vSt}, v{vSt}, v{vT0}")
    a(f"s_mul_i32 s24, s13, {WF_DQ}")
    a("s_lshr_b32 s25, s14, 5")
    a(f"s_mul_i32 s25, s25, {WF_KS}")
    a("s_add_u32 s24, s24, s25")
    a("s_and_b32 s25, s14, 31")
    a("s_lshl_b32 s25, s25, 8")
    a("s_add_u32 s24, s24, s25")
    if WF_BASE: a(f"s_add_u32 s24, s24, {WF_BASE}")
    a("s_waitcnt vmcnt(0) lgkmcnt(0)")
    OUT = 32
    FR = 32
    for dd in range(8):
        q = dd >> 1; h = dd & 1
        for e in range(4):
            r0 = RAW + 4 * (2 * e) + q
            r1 = RAW + 4 * (2 * e + 1) + q
            a(f"v_perm_b32 v{FR+4*dd+e}, v{r1}, v{r0}, s{30+h}")
    for o in range(4):
        A = AF + 4 * o
        for dd in range(8):
            d = ACC + 4 * dd
            a(f"v_mfma_f32_16x16x32_bf16 v[{d}:{d+3}], v[{A}:{A+3}], v[{FR+4*dd}:{FR+4*dd+3}], 0")
        ob = RAW + 16 * (o & 1)
        for rp in range(4):
            for q in range(4):
                a(f"v_cvt_pk_bf16_f32 v{ob+4*rp+q}, v{ACC+8*q+rp}, v{ACC+8*q+4+rp}")
        for rp in range(4):
            off = (8 * o + (rp >> 1)) * WF_K + (rp & 1) * 8192
            a(f"s_add_u32 s25, s24, {off}")
            r = ob + 4 * rp
            a(f"buffer_store_dwordx4 v[{r}:{r+3}], v{vSt}, s[16:19], s25 offen {CFG['k12_st']}")
    a.label("L_k12_end")
    a("s_endpgm")
    return name, a.lines, NV, (NX + NW, 256, 16384)

STAMP_BASE = 200 << 20
def add_timeline(name, lines, kidx):
    out = []
    started = False
    n = 0
    for l in lines:
        t = l.strip()
        out.append(l)
        if not started and t == name + ':':
            out.append("    s_memrealtime s[92:93]")
            out.append("    v_lshrrev_b32 v1, 6, v0")
            out.append("    s_nop 1")
            out.append("    v_readfirstlane_b32 s91, v1")
            out.append("    s_waitcnt lgkmcnt(0)")
            started = True
        if t == 's_endpgm':
            out.pop()
            n += 1
            out.append("    s_waitcnt vmcnt(0) lgkmcnt(0)")
            out.append("    s_memrealtime s[94:95]")
            out.append("    s_load_dwordx2 s[80:81], s[0:1], 48")
            out.append("    s_mov_b64 exec, -1")
            out.append("    s_waitcnt lgkmcnt(0)")
            out.append("    s_mov_b32 s84, s80"); out.append("    s_and_b32 s85, s81, 0xffff")
            out.append(f"    s_mov_b32 s86, {WS_BYTES}"); out.append("    s_mov_b32 s87, 0x00020000")
            out.append("    s_lshl_b32 s88, s2, 4"); out.append("    s_add_u32 s88, s88, s91"); out.append("    s_lshl_b32 s88, s88, 4")
            out.append(f"    s_add_u32 s88, s88, {STAMP_BASE + kidx * (1 << 20)}")
            out.append("    v_mov_b32 v0, s92"); out.append("    v_mov_b32 v1, s93"); out.append("    v_mov_b32 v2, s94"); out.append("    v_mov_b32 v3, s95")
            out.append("    v_mov_b32 v4, 0")
            out.append("    buffer_store_dwordx4 v[0:3], v4, s[84:87], s88 offen")
            out.append("    s_endpgm")
    return out

def build(kernels):
    if CFG['timeline']:
        kernels = [(n, add_timeline(n, l, i), nv, g) for i, (n, l, nv, g) in enumerate(kernels)]
    hdr = open(os.path.join(os.path.dirname(os.path.abspath(__file__)), '..', NAME + '.s.ref')).read().split('\n')
    out = []
    for l in hdr:
        if l.startswith('; Override launch') or l.startswith('; grid=ceil') or l.startswith('; @launch'): continue
        if l.startswith(';'): out.append(l)
        else: break
    for (name, lines, nv, (g, blk, lds)) in kernels:
        out.append(f"; @launch kernel={name} grid=({g},1,1) block=({blk},1,1) lds={lds}")
    out.append('.amdgcn_target "amdgcn-amd-amdhsa--gfx950"')
    out.append('.text')
    for (name, lines, nv, _) in kernels:
        out += hazard_pass(lines)
    out.append('L_code_end:')
    out.append('    s_endpgm')
    out.append('.section .rodata,"a"')
    for (name, lines, nv, _) in kernels:
        out.append('.p2align 6')
        out.append(kernel_desc(name, nv))
    return '\n'.join(out) + '\n'

if __name__ == '__main__':
    from gen_k3 import gen_k3
    from gen_k45 import gen_k4, gen_k5
    from gen_k3b import gen_k3b
    from gen_k123 import gen_k123
    from gen_k3h import gen_k3h
    from gen_k3w import gen_k3w
    if CFG['wfuse']:
        ks = [gen_k12(), gen_k3w(), gen_k4(), gen_k5()]
    elif CFG['half']:
        ks = [gen_k12(), gen_k3h(), gen_k4(), gen_k5()]
    elif CFG['fused']:
        ks = [gen_k123(), gen_k4(), gen_k5()]
    else:
        ks = [gen_k12(), gen_k3b() if CFG['k3b'] else gen_k3(), gen_k4(), gen_k5()]
    if CFG['k12p']:
        from gen_k12p import gen_k12p
        ks[0] = gen_k12p()
    if CFG['k12q']:
        from gen_k12q import gen_k12q
        ks[0] = gen_k12q()
    if CFG['k3c']:
        from gen_k3c import gen_k3c
        ks[1] = gen_k3c()
    if CFG['k45g']:
        from gen_k45g import gen_k45g
        ks = ks[:-2] + [gen_k45g()]
    elif CFG['k45f']:
        from gen_k45 import gen_k45f
        ks = ks[:-2] + [gen_k45f()]
    dst = sys.argv[1] if len(sys.argv) > 1 else os.path.join(os.path.dirname(os.path.abspath(__file__)), '..', NAME + '.s')
    open(dst, 'w').write(build(ks))
    print('wrote', dst)
```

```python
from asmlib import *
import gen as G

def gen_k12q(cfg=None):
    cfg = cfg or G.CFG
    a = Asm()
    name = 'xform_kernel'
    G.kernel_header(a, name)
    NX = 2 * G.NGRP * 8
    NW = 1024
    NT = NX + NW
    NWG = cfg.get('k12_nwg', 256)
    st = cfg['k12_st']; ld = cfg.get('k12_ld', '')
    BUF = [0, 64]; AF = 128; BF = 160; ACC = 176; VT = 208
    vLane = VT; vR = VT+1; vG = VT+2; vOff = VT+3; vSt = VT+4; vT0 = VT+5
    vNext = VT + 13; vZ = VT + 14; vL16 = VT + 15
    vXo = VT + 16; vWo = VT + 17; vXs = VT + 18; vWs = VT + 19
    NV = 232
    sCur, sNxt = 40, 42
    a(f"s_cmp_ge_u32 s2, {NWG}")
    a("s_cbranch_scc1 L_k12_end")
    a("s_load_dwordx4 s[4:7], s[0:1], 0")
    a("s_load_dwordx4 s[36:39], s[0:1], 40")
    if cfg.get('pf_code'):
        a(f"v_lshrrev_b32 v{vT0}, 6, v0")
        a("s_cmp_ge_u32 s2, 8"); a("s_cbranch_scc1 L_nopf12")
        a(f"v_readfirstlane_b32 s10, v{vT0}")
        a("s_cmp_lg_u32 s10, 3"); a("s_cbranch_scc1 L_nopf12")
        G.prefetch_code(a, "k12", "xform_kernel", "L_code_end", 10, ACC + 8, sp=60)
        a.label("L_nopf12")
    a(f"v_and_b32 v{vLane}, 63, v0")
    a(f"v_lshrrev_b32 v{vT0}, 6, v0")
    a(f"v_and_b32 v{vR}, 15, v{vLane}")
    a(f"v_readfirstlane_b32 s10, v{vT0}")
    a(f"v_lshrrev_b32 v{vG}, 4, v{vLane}")
    a(f"v_lshlrev_b32 v{vL16}, 4, v{vLane}")
    a(f"v_mov_b32 v{vZ}, 0")
    a("s_mov_b32 s30, 0x05040100")
    a("s_mov_b32 s31, 0x07060302")
    a("s_mov_b32 s32, 0x01000100")
    a("s_mov_b32 s33, 0x03020302")
    a(f"s_mov_b32 s{sCur}, s2")
    a(f"s_add_u32 s{sNxt}, s2, {NWG}")
    a("s_mov_b32 s41, 0")
    remap_later = True
    a("s_mov_b32 s43, 0")
    a(f"v_lshlrev_b32 v{vXo}, 14, v{vG}")
    a(f"v_lshl_add_u32 v{vXo}, v{vR}, 4, v{vXo}")
    a(f"v_lshlrev_b32 v{vWo}, 22, v{vG}")
    a(f"v_lshrrev_b32 v{vT0}, 2, v{vR}")
    a(f"v_lshl_add_u32 v{vWo}, v{vT0}, 6, v{vWo}")
    a(f"v_and_b32 v{vT0}, 1, v{vR}")
    a(f"v_lshl_add_u32 v{vWo}, v{vT0}, 5, v{vWo}")
    a(f"v_bfe_u32 v{vT0}, v{vR}, 1, 1")
    a(f"v_lshl_add_u32 v{vWo}, v{vT0}, 3, v{vWo}")
    a(f"v_lshrrev_b32 v{vT0}, 2, v{vR}")
    a(f"s_mov_b32 s24, {G.XF_KS}")
    a(f"v_mul_u32_u24 v{vXs}, s24, v{vT0}")
    a(f"s_mov_b32 s24, {2*G.XF_K}")
    a(f"v_mad_u32_u24 v{vXs}, v{vG}, s24, v{vXs}")
    a(f"s_mov_b32 s24, {2*G.WF_K}")
    a(f"v_mul_u32_u24 v{vWs}, s24, v{vG}")
    a("s_waitcnt lgkmcnt(0)")
    G.make_srd(a, 16, 38, 39, G.WS_BYTES)
    G.make_srd(a, 44, 36, 37, 256)
    uid = [0]
    MIX = cfg.get('k12_mix')
    def remap(sr):
        if not MIX: return
        u = uid[0]; uid[0] += 1
        if MIX >= 3:
            a(f"s_cmp_ge_u32 s{sr}, {2*NX}")
            a(f"s_cbranch_scc1 L_rm{u}")
            a(f"s_lshr_b32 s28, s{sr}, 1")
            a(f"s_add_u32 s29, s28, {NX}")
            a(f"s_bitcmp1_b32 s{sr}, 0")
            if MIX == 3: a(f"s_cselect_b32 s{sr}, s29, s28")
            else: a(f"s_cselect_b32 s{sr}, s28, s29")
            a.label(f"L_rm{u}")
            return
        a(f"s_cmp_ge_u32 s{sr}, 1680")
        a(f"s_cbranch_scc1 L_rm{u}")
        a(f"s_mul_i32 s26, s{sr}, 52429")
        a("s_lshr_b32 s26, s26, 18")
        a("s_mul_i32 s27, s26, 5")
        a(f"s_sub_u32 s27, s{sr}, s27")
        if MIX == 1:
            a("s_lshl_b32 s28, s26, 1"); a("s_add_u32 s28, s28, s27")
            a("s_mul_i32 s29, s26, 3"); a("s_add_u32 s29, s29, s27"); a(f"s_add_u32 s29, s29, {NX-2}")
            a("s_cmp_lt_u32 s27, 2")
        else:
            a("s_lshr_b32 s28, s27, 1"); a("s_lshl_b32 s29, s26, 1"); a("s_add_u32 s28, s28, s29")
            a("s_add_u32 s29, s27, 1"); a("s_lshr_b32 s29, s29, 1"); a("s_mul_i32 s27, s26, 3") if False else None
            a("s_mul_i32 s35, s26, 3"); a("s_add_u32 s29, s29, s35"); a(f"s_add_u32 s29, s29, {NX}")
            a("s_sub_u32 s29, s29, 0")
            a("s_bitcmp1_b32 s27, 0")
        a(f"s_cselect_b32 s{sr}, s28, s29")
        a.label(f"L_rm{u}")
    def issue_loads(sIdx, buf):
        u = uid[0]; uid[0] += 1
        a(f"s_cmp_ge_u32 s{sIdx}, {NT}")
        a(f"s_cbranch_scc1 L_ld_done{u}")
        a(f"s_cmp_ge_u32 s{sIdx}, {NX}")
        a(f"s_cbranch_scc1 L_ld_w{u}")
        a(f"s_cmp_ge_u32 s{sIdx}, 336")
        a("s_cselect_b32 s11, 1, 0")
        a("s_mul_i32 s12, s11, 336")
        a(f"s_sub_u32 s12, s{sIdx}, s12")
        a("s_and_b32 s13, s12, 7")
        a("s_lshr_b32 s14, s12, 3")
        a("s_lshl_b32 s14, s14, 2")
        a("s_add_u32 s14, s14, s10")
        a(f"s_mul_i32 s15, s11, {G.X_BYTES_B}")
        a("s_add_u32 s34, s4, s15")
        a("s_addc_u32 s35, s5, 0")
        G.make_srd(a, 20, 34, 35, G.X_BYTES_B)
        a("s_mul_i32 s15, s14, %d" % (48 * 2048))
        a("s_lshl_b32 s24, s13, 8")
        a("s_add_u32 s15, s15, s24")
        for s in range(2):
            for i in range(8):
                r = buf + 4 * (8 * s + i)
                a(f"s_add_u32 s25, s15, {(32*s+i)*2048}")
                a(f"buffer_load_dwordx4 v[{r}:{r+3}], v{vXo}, s[20:23], s25 offen {ld}")
        a(f"s_branch L_ld_done{u}")
        a.label(f"L_ld_w{u}")
        a(f"s_sub_u32 s12, s{sIdx}, {NX}")
        a("s_and_b32 s13, s12, 3")
        a("s_lshr_b32 s14, s12, 2")
        a("s_lshl_b32 s14, s14, 2")
        a("s_add_u32 s14, s14, s10")
        G.make_srd(a, 20, 6, 7, G.W_BYTES)
        a("s_lshl_b32 s15, s14, 10")
        a("s_lshl_b32 s24, s13, 8")
        a("s_add_u32 s15, s15, s24")
        for i in range(4):
            r = buf + 4 * i
            a(f"s_add_u32 s25, s15, {i << 20}")
            a(f"buffer_load_dwordx2 v[{r}:{r+1}], v{vWo}, s[20:23], s25 offen {ld}")
            a(f"buffer_load_dwordx2 v[{r+2}:{r+3}], v{vWo}, s[20:23], s25 offen offset:16 {ld}")
        a.label(f"L_ld_done{u}")
    remap(sCur); remap(sNxt)
    issue_loads(sCur, BUF[0])
    vA = vT0; vC = vT0+1; vP = BF
    a(f"v_lshrrev_b32 v{vA}, 2, v{vR}")
    a(f"v_lshlrev_b32 v{vA}, 1, v{vA}")
    a(f"v_bfe_u32 v{vC}, v{vR}, 1, 1")
    a(f"v_add_u32 v{vA}, v{vA}, v{vC}")
    a("s_lshl_b32 s24, s10, 3")
    a(f"v_add_u32 v{vA}, s24, v{vA}")
    a(f"v_lshl_add_u32 v{vA}, v{vA}, 1, 1")
    a(f"v_and_b32 v{vC}, 1, v{vR}")
    a(f"v_lshlrev_b32 v{vC}, 5, v{vC}")
    for s in range(2):
        a(f"v_lshlrev_b32 v{vT0+2}, 3, v{vG}")
        if s: a(f"v_add_u32 v{vT0+2}, 32, v{vT0+2}")
        a(f"v_mad_u32_u24 v{vP}, v{vA}, v{vT0+2}, v{vC}")
        for e in range(1, 8): a(f"v_add_u32 v{vP+e}, v{vP+e-1}, v{vA}")
        G.cos_table(a, None, [vP+e for e in range(8)], ACC, ACC+4)
        a("s_lshl_b32 s24, s10, 11")
        a(f"v_add_u32 v{vT0+3}, s24, v{vL16}")
        a(f"ds_write_b128 v{vT0+3}, v[{ACC}:{ACC+3}] offset:{s*1024}")
    a(f"v_lshlrev_b32 v{vT0+2}, 2, v{vG}")
    a(f"v_mad_u32_u24 v{vP}, v{vA}, v{vT0+2}, v{vC}")
    for e in range(1, 4): a(f"v_add_u32 v{vP+e}, v{vP+e-1}, v{vA}")
    for e in range(4):
        r = vP + e
        a(f"v_and_b32 v{r}, 127, v{r}"); a(f"v_cvt_f32_u32 v{r}, v{r}"); a(f"v_mul_f32 v{r}, 0x3c000000, v{r}"); a(f"v_cos_f32 v{r}, v{r}")
    for e in range(4):
        r = vP + e
        a(f"v_cvt_pk_bf16_f32 v{ACC+4}, v{r}, v{r}")
        a(f"v_lshlrev_b32 v{ACC+5}, 16, v{ACC+4}")
        a(f"v_sub_f32 v{ACC+5}, v{r}, v{ACC+5}")
        a(f"v_cvt_pk_bf16_f32 v{ACC+5}, v{ACC+5}, v{ACC+5}")
        a(f"v_perm_b32 v{ACC+e}, v{ACC+5}, v{ACC+4}, s30")
    a("s_lshl_b32 s24, s10, 10")
    a(f"v_add_u32 v{vT0+3}, s24, v{vL16}")
    a(f"ds_write_b128 v{vT0+3}, v[{ACC}:{ACC+3}] offset:8192")
    a("s_waitcnt lgkmcnt(0)")
    a("s_barrier")
    a.label("L_k12_loop")
    for p in range(2):
        buf = BUF[p]; nbuf = BUF[p ^ 1]
        a("s_cmp_lg_u32 s10, 0")
        a(f"s_cbranch_scc1 L_nofetch{p}")
        a(f"v_mov_b32 v{vNext}, 1")
        a("s_mov_b64 exec, 1")
        a(f"buffer_atomic_add v{vNext}, v{vZ}, s[44:47], 0 offen sc0 sc1")
        a("s_mov_b64 exec, -1")
        a.label(f"L_nofetch{p}")
        issue_loads(sNxt, nbuf)
        def counted(tag, base):
            a(f"s_cmp_ge_u32 s{sNxt}, {NT}")
            a(f"s_cbranch_scc1 L_w0_{tag}")
            a(f"s_cmp_ge_u32 s{sNxt}, {NX}")
            a(f"s_cbranch_scc1 L_w8_{tag}")
            a(f"s_waitcnt vmcnt({base+16})")
            a(f"s_branch L_wd_{tag}")
            a.label(f"L_w8_{tag}")
            a(f"s_waitcnt vmcnt({base+8})")
            a(f"s_branch L_wd_{tag}")
            a.label(f"L_w0_{tag}")
            a(f"s_waitcnt vmcnt({base})")
            a.label(f"L_wd_{tag}")
        if p == 0:
            a("s_cmp_lg_u32 s43, 0")
            a("s_cbranch_scc1 L_notfirst")
            counted("f", 0)
            a("s_mov_b32 s43, 1")
            a("s_branch L_wfin")
            a.label("L_notfirst")
            counted("a0", 16)
            a.label("L_wfin")
        else:
            counted("a1", 16)
        a(f"s_cmp_ge_u32 s{sCur}, {NX}")
        a(f"s_cbranch_scc1 L_cw{p}")
        a(f"s_cmp_ge_u32 s{sCur}, 336")
        a("s_cselect_b32 s11, 1, 0")
        a("s_mul_i32 s12, s11, 336")
        a(f"s_sub_u32 s12, s{sCur}, s12")
        a("s_and_b32 s13, s12, 7")
        a("s_lshr_b32 s14, s12, 3")
        a("s_lshl_b32 s14, s14, 2")
        a("s_add_u32 s14, s14, s10")
        for o in range(4):
            for s in range(2):
                r = AF + 4 * (2 * o + s)
                a(f"ds_read_b128 v[{r}:{r+3}], v{vL16} offset:{(2*o+s)*1024}")
        a("s_bfe_u32 s24, s14, 0x10003")
        a("s_mul_i32 s24, s24, 3")
        a(f"v_and_b32 v{vT0}, 3, v{vR}")
        a(f"v_xor_b32 v{vT0}, s24, v{vT0}")
        a(f"v_lshl_add_u32 v{vSt}, v{vT0}, 4, v{vXs}")
        a(f"s_mul_i32 s24, s11, {G.XF_B}")
        a(f"s_mul_i32 s25, s13, {4*G.XF_KS}")
        a("s_add_u32 s24, s24, s25")
        a("s_lshl_b32 s25, s14, 6")
        a("s_add_u32 s24, s24, s25")
        a(f"s_add_u32 s24, s24, {G.XF_BASE}")
        def perms(q):
            for s in range(2):
                for h in range(2):
                    for e in range(4):
                        d = BF + (s * 2 + h) * 4 + e
                        a(f"v_perm_b32 v{d}, v{buf + 4*(8*s+2*e+1) + q}, v{buf + 4*(8*s+2*e) + q}, s{30+h}")
        def mfmas():
            for s in range(2):
                for o in range(4):
                    for h in range(2):
                        d = ACC + (o * 2 + h) * 4
                        A = AF + 4 * (2 * o + s); B = BF + (s * 2 + h) * 4
                        c = "0" if s == 0 else f"v[{d}:{d+3}]"
                        a(f"v_mfma_f32_16x16x32_bf16 v[{d}:{d+3}], v[{A}:{A+3}], v[{B}:{B+3}], {c}")
        def cvts(q):
            for o in range(4):
                for rp in range(4):
                    a(f"v_cvt_pk_bf16_f32 v{buf + 4*(4*o+rp) + q}, v{ACC+(o*2)*4+rp}, v{ACC+(o*2+1)*4+rp}")
        perms(0)
        a("s_waitcnt lgkmcnt(0)")
        for q in range(4):
            mfmas()
            if q < 3: perms(q + 1)
            cvts(q)
        for o in range(4):
            for rp in range(4):
                off = (8 * o + (rp >> 1)) * G.XF_K + (rp & 1) * (G.ROWS * 64)
                a(f"s_add_u32 s25, s24, {off}")
                r = buf + 4 * (4 * o + rp)
                a(f"buffer_store_dwordx4 v[{r}:{r+3}], v{vSt}, s[16:19], s25 offen {st}")
        a(f"s_branch L_next{p}")
        a.label(f"L_cw{p}")
        a(f"s_sub_u32 s12, s{sCur}, {NX}")
        a("s_and_b32 s13, s12, 3")
        a("s_lshr_b32 s14, s12, 2")
        a("s_lshl_b32 s14, s14, 2")
        a("s_add_u32 s14, s14, s10")
        for o in range(4):
            r = AF + 4 * o
            a(f"ds_read_b128 v[{r}:{r+3}], v{vL16} offset:{8192+o*1024}")
        a("s_and_b32 s24, s14, 3")
        a("s_bfe_u32 s25, s14, 0x10003")
        a("s_lshl_b32 s25, s25, 2")
        a("s_or_b32 s24, s24, s25")
        a("s_lshl_b32 s24, s24, 1")
        a(f"v_xor_b32 v{vT0}, s24, v{vR}")
        a(f"v_lshl_add_u32 v{vSt}, v{vT0}, 4, v{vWs}")
        a(f"s_mul_i32 s24, s13, {G.WF_DQ}")
        a("s_lshr_b32 s25, s14, 5")
        a(f"s_mul_i32 s25, s25, {G.WF_KS}")
        a("s_add_u32 s24, s24, s25")
        a("s_and_b32 s25, s14, 31")
        a("s_lshl_b32 s25, s25, 8")
        a("s_add_u32 s24, s24, s25")
        if G.WF_BASE: a(f"s_add_u32 s24, s24, {G.WF_BASE}")
        FR = buf + 16
        for dd in range(8):
            q = dd >> 1; h = dd & 1
            for e in range(4):
                a(f"v_perm_b32 v{FR+4*dd+e}, v{buf+4*e+q}, v{buf+4*e+q}, s{32+h}")
        a("s_waitcnt lgkmcnt(0)")
        for o in range(4):
            A = AF + 4 * o
            for dd in range(8):
                d = ACC + 4 * dd
                a(f"v_mfma_f32_16x16x32_bf16 v[{d}:{d+3}], v[{A}:{A+3}], v[{FR+4*dd}:{FR+4*dd+3}], 0")
            ob = (buf if (o & 1) == 0 else buf + 48)
            for rp in range(4):
                for q in range(4):
                    a(f"v_cvt_pk_bf16_f32 v{ob+4*rp+q}, v{ACC+8*q+rp}, v{ACC+8*q+4+rp}")
            for rp in range(4):
                off = (8 * o + (rp >> 1)) * G.WF_K + (rp & 1) * 8192
                a(f"s_add_u32 s25, s24, {off}")
                r = ob + 4 * rp
                a(f"buffer_store_dwordx4 v[{r}:{r+3}], v{vSt}, s[16:19], s25 offen {st}")
        a.label(f"L_next{p}")
        a("s_cmp_lg_u32 s10, 0")
        a(f"s_cbranch_scc1 L_pub{p}")
        counted(f"p{p}", 16)
        a(f"v_add_u32 v{vNext}, {2*NWG}, v{vNext}")
        a(f"v_mov_b32 v{vT0}, s41")
        a("s_mov_b64 exec, 1")
        a(f"ds_write_b32 v{vT0}, v{vNext} offset:12288")
        a("s_mov_b64 exec, -1")
        a.label(f"L_pub{p}")
        a("s_waitcnt lgkmcnt(0)")
        a("s_barrier")
        a(f"v_mov_b32 v{vT0}, s41")
        a(f"ds_read_b32 v{vT0+1}, v{vT0} offset:12288")
        a("s_xor_b32 s41, s41, 4")
        a(f"s_mov_b32 s{sCur}, s{sNxt}")
        a("s_waitcnt lgkmcnt(0)")
        a(f"v_readfirstlane_b32 s{sNxt}, v{vT0+1}")
        remap(sNxt)
        a(f"s_cmp_ge_u32 s{sCur}, {NT}")
        a("s_cbranch_scc1 L_k12_fin")
    a("s_branch L_k12_loop")
    a.label("L_k12_fin")
    if cfg.get('pf_late'):
        a("s_cmp_ge_u32 s2, 8"); a("s_cbranch_scc1 L_k12_end")
        a("s_cmp_lg_u32 s10, 3"); a("s_cbranch_scc1 L_k12_end")
        G.prefetch_code_fwd(a, "k12b", "gemm_kernel", "final_kernel", 4, ACC + 8, sp=60)
    a.label("L_k12_end")
    a("s_endpgm")
    return name, a.lines, NV, (NWG, 256, 12288 + 64)
```

```python
from asmlib import *
import gen as G
from gen_k3 import LQ, NSTAGE
XC = 11264
STAGE = 16384 + 2 * XC
LDS_BYTES = STAGE * NSTAGE

T = 11
ACC = 0
WA = 176; WB = 192; NW = 208
XR = 216
vWa = 248; vXa = 250; vSt = 251; vSt2 = 252; vT = 253

def acc(i, c, t): return ACC + ((i * 2 + c) * 2 + t) * 4 if i < 10 else ACC + 160 + 4 * c
def wf(p, which): return (WA if p == 0 else WB) + which * 4
def nw(t): return NW + 4 * t
def xr(slot, c): return XR + slot * 8 + c * 4
def mf(d, A, B): return f"v_mfma_f32_16x16x32_bf16 v[{d}:{d+3}], v[{A}:{A+3}], v[{B}:{B+3}], v[{d}:{d+3}]"

def gemm_wave(a, cfg):
    lq = LQ(a)
    def x_read(step, i, slot):
        for c in range(2):
            r = xr(slot, c)
            off = 16384 + c * XC + i * 1024
            a(f"ds_read_b128 v[{r}:{r+3}], v{vXa} offset:{off}")
            lq.issue(('x', step, i))
    def w_read(step, c):
        p = step & 1
        for t in range(2):
            r = wf(p, c * 2 + t)
            for e in range(2):
                a(f"ds_read_b64_tr_b16 v[{r+2*e}:{r+2*e+1}], v{vWa+t} offset:{c*8192+e*1024}")
                lq.issue(('w', step))
    def w_xor(step):
        p = step & 1
        return [f"v_xor_b32 v{nw(t)+e}, 0x80008000, v{wf(p,2+t)+e}" for t in range(2) for e in range(4)]
    def bump(reg, step):
        d = STAGE if step % NSTAGE else -(NSTAGE - 1) * STAGE
        a(f"v_add_u32 v{reg}, {d & 0xffffffff:#x}, v{reg}")
    def step_code(s, tau0, barrier, nxt):
        p = s & 1
        if barrier:
            if G.CFG.get('gstamp'):
                a("s_memrealtime s[70:71]"); a("s_waitcnt lgkmcnt(0)")
                a("s_mov_b32 m0, s72"); a("v_writelane_b32 v255, s70, m0"); a("s_add_u32 s72, s72, 1")
            a("s_barrier")
            if G.CFG.get('gstamp'):
                a("s_memrealtime s[70:71]"); a("s_waitcnt lgkmcnt(0)")
                a("s_mov_b32 m0, s72"); a("v_writelane_b32 v255, s70, m0"); a("s_add_u32 s72, s72, 1")
        for i in range(T):
            tau = tau0 + i
            slot = tau % 4
            lq.wait(('x', s, i))
            if i < 10:
                ms = [mf(acc(i,0,0), wf(p,0), xr(slot,0)), mf(acc(i,0,1), wf(p,1), xr(slot,0)),
                      mf(acc(i,1,0), nw(0), xr(slot,0)), mf(acc(i,1,1), nw(1), xr(slot,0)),
                      mf(acc(i,0,0), wf(p,2), xr(slot,1)), mf(acc(i,0,1), wf(p,3), xr(slot,1)),
                      mf(acc(i,1,0), wf(p,0), xr(slot,1)), mf(acc(i,1,1), wf(p,1), xr(slot,1))]
            else:
                ms = [mf(acc(i,0,0), wf(p,0), xr(slot,0)), mf(acc(i,1,0), nw(0), xr(slot,0)),
                      mf(acc(i,0,0), wf(p,2), xr(slot,1)), mf(acc(i,1,0), wf(p,0), xr(slot,1))]
            xors = []
            for m in range(len(ms)):
                a(ms[m])
                if m == 0:
                    if i + 2 < T: x_read(s, i + 2, (tau + 2) % 4)
                    elif nxt:
                        if i + 2 == T: bump(vXa, s + 1)
                        x_read(s + 1, i + 2 - T, (tau + 2) % 4)
                if nxt and i == T - 6 and m == 4:
                    bump(vWa, s + 1); bump(vWa + 1, s + 1)
                if m == 3 and nxt and i == T - 5: w_read(s + 1, 0)
                if m == 3 and nxt and i == T - 4: w_read(s + 1, 1)
                if nxt and i == T - 2 and m == 4:
                    lq.wait(('w', s + 1))
                    xors = w_xor(s + 1)[4:]
                if nxt and i == T - 1 and m == 1:
                    xors = w_xor(s + 1)[:4]
                for _ in range(2):
                    if xors: a(xors.pop(0))
            for x in xors: a(x)
    if G.CFG.get('gstamp'):
        a("s_mov_b32 s72, 0"); a("v_mov_b32 v255, 0")
    for r in range(168): a(f"v_mov_b32 v{ACC+r}, 0")
    a("s_barrier")
    w_read(0, 0); w_read(0, 1)
    x_read(0, 0, 0); x_read(0, 1, 1)
    lq.wait(('w', 0))
    for x in w_xor(0): a(x)
    a("s_mov_b32 s46, 7")
    a.label("L_g_loop")
    q0 = list(lq.q)
    for u in range(4):
        step_code(u, u * T, True, True)
    q1 = [(t[0], t[1] - 4) + tuple(t[2:]) for t in lq.q]
    assert q0[len(q0)-len(q1):] == q1, (q0, q1)
    a("s_sub_u32 s46, s46, 1")
    a("s_cmp_lg_u32 s46, 0")
    a("s_cbranch_scc1 L_g_loop")
    lq.q = [(t[0], t[1] + 24) + tuple(t[2:]) for t in lq.q]
    step_code(28, 0 * T, True, True)
    step_code(29, 1 * T, True, True)
    if not G.CFG.get('k3_tail', True):
        step_code(30, 2 * T, True, True)
        step_code(31, 3 * T, False, False)
        a("s_nop 7")
    else:
        a("s_barrier")
    NW2 = 168; vXb = 253
    def epi_list(i, bb):
        l = []
        if i < 10:
            for c in range(2):
                dA = acc(i, c, bb); dB = acc(i, c, 1 - bb)
                l += [f"v_cvt_pk_bf16_f32 v{dA}, v{dA}, v{dA+1}", f"v_cvt_pk_bf16_f32 v{dA+1}, v{dA+2}, v{dA+3}",
                      f"v_cvt_pk_bf16_f32 v{dA+2}, v{dB}, v{dB+1}", f"v_cvt_pk_bf16_f32 v{dA+3}, v{dB+2}, v{dB+3}",
                      f"s_add_u32 s47, s48, {c * G.YF_J + i * 16 * G.YF_ROW}",
                      f"buffer_store_dwordx4 v[{dA}:{dA+3}], v{vSt}, s[16:19], s47 offen {G.CFG['k3_st']}"]
        else:
            for c in range(2):
                d = acc(10, c, 0)
                l += [f"v_cvt_pk_bf16_f32 v{d}, v{d}, v{d+1}", f"v_cvt_pk_bf16_f32 v{d+1}, v{d+2}, v{d+3}",
                      f"s_add_u32 s47, s49, {c * G.YF_J}",
                      f"buffer_store_dwordx2 v[{d}:{d+1}], v{vSt2}, s[16:19], s47 offen {G.CFG['k3_st']}"]
        return l
    q_save = list(lq.q)
    for bb in range(2):
        if bb == 0:
            a("s_cmp_lg_u32 s13, 0"); a("s_cbranch_scc1 L_epi_b1")
        else:
            a.label("L_epi_b1")
        if not G.CFG.get('k3_tail', True):
            for i in range(T):
                for ins in epi_list(i, bb): a(ins)
        else:
            lq.q = list(q_save)
            bump(vWa, 31); bump(vWa + 1, 31)
            a(f"v_add_u32 v{vXb}, {STAGE}, v{vXa}")
            w_read(31, 0); w_read(31, 1)
            items = [(30, 0), (30, 1)]
            for i in range(T):
                if i + 2 < T: items.append((30, i + 2))
                items.append((31, i))
            def x_read2(step, i, slot):
                for c in range(2):
                    r = xr(slot, c)
                    off = 16384 + c * XC + i * 1024
                    a(f"ds_read_b128 v[{r}:{r+3}], v{vXa if step == 30 else vXb} offset:{off}")
                    lq.issue(('x', step, i))
            pend = []
            xored = False
            for n, (st, i) in enumerate(items):
                slot = (2 * T + n) % 4
                p = st & 1
                nwf = (lambda t: nw(t)) if st == 30 else (lambda t: NW2 + 4 * t)
                if st == 31 and not xored:
                    lq.wait(('w', 31))
                    for t in range(2):
                        for e in range(4): a(f"v_xor_b32 v{NW2+4*t+e}, 0x80008000, v{wf(1,2+t)+e}")
                    xored = True
                lq.wait(('x', st, i))
                if i < 10:
                    ms = [mf(acc(i,0,0), wf(p,0), xr(slot,0)), mf(acc(i,0,1), wf(p,1), xr(slot,0)),
                          mf(acc(i,1,0), nwf(0), xr(slot,0)), mf(acc(i,1,1), nwf(1), xr(slot,0)),
                          mf(acc(i,0,0), wf(p,2), xr(slot,1)), mf(acc(i,0,1), wf(p,3), xr(slot,1)),
                          mf(acc(i,1,0), wf(p,0), xr(slot,1)), mf(acc(i,1,1), wf(p,1), xr(slot,1))]
                else:
                    ms = [mf(acc(i,0,0), wf(p,0), xr(slot,0)), mf(acc(i,1,0), nwf(0), xr(slot,0)),
                          mf(acc(i,0,0), wf(p,2), xr(slot,1)), mf(acc(i,1,0), wf(p,0), xr(slot,1))]
                for m in range(len(ms)):
                    a(ms[m])
                    if m == 0 and n + 2 < len(items): x_read2(items[n + 2][0], items[n + 2][1], (2 * T + n + 2) % 4)
                    if m >= 1:
                        for _ in range(2):
                            if pend and pend[0][0] <= n - 1: a(pend.pop(0)[1])
                if st == 31:
                    pend += [(n + 1, ins) for ins in epi_list(i, bb)]
            a("s_nop 7")
            for _, ins in pend: a(ins)
        if bb == 0: a("s_branch L_epi_done")
    a.label("L_epi_done")
    if G.CFG.get('gstamp'):
        a("s_lshl_b32 s73, s2, 2"); a("s_add_u32 s73, s73, s15"); a("s_lshl_b32 s73, s73, 10")
        a(f"s_add_u32 s73, s73, {212 << 20}")
        a("v_mbcnt_lo_u32_b32 v254, -1, 0")
        a("v_mbcnt_hi_u32_b32 v254, -1, v254")
        a("v_lshlrev_b32 v254, 2, v254")
        a("buffer_store_dword v255, v254, s[16:19], s73 offen")
    a("s_endpgm")

def helper_wave(a, cfg):
    vDW = 1; vDX = 2
    sWo, sXo, sLW, sLX = 40, 41, 42, 43
    vD6 = 5; sX6 = 44
    def dma(buf):
        a(f"s_add_u32 m0, s{sLW}, {buf*STAGE}")
        for j in range(4):
            a(f"buffer_load_dwordx4 v{vDW}, s[16:19], s{sWo} offen offset:{j*1024} lds")
        a(f"s_add_u32 s{sWo}, s{sWo}, {G.WF_KS}")
        a(f"s_add_u32 m0, s{sLX}, {buf*STAGE}")
        for j in range(4):
            a(f"buffer_load_dwordx4 v{vDX}, s[16:19], s{sXo} offen offset:{j*1024} lds")
        a(f"s_add_u32 m0, s{sLX}, {buf*STAGE+4096}")
        a(f"s_add_u32 s49, s{sXo}, 4096")
        a(f"buffer_load_dwordx4 v{vDX}, s[16:19], s49 offen lds")
        a("s_mov_b64 exec, s[50:51]")
        a(f"buffer_load_dwordx4 v{vD6}, s[16:19], s{sX6} offen offset:1024 lds")
        a("s_mov_b64 exec, -1")
        a(f"s_add_u32 s{sXo}, s{sXo}, {G.XF_KS}")
        a(f"s_add_u32 s{sX6}, s{sX6}, {G.XF_KS}")
    for st in range(3): dma(st)
    a("s_waitcnt vmcnt(20)")
    a("s_barrier")
    a("s_mov_b32 s46, 7")
    a.label("L_h_loop")
    for u in range(4):
        a("s_waitcnt vmcnt(10)")
        a("s_barrier")
        dma((u + 3) % NSTAGE)
    a("s_sub_u32 s46, s46, 1")
    a("s_cmp_lg_u32 s46, 0")
    a("s_cbranch_scc1 L_h_loop")
    a("s_waitcnt vmcnt(10)"); a("s_barrier"); dma((28 + 3) % NSTAGE)
    a("s_waitcnt vmcnt(10)"); a("s_barrier")
    a("s_waitcnt vmcnt(0)"); a("s_barrier")
    if G.CFG.get('pf_late'):
        a("s_cmp_ge_u32 s2, 8"); a("s_cbranch_scc1 L_h_end")
        a("s_cmp_lg_u32 s15, 3"); a("s_cbranch_scc1 L_h_end")
        G.prefetch_code_fwd(a, "k3b", "final_kernel", "L_code_end", 3, 12, sp=60)
        a.label("L_h_end")
    a("s_endpgm")

def gen_k3c(cfg=None):
    a = Asm()
    name = 'gemm_kernel'
    G.kernel_header(a, name)
    a("s_cmp_ge_u32 s2, 256")
    a("s_cbranch_scc1 L_k3_end")
    a("s_load_dwordx2 s[8:9], s[0:1], 48")
    a(f"v_lshrrev_b32 v{vT}, 6, v0")
    a(f"v_and_b32 v0, 63, v0")
    a(f"v_readfirstlane_b32 s10, v{vT}")
    if G.CFG.get('pf_code'):
        a("s_cmp_ge_u32 s2, 8"); a("s_cbranch_scc1 L_nopf3")
        a("s_cmp_lg_u32 s10, 7"); a("s_cbranch_scc1 L_nopf3")
        G.prefetch_code(a, "k3", "gemm_kernel", "final_kernel", 4, 12, sp=60)
        a.label("L_nopf3")
    a("s_and_b32 s11, s2, 7")
    a("s_lshr_b32 s12, s2, 3")
    a("s_lshr_b32 s13, s12, 3")
    a("s_lshl_b32 s11, s11, 2")
    a("s_add_u32 s11, s11, s13")
    a("s_bfe_u32 s13, s12, 0x10002")
    a("s_and_b32 s14, s12, 3")
    a("s_and_b32 s15, s10, 3")
    a("s_waitcnt lgkmcnt(0)")
    G.make_srd(a, 16, 8, 9, G.WS_BYTES)
    a("s_cmp_ge_u32 s10, 4")
    a("s_cbranch_scc1 L_k3_helper")
    g = vT; c16 = vT + 1; t0 = vT + 2; t1 = XR; t2 = XR + 1
    a(f"v_lshrrev_b32 v{g}, 4, v0")
    a(f"v_and_b32 v{c16}, 15, v0")
    a(f"v_bfe_u32 v{t0}, v{c16}, 3, 1")
    a(f"v_mul_u32_u24 v{t0}, 3, v{t0}")
    a(f"v_xor_b32 v{t0}, v{t0}, v{g}")
    a(f"v_lshlrev_b32 v{t0}, 4, v{t0}")
    a(f"v_lshl_add_u32 v{vXa}, v{c16}, 6, v{t0}")
    a(f"v_lshrrev_b32 v{t0}, 2, v{c16}")
    a(f"v_and_b32 v{t1}, 1, v{g}")
    a(f"v_lshl_or_b32 v{t1}, v{t1}, 2, v{t0}")
    a(f"v_lshl_add_u32 v{t0}, v{g}, 3, v{t0}")
    a(f"v_lshlrev_b32 v{t0}, 8, v{t0}")
    a(f"v_and_b32 v{t2}, 3, v{c16}")
    a(f"v_lshl_add_u32 v{t0}, v{t2}, 3, v{t0}")
    a("s_lshl_b32 s20, s15, 1")
    a("s_add_u32 s20, s20, s13")
    for t in range(2):
        if t: a("s_xor_b32 s20, s20, 1")
        a(f"v_xor_b32 v{t2}, s20, v{t1}")
        a(f"v_lshl_add_u32 v{vWa+t}, v{t2}, 5, v{t0}")
    a(f"s_mov_b32 s21, {G.YF_ROW}")
    a(f"v_mul_u32_u24 v{vSt}, s21, v{c16}")
    a(f"v_lshl_add_u32 v{vSt}, v{g}, 4, v{vSt}")
    a("s_lshl_b32 s23, s15, 6")
    a(f"v_add_u32 v{vSt}, s23, v{vSt}")
    a(f"v_and_b32 v{t0}, 7, v{c16}")
    a(f"v_mul_u32_u24 v{vSt2}, s21, v{t0}")
    a(f"v_lshrrev_b32 v{t1}, 3, v{c16}")
    a(f"v_xor_b32 v{t1}, s13, v{t1}")
    a(f"s_mov_b32 s22, {G.YF_B}")
    a(f"v_mul_lo_u32 v{t1}, v{t1}, s22")
    a(f"v_add_u32 v{vSt2}, v{vSt2}, v{t1}")
    a(f"v_lshl_add_u32 v{vSt2}, v{g}, 4, v{vSt2}")
    a("s_lshl_b32 s22, s13, 3")
    a("s_add_u32 s22, s22, s23")
    a(f"v_add_u32 v{vSt2}, s22, v{vSt2}")
    a(f"v_cmp_gt_u32 vcc, 7, v{t0}")
    a(f"v_mov_b32 v{t1}, 0x80000000")
    a(f"v_cndmask_b32 v{vSt2}, v{t1}, v{vSt2}, vcc")
    a(f"s_mul_i32 s48, s11, {2*G.YF_J}")
    a("s_lshl_b32 s20, s14, 8")
    a("s_add_u32 s48, s48, s20")
    a(f"s_add_u32 s48, s48, {G.YF_BASE}")
    a(f"s_add_u32 s49, s48, {160*G.YF_ROW}")
    a(f"s_mul_i32 s20, s13, {G.YF_B}")
    a("s_add_u32 s48, s48, s20")
    gemm_wave(a, cfg)
    a.label("L_k3_helper")
    a(f"s_mul_i32 s40, s11, {G.WF_K}")
    a(f"s_mul_i32 s20, s14, {G.WF_DQ}")
    a("s_add_u32 s40, s40, s20")
    if G.WF_BASE: a(f"s_add_u32 s40, s40, {G.WF_BASE}")
    a(f"s_mul_i32 s41, s11, {G.XF_K}")
    a(f"s_mul_i32 s20, s13, {G.XF_B}")
    a("s_add_u32 s41, s41, s20")
    a(f"s_add_u32 s41, s41, {G.XF_BASE}")
    a("s_lshl_b32 s42, s15, 12")
    a("s_mul_i32 s43, s15, 5632")
    a("s_lshr_b32 s20, s15, 1")
    a("s_lshl_b32 s21, s20, 9")
    a("s_sub_u32 s21, s43, s21")
    a("v_lshlrev_b32 v1, 4, v0")
    a("v_add_u32 v2, s21, v1")
    a("s_add_u32 s22, s21, 4096")
    a("v_add_u32 v5, s22, v1")
    a("s_mov_b32 s44, s41")
    a("s_bitcmp1_b32 s15, 0")
    a("s_cbranch_scc0 L_six_even")
    a(f"s_mul_i32 s22, s20, 10752")
    a(f"s_add_u32 s22, s22, {10240-1024}")
    a("v_lshrrev_b32 v5, 2, v0"); a("v_lshlrev_b32 v5, 6, v5")
    a("v_and_b32 v3, 3, v0"); a("v_xor_b32 v3, 3, v3"); a("v_lshl_add_u32 v5, v3, 4, v5")
    a("v_add_u32 v5, s22, v5")
    a(f"s_mul_i32 s44, s11, {G.XF_K}")
    a("s_xor_b32 s22, s13, 1")
    a(f"s_mul_i32 s22, s22, {G.XF_B}")
    a("s_add_u32 s44, s44, s22")
    a(f"s_add_u32 s44, s44, {G.XF_BASE}")
    a.label("L_six_even")
    a("s_mov_b32 s50, -1"); a("s_mov_b32 s51, 0")
    a("v_add_u32 v1, s42, v1")
    a("s_add_u32 s43, s43, 16384")
    a("s_cmp_ge_u32 s2, 8"); a("s_cbranch_scc1 L_nozero")
    a("s_cmp_lg_u32 s15, 0"); a("s_cbranch_scc1 L_nozero")
    a(f"s_mul_i32 s20, s2, {G.CNT_STRIDE}"); a(f"s_add_u32 s20, s20, {G.CNT_BASE}")
    a("v_mov_b32 v3, 0"); a("v_lshlrev_b32 v4, 2, v0")
    a("buffer_store_dword v3, v4, s[16:19], s20 offen")
    a.label("L_nozero")
    a("s_cmp_ge_u32 s2, 224"); a("s_cbranch_scc1 L_nofill")
    a("s_cmp_lg_u32 s15, 1"); a("s_cbranch_scc1 L_nofill")
    a("s_lshl_b32 s20, s2, 10"); a(f"s_add_u32 s20, s20, {G.PART_BASE}")
    a("v_mov_b32 v8, -1"); a("v_mov_b32 v9, -1"); a("v_mov_b32 v10, -1"); a("v_mov_b32 v11, -1"); a("v_lshlrev_b32 v4, 4, v0")
    a("buffer_store_dwordx4 v[8:11], v4, s[16:19], s20 offen")
    a.label("L_nofill")
    helper_wave(a, cfg)
    a.label("L_k3_end")
    a("s_endpgm")
    return name, a.lines, 256, (256, 512, LDS_BYTES)
```

```python
from asmlib import *
import gen as G
import math, struct
f2h = lambda x: "0x%08x" % struct.unpack('<I', struct.pack('<f', x))[0]

RAW = 0
AF = 64
BF = 88
ACC = 104
VT = 200
NG = 28
L_TAB = 0; L_PART = 8192; L_SUM = L_PART + 6 * 4096; L_OFF = L_SUM + 1024
LDS = L_OFF + 6 * 8192

def hreg(o, dd, rp): return ACC + (o * 8 + dd) * 4 + rp

def gen_k45g(cfg=None):
    cfg = cfg or G.CFG
    a = Asm()
    def st(i):
        if cfg.get('fstamp'):
            a("s_memrealtime s[70:71]"); a("s_waitcnt lgkmcnt(0)"); a(f"v_writelane_b32 v244, s70, {i}")
    name = 'final_kernel'
    G.kernel_header(a, name)
    vLane = VT; vR = VT+1; vG = VT+2; vOff = VT+3; vT0 = VT+4
    VTID4 = 214; PA = 216; PB = 224; GB = 232
    st(0)
    a(f"s_cmp_ge_u32 s2, {2*NG*4}")
    a("s_cbranch_scc1 L_k45_end")
    a("s_load_dwordx2 s[8:9], s[0:1], 48")
    a("s_load_dwordx4 s[4:7], s[0:1], 16")
    a("s_load_dwordx2 s[28:29], s[0:1], 32")
    a(f"v_lshrrev_b32 v{vT0}, 6, v0")
    a(f"v_and_b32 v{vLane}, 63, v0")
    a(f"v_readfirstlane_b32 s10, v{vT0}")
    if cfg.get('pf_code'):
        a("s_cmp_ge_u32 s2, 8"); a("s_cbranch_scc1 L_nopf45")
        a("s_cmp_lg_u32 s10, 7"); a("s_cbranch_scc1 L_nopf45")
        G.prefetch_code(a, "k45", "final_kernel", "L_code_end", 3, ACC + 8, sp=60)
        a.label("L_nopf45")
    a(f"v_lshlrev_b32 v{VTID4}, 2, v0")
    a(f"v_and_b32 v{vR}, 15, v{vLane}")
    a(f"v_lshrrev_b32 v{vG}, 4, v{vLane}")
    a("s_and_b32 s13, s2, 3")
    a("s_lshr_b32 s12, s2, 2")
    a(f"s_cmp_ge_u32 s12, {NG}")
    a("s_cselect_b32 s11, 1, 0")
    a(f"s_mul_i32 s15, s11, {NG}")
    a("s_sub_u32 s12, s12, s15")
    a("s_mul_i32 s14, s12, 6")
    a("s_add_u32 s14, s14, s10")
    a(f"s_mov_b32 s24, {8*G.YF_J}")
    a(f"v_mul_u32_u24 v{vOff}, s24, v{vG}")
    a(f"v_lshl_add_u32 v{vOff}, v{vR}, 4, v{vOff}")
    a(f"s_mul_i32 s24, s11, {G.YF_B}")
    a(f"s_mul_i32 s25, s14, {G.YF_ROW}")
    a("s_add_u32 s24, s24, s25")
    a("s_lshl_b32 s25, s13, 8")
    a("s_add_u32 s24, s24, s25")
    a(f"s_add_u32 s24, s24, {G.YF_BASE}")
    a("s_mov_b32 s30, 0x05040100")
    a("s_mov_b32 s31, 0x07060302")
    a("s_waitcnt lgkmcnt(0)")
    st(6)
    G.make_srd(a, 16, 8, 9, G.WS_BYTES)
    a("s_cmp_ge_u32 s10, 6")
    a("s_cbranch_scc1 L_k45_gb")
    for s in range(2):
        for i in range(8):
            r = RAW + 4 * (8 * s + i)
            a(f"s_add_u32 s25, s24, {(32*s+i)*G.YF_J}")
            a(f"buffer_load_dwordx4 v[{r}:{r+3}], v{vOff}, s[16:19], s25 offen")
    st(8)
    vN = vT0; vA = vT0+1; vP = BF
    a("s_lshr_b32 s27, s10, 1")
    a("s_and_b32 s33, s10, 1")
    a("s_lshl_b32 s27, s27, 4")
    a(f"v_add_u32 v{vN}, s27, v{vR}")
    a("s_lshl_b32 s33, s33, 5")
    a("s_add_u32 s33, s33, 1")
    a(f"v_lshlrev_b32 v{vA}, 3, v{vG}")
    a(f"v_add_u32 v{vA}, s33, v{vA}")
    for e2 in range(4):
        a(f"v_mul_u32_u24 v{vP+2*e2}, v{vA}, v{vN}")
        a(f"v_add_u32 v{vP+2*e2+1}, 32, v{vP+2*e2}")
        if e2 < 3: a(f"v_add_u32 v{vA}, 2, v{vA}")
    G.cos_table(a, None, [vP+e for e in range(8)], ACC, ACC+4, scale="0x3d000000")
    a("s_lshl_b32 s26, s10, 10")
    a(f"v_lshlrev_b32 v{vT0+3}, 4, v{vLane}")
    a(f"v_add_u32 v{vT0+3}, s26, v{vT0+3}")
    a(f"ds_write_b128 v{vT0+3}, v[{ACC}:{ACC+3}] offset:{L_TAB}")
    a.label("L_k45_gb")
    G.make_srd(a, 20, 4, 5, 1024)
    G.make_srd(a, 36, 6, 7, 1024)
    a(f"v_lshlrev_b32 v{vT0+6}, 4, v{vR}")
    a("s_lshl_b32 s25, s13, 8")
    a(f"buffer_load_dwordx4 v[{GB}:{GB+3}], v{vT0+6}, s[20:23], s25 offen")
    a(f"buffer_load_dwordx4 v[{GB+4}:{GB+7}], v{vT0+6}, s[36:39], s25 offen")
    st(1)
    a("s_waitcnt lgkmcnt(0)")
    a("s_barrier")
    a("s_cmp_ge_u32 s10, 6")
    a("s_cbranch_scc1 L_k45_red2")
    a(f"v_lshlrev_b32 v{vT0+3}, 4, v{vLane}")
    for o in range(3):
        for s in range(2):
            r = AF + 4 * (2 * o + s)
            a(f"ds_read_b128 v[{r}:{r+3}], v{vT0+3} offset:{L_TAB+(2*o+s)*1024}")
    S1 = PA; S2 = PB
    a(f"s_cmp_ge_u32 s14, {G.NBLK}")
    a("s_cbranch_scc1 L_k45_zero")
    a("s_waitcnt lgkmcnt(0)")
    a(f"s_cmp_lg_u32 s14, {G.NBLK-1}")
    a("s_cbranch_scc1 L_k45_full")
    lastn = G.L_OUT - 48 * (G.NBLK - 1)
    for o in range(3):
        nvalid = lastn - 16 * o
        a(f"v_cmp_gt_i32 vcc, {max(nvalid,0)}, v{vR}")
        for r in range(8):
            a(f"v_cndmask_b32 v{AF+8*o+r}, 0, v{AF+8*o+r}, vcc")
    a.label("L_k45_full")
    a("s_waitcnt vmcnt(2)")
    st(2)
    for q in range(4):
        for s in range(2):
            for h in range(2):
                for e in range(4):
                    a(f"v_perm_b32 v{BF+(s*2+h)*4+e}, v{RAW+4*(8*s+2*e+1)+q}, v{RAW+4*(8*s+2*e)+q}, s{30+h}")
        for s in range(2):
            for o in range(3):
                for h in range(2):
                    d = ACC + (o * 8 + 2 * q + h) * 4
                    A = AF + 4 * (2 * o + s); B = BF + (s * 2 + h) * 4
                    c = "0" if s == 0 else f"v[{d}:{d+3}]"
                    a(f"v_mfma_f32_16x16x32_bf16 v[{d}:{d+3}], v[{A}:{A+3}], v[{B}:{B+3}], {c}")
    st(3)
    a("s_nop 7")
    for dd in range(8):
        first = True
        for o in range(3):
            for rp in range(4):
                h = hreg(o, dd, rp)
                if first:
                    a(f"v_mul_f32 v{S2+dd}, v{h}, v{h}"); a(f"v_mov_b32 v{S1+dd}, v{h}"); first = False
                else:
                    a(f"v_fmac_f32 v{S2+dd}, v{h}, v{h}"); a(f"v_add_f32 v{S1+dd}, v{S1+dd}, v{h}")
    a("s_branch L_k45_red")
    a.label("L_k45_zero")
    a("s_waitcnt vmcnt(0) lgkmcnt(0)")
    for r in range(8):
        a(f"v_mov_b32 v{S1+r}, 0"); a(f"v_mov_b32 v{S2+r}, 0")
    a.label("L_k45_red")
    st(4)
    a("s_lshl_b32 s25, s10, 12")
    a(f"v_lshlrev_b32 v{vT0}, 10, v{vG}")
    a(f"v_lshl_add_u32 v{vT0}, v{vR}, 5, v{vT0}")
    a(f"v_add_u32 v{vT0}, s25, v{vT0}")
    a(f"ds_write_b128 v{vT0}, v[{S1}:{S1+3}] offset:{L_PART}")
    a(f"ds_write_b128 v{vT0}, v[{S1+4}:{S1+7}] offset:{L_PART+16}")
    a(f"ds_write_b128 v{vT0}, v[{S2}:{S2+3}] offset:{L_PART+512}")
    a(f"ds_write_b128 v{vT0}, v[{S2+4}:{S2+7}] offset:{L_PART+512+16}")
    a("s_lshl_b32 s25, s10, 13")
    a(f"v_lshlrev_b32 v{vT0+1}, 4, v{vLane}")
    a(f"v_add_u32 v{vT0+1}, s25, v{vT0+1}")
    for dd in range(8):
        h = hreg(2, dd, 0)
        a(f"ds_write_b96 v{vT0+1}, v[{h}:{h+2}] offset:{L_OFF+dd*1024}")
    a.label("L_k45_red2")
    a("s_waitcnt lgkmcnt(0)")
    a("s_barrier")
    a(f"s_mul_i32 s24, s11, {4*NG}")
    a(f"s_mul_i32 s25, s13, {NG}")
    a("s_add_u32 s24, s24, s25")
    a("s_lshl_b32 s26, s24, 10")
    a(f"s_add_u32 s26, s26, {G.PART_BASE}")
    a("s_cmp_ge_u32 s10, 6")
    a("s_cbranch_scc1 L_k45_hread")
    a("s_cmp_ge_u32 s10, 4")
    a("s_cbranch_scc1 L_k45_sumdone")
    for p in range(24):
        a(f"ds_read_b32 v{RAW+16+p}, v{VTID4} offset:{L_PART+p*1024}")
    a("s_waitcnt lgkmcnt(0)")
    vals = [RAW + 16 + p for p in range(24)]
    while len(vals) > 1:
        nv = []
        for i in range(0, len(vals) - 1, 2):
            a(f"v_add_f32 v{vals[i]}, v{vals[i]}, v{vals[i+1]}"); nv.append(vals[i])
        if len(vals) & 1: nv.append(vals[-1])
        vals = nv
    a("s_lshl_b32 s24, s12, 10")
    a("s_add_u32 s24, s24, s26")
    a(f"buffer_store_dword v{vals[0]}, v{VTID4}, s[16:19], s24 offen sc1")
    st(5)
    PT = RAW
    a(f"s_mov_b32 s33, {1 << 14}")
    a.label("L_k45_poll")
    a("s_mov_b32 s27, s26")
    for p in range(NG):
        if p % 4 == 0 and p: a("s_add_u32 s27, s27, 4096")
        a(f"buffer_load_dword v{PT+p}, v{VTID4}, s[16:19], s27 offen offset:{(p%4)*1024} sc1")
    a("s_waitcnt vmcnt(0)")
    t = RAW + 32
    a(f"v_max3_u32 v{t}, v{PT}, v{PT+1}, v{PT+2}")
    for p in range(3, NG - 1, 2):
        a(f"v_max3_u32 v{t}, v{t}, v{PT+p}, v{PT+p+1}")
    a(f"v_max_u32 v{t}, v{t}, v{PT+NG-1}")
    a(f"v_cmp_eq_u32 vcc, -1, v{t}")
    a("s_cmp_eq_u64 vcc, 0")
    a("s_cbranch_scc1 L_k45_got")
    a("s_sub_u32 s33, s33, 1")
    a("s_cmp_eq_u32 s33, 0")
    a("s_cbranch_scc1 L_k45_got")
    if cfg.get('k45_sleep'): a(f"s_sleep {cfg['k45_sleep']}")
    a("s_branch L_k45_poll")
    a.label("L_k45_got")
    st(7)
    vals = [PT + p for p in range(NG)]
    while len(vals) > 1:
        nv = []
        for i in range(0, len(vals) - 1, 2):
            a(f"v_add_f32 v{vals[i]}, v{vals[i]}, v{vals[i+1]}"); nv.append(vals[i])
        if len(vals) & 1: nv.append(vals[-1])
        vals = nv
    a(f"ds_write_b32 v{VTID4}, v{vals[0]} offset:{L_SUM}")
    a("s_branch L_k45_sumdone")
    a.label("L_k45_hread")
    a("s_waitcnt vmcnt(0)")
    a("s_sub_u32 s25, s10, 6")
    a("s_mul_i32 s25, s25, 3")
    a("s_lshl_b32 s25, s25, 13")
    a(f"v_lshlrev_b32 v{vT0+1}, 4, v{vLane}")
    a(f"v_add_u32 v{vT0+1}, s25, v{vT0+1}")
    for j in range(3):
        for dd in range(8):
            h = hreg(j, dd, 0)
            a(f"ds_read_b96 v[{h}:{h+2}], v{vT0+1} offset:{L_OFF+j*8192+dd*1024}")
            if dd == 7: a("s_waitcnt lgkmcnt(0)")
    a.label("L_k45_sumdone")
    st(9)
    a("s_waitcnt lgkmcnt(0)")
    a("s_barrier")
    ST = RAW + 44
    a(f"v_lshlrev_b32 v{vT0+6}, 5, v{vR}")
    a(f"ds_read_b128 v[{ST}:{ST+3}], v{vT0+6} offset:{L_SUM}")
    a(f"ds_read_b128 v[{ST+4}:{ST+7}], v{vT0+6} offset:{L_SUM+16}")
    a(f"ds_read_b128 v[{ST+8}:{ST+11}], v{vT0+6} offset:{L_SUM+512}")
    a(f"ds_read_b128 v[{ST+12}:{ST+15}], v{vT0+6} offset:{L_SUM+512+16}")
    a(f"s_mov_b32 s24, {f2h(1.0 / G.L_OUT)}")
    a("s_mov_b32 s25, 0x3727c5ac")
    a("s_waitcnt vmcnt(0) lgkmcnt(0)")
    for dd in range(8):
        mu = ST + dd; m2 = ST + 8 + dd
        a(f"v_mul_f32 v{mu}, s24, v{mu}")
        a(f"v_mul_f32 v{m2}, s24, v{m2}")
        a(f"v_fma_f32 v{m2}, -v{mu}, v{mu}, v{m2}")
        a(f"v_max_f32 v{m2}, 0, v{m2}")
        a(f"v_add_f32 v{m2}, s25, v{m2}")
        a(f"v_rsq_f32 v{m2}, v{m2}")
        gsrc = GB + (dd >> 1); bsrc = GB + 4 + (dd >> 1)
        if dd & 1:
            a(f"v_and_b32 v{PA+dd}, 0xffff0000, v{gsrc}"); a(f"v_and_b32 v{PB+dd}, 0xffff0000, v{bsrc}")
        else:
            a(f"v_lshlrev_b32 v{PA+dd}, 16, v{gsrc}"); a(f"v_lshlrev_b32 v{PB+dd}, 16, v{bsrc}")
        a(f"v_mul_f32 v{PA+dd}, v{PA+dd}, v{m2}")
        a(f"v_fma_f32 v{PB+dd}, -v{mu}, v{PA+dd}, v{PB+dd}")
    a(f"s_mul_i32 s24, s11, {G.OUT_B}")
    a("s_add_u32 s28, s28, s24")
    a("s_addc_u32 s29, s29, 0")
    G.make_srd(a, 32, 28, 29, G.OUT_B)
    vO = vT0 + 6
    a("s_lshl_b32 s25, s13, 8")
    a(f"v_lshlrev_b32 v{vO}, 12, v{vG}")
    a(f"v_lshl_add_u32 v{vO}, v{vR}, 4, v{vO}")
    a(f"v_add_u32 v{vO}, s25, v{vO}")
    c0 = -2.0 * math.log2(math.e) * math.sqrt(2.0 / math.pi); c1 = c0 * 0.044715
    a(f"s_mov_b32 s26, {f2h(c1)}")
    a(f"v_mov_b32 v{vT0+7}, {f2h(c0)}")
    st(10)
    T0 = RAW
    cnt = [0]
    def gelu_row(regs, soff_imm):
        ob = RAW + 16 + 4 * (cnt[0] % 8); cnt[0] += 1
        for dd in range(8): a(f"v_fma_f32 v{regs[dd]}, v{regs[dd]}, v{PA+dd}, v{PB+dd}")
        for dd in range(8): a(f"v_mul_f32 v{T0+dd}, v{regs[dd]}, v{regs[dd]}")
        for dd in range(8): a(f"v_fma_f32 v{T0+dd}, v{T0+dd}, s26, v{vT0+7}")
        for dd in range(8): a(f"v_mul_f32 v{T0+dd}, v{T0+dd}, v{regs[dd]}")
        for dd in range(8): a(f"v_exp_f32 v{T0+dd}, v{T0+dd}")
        for dd in range(8): a(f"v_add_f32 v{T0+dd}, 1.0, v{T0+dd}")
        for dd in range(8): a(f"v_rcp_f32 v{T0+dd}, v{T0+dd}")
        for dd in range(8): a(f"v_mul_f32 v{T0+dd}, v{T0+dd}, v{regs[dd]}")
        for q in range(4): a(f"v_cvt_pk_bf16_f32 v{ob+q}, v{T0+2*q}, v{T0+2*q+1}")
        a(f"s_add_u32 s27, s24, {soff_imm}")
        a(f"buffer_store_dwordx4 v[{ob}:{ob+3}], v{vO}, s[32:35], s27 offen {cfg['k5_st']}")
    a("s_cmp_ge_u32 s10, 6")
    a("s_cbranch_scc1 L_k45_hgelu")
    a(f"s_cmp_ge_u32 s14, {G.NBLK}")
    a("s_cbranch_scc1 L_k45_fin")
    a("s_mul_i32 s24, s14, %d" % (48 * 1024))
    for o in range(3):
        for rp in range(4):
            if o == 2 and rp < 3: continue
            gelu_row([hreg(o, dd, rp) for dd in range(8)], (16 * o + rp) * 1024)
    a("s_branch L_k45_fin")
    a.label("L_k45_hgelu")
    a("s_sub_u32 s25, s10, 6")
    a("s_mul_i32 s25, s25, 3")
    a("s_mul_i32 s24, s12, 6")
    a("s_add_u32 s24, s24, s25")
    a("s_mul_i32 s24, s24, %d" % (48 * 1024))
    for j in range(3):
        for rp in range(3):
            gelu_row([hreg(j, dd, rp) for dd in range(8)], j * 48 * 1024 + (32 + rp) * 1024)
    a.label("L_k45_fin")
    st(11)
    if cfg.get('fstamp'):
        a("s_waitcnt vmcnt(0)")
        st(12)
        a("s_lshl_b32 s73, s2, 3"); a("s_add_u32 s73, s73, s10"); a("s_lshl_b32 s73, s73, 8")
        a(f"s_add_u32 s73, s73, {214 << 20}")
        a(f"v_lshlrev_b32 v245, 2, v{vLane}")
        a("buffer_store_dword v244, v245, s[16:19], s73 offen")
    a.label("L_k45_end")
    a("s_endpgm")
    return name, a.lines, 248 if cfg.get('fstamp') else 240, (2 * NG * 4, 512, LDS)
```

```python
import sys, os
sys.path.insert(0, os.path.dirname(os.path.abspath(__file__)))
from asmlib import *

NAME = 'standalone__self_sup_conv_stem_wavlm__speech'

L_OUT = 7985
NBLK = 167
ROWS = 168
X_BYTES_B = 8000 * 2048
W_BYTES = 31 * 524288
WS_BYTES = 268435456
WF_BASE = 0
WF_K = 4 * 32 * 16384
XF_BASE = 64 << 20
XF_TILE = 2 * ROWS * 64
XF_B = 32 * XF_TILE
XF_K = 2 * XF_B
YF_BASE = 112 << 20
YF_B = 176 * 1024
YF_J = 2 * YF_B
PART_BASE = 140 << 20
NGRP = 42
CNT_BASE = 141 << 20
CNT_STRIDE = 8192 + 256
OUT_B = L_OUT * 1024

import json
CFG = dict(
    k3_nodma=False,
    k3_nomfma=False,
    k3_stamp=False,
    k3b=True,
    k3c=True,
    k12p=False,
    k12q=True,
    k12_nwg=256,
    w_nodup=True,
    k45f=True,
    k45g=True,
    pf_code=True,
    pf_late=False,
    y3=True,
    xf2=False,
    pf_tlb=False,
    k45_sleep=2,
    k45_wpg=6,
    k12_st='sc1',
    k3_st='sc1',
    k5_st='sc1',
    half=False,
    wfuse=False,
    c0=4,
    ldist=[6,5,5,0],
    xfull=True,
    layout=2,
    ypad=256,
    fused=False,
    hprio=0,
    st_flags='sc1',
    dma_flags='',
    timeline=False,
    k3_nolds=False,
)
CFG.update(json.loads(os.environ.get('GENCFG', '{}')))
if CFG['layout'] == 2:
    WF_K = 16384; WF_KS = 32 * 16384; WF_DQ = 32 * WF_KS
    XF_K = XF_TILE; XF_KS = 32 * XF_TILE; XF_B = 32 * XF_KS
    YF_J = 1024; YF_ROW = 65536 + CFG['ypad']; YF_B = 176 * YF_ROW
else:
    WF_KS = 16384; WF_DQ = 32 * 16384; XF_KS = XF_TILE; YF_ROW = 1024
YJ3 = 176 * 64; YS3 = 64 * YJ3; YB3 = 16 * YS3
XF2_K = 2 * XF_TILE; XF_KP = 32 * XF2_K; XF2_B = 16 * XF_KP

def kernel_header(a, name):
    a(f".globl {name}")
    a(".p2align 8")
    a(f".type {name},@function")
    a.label(name)

def kernel_desc(name, vgpr, sgpr=96, accum=None):
    accum = accum or ((vgpr + 3) // 4 * 4)
    return f""".amdhsa_kernel {name}
  .amdhsa_next_free_vgpr {vgpr}
  .amdhsa_next_free_sgpr {sgpr}
  .amdhsa_accum_offset {accum}
  .amdhsa_group_segment_fixed_size 0
  .amdhsa_kernarg_size 56
  .amdhsa_user_sgpr_count 2
  .amdhsa_user_sgpr_kernarg_segment_ptr 1
  .amdhsa_system_sgpr_workgroup_id_x 1
  .amdhsa_float_denorm_mode_32 3
.end_amdhsa_kernel
"""

def prefetch_code(a, tag, start, end, nloads, v, sp=50):
    a(f"s_getpc_b64 s[{sp}:{sp+1}]")
    a.label(f"L_pf_{tag}")
    a(f"s_sub_u32 s{sp}, s{sp}, L_pf_{tag}-{start}")
    a(f"s_subb_u32 s{sp+1}, s{sp+1}, 0")
    a(f"v_mbcnt_lo_u32_b32 v{v}, -1, 0")
    a(f"v_mbcnt_hi_u32_b32 v{v}, -1, v{v}")
    a(f"v_lshlrev_b32 v{v}, 6, v{v}")
    for j in range(nloads):
        a(f"v_add_u32 v{v+1}, {j*4096}, v{v}")
        a(f"v_min_u32 v{v+1}, {end}-{start}-4, v{v+1}")
        a(f"v_mov_b32 v{v+3}, s{sp+1}")
        a(f"v_add_co_u32 v{v+2}, vcc, s{sp}, v{v+1}")
        a(f"v_addc_co_u32 v{v+3}, vcc, 0, v{v+3}, vcc")
        a(f"global_load_dword v{v+4}, v[{v+2}:{v+3}], off")

def prefetch_code_fwd(a, tag, start, end, nloads, v, sp=50):
    a(f"s_getpc_b64 s[{sp}:{sp+1}]")
    a.label(f"L_pf_{tag}")
    a(f"s_add_u32 s{sp}, s{sp}, {start}-L_pf_{tag}")
    a(f"s_addc_u32 s{sp+1}, s{sp+1}, 0")
    a(f"v_mbcnt_lo_u32_b32 v{v}, -1, 0")
    a(f"v_mbcnt_hi_u32_b32 v{v}, -1, v{v}")
    a(f"v_lshlrev_b32 v{v}, 6, v{v}")
    for j in range(nloads):
        a(f"v_add_u32 v{v+1}, {j*4096}, v{v}")
        a(f"v_min_u32 v{v+1}, {end}-{start}-4, v{v+1}")
        a(f"v_mov_b32 v{v+3}, s{sp+1}")
        a(f"v_add_co_u32 v{v+2}, vcc, s{sp}, v{v+1}")
        a(f"v_addc_co_u32 v{v+3}, vcc, 0, v{v+3}, vcc")
        a(f"global_load_dword v{v+4}, v[{v+2}:{v+3}], off")

def make_srd(a, s, base_lo, base_hi, size):
    a(f"s_mov_b32 s{s}, s{base_lo}")
    a(f"s_and_b32 s{s+1}, s{base_hi}, 0xffff")
    a(f"s_mov_b32 s{s+2}, {size}")
    a(f"s_mov_b32 s{s+3}, 0x00020000")

def cos_table(a, vp0, vstep_list, dst, tmp, scale=None, lo_sel=None):
    for e in range(8):
        r = vstep_list[e]
        a(f"v_and_b32 v{r}, 127, v{r}")
        a(f"v_cvt_f32_u32 v{r}, v{r}")
        a(f"v_mul_f32 v{r}, 0x3c000000, v{r}")
        a(f"v_cos_f32 v{r}, v{r}")
    if scale is not None:
        for e in range(8):
            r = vstep_list[e]
            a(f"v_mul_f32 v{r}, {scale}, v{r}")
    for e2 in range(4):
        r0, r1 = vstep_list[2*e2], vstep_list[2*e2+1]
        a(f"v_cvt_pk_bf16_f32 v{dst+e2}, v{r0}, v{r1}")
    if lo_sel is not None:
        for e2 in range(4):
            r0, r1 = vstep_list[2*e2], vstep_list[2*e2+1]
            a(f"v_lshlrev_b32 v{tmp}, 16, v{dst+e2}")
            a(f"v_and_b32 v{tmp+1}, 0xffff0000, v{dst+e2}")
            a(f"v_sub_f32 v{r0}, v{r0}, v{tmp}")
            a(f"v_sub_f32 v{r1}, v{r1}, v{tmp+1}")
            a(f"v_cvt_pk_bf16_f32 v{tmp}, v{r0}, v{r1}")
            a(f"v_cndmask_b32 v{dst+e2}, v{dst+e2}, v{tmp}, s[{lo_sel}:{lo_sel+1}]")

def gen_k12():
    a = Asm()
    name = 'xform_kernel'
    kernel_header(a, name)
    NCG = CFG['c0'] if CFG['half'] else 8
    XFULL = CFG['half'] or CFG['wfuse']
    XF2_K = 2 * XF_TILE; XF_KP = 32 * XF2_K; XF2_B = 16 * XF_KP
    NX = 2 * NGRP * NCG
    NW = 128 * (CFG['c0'] if CFG['wfuse'] else NCG)
    RAW = 0
    AF = 64
    BF = 96
    ACC = 112
    VT = 144
    vLane = VT; vR = VT+1; vG = VT+2; vOff = VT+3; vSt = VT+4; vT0 = VT+5
    NV = 160
    a("s_cmp_ge_u32 s2, %d" % (NX + NW))
    a("s_cbranch_scc1 L_k12_end")
    a("s_load_dwordx4 s[4:7], s[0:1], 0")
    a("s_load_dwordx2 s[8:9], s[0:1], 48")
    a(f"v_and_b32 v{vLane}, 63, v0")
    a(f"v_lshrrev_b32 v{vT0}, 6, v0")
    a(f"v_and_b32 v{vR}, 15, v{vLane}")
    a(f"v_readfirstlane_b32 s10, v{vT0}")
    a(f"v_lshrrev_b32 v{vG}, 4, v{vLane}")
    a("s_mov_b32 s30, 0x05040100")
    a("s_mov_b32 s31, 0x07060302")
    a("s_waitcnt lgkmcnt(0)")
    make_srd(a, 16, 8, 9, WS_BYTES)
    a("s_cmp_ge_u32 s2, %d" % NX)
    a("s_cbranch_scc1 L_k12_w")
    a.c("X item: b, cg, grp")
    a(f"s_cmp_ge_u32 s2, {NGRP*NCG}")
    a("s_cselect_b32 s11, 1, 0")
    a(f"s_mul_i32 s12, s11, {NGRP*NCG}")
    a("s_sub_u32 s12, s2, s12")
    a(f"s_mul_hi_u32 s14, s12, {((1 << 32) + NCG - 1) // NCG if NCG > 1 else 0}")
    a(f"s_mul_i32 s13, s14, {NCG}")
    a("s_sub_u32 s13, s12, s13")
    a("s_lshl_b32 s14, s14, 2")
    a("s_add_u32 s14, s14, s10")
    a(f"s_mul_i32 s15, s11, {X_BYTES_B}")
    a("s_add_u32 s4, s4, s15")
    a("s_addc_u32 s5, s5, 0")
    make_srd(a, 12+8, 4, 5, X_BYTES_B)
    a("s_mul_i32 s15, s14, %d" % (48 * 2048))
    a("s_lshl_b32 s24, s13, 8")
    a("s_add_u32 s15, s15, s24")
    a(f"v_lshlrev_b32 v{vOff}, 14, v{vG}")
    a(f"v_lshl_add_u32 v{vOff}, v{vR}, 4, v{vOff}")
    a(f"v_add_u32 v{vOff}, s15, v{vOff}")
    for s in range(2):
        for i in range(8):
            off = (32 * s + i) * 2048
            if off == 0:
                a(f"buffer_load_dwordx4 v[{RAW}:{RAW+3}], v{vOff}, s[20:23], 0 offen")
            else:
                a(f"v_add_u32 v{vT0}, {off}, v{vOff}")
                r = RAW + 4 * (8 * s + i)
                a(f"buffer_load_dwordx4 v[{r}:{r+3}], v{vT0}, s[20:23], 0 offen")
    a.c("table generation: wave w -> o = w, s = 0,1")
    vA = vT0; vC = vT0+1; vP = BF
    a(f"v_lshrrev_b32 v{vA}, 2, v{vR}")
    a(f"v_lshlrev_b32 v{vA}, 1, v{vA}")
    a(f"v_bfe_u32 v{vC}, v{vR}, 1, 1")
    a(f"v_add_u32 v{vA}, v{vA}, v{vC}")
    a("s_lshl_b32 s24, s10, 3")
    a(f"v_add_u32 v{vA}, s24, v{vA}")
    a(f"v_lshl_add_u32 v{vA}, v{vA}, 1, 1")
    a(f"v_and_b32 v{vC}, 1, v{vR}")
    a(f"v_lshlrev_b32 v{vC}, 5, v{vC}")
    for s in range(2):
        a(f"v_lshlrev_b32 v{vT0+2}, 3, v{vG}")
        if s: a(f"v_add_u32 v{vT0+2}, 32, v{vT0+2}")
        a(f"v_mad_u32_u24 v{vP}, v{vA}, v{vT0+2}, v{vC}")
        for e in range(1, 8):
            a(f"v_add_u32 v{vP+e}, v{vP+e-1}, v{vA}")
        cos_table(a, None, [vP+e for e in range(8)], ACC, ACC+4)
        a("s_lshl_b32 s24, s10, 11")
        a(f"v_lshlrev_b32 v{vT0+3}, 4, v{vLane}")
        a(f"v_add_u32 v{vT0+3}, s24, v{vT0+3}")
        a(f"ds_write_b128 v{vT0+3}, v[{ACC}:{ACC+3}] offset:{s*1024}")
    a("s_waitcnt lgkmcnt(0)")
    a("s_barrier")
    a(f"v_lshlrev_b32 v{vT0+3}, 4, v{vLane}")
    for o in range(4):
        for s in range(2):
            r = AF + 4 * (2 * o + s)
            a(f"ds_read_b128 v[{r}:{r+3}], v{vT0+3} offset:{(2*o+s)*1024}")
    a("s_bfe_u32 s24, s14, 0x10003")
    a("s_mul_i32 s24, s24, 3")
    a(f"v_and_b32 v{vT0}, 3, v{vR}")
    a(f"v_xor_b32 v{vT0}, s24, v{vT0}")
    a(f"v_lshlrev_b32 v{vT0}, 4, v{vT0}")
    if XFULL:
        a(f"v_bfe_u32 v{vT0+1}, v{vR}, 2, 1")
        a(f"v_lshl_add_u32 v{vT0}, v{vT0+1}, 6, v{vT0}")
        a(f"v_lshrrev_b32 v{vT0+1}, 3, v{vR}")
        a(f"s_mov_b32 s24, {XF_KP}")
    else:
        a(f"v_lshrrev_b32 v{vT0+1}, 2, v{vR}")
        a(f"s_mov_b32 s24, {XF_KS}")
    a(f"v_mad_u32_u24 v{vT0}, v{vT0+1}, s24, v{vT0}")
    a(f"s_mov_b32 s24, {2*(XF2_K if XFULL else XF_K)}")
    a(f"v_mad_u32_u24 v{vSt}, v{vG}, s24, v{vT0}")
    a(f"s_mul_i32 s24, s11, {XF2_B if XFULL else XF_B}")
    a(f"s_mul_i32 s25, s13, {2*XF_KP if XFULL else 4*XF_KS}")
    a("s_add_u32 s24, s24, s25")
    a(f"s_lshl_b32 s25, s14, {7 if XFULL else 6}")
    a("s_add_u32 s24, s24, s25")
    a(f"s_add_u32 s24, s24, {XF_BASE}")
    a("s_waitcnt vmcnt(0) lgkmcnt(0)")
    def perms(q):
        for s in range(2):
            for h in range(2):
                for e in range(4):
                    d = BF + (s * 2 + h) * 4 + e
                    r0 = RAW + 4 * (8 * s + 2 * e) + q
                    r1 = RAW + 4 * (8 * s + 2 * e + 1) + q
                    a(f"v_perm_b32 v{d}, v{r1}, v{r0}, s{30+h}")
    def mfmas():
        for s in range(2):
            for o in range(4):
                for h in range(2):
                    d = ACC + (o * 2 + h) * 4
                    A = AF + 4 * (2 * o + s)
                    B = BF + (s * 2 + h) * 4
                    c = "0" if s == 0 else f"v[{d}:{d+3}]"
                    a(f"v_mfma_f32_16x16x32_bf16 v[{d}:{d+3}], v[{A}:{A+3}], v[{B}:{B+3}], {c}")
    def cvts(q):
        for o in range(4):
            for rp in range(4):
                d = RAW + 4 * (4 * o + rp) + q
                a(f"v_cvt_pk_bf16_f32 v{d}, v{ACC+(o*2)*4+rp}, v{ACC+(o*2+1)*4+rp}")
    perms(0)
    for q in range(4):
        mfmas()
        if q < 3: perms(q + 1)
        cvts(q)
    for o in range(4):
        for rp in range(4):
            off = (8 * o + (rp >> 1)) * XF_K + (rp & 1) * (ROWS * 64)
            if XFULL: off = (8 * o + (rp >> 1)) * XF2_K + (rp & 1) * (ROWS * 128)
            a(f"s_add_u32 s25, s24, {off}")
            r = RAW + 4 * (4 * o + rp)
            a(f"buffer_store_dwordx4 v[{r}:{r+3}], v{vSt}, s[16:19], s25 offen {CFG['k12_st']}")
    a("s_endpgm")
    a.label("L_k12_w")
    a(f"s_sub_u32 s12, s2, {NX}")
    a("s_and_b32 s13, s12, 3")
    a("s_lshr_b32 s14, s12, 2")
    a("s_lshl_b32 s14, s14, 2")
    a("s_add_u32 s14, s14, s10")
    make_srd(a, 20, 6, 7, W_BYTES)
    a(f"v_and_b32 v{vT0}, 1, v{vG}")
    a(f"v_lshlrev_b32 v{vOff}, 23, v{vT0}")
    a(f"v_lshrrev_b32 v{vT0}, 2, v{vR}")
    a(f"v_lshl_add_u32 v{vOff}, v{vT0}, 6, v{vOff}")
    a(f"v_and_b32 v{vT0}, 1, v{vR}")
    a(f"v_lshl_add_u32 v{vOff}, v{vT0}, 5, v{vOff}")
    a(f"v_bfe_u32 v{vT0}, v{vR}, 1, 1")
    a(f"v_lshl_add_u32 v{vOff}, v{vT0}, 3, v{vOff}")
    a("s_lshl_b32 s15, s14, 10")
    a("s_lshl_b32 s24, s13, 8")
    a("s_add_u32 s15, s15, s24")
    a(f"v_add_u32 v{vOff}, s15, v{vOff}")
    for i in range(8):
        r = RAW + 4 * i
        if i == 0:
            src = vOff
        else:
            a(f"v_add_u32 v{vT0}, {i << 20}, v{vOff}")
            src = vT0
        a(f"buffer_load_dwordx2 v[{r}:{r+1}], v{src}, s[20:23], 0 offen")
        a(f"buffer_load_dwordx2 v[{r+2}:{r+3}], v{src}, s[20:23], 0 offen offset:16")
    a.c("table: wave w -> o = w")
    vA = vT0; vC = vT0+1; vP = BF
    a(f"v_lshrrev_b32 v{vA}, 2, v{vR}")
    a(f"v_lshlrev_b32 v{vA}, 1, v{vA}")
    a(f"v_bfe_u32 v{vC}, v{vR}, 1, 1")
    a(f"v_add_u32 v{vA}, v{vA}, v{vC}")
    a("s_lshl_b32 s24, s10, 3")
    a(f"v_add_u32 v{vA}, s24, v{vA}")
    a(f"v_lshl_add_u32 v{vA}, v{vA}, 1, 1")
    a(f"v_and_b32 v{vC}, 1, v{vR}")
    a(f"v_lshlrev_b32 v{vC}, 5, v{vC}")
    a(f"v_and_b32 v{vT0+2}, 1, v{vG}")
    a(f"v_lshlrev_b32 v{vT0+2}, 3, v{vT0+2}")
    a(f"v_mad_u32_u24 v{vP}, v{vA}, v{vT0+2}, v{vC}")
    for e in range(1, 8):
        a(f"v_add_u32 v{vP+e}, v{vP+e-1}, v{vA}")
    a(f"v_cmp_lt_u32 s[26:27], 1, v{vG}")
    cos_table(a, None, [vP+e for e in range(8)], ACC, ACC+4, lo_sel=26)
    a("s_lshl_b32 s24, s10, 10")
    a(f"v_lshlrev_b32 v{vT0+3}, 4, v{vLane}")
    a(f"v_add_u32 v{vT0+3}, s24, v{vT0+3}")
    a(f"ds_write_b128 v{vT0+3}, v[{ACC}:{ACC+3}]")
    a("s_waitcnt lgkmcnt(0)")
    a("s_barrier")
    a(f"v_lshlrev_b32 v{vT0+3}, 4, v{vLane}")
    for o in range(4):
        r = AF + 4 * o
        a(f"ds_read_b128 v[{r}:{r+3}], v{vT0+3} offset:{o*1024}")
    a("s_and_b32 s24, s14, 3")
    a("s_bfe_u32 s25, s14, 0x10003")
    a("s_lshl_b32 s25, s25, 2")
    a("s_or_b32 s24, s24, s25")
    a("s_lshl_b32 s24, s24, 1")
    a(f"v_xor_b32 v{vT0}, s24, v{vR}")
    a(f"v_lshlrev_b32 v{vT0}, 4, v{vT0}")
    a(f"s_mov_b32 s25, {2*WF_K}")
    a(f"v_mul_u32_u24 v{vSt}, s25, v{vG}")
    a(f"v_add_u32 v{vSt}, v{vSt}, v{vT0}")
    a(f"s_mul_i32 s24, s13, {WF_DQ}")
    a("s_lshr_b32 s25, s14, 5")
    a(f"s_mul_i32 s25, s25, {WF_KS}")
    a("s_add_u32 s24, s24, s25")
    a("s_and_b32 s25, s14, 31")
    a("s_lshl_b32 s25, s25, 8")
    a("s_add_u32 s24, s24, s25")
    if WF_BASE: a(f"s_add_u32 s24, s24, {WF_BASE}")
    a("s_waitcnt vmcnt(0) lgkmcnt(0)")
    OUT = 32
    FR = 32
    for dd in range(8):
        q = dd >> 1; h = dd & 1
        for e in range(4):
            r0 = RAW + 4 * (2 * e) + q
            r1 = RAW + 4 * (2 * e + 1) + q
            a(f"v_perm_b32 v{FR+4*dd+e}, v{r1}, v{r0}, s{30+h}")
    for o in range(4):
        A = AF + 4 * o
        for dd in range(8):
            d = ACC + 4 * dd
            a(f"v_mfma_f32_16x16x32_bf16 v[{d}:{d+3}], v[{A}:{A+3}], v[{FR+4*dd}:{FR+4*dd+3}], 0")
        ob = RAW + 16 * (o & 1)
        for rp in range(4):
            for q in range(4):
                a(f"v_cvt_pk_bf16_f32 v{ob+4*rp+q}, v{ACC+8*q+rp}, v{ACC+8*q+4+rp}")
        for rp in range(4):
            off = (8 * o + (rp >> 1)) * WF_K + (rp & 1) * 8192
            a(f"s_add_u32 s25, s24, {off}")
            r = ob + 4 * rp
            a(f"buffer_store_dwordx4 v[{r}:{r+3}], v{vSt}, s[16:19], s25 offen {CFG['k12_st']}")
    a.label("L_k12_end")
    a("s_endpgm")
    return name, a.lines, NV, (NX + NW, 256, 16384)

STAMP_BASE = 200 << 20
def add_timeline(name, lines, kidx):
    out = []
    started = False
    n = 0
    for l in lines:
        t = l.strip()
        out.append(l)
        if not started and t == name + ':':
            out.append("    s_memrealtime s[92:93]")
            out.append("    v_lshrrev_b32 v1, 6, v0")
            out.append("    s_nop 1")
            out.append("    v_readfirstlane_b32 s91, v1")
            out.append("    s_waitcnt lgkmcnt(0)")
            started = True
        if t == 's_endpgm':
            out.pop()
            n += 1
            out.append("    s_waitcnt vmcnt(0) lgkmcnt(0)")
            out.append("    s_memrealtime s[94:95]")
            out.append("    s_load_dwordx2 s[80:81], s[0:1], 48")
            out.append("    s_mov_b64 exec, -1")
            out.append("    s_waitcnt lgkmcnt(0)")
            out.append("    s_mov_b32 s84, s80"); out.append("    s_and_b32 s85, s81, 0xffff")
            out.append(f"    s_mov_b32 s86, {WS_BYTES}"); out.append("    s_mov_b32 s87, 0x00020000")
            out.append("    s_lshl_b32 s88, s2, 4"); out.append("    s_add_u32 s88, s88, s91"); out.append("    s_lshl_b32 s88, s88, 4")
            out.append(f"    s_add_u32 s88, s88, {STAMP_BASE + kidx * (1 << 20)}")
            out.append("    v_mov_b32 v0, s92"); out.append("    v_mov_b32 v1, s93"); out.append("    v_mov_b32 v2, s94"); out.append("    v_mov_b32 v3, s95")
            out.append("    v_mov_b32 v4, 0")
            out.append("    buffer_store_dwordx4 v[0:3], v4, s[84:87], s88 offen")
            out.append("    s_endpgm")
    return out

def build(kernels):
    if CFG['timeline']:
        kernels = [(n, add_timeline(n, l, i), nv, g) for i, (n, l, nv, g) in enumerate(kernels)]
    hdr = open(os.path.join(os.path.dirname(os.path.abspath(__file__)), '..', NAME + '.s.ref')).read().split('\n')
    out = []
    for l in hdr:
        if l.startswith('; Override launch') or l.startswith('; grid=ceil') or l.startswith('; @launch'): continue
        if l.startswith(';'): out.append(l)
        else: break
    for (name, lines, nv, (g, blk, lds)) in kernels:
        out.append(f"; @launch kernel={name} grid=({g},1,1) block=({blk},1,1) lds={lds}")
    out.append('.amdgcn_target "amdgcn-amd-amdhsa--gfx950"')
    out.append('.text')
    for (name, lines, nv, _) in kernels:
        out += hazard_pass(lines)
    out.append('L_code_end:')
    out.append('    s_endpgm')
    out.append('.section .rodata,"a"')
    for (name, lines, nv, _) in kernels:
        out.append('.p2align 6')
        out.append(kernel_desc(name, nv))
    return '\n'.join(out) + '\n'

if __name__ == '__main__':
    from gen_k3 import gen_k3
    from gen_k45 import gen_k4, gen_k5
    from gen_k3b import gen_k3b
    from gen_k123 import gen_k123
    from gen_k3h import gen_k3h
    from gen_k3w import gen_k3w
    if CFG['wfuse']:
        ks = [gen_k12(), gen_k3w(), gen_k4(), gen_k5()]
    elif CFG['half']:
        ks = [gen_k12(), gen_k3h(), gen_k4(), gen_k5()]
    elif CFG['fused']:
        ks = [gen_k123(), gen_k4(), gen_k5()]
    else:
        ks = [gen_k12(), gen_k3b() if CFG['k3b'] else gen_k3(), gen_k4(), gen_k5()]
    if CFG['k12p']:
        from gen_k12p import gen_k12p
        ks[0] = gen_k12p()
    if CFG['k12q']:
        from gen_k12q import gen_k12q
        ks[0] = gen_k12q()
    if CFG['k3c']:
        from gen_k3c import gen_k3c
        ks[1] = gen_k3c()
    if CFG['k45g']:
        from gen_k45g import gen_k45g
        ks = ks[:-2] + [gen_k45g()]
    elif CFG['k45f']:
        from gen_k45 import gen_k45f
        ks = ks[:-2] + [gen_k45f()]
    dst = sys.argv[1] if len(sys.argv) > 1 else os.path.join(os.path.dirname(os.path.abspath(__file__)), '..', NAME + '.s')
    open(dst, 'w').write(build(ks))
    print('wrote', dst)
```

```python
from asmlib import *
import gen as G

def gen_k12q(cfg=None):
    cfg = cfg or G.CFG
    a = Asm()
    name = 'xform_kernel'
    G.kernel_header(a, name)
    NX = 2 * G.NGRP * 8
    NW = 1024
    NT = NX + NW
    NWG = cfg.get('k12_nwg', 256)
    st = cfg['k12_st']; ld = cfg.get('k12_ld', '')
    BUF = [0, 64]; AF = 128; BF = 160; ACC = 176; VT = 208
    vLane = VT; vR = VT+1; vG = VT+2; vOff = VT+3; vSt = VT+4; vT0 = VT+5
    vNext = VT + 13; vZ = VT + 14; vL16 = VT + 15
    vXo = VT + 16; vWo = VT + 17; vXs = VT + 18; vWs = VT + 19
    NV = 232
    sCur, sNxt = 40, 42
    a(f"s_cmp_ge_u32 s2, {NWG}")
    a("s_cbranch_scc1 L_k12_end")
    a("s_load_dwordx4 s[4:7], s[0:1], 0")
    a("s_load_dwordx4 s[36:39], s[0:1], 40")
    if cfg.get('pf_code'):
        a(f"v_lshrrev_b32 v{vT0}, 6, v0")
        a("s_cmp_ge_u32 s2, 8"); a("s_cbranch_scc1 L_nopf12")
        a(f"v_readfirstlane_b32 s10, v{vT0}")
        a("s_cmp_lg_u32 s10, 3"); a("s_cbranch_scc1 L_nopf12")
        G.prefetch_code(a, "k12", "xform_kernel", "L_code_end", 10, ACC + 8, sp=60)
        a.label("L_nopf12")
    a(f"v_and_b32 v{vLane}, 63, v0")
    a(f"v_lshrrev_b32 v{vT0}, 6, v0")
    a(f"v_and_b32 v{vR}, 15, v{vLane}")
    a(f"v_readfirstlane_b32 s10, v{vT0}")
    a(f"v_lshrrev_b32 v{vG}, 4, v{vLane}")
    a(f"v_lshlrev_b32 v{vL16}, 4, v{vLane}")
    a(f"v_mov_b32 v{vZ}, 0")
    a("s_mov_b32 s30, 0x05040100")
    a("s_mov_b32 s31, 0x07060302")
    a("s_mov_b32 s32, 0x01000100")
    a("s_mov_b32 s33, 0x03020302")
    a(f"s_mov_b32 s{sCur}, s2")
    a(f"s_add_u32 s{sNxt}, s2, {NWG}")
    a("s_mov_b32 s41, 0")
    remap_later = True
    a("s_mov_b32 s43, 0")
    a(f"v_lshlrev_b32 v{vXo}, 14, v{vG}")
    a(f"v_lshl_add_u32 v{vXo}, v{vR}, 4, v{vXo}")
    a(f"v_lshlrev_b32 v{vWo}, 22, v{vG}")
    a(f"v_lshrrev_b32 v{vT0}, 2, v{vR}")
    a(f"v_lshl_add_u32 v{vWo}, v{vT0}, 6, v{vWo}")
    a(f"v_and_b32 v{vT0}, 1, v{vR}")
    a(f"v_lshl_add_u32 v{vWo}, v{vT0}, 5, v{vWo}")
    a(f"v_bfe_u32 v{vT0}, v{vR}, 1, 1")
    a(f"v_lshl_add_u32 v{vWo}, v{vT0}, 3, v{vWo}")
    a(f"v_lshrrev_b32 v{vT0}, 2, v{vR}")
    a(f"s_mov_b32 s24, {G.XF_KS}")
    a(f"v_mul_u32_u24 v{vXs}, s24, v{vT0}")
    a(f"s_mov_b32 s24, {2*G.XF_K}")
    a(f"v_mad_u32_u24 v{vXs}, v{vG}, s24, v{vXs}")
    a(f"s_mov_b32 s24, {2*G.WF_K}")
    a(f"v_mul_u32_u24 v{vWs}, s24, v{vG}")
    a("s_waitcnt lgkmcnt(0)")
    G.make_srd(a, 16, 38, 39, G.WS_BYTES)
    G.make_srd(a, 44, 36, 37, 256)
    if cfg.get('pf_tlb'):
        a("s_cmp_ge_u32 s2, 8"); a("s_cbranch_scc1 L_notlb")
        a("s_cmp_lg_u32 s10, 2"); a("s_cbranch_scc1 L_notlb")
        a(f"v_lshlrev_b32 v{ACC+8}, 21, v{vLane}")
        a(f"buffer_load_dword v{ACC+9}, v{ACC+8}, s[16:19], 0 offen")
        a(f"s_mov_b32 s24, {128 << 20}")
        a(f"v_cmp_gt_u32 vcc, 8, v{vLane}")
        a("s_and_saveexec_b64 s[26:27], vcc")
        a(f"buffer_load_dword v{ACC+10}, v{ACC+8}, s[16:19], s24 offen")
        a("s_mov_b64 exec, s[26:27]")
        a.label("L_notlb")
    uid = [0]
    MIX = cfg.get('k12_mix')
    def remap(sr):
        if not MIX: return
        u = uid[0]; uid[0] += 1
        if MIX >= 3:
            a(f"s_cmp_ge_u32 s{sr}, {2*NX}")
            a(f"s_cbranch_scc1 L_rm{u}")
            a(f"s_lshr_b32 s28, s{sr}, 1")
            a(f"s_add_u32 s29, s28, {NX}")
            a(f"s_bitcmp1_b32 s{sr}, 0")
            if MIX == 3: a(f"s_cselect_b32 s{sr}, s29, s28")
            else: a(f"s_cselect_b32 s{sr}, s28, s29")
            a.label(f"L_rm{u}")
            return
        a(f"s_cmp_ge_u32 s{sr}, 1680")
        a(f"s_cbranch_scc1 L_rm{u}")
        a(f"s_mul_i32 s26, s{sr}, 52429")
        a("s_lshr_b32 s26, s26, 18")
        a("s_mul_i32 s27, s26, 5")
        a(f"s_sub_u32 s27, s{sr}, s27")
        if MIX == 1:
            a("s_lshl_b32 s28, s26, 1"); a("s_add_u32 s28, s28, s27")
            a("s_mul_i32 s29, s26, 3"); a("s_add_u32 s29, s29, s27"); a(f"s_add_u32 s29, s29, {NX-2}")
            a("s_cmp_lt_u32 s27, 2")
        else:
            a("s_lshr_b32 s28, s27, 1"); a("s_lshl_b32 s29, s26, 1"); a("s_add_u32 s28, s28, s29")
            a("s_add_u32 s29, s27, 1"); a("s_lshr_b32 s29, s29, 1"); a("s_mul_i32 s27, s26, 3") if False else None
            a("s_mul_i32 s35, s26, 3"); a("s_add_u32 s29, s29, s35"); a(f"s_add_u32 s29, s29, {NX}")
            a("s_sub_u32 s29, s29, 0")
            a("s_bitcmp1_b32 s27, 0")
        a(f"s_cselect_b32 s{sr}, s28, s29")
        a.label(f"L_rm{u}")
    def issue_loads(sIdx, buf):
        u = uid[0]; uid[0] += 1
        a(f"s_cmp_ge_u32 s{sIdx}, {NT}")
        a(f"s_cbranch_scc1 L_ld_done{u}")
        a(f"s_cmp_ge_u32 s{sIdx}, {NX}")
        a(f"s_cbranch_scc1 L_ld_w{u}")
        a(f"s_cmp_ge_u32 s{sIdx}, 336")
        a("s_cselect_b32 s11, 1, 0")
        a("s_mul_i32 s12, s11, 336")
        a(f"s_sub_u32 s12, s{sIdx}, s12")
        a("s_and_b32 s13, s12, 7")
        a("s_lshr_b32 s14, s12, 3")
        a("s_lshl_b32 s14, s14, 2")
        a("s_add_u32 s14, s14, s10")
        a(f"s_mul_i32 s15, s11, {G.X_BYTES_B}")
        a("s_add_u32 s34, s4, s15")
        a("s_addc_u32 s35, s5, 0")
        G.make_srd(a, 20, 34, 35, G.X_BYTES_B)
        a("s_mul_i32 s15, s14, %d" % (48 * 2048))
        a("s_lshl_b32 s24, s13, 8")
        a("s_add_u32 s15, s15, s24")
        for s in range(2):
            for i in range(8):
                r = buf + 4 * (8 * s + i)
                a(f"s_add_u32 s25, s15, {(32*s+i)*2048}")
                a(f"buffer_load_dwordx4 v[{r}:{r+3}], v{vXo}, s[20:23], s25 offen {ld}")
        a(f"s_branch L_ld_done{u}")
        a.label(f"L_ld_w{u}")
        a(f"s_sub_u32 s12, s{sIdx}, {NX}")
        a("s_and_b32 s13, s12, 3")
        a("s_lshr_b32 s14, s12, 2")
        a("s_lshl_b32 s14, s14, 2")
        a("s_add_u32 s14, s14, s10")
        G.make_srd(a, 20, 6, 7, G.W_BYTES)
        a("s_lshl_b32 s15, s14, 10")
        a("s_lshl_b32 s24, s13, 8")
        a("s_add_u32 s15, s15, s24")
        for i in range(4):
            r = buf + 4 * i
            a(f"s_add_u32 s25, s15, {i << 20}")
            a(f"buffer_load_dwordx2 v[{r}:{r+1}], v{vWo}, s[20:23], s25 offen {ld}")
            a(f"buffer_load_dwordx2 v[{r+2}:{r+3}], v{vWo}, s[20:23], s25 offen offset:16 {ld}")
        a.label(f"L_ld_done{u}")
    remap(sCur); remap(sNxt)
    issue_loads(sCur, BUF[0])
    vA = vT0; vC = vT0+1; vP = BF
    a(f"v_lshrrev_b32 v{vA}, 2, v{vR}")
    a(f"v_lshlrev_b32 v{vA}, 1, v{vA}")
    a(f"v_bfe_u32 v{vC}, v{vR}, 1, 1")
    a(f"v_add_u32 v{vA}, v{vA}, v{vC}")
    a("s_lshl_b32 s24, s10, 3")
    a(f"v_add_u32 v{vA}, s24, v{vA}")
    a(f"v_lshl_add_u32 v{vA}, v{vA}, 1, 1")
    a(f"v_and_b32 v{vC}, 1, v{vR}")
    a(f"v_lshlrev_b32 v{vC}, 5, v{vC}")
    for s in range(2):
        a(f"v_lshlrev_b32 v{vT0+2}, 3, v{vG}")
        if s: a(f"v_add_u32 v{vT0+2}, 32, v{vT0+2}")
        a(f"v_mad_u32_u24 v{vP}, v{vA}, v{vT0+2}, v{vC}")
        for e in range(1, 8): a(f"v_add_u32 v{vP+e}, v{vP+e-1}, v{vA}")
        G.cos_table(a, None, [vP+e for e in range(8)], ACC, ACC+4)
        a("s_lshl_b32 s24, s10, 11")
        a(f"v_add_u32 v{vT0+3}, s24, v{vL16}")
        a(f"ds_write_b128 v{vT0+3}, v[{ACC}:{ACC+3}] offset:{s*1024}")
    a(f"v_lshlrev_b32 v{vT0+2}, 2, v{vG}")
    a(f"v_mad_u32_u24 v{vP}, v{vA}, v{vT0+2}, v{vC}")
    for e in range(1, 4): a(f"v_add_u32 v{vP+e}, v{vP+e-1}, v{vA}")
    for e in range(4):
        r = vP + e
        a(f"v_and_b32 v{r}, 127, v{r}"); a(f"v_cvt_f32_u32 v{r}, v{r}"); a(f"v_mul_f32 v{r}, 0x3c000000, v{r}"); a(f"v_cos_f32 v{r}, v{r}")
    for e in range(4):
        r = vP + e
        a(f"v_cvt_pk_bf16_f32 v{ACC+4}, v{r}, v{r}")
        a(f"v_lshlrev_b32 v{ACC+5}, 16, v{ACC+4}")
        a(f"v_sub_f32 v{ACC+5}, v{r}, v{ACC+5}")
        a(f"v_cvt_pk_bf16_f32 v{ACC+5}, v{ACC+5}, v{ACC+5}")
        a(f"v_perm_b32 v{ACC+e}, v{ACC+5}, v{ACC+4}, s30")
    a("s_lshl_b32 s24, s10, 10")
    a(f"v_add_u32 v{vT0+3}, s24, v{vL16}")
    a(f"ds_write_b128 v{vT0+3}, v[{ACC}:{ACC+3}] offset:8192")
    a("s_waitcnt lgkmcnt(0)")
    a("s_barrier")
    a.label("L_k12_loop")
    for p in range(2):
        buf = BUF[p]; nbuf = BUF[p ^ 1]
        a("s_cmp_lg_u32 s10, 0")
        a(f"s_cbranch_scc1 L_nofetch{p}")
        a(f"v_mov_b32 v{vNext}, 1")
        a("s_mov_b64 exec, 1")
        a(f"buffer_atomic_add v{vNext}, v{vZ}, s[44:47], 0 offen sc0 sc1")
        a("s_mov_b64 exec, -1")
        a.label(f"L_nofetch{p}")
        issue_loads(sNxt, nbuf)
        def counted(tag, base):
            a(f"s_cmp_ge_u32 s{sNxt}, {NT}")
            a(f"s_cbranch_scc1 L_w0_{tag}")
            a(f"s_cmp_ge_u32 s{sNxt}, {NX}")
            a(f"s_cbranch_scc1 L_w8_{tag}")
            a(f"s_waitcnt vmcnt({base+16})")
            a(f"s_branch L_wd_{tag}")
            a.label(f"L_w8_{tag}")
            a(f"s_waitcnt vmcnt({base+8})")
            a(f"s_branch L_wd_{tag}")
            a.label(f"L_w0_{tag}")
            a(f"s_waitcnt vmcnt({base})")
            a.label(f"L_wd_{tag}")
        if p == 0:
            a("s_cmp_lg_u32 s43, 0")
            a("s_cbranch_scc1 L_notfirst")
            counted("f", 0)
            a("s_mov_b32 s43, 1")
            a("s_branch L_wfin")
            a.label("L_notfirst")
            counted("a0", 16)
            a.label("L_wfin")
        else:
            counted("a1", 16)
        a(f"s_cmp_ge_u32 s{sCur}, {NX}")
        a(f"s_cbranch_scc1 L_cw{p}")
        a(f"s_cmp_ge_u32 s{sCur}, 336")
        a("s_cselect_b32 s11, 1, 0")
        a("s_mul_i32 s12, s11, 336")
        a(f"s_sub_u32 s12, s{sCur}, s12")
        a("s_and_b32 s13, s12, 7")
        a("s_lshr_b32 s14, s12, 3")
        a("s_lshl_b32 s14, s14, 2")
        a("s_add_u32 s14, s14, s10")
        for o in range(4):
            for s in range(2):
                r = AF + 4 * (2 * o + s)
                a(f"ds_read_b128 v[{r}:{r+3}], v{vL16} offset:{(2*o+s)*1024}")
        a("s_bfe_u32 s24, s14, 0x10003")
        a("s_mul_i32 s24, s24, 3")
        a(f"v_and_b32 v{vT0}, 3, v{vR}")
        a(f"v_xor_b32 v{vT0}, s24, v{vT0}")
        a(f"v_lshl_add_u32 v{vSt}, v{vT0}, 4, v{vXs}")
        a(f"s_mul_i32 s24, s11, {G.XF_B}")
        a(f"s_mul_i32 s25, s13, {4*G.XF_KS}")
        a("s_add_u32 s24, s24, s25")
        a("s_lshl_b32 s25, s14, 6")
        a("s_add_u32 s24, s24, s25")
        a(f"s_add_u32 s24, s24, {G.XF_BASE}")
        def perms(q):
            for s in range(2):
                for h in range(2):
                    for e in range(4):
                        d = BF + (s * 2 + h) * 4 + e
                        a(f"v_perm_b32 v{d}, v{buf + 4*(8*s+2*e+1) + q}, v{buf + 4*(8*s+2*e) + q}, s{30+h}")
        def mfmas():
            for s in range(2):
                for o in range(4):
                    for h in range(2):
                        d = ACC + (o * 2 + h) * 4
                        A = AF + 4 * (2 * o + s); B = BF + (s * 2 + h) * 4
                        c = "0" if s == 0 else f"v[{d}:{d+3}]"
                        a(f"v_mfma_f32_16x16x32_bf16 v[{d}:{d+3}], v[{A}:{A+3}], v[{B}:{B+3}], {c}")
        def cvts(q):
            for o in range(4):
                for rp in range(4):
                    a(f"v_cvt_pk_bf16_f32 v{buf + 4*(4*o+rp) + q}, v{ACC+(o*2)*4+rp}, v{ACC+(o*2+1)*4+rp}")
        perms(0)
        a("s_waitcnt lgkmcnt(0)")
        for q in range(4):
            mfmas()
            if q < 3: perms(q + 1)
            cvts(q)
        for o in range(4):
            for rp in range(4):
                off = (8 * o + (rp >> 1)) * G.XF_K + (rp & 1) * (G.ROWS * 64)
                a(f"s_add_u32 s25, s24, {off}")
                r = buf + 4 * (4 * o + rp)
                a(f"buffer_store_dwordx4 v[{r}:{r+3}], v{vSt}, s[16:19], s25 offen {st}")
        a(f"s_branch L_next{p}")
        a.label(f"L_cw{p}")
        a(f"s_sub_u32 s12, s{sCur}, {NX}")
        a("s_and_b32 s13, s12, 3")
        a("s_lshr_b32 s14, s12, 2")
        a("s_lshl_b32 s14, s14, 2")
        a("s_add_u32 s14, s14, s10")
        for o in range(4):
            r = AF + 4 * o
            a(f"ds_read_b128 v[{r}:{r+3}], v{vL16} offset:{8192+o*1024}")
        a("s_and_b32 s24, s14, 3")
        a("s_bfe_u32 s25, s14, 0x10003")
        a("s_lshl_b32 s25, s25, 2")
        a("s_or_b32 s24, s24, s25")
        a("s_lshl_b32 s24, s24, 1")
        a(f"v_xor_b32 v{vT0}, s24, v{vR}")
        a(f"v_lshl_add_u32 v{vSt}, v{vT0}, 4, v{vWs}")
        a(f"s_mul_i32 s24, s13, {G.WF_DQ}")
        a("s_lshr_b32 s25, s14, 5")
        a(f"s_mul_i32 s25, s25, {G.WF_KS}")
        a("s_add_u32 s24, s24, s25")
        a("s_and_b32 s25, s14, 31")
        a("s_lshl_b32 s25, s25, 8")
        a("s_add_u32 s24, s24, s25")
        if G.WF_BASE: a(f"s_add_u32 s24, s24, {G.WF_BASE}")
        FR = buf + 16
        for dd in range(8):
            q = dd >> 1; h = dd & 1
            for e in range(4):
                a(f"v_perm_b32 v{FR+4*dd+e}, v{buf+4*e+q}, v{buf+4*e+q}, s{32+h}")
        a("s_waitcnt lgkmcnt(0)")
        for o in range(4):
            A = AF + 4 * o
            for dd in range(8):
                d = ACC + 4 * dd
                a(f"v_mfma_f32_16x16x32_bf16 v[{d}:{d+3}], v[{A}:{A+3}], v[{FR+4*dd}:{FR+4*dd+3}], 0")
            ob = (buf if (o & 1) == 0 else buf + 48)
            for rp in range(4):
                for q in range(4):
                    a(f"v_cvt_pk_bf16_f32 v{ob+4*rp+q}, v{ACC+8*q+rp}, v{ACC+8*q+4+rp}")
            for rp in range(4):
                off = (8 * o + (rp >> 1)) * G.WF_K + (rp & 1) * 8192
                a(f"s_add_u32 s25, s24, {off}")
                r = ob + 4 * rp
                a(f"buffer_store_dwordx4 v[{r}:{r+3}], v{vSt}, s[16:19], s25 offen {st}")
        a.label(f"L_next{p}")
        a("s_cmp_lg_u32 s10, 0")
        a(f"s_cbranch_scc1 L_pub{p}")
        counted(f"p{p}", 16)
        a(f"v_add_u32 v{vNext}, {2*NWG}, v{vNext}")
        a(f"v_mov_b32 v{vT0}, s41")
        a("s_mov_b64 exec, 1")
        a(f"ds_write_b32 v{vT0}, v{vNext} offset:12288")
        a("s_mov_b64 exec, -1")
        a.label(f"L_pub{p}")
        a("s_waitcnt lgkmcnt(0)")
        a("s_barrier")
        a(f"v_mov_b32 v{vT0}, s41")
        a(f"ds_read_b32 v{vT0+1}, v{vT0} offset:12288")
        a("s_xor_b32 s41, s41, 4")
        a(f"s_mov_b32 s{sCur}, s{sNxt}")
        a("s_waitcnt lgkmcnt(0)")
        a(f"v_readfirstlane_b32 s{sNxt}, v{vT0+1}")
        remap(sNxt)
        a(f"s_cmp_ge_u32 s{sCur}, {NT}")
        a("s_cbranch_scc1 L_k12_fin")
    a("s_branch L_k12_loop")
    a.label("L_k12_fin")
    if cfg.get('pf_late'):
        a("s_cmp_ge_u32 s2, 8"); a("s_cbranch_scc1 L_k12_end")
        a("s_cmp_lg_u32 s10, 3"); a("s_cbranch_scc1 L_k12_end")
        G.prefetch_code_fwd(a, "k12b", "gemm_kernel", "final_kernel", 4, ACC + 8, sp=60)
    a.label("L_k12_end")
    a("s_endpgm")
    return name, a.lines, NV, (NWG, 256, 12288 + 64)
```

```python
from asmlib import *
import gen as G
from gen_k3 import LQ, NSTAGE
XC = 11264
STAGE = 16384 + 2 * XC
LDS_BYTES = STAGE * NSTAGE

T = 11
ACC = 0
WA = 176; WB = 192; NW = 208
XR = 216
vWa = 248; vXa = 250; vSt = 251; vSt2 = 252; vT = 253

def acc(i, c, t): return ACC + ((i * 2 + c) * 2 + t) * 4 if i < 10 else ACC + 160 + 4 * c
def wf(p, which): return (WA if p == 0 else WB) + which * 4
def nw(t): return NW + 4 * t
def xr(slot, c): return XR + slot * 8 + c * 4
def mf(d, A, B): return f"v_mfma_f32_16x16x32_bf16 v[{d}:{d+3}], v[{A}:{A+3}], v[{B}:{B+3}], v[{d}:{d+3}]"

def gemm_wave(a, cfg):
    lq = LQ(a)
    def x_read(step, i, slot):
        for c in range(2):
            r = xr(slot, c)
            off = 16384 + c * XC + i * 1024
            a(f"ds_read_b128 v[{r}:{r+3}], v{vXa} offset:{off}")
            lq.issue(('x', step, i))
    def w_read(step, c):
        p = step & 1
        for t in range(2):
            r = wf(p, c * 2 + t)
            for e in range(2):
                a(f"ds_read_b64_tr_b16 v[{r+2*e}:{r+2*e+1}], v{vWa+t} offset:{c*8192+e*1024}")
                lq.issue(('w', step))
    def w_xor(step):
        p = step & 1
        return [f"v_xor_b32 v{nw(t)+e}, 0x80008000, v{wf(p,2+t)+e}" for t in range(2) for e in range(4)]
    def bump(reg, step):
        d = STAGE if step % NSTAGE else -(NSTAGE - 1) * STAGE
        a(f"v_add_u32 v{reg}, {d & 0xffffffff:#x}, v{reg}")
    def step_code(s, tau0, barrier, nxt):
        p = s & 1
        if barrier:
            if G.CFG.get('gstamp'):
                a("s_memrealtime s[70:71]"); a("s_waitcnt lgkmcnt(0)")
                a("s_mov_b32 m0, s72"); a("v_writelane_b32 v255, s70, m0"); a("s_add_u32 s72, s72, 1")
            a("s_barrier")
            if G.CFG.get('gstamp'):
                a("s_memrealtime s[70:71]"); a("s_waitcnt lgkmcnt(0)")
                a("s_mov_b32 m0, s72"); a("v_writelane_b32 v255, s70, m0"); a("s_add_u32 s72, s72, 1")
        for i in range(T):
            tau = tau0 + i
            slot = tau % 4
            lq.wait(('x', s, i))
            if i < 10:
                ms = [mf(acc(i,0,0), wf(p,0), xr(slot,0)), mf(acc(i,0,1), wf(p,1), xr(slot,0)),
                      mf(acc(i,1,0), nw(0), xr(slot,0)), mf(acc(i,1,1), nw(1), xr(slot,0)),
                      mf(acc(i,0,0), wf(p,2), xr(slot,1)), mf(acc(i,0,1), wf(p,3), xr(slot,1)),
                      mf(acc(i,1,0), wf(p,0), xr(slot,1)), mf(acc(i,1,1), wf(p,1), xr(slot,1))]
            else:
                ms = [mf(acc(i,0,0), wf(p,0), xr(slot,0)), mf(acc(i,1,0), nw(0), xr(slot,0)),
                      mf(acc(i,0,0), wf(p,2), xr(slot,1)), mf(acc(i,1,0), wf(p,0), xr(slot,1))]
            xors = []
            for m in range(len(ms)):
                a(ms[m])
                if m == 0:
                    if i + 2 < T: x_read(s, i + 2, (tau + 2) % 4)
                    elif nxt:
                        if i + 2 == T: bump(vXa, s + 1)
                        x_read(s + 1, i + 2 - T, (tau + 2) % 4)
                if nxt and i == T - 6 and m == 4:
                    bump(vWa, s + 1); bump(vWa + 1, s + 1)
                if m == 3 and nxt and i == T - 5: w_read(s + 1, 0)
                if m == 3 and nxt and i == T - 4: w_read(s + 1, 1)
                if nxt and i == T - 2 and m == 4:
                    lq.wait(('w', s + 1))
                    xors = w_xor(s + 1)[4:]
                if nxt and i == T - 1 and m == 1:
                    xors = w_xor(s + 1)[:4]
                for _ in range(2):
                    if xors: a(xors.pop(0))
            for x in xors: a(x)
    if G.CFG.get('gstamp'):
        a("s_mov_b32 s72, 0"); a("v_mov_b32 v255, 0")
    for r in range(168): a(f"v_mov_b32 v{ACC+r}, 0")
    a("s_barrier")
    w_read(0, 0); w_read(0, 1)
    x_read(0, 0, 0); x_read(0, 1, 1)
    lq.wait(('w', 0))
    for x in w_xor(0): a(x)
    a("s_mov_b32 s46, 7")
    a.label("L_g_loop")
    q0 = list(lq.q)
    for u in range(4):
        step_code(u, u * T, True, True)
    q1 = [(t[0], t[1] - 4) + tuple(t[2:]) for t in lq.q]
    assert q0[len(q0)-len(q1):] == q1, (q0, q1)
    a("s_sub_u32 s46, s46, 1")
    a("s_cmp_lg_u32 s46, 0")
    a("s_cbranch_scc1 L_g_loop")
    lq.q = [(t[0], t[1] + 24) + tuple(t[2:]) for t in lq.q]
    step_code(28, 0 * T, True, True)
    step_code(29, 1 * T, True, True)
    if not G.CFG.get('k3_tail', True):
        step_code(30, 2 * T, True, True)
        step_code(31, 3 * T, False, False)
        a("s_nop 7")
    else:
        a("s_barrier")
    NW2 = 168; vXb = 253
    def epi_list(i, bb):
        l = []
        if i < 10:
            for c in range(2):
                dA = acc(i, c, bb); dB = acc(i, c, 1 - bb)
                l += [f"v_cvt_pk_bf16_f32 v{dA}, v{dA}, v{dA+1}", f"v_cvt_pk_bf16_f32 v{dA+1}, v{dA+2}, v{dA+3}",
                      f"v_cvt_pk_bf16_f32 v{dA+2}, v{dB}, v{dB+1}", f"v_cvt_pk_bf16_f32 v{dA+3}, v{dB+2}, v{dB+3}",
                      f"s_add_u32 s47, s48, {(c * G.YJ3 + i * 16 * 64) if G.CFG['y3'] else (c * G.YF_J + i * 16 * G.YF_ROW)}",
                      f"buffer_store_dwordx4 v[{dA}:{dA+3}], v{vSt}, s[16:19], s47 offen {G.CFG['k3_st']}"]
        else:
            for c in range(2):
                d = acc(10, c, 0)
                l += [f"v_cvt_pk_bf16_f32 v{d}, v{d}, v{d+1}", f"v_cvt_pk_bf16_f32 v{d+1}, v{d+2}, v{d+3}",
                      f"s_add_u32 s47, s49, {c * (G.YJ3 if G.CFG['y3'] else G.YF_J)}",
                      f"buffer_store_dwordx2 v[{d}:{d+1}], v{vSt2}, s[16:19], s47 offen {G.CFG['k3_st']}"]
        return l
    q_save = list(lq.q)
    for bb in range(2):
        if bb == 0:
            a("s_cmp_lg_u32 s13, 0"); a("s_cbranch_scc1 L_epi_b1")
        else:
            a.label("L_epi_b1")
        if not G.CFG.get('k3_tail', True):
            for i in range(T):
                for ins in epi_list(i, bb): a(ins)
        else:
            lq.q = list(q_save)
            bump(vWa, 31); bump(vWa + 1, 31)
            a(f"v_add_u32 v{vXb}, {STAGE}, v{vXa}")
            w_read(31, 0); w_read(31, 1)
            items = [(30, 0), (30, 1)]
            for i in range(T):
                if i + 2 < T: items.append((30, i + 2))
                items.append((31, i))
            def x_read2(step, i, slot):
                for c in range(2):
                    r = xr(slot, c)
                    off = 16384 + c * XC + i * 1024
                    a(f"ds_read_b128 v[{r}:{r+3}], v{vXa if step == 30 else vXb} offset:{off}")
                    lq.issue(('x', step, i))
            pend = []
            xored = False
            for n, (st, i) in enumerate(items):
                slot = (2 * T + n) % 4
                p = st & 1
                nwf = (lambda t: nw(t)) if st == 30 else (lambda t: NW2 + 4 * t)
                if st == 31 and not xored:
                    lq.wait(('w', 31))
                    for t in range(2):
                        for e in range(4): a(f"v_xor_b32 v{NW2+4*t+e}, 0x80008000, v{wf(1,2+t)+e}")
                    xored = True
                lq.wait(('x', st, i))
                if i < 10:
                    ms = [mf(acc(i,0,0), wf(p,0), xr(slot,0)), mf(acc(i,0,1), wf(p,1), xr(slot,0)),
                          mf(acc(i,1,0), nwf(0), xr(slot,0)), mf(acc(i,1,1), nwf(1), xr(slot,0)),
                          mf(acc(i,0,0), wf(p,2), xr(slot,1)), mf(acc(i,0,1), wf(p,3), xr(slot,1)),
                          mf(acc(i,1,0), wf(p,0), xr(slot,1)), mf(acc(i,1,1), wf(p,1), xr(slot,1))]
                else:
                    ms = [mf(acc(i,0,0), wf(p,0), xr(slot,0)), mf(acc(i,1,0), nwf(0), xr(slot,0)),
                          mf(acc(i,0,0), wf(p,2), xr(slot,1)), mf(acc(i,1,0), wf(p,0), xr(slot,1))]
                for m in range(len(ms)):
                    a(ms[m])
                    if m == 0 and n + 2 < len(items): x_read2(items[n + 2][0], items[n + 2][1], (2 * T + n + 2) % 4)
                    if m >= 1:
                        for _ in range(2):
                            if pend and pend[0][0] <= n - 1: a(pend.pop(0)[1])
                if st == 31:
                    pend += [(n + 1, ins) for ins in epi_list(i, bb)]
            a("s_nop 7")
            for _, ins in pend: a(ins)
        if bb == 0: a("s_branch L_epi_done")
    a.label("L_epi_done")
    if G.CFG.get('gstamp'):
        a("s_lshl_b32 s73, s2, 2"); a("s_add_u32 s73, s73, s15"); a("s_lshl_b32 s73, s73, 10")
        a(f"s_add_u32 s73, s73, {212 << 20}")
        a("v_mbcnt_lo_u32_b32 v254, -1, 0")
        a("v_mbcnt_hi_u32_b32 v254, -1, v254")
        a("v_lshlrev_b32 v254, 2, v254")
        a("buffer_store_dword v255, v254, s[16:19], s73 offen")
    a("s_endpgm")

def helper_wave(a, cfg):
    vDW = 1; vDX = 2
    sWo, sXo, sLW, sLX = 40, 41, 42, 43
    vD6 = 5; sX6 = 44
    def dma(buf):
        a(f"s_add_u32 m0, s{sLW}, {buf*STAGE}")
        for j in range(4):
            a(f"buffer_load_dwordx4 v{vDW}, s[16:19], s{sWo} offen offset:{j*1024} lds")
        a(f"s_add_u32 s{sWo}, s{sWo}, {G.WF_KS}")
        a(f"s_add_u32 m0, s{sLX}, {buf*STAGE}")
        for j in range(4):
            a(f"buffer_load_dwordx4 v{vDX}, s[16:19], s{sXo} offen offset:{j*1024} lds")
        a(f"s_add_u32 m0, s{sLX}, {buf*STAGE+4096}")
        a(f"s_add_u32 s49, s{sXo}, 4096")
        a(f"buffer_load_dwordx4 v{vDX}, s[16:19], s49 offen lds")
        a("s_mov_b64 exec, s[50:51]")
        a(f"buffer_load_dwordx4 v{vD6}, s[16:19], s{sX6} offen offset:1024 lds")
        a("s_mov_b64 exec, -1")
        a(f"s_add_u32 s{sXo}, s{sXo}, {G.XF_KS}")
        a(f"s_add_u32 s{sX6}, s{sX6}, {G.XF_KS}")
    for st in range(3): dma(st)
    a("s_waitcnt vmcnt(20)")
    a("s_barrier")
    a("s_mov_b32 s46, 7")
    a.label("L_h_loop")
    for u in range(4):
        a("s_waitcnt vmcnt(10)")
        a("s_barrier")
        dma((u + 3) % NSTAGE)
    a("s_sub_u32 s46, s46, 1")
    a("s_cmp_lg_u32 s46, 0")
    a("s_cbranch_scc1 L_h_loop")
    a("s_waitcnt vmcnt(10)"); a("s_barrier"); dma((28 + 3) % NSTAGE)
    a("s_waitcnt vmcnt(10)"); a("s_barrier")
    a("s_waitcnt vmcnt(0)"); a("s_barrier")
    if G.CFG.get('pf_late'):
        a("s_cmp_ge_u32 s2, 8"); a("s_cbranch_scc1 L_h_end")
        a("s_cmp_lg_u32 s15, 3"); a("s_cbranch_scc1 L_h_end")
        G.prefetch_code_fwd(a, "k3b", "final_kernel", "L_code_end", 3, 12, sp=60)
        a.label("L_h_end")
    a("s_endpgm")

def gen_k3c(cfg=None):
    a = Asm()
    name = 'gemm_kernel'
    G.kernel_header(a, name)
    a("s_cmp_ge_u32 s2, 256")
    a("s_cbranch_scc1 L_k3_end")
    a("s_load_dwordx2 s[8:9], s[0:1], 48")
    a(f"v_lshrrev_b32 v{vT}, 6, v0")
    a(f"v_and_b32 v0, 63, v0")
    a(f"v_readfirstlane_b32 s10, v{vT}")
    if G.CFG.get('pf_code'):
        a("s_cmp_ge_u32 s2, 8"); a("s_cbranch_scc1 L_nopf3")
        a("s_cmp_lg_u32 s10, 7"); a("s_cbranch_scc1 L_nopf3")
        G.prefetch_code(a, "k3", "gemm_kernel", "final_kernel", 4, 12, sp=60)
        a.label("L_nopf3")
    a("s_and_b32 s11, s2, 7")
    a("s_lshr_b32 s12, s2, 3")
    a("s_lshr_b32 s13, s12, 3")
    a("s_lshl_b32 s11, s11, 2")
    a("s_add_u32 s11, s11, s13")
    a("s_bfe_u32 s13, s12, 0x10002")
    a("s_and_b32 s14, s12, 3")
    a("s_and_b32 s15, s10, 3")
    a("s_waitcnt lgkmcnt(0)")
    G.make_srd(a, 16, 8, 9, G.WS_BYTES)
    a("s_cmp_ge_u32 s10, 4")
    a("s_cbranch_scc1 L_k3_helper")
    g = vT; c16 = vT + 1; t0 = vT + 2; t1 = XR; t2 = XR + 1
    a(f"v_lshrrev_b32 v{g}, 4, v0")
    a(f"v_and_b32 v{c16}, 15, v0")
    a(f"v_bfe_u32 v{t0}, v{c16}, 3, 1")
    a(f"v_mul_u32_u24 v{t0}, 3, v{t0}")
    a(f"v_xor_b32 v{t0}, v{t0}, v{g}")
    a(f"v_lshlrev_b32 v{t0}, 4, v{t0}")
    a(f"v_lshl_add_u32 v{vXa}, v{c16}, 6, v{t0}")
    a(f"v_lshrrev_b32 v{t0}, 2, v{c16}")
    a(f"v_and_b32 v{t1}, 1, v{g}")
    a(f"v_lshl_or_b32 v{t1}, v{t1}, 2, v{t0}")
    a(f"v_lshl_add_u32 v{t0}, v{g}, 3, v{t0}")
    a(f"v_lshlrev_b32 v{t0}, 8, v{t0}")
    a(f"v_and_b32 v{t2}, 3, v{c16}")
    a(f"v_lshl_add_u32 v{t0}, v{t2}, 3, v{t0}")
    a("s_lshl_b32 s20, s15, 1")
    a("s_add_u32 s20, s20, s13")
    for t in range(2):
        if t: a("s_xor_b32 s20, s20, 1")
        a(f"v_xor_b32 v{t2}, s20, v{t1}")
        a(f"v_lshl_add_u32 v{vWa+t}, v{t2}, 5, v{t0}")
    if G.CFG['y3']:
        a(f"v_lshlrev_b32 v{vSt}, 6, v{c16}")
        a(f"v_lshl_add_u32 v{vSt}, v{g}, 4, v{vSt}")
        a(f"v_and_b32 v{t0}, 7, v{c16}")
        a(f"v_lshlrev_b32 v{vSt2}, 6, v{t0}")
        a(f"v_lshrrev_b32 v{t1}, 3, v{c16}")
        a(f"v_xor_b32 v{t1}, s13, v{t1}")
        a(f"s_mov_b32 s22, {G.YB3}")
        a(f"v_mul_lo_u32 v{t1}, v{t1}, s22")
        a(f"v_add_u32 v{vSt2}, v{vSt2}, v{t1}")
        a(f"v_lshl_add_u32 v{vSt2}, v{g}, 4, v{vSt2}")
        a("s_lshl_b32 s22, s13, 3")
        a(f"v_add_u32 v{vSt2}, s22, v{vSt2}")
        a(f"v_cmp_gt_u32 vcc, 7, v{t0}")
        a(f"v_mov_b32 v{t1}, 0x80000000")
        a(f"v_cndmask_b32 v{vSt2}, v{t1}, v{vSt2}, vcc")
        a("s_lshl_b32 s20, s14, 2")
        a("s_add_u32 s20, s20, s15")
        a(f"s_mul_i32 s48, s20, {G.YS3}")
        a(f"s_mul_i32 s20, s11, {2*G.YJ3}")
        a("s_add_u32 s48, s48, s20")
        a(f"s_add_u32 s48, s48, {G.YF_BASE}")
        a(f"s_add_u32 s49, s48, {160*64}")
        a(f"s_mul_i32 s20, s13, {G.YB3}")
        a("s_add_u32 s48, s48, s20")
    else:
        a(f"s_mov_b32 s21, {G.YF_ROW}")
        a(f"v_mul_u32_u24 v{vSt}, s21, v{c16}")
        a(f"v_lshl_add_u32 v{vSt}, v{g}, 4, v{vSt}")
        a("s_lshl_b32 s23, s15, 6")
        a(f"v_add_u32 v{vSt}, s23, v{vSt}")
        a(f"v_and_b32 v{t0}, 7, v{c16}")
        a(f"v_mul_u32_u24 v{vSt2}, s21, v{t0}")
        a(f"v_lshrrev_b32 v{t1}, 3, v{c16}")
        a(f"v_xor_b32 v{t1}, s13, v{t1}")
        a(f"s_mov_b32 s22, {G.YF_B}")
        a(f"v_mul_lo_u32 v{t1}, v{t1}, s22")
        a(f"v_add_u32 v{vSt2}, v{vSt2}, v{t1}")
        a(f"v_lshl_add_u32 v{vSt2}, v{g}, 4, v{vSt2}")
        a("s_lshl_b32 s22, s13, 3")
        a("s_add_u32 s22, s22, s23")
        a(f"v_add_u32 v{vSt2}, s22, v{vSt2}")
        a(f"v_cmp_gt_u32 vcc, 7, v{t0}")
        a(f"v_mov_b32 v{t1}, 0x80000000")
        a(f"v_cndmask_b32 v{vSt2}, v{t1}, v{vSt2}, vcc")
        a(f"s_mul_i32 s48, s11, {2*G.YF_J}")
        a("s_lshl_b32 s20, s14, 8")
        a("s_add_u32 s48, s48, s20")
        a(f"s_add_u32 s48, s48, {G.YF_BASE}")
        a(f"s_add_u32 s49, s48, {160*G.YF_ROW}")
        a(f"s_mul_i32 s20, s13, {G.YF_B}")
        a("s_add_u32 s48, s48, s20")
    gemm_wave(a, cfg)
    a.label("L_k3_helper")
    a(f"s_mul_i32 s40, s11, {G.WF_K}")
    a(f"s_mul_i32 s20, s14, {G.WF_DQ}")
    a("s_add_u32 s40, s40, s20")
    if G.WF_BASE: a(f"s_add_u32 s40, s40, {G.WF_BASE}")
    a(f"s_mul_i32 s41, s11, {G.XF_K}")
    a(f"s_mul_i32 s20, s13, {G.XF_B}")
    a("s_add_u32 s41, s41, s20")
    a(f"s_add_u32 s41, s41, {G.XF_BASE}")
    a("s_lshl_b32 s42, s15, 12")
    a("s_mul_i32 s43, s15, 5632")
    a("s_lshr_b32 s20, s15, 1")
    a("s_lshl_b32 s21, s20, 9")
    a("s_sub_u32 s21, s43, s21")
    a("v_lshlrev_b32 v1, 4, v0")
    a("v_add_u32 v2, s21, v1")
    a("s_add_u32 s22, s21, 4096")
    a("v_add_u32 v5, s22, v1")
    a("s_mov_b32 s44, s41")
    a("s_bitcmp1_b32 s15, 0")
    a("s_cbranch_scc0 L_six_even")
    a(f"s_mul_i32 s22, s20, 10752")
    a(f"s_add_u32 s22, s22, {10240-1024}")
    a("v_lshrrev_b32 v5, 2, v0"); a("v_lshlrev_b32 v5, 6, v5")
    a("v_and_b32 v3, 3, v0"); a("v_xor_b32 v3, 3, v3"); a("v_lshl_add_u32 v5, v3, 4, v5")
    a("v_add_u32 v5, s22, v5")
    a(f"s_mul_i32 s44, s11, {G.XF_K}")
    a("s_xor_b32 s22, s13, 1")
    a(f"s_mul_i32 s22, s22, {G.XF_B}")
    a("s_add_u32 s44, s44, s22")
    a(f"s_add_u32 s44, s44, {G.XF_BASE}")
    a.label("L_six_even")
    a("s_mov_b32 s50, -1"); a("s_mov_b32 s51, 0")
    a("v_add_u32 v1, s42, v1")
    a("s_add_u32 s43, s43, 16384")
    a("s_cmp_ge_u32 s2, 8"); a("s_cbranch_scc1 L_nozero")
    a("s_cmp_lg_u32 s15, 0"); a("s_cbranch_scc1 L_nozero")
    a(f"s_mul_i32 s20, s2, {G.CNT_STRIDE}"); a(f"s_add_u32 s20, s20, {G.CNT_BASE}")
    a("v_mov_b32 v3, 0"); a("v_lshlrev_b32 v4, 2, v0")
    a("buffer_store_dword v3, v4, s[16:19], s20 offen")
    a.label("L_nozero")
    a("s_cmp_ge_u32 s2, 224"); a("s_cbranch_scc1 L_nofill")
    a("s_cmp_lg_u32 s15, 1"); a("s_cbranch_scc1 L_nofill")
    a("s_lshl_b32 s20, s2, 10"); a(f"s_add_u32 s20, s20, {G.PART_BASE}")
    a("v_mov_b32 v8, -1"); a("v_mov_b32 v9, -1"); a("v_mov_b32 v10, -1"); a("v_mov_b32 v11, -1"); a("v_lshlrev_b32 v4, 4, v0")
    a("buffer_store_dwordx4 v[8:11], v4, s[16:19], s20 offen")
    a.label("L_nofill")
    helper_wave(a, cfg)
    a.label("L_k3_end")
    a("s_endpgm")
    return name, a.lines, 256, (256, 512, LDS_BYTES)
```

```python
from asmlib import *
import gen as G
import math, struct
f2h = lambda x: "0x%08x" % struct.unpack('<I', struct.pack('<f', x))[0]

RAW = 0
AF = 64
BF = 88
ACC = 104
VT = 200
NG = 28
L_TAB = 0; L_PART = 8192; L_SUM = L_PART + 6 * 4096; L_OFF = L_SUM + 1024
LDS = L_OFF + 6 * 8192

def hreg(o, dd, rp): return ACC + (o * 8 + dd) * 4 + rp

def gen_k45g(cfg=None):
    cfg = cfg or G.CFG
    a = Asm()
    def st(i):
        if cfg.get('fstamp'):
            a("s_memrealtime s[70:71]"); a("s_waitcnt lgkmcnt(0)"); a(f"v_writelane_b32 v244, s70, {i}")
    name = 'final_kernel'
    G.kernel_header(a, name)
    vLane = VT; vR = VT+1; vG = VT+2; vOff = VT+3; vT0 = VT+4
    VTID4 = 214; PA = 216; PB = 224; GB = 232
    st(0)
    a(f"s_cmp_ge_u32 s2, {2*NG*4}")
    a("s_cbranch_scc1 L_k45_end")
    a("s_load_dwordx2 s[8:9], s[0:1], 48")
    a("s_load_dwordx4 s[4:7], s[0:1], 16")
    a("s_load_dwordx2 s[28:29], s[0:1], 32")
    a(f"v_lshrrev_b32 v{vT0}, 6, v0")
    a(f"v_and_b32 v{vLane}, 63, v0")
    a(f"v_readfirstlane_b32 s10, v{vT0}")
    if cfg.get('pf_code'):
        a("s_cmp_ge_u32 s2, 8"); a("s_cbranch_scc1 L_nopf45")
        a("s_cmp_lg_u32 s10, 7"); a("s_cbranch_scc1 L_nopf45")
        G.prefetch_code(a, "k45", "final_kernel", "L_code_end", 3, ACC + 8, sp=60)
        a.label("L_nopf45")
    a(f"v_lshlrev_b32 v{VTID4}, 2, v0")
    a(f"v_and_b32 v{vR}, 15, v{vLane}")
    a(f"v_lshrrev_b32 v{vG}, 4, v{vLane}")
    a("s_and_b32 s13, s2, 3")
    a("s_lshr_b32 s12, s2, 2")
    a(f"s_cmp_ge_u32 s12, {NG}")
    a("s_cselect_b32 s11, 1, 0")
    a(f"s_mul_i32 s15, s11, {NG}")
    a("s_sub_u32 s12, s12, s15")
    a("s_mul_i32 s14, s12, 6")
    a("s_add_u32 s14, s14, s10")
    if cfg['y3']:
        a(f"s_mov_b32 s24, {8*G.YJ3}")
        a(f"v_mul_u32_u24 v{vOff}, s24, v{vG}")
        a(f"v_lshrrev_b32 v{vT0+1}, 2, v{vR}")
        a(f"s_mov_b32 s24, {G.YS3}")
        a(f"v_mad_u32_u24 v{vOff}, v{vT0+1}, s24, v{vOff}")
        a(f"v_and_b32 v{vT0+1}, 3, v{vR}")
        a(f"v_lshl_add_u32 v{vOff}, v{vT0+1}, 4, v{vOff}")
        a(f"s_mul_i32 s24, s11, {G.YB3}")
        a(f"s_mul_i32 s25, s13, {4*G.YS3}")
        a("s_add_u32 s24, s24, s25")
        a("s_lshl_b32 s25, s14, 6")
        a("s_add_u32 s24, s24, s25")
        a(f"s_add_u32 s24, s24, {G.YF_BASE}")
    else:
        a(f"s_mov_b32 s24, {8*G.YF_J}")
        a(f"v_mul_u32_u24 v{vOff}, s24, v{vG}")
        a(f"v_lshl_add_u32 v{vOff}, v{vR}, 4, v{vOff}")
        a(f"s_mul_i32 s24, s11, {G.YF_B}")
        a(f"s_mul_i32 s25, s14, {G.YF_ROW}")
        a("s_add_u32 s24, s24, s25")
        a("s_lshl_b32 s25, s13, 8")
        a("s_add_u32 s24, s24, s25")
        a(f"s_add_u32 s24, s24, {G.YF_BASE}")
    a("s_mov_b32 s30, 0x05040100")
    a("s_mov_b32 s31, 0x07060302")
    a("s_waitcnt lgkmcnt(0)")
    st(6)
    G.make_srd(a, 16, 8, 9, G.WS_BYTES)
    a("s_cmp_ge_u32 s10, 6")
    a("s_cbranch_scc1 L_k45_gb")
    for s in range(2):
        for i in range(8):
            r = RAW + 4 * (8 * s + i)
            a(f"s_add_u32 s25, s24, {(32*s+i)*(G.YJ3 if cfg['y3'] else G.YF_J)}")
            a(f"buffer_load_dwordx4 v[{r}:{r+3}], v{vOff}, s[16:19], s25 offen")
    st(8)
    vN = vT0; vA = vT0+1; vP = BF
    a("s_lshr_b32 s27, s10, 1")
    a("s_and_b32 s33, s10, 1")
    a("s_lshl_b32 s27, s27, 4")
    a(f"v_add_u32 v{vN}, s27, v{vR}")
    a("s_lshl_b32 s33, s33, 5")
    a("s_add_u32 s33, s33, 1")
    a(f"v_lshlrev_b32 v{vA}, 3, v{vG}")
    a(f"v_add_u32 v{vA}, s33, v{vA}")
    for e2 in range(4):
        a(f"v_mul_u32_u24 v{vP+2*e2}, v{vA}, v{vN}")
        a(f"v_add_u32 v{vP+2*e2+1}, 32, v{vP+2*e2}")
        if e2 < 3: a(f"v_add_u32 v{vA}, 2, v{vA}")
    G.cos_table(a, None, [vP+e for e in range(8)], ACC, ACC+4, scale="0x3d000000")
    a("s_lshl_b32 s26, s10, 10")
    a(f"v_lshlrev_b32 v{vT0+3}, 4, v{vLane}")
    a(f"v_add_u32 v{vT0+3}, s26, v{vT0+3}")
    a(f"ds_write_b128 v{vT0+3}, v[{ACC}:{ACC+3}] offset:{L_TAB}")
    a.label("L_k45_gb")
    if cfg.get('pf_tlb'):
        a("s_cmp_lg_u32 s10, 6"); a("s_cbranch_scc1 L_notlb45")
        a(f"s_mul_i32 s24, s11, {G.OUT_B}")
        a("s_add_u32 s40, s28, s24"); a("s_addc_u32 s41, s29, 0")
        G.make_srd(a, 44, 40, 41, G.OUT_B)
        a("s_mul_i32 s24, s12, %d" % (6 * 48 * 1024))
        a(f"v_lshlrev_b32 v{ACC+8}, 13, v{vLane}")
        a(f"buffer_load_dword v{ACC+9}, v{ACC+8}, s[44:47], s24 offen")
        a.label("L_notlb45")
    G.make_srd(a, 20, 4, 5, 1024)
    G.make_srd(a, 36, 6, 7, 1024)
    a(f"v_lshlrev_b32 v{vT0+6}, 4, v{vR}")
    a("s_lshl_b32 s25, s13, 8")
    a(f"buffer_load_dwordx4 v[{GB}:{GB+3}], v{vT0+6}, s[20:23], s25 offen")
    a(f"buffer_load_dwordx4 v[{GB+4}:{GB+7}], v{vT0+6}, s[36:39], s25 offen")
    st(1)
    a("s_waitcnt lgkmcnt(0)")
    a("s_barrier")
    a("s_cmp_ge_u32 s10, 6")
    a("s_cbranch_scc1 L_k45_red2")
    a(f"v_lshlrev_b32 v{vT0+3}, 4, v{vLane}")
    for o in range(3):
        for s in range(2):
            r = AF + 4 * (2 * o + s)
            a(f"ds_read_b128 v[{r}:{r+3}], v{vT0+3} offset:{L_TAB+(2*o+s)*1024}")
    S1 = PA; S2 = PB
    a(f"s_cmp_ge_u32 s14, {G.NBLK}")
    a("s_cbranch_scc1 L_k45_zero")
    a("s_waitcnt lgkmcnt(0)")
    a(f"s_cmp_lg_u32 s14, {G.NBLK-1}")
    a("s_cbranch_scc1 L_k45_full")
    lastn = G.L_OUT - 48 * (G.NBLK - 1)
    for o in range(3):
        nvalid = lastn - 16 * o
        a(f"v_cmp_gt_i32 vcc, {max(nvalid,0)}, v{vR}")
        for r in range(8):
            a(f"v_cndmask_b32 v{AF+8*o+r}, 0, v{AF+8*o+r}, vcc")
    a.label("L_k45_full")
    a("s_waitcnt vmcnt(2)")
    st(2)
    for q in range(4):
        for s in range(2):
            for h in range(2):
                for e in range(4):
                    a(f"v_perm_b32 v{BF+(s*2+h)*4+e}, v{RAW+4*(8*s+2*e+1)+q}, v{RAW+4*(8*s+2*e)+q}, s{30+h}")
        for s in range(2):
            for o in range(3):
                for h in range(2):
                    d = ACC + (o * 8 + 2 * q + h) * 4
                    A = AF + 4 * (2 * o + s); B = BF + (s * 2 + h) * 4
                    c = "0" if s == 0 else f"v[{d}:{d+3}]"
                    a(f"v_mfma_f32_16x16x32_bf16 v[{d}:{d+3}], v[{A}:{A+3}], v[{B}:{B+3}], {c}")
    st(3)
    a("s_nop 7")
    for dd in range(8):
        first = True
        for o in range(3):
            for rp in range(4):
                h = hreg(o, dd, rp)
                if first:
                    a(f"v_mul_f32 v{S2+dd}, v{h}, v{h}"); a(f"v_mov_b32 v{S1+dd}, v{h}"); first = False
                else:
                    a(f"v_fmac_f32 v{S2+dd}, v{h}, v{h}"); a(f"v_add_f32 v{S1+dd}, v{S1+dd}, v{h}")
    a("s_branch L_k45_red")
    a.label("L_k45_zero")
    a("s_waitcnt vmcnt(0) lgkmcnt(0)")
    for r in range(8):
        a(f"v_mov_b32 v{S1+r}, 0"); a(f"v_mov_b32 v{S2+r}, 0")
    a.label("L_k45_red")
    st(4)
    a("s_lshl_b32 s25, s10, 12")
    a(f"v_lshlrev_b32 v{vT0}, 10, v{vG}")
    a(f"v_lshl_add_u32 v{vT0}, v{vR}, 5, v{vT0}")
    a(f"v_add_u32 v{vT0}, s25, v{vT0}")
    a(f"ds_write_b128 v{vT0}, v[{S1}:{S1+3}] offset:{L_PART}")
    a(f"ds_write_b128 v{vT0}, v[{S1+4}:{S1+7}] offset:{L_PART+16}")
    a(f"ds_write_b128 v{vT0}, v[{S2}:{S2+3}] offset:{L_PART+512}")
    a(f"ds_write_b128 v{vT0}, v[{S2+4}:{S2+7}] offset:{L_PART+512+16}")
    a("s_lshl_b32 s25, s10, 13")
    a(f"v_lshlrev_b32 v{vT0+1}, 4, v{vLane}")
    a(f"v_add_u32 v{vT0+1}, s25, v{vT0+1}")
    for dd in range(8):
        h = hreg(2, dd, 0)
        a(f"ds_write_b96 v{vT0+1}, v[{h}:{h+2}] offset:{L_OFF+dd*1024}")
    a.label("L_k45_red2")
    a("s_waitcnt lgkmcnt(0)")
    a("s_barrier")
    a(f"s_mul_i32 s24, s11, {4*NG}")
    a(f"s_mul_i32 s25, s13, {NG}")
    a("s_add_u32 s24, s24, s25")
    a("s_lshl_b32 s26, s24, 10")
    a(f"s_add_u32 s26, s26, {G.PART_BASE}")
    a("s_cmp_ge_u32 s10, 6")
    a("s_cbranch_scc1 L_k45_hread")
    a("s_cmp_ge_u32 s10, 4")
    a("s_cbranch_scc1 L_k45_sumdone")
    for p in range(24):
        a(f"ds_read_b32 v{RAW+16+p}, v{VTID4} offset:{L_PART+p*1024}")
    a("s_waitcnt lgkmcnt(0)")
    vals = [RAW + 16 + p for p in range(24)]
    while len(vals) > 1:
        nv = []
        for i in range(0, len(vals) - 1, 2):
            a(f"v_add_f32 v{vals[i]}, v{vals[i]}, v{vals[i+1]}"); nv.append(vals[i])
        if len(vals) & 1: nv.append(vals[-1])
        vals = nv
    a("s_lshl_b32 s24, s12, 10")
    a("s_add_u32 s24, s24, s26")
    a(f"buffer_store_dword v{vals[0]}, v{VTID4}, s[16:19], s24 offen sc1")
    st(5)
    PT = RAW
    a(f"s_mov_b32 s33, {1 << 14}")
    a.label("L_k45_poll")
    a("s_mov_b32 s27, s26")
    for p in range(NG):
        if p % 4 == 0 and p: a("s_add_u32 s27, s27, 4096")
        a(f"buffer_load_dword v{PT+p}, v{VTID4}, s[16:19], s27 offen offset:{(p%4)*1024} sc1")
    a("s_waitcnt vmcnt(0)")
    t = RAW + 32
    a(f"v_max3_u32 v{t}, v{PT}, v{PT+1}, v{PT+2}")
    for p in range(3, NG - 1, 2):
        a(f"v_max3_u32 v{t}, v{t}, v{PT+p}, v{PT+p+1}")
    a(f"v_max_u32 v{t}, v{t}, v{PT+NG-1}")
    a(f"v_cmp_eq_u32 vcc, -1, v{t}")
    a("s_cmp_eq_u64 vcc, 0")
    a("s_cbranch_scc1 L_k45_got")
    a("s_sub_u32 s33, s33, 1")
    a("s_cmp_eq_u32 s33, 0")
    a("s_cbranch_scc1 L_k45_got")
    if cfg.get('k45_sleep'): a(f"s_sleep {cfg['k45_sleep']}")
    a("s_branch L_k45_poll")
    a.label("L_k45_got")
    st(7)
    vals = [PT + p for p in range(NG)]
    while len(vals) > 1:
        nv = []
        for i in range(0, len(vals) - 1, 2):
            a(f"v_add_f32 v{vals[i]}, v{vals[i]}, v{vals[i+1]}"); nv.append(vals[i])
        if len(vals) & 1: nv.append(vals[-1])
        vals = nv
    a(f"ds_write_b32 v{VTID4}, v{vals[0]} offset:{L_SUM}")
    a("s_branch L_k45_sumdone")
    a.label("L_k45_hread")
    a("s_waitcnt vmcnt(0)")
    a("s_sub_u32 s25, s10, 6")
    a("s_mul_i32 s25, s25, 3")
    a("s_lshl_b32 s25, s25, 13")
    a(f"v_lshlrev_b32 v{vT0+1}, 4, v{vLane}")
    a(f"v_add_u32 v{vT0+1}, s25, v{vT0+1}")
    for j in range(3):
        for dd in range(8):
            h = hreg(j, dd, 0)
            a(f"ds_read_b96 v[{h}:{h+2}], v{vT0+1} offset:{L_OFF+j*8192+dd*1024}")
            if dd == 7: a("s_waitcnt lgkmcnt(0)")
    a.label("L_k45_sumdone")
    st(9)
    a("s_waitcnt lgkmcnt(0)")
    a("s_barrier")
    ST = RAW + 44
    a(f"v_lshlrev_b32 v{vT0+6}, 5, v{vR}")
    a(f"ds_read_b128 v[{ST}:{ST+3}], v{vT0+6} offset:{L_SUM}")
    a(f"ds_read_b128 v[{ST+4}:{ST+7}], v{vT0+6} offset:{L_SUM+16}")
    a(f"ds_read_b128 v[{ST+8}:{ST+11}], v{vT0+6} offset:{L_SUM+512}")
    a(f"ds_read_b128 v[{ST+12}:{ST+15}], v{vT0+6} offset:{L_SUM+512+16}")
    a(f"s_mov_b32 s24, {f2h(1.0 / G.L_OUT)}")
    a("s_mov_b32 s25, 0x3727c5ac")
    a("s_waitcnt vmcnt(0) lgkmcnt(0)")
    for dd in range(8):
        mu = ST + dd; m2 = ST + 8 + dd
        a(f"v_mul_f32 v{mu}, s24, v{mu}")
        a(f"v_mul_f32 v{m2}, s24, v{m2}")
        a(f"v_fma_f32 v{m2}, -v{mu}, v{mu}, v{m2}")
        a(f"v_max_f32 v{m2}, 0, v{m2}")
        a(f"v_add_f32 v{m2}, s25, v{m2}")
        a(f"v_rsq_f32 v{m2}, v{m2}")
        gsrc = GB + (dd >> 1); bsrc = GB + 4 + (dd >> 1)
        if dd & 1:
            a(f"v_and_b32 v{PA+dd}, 0xffff0000, v{gsrc}"); a(f"v_and_b32 v{PB+dd}, 0xffff0000, v{bsrc}")
        else:
            a(f"v_lshlrev_b32 v{PA+dd}, 16, v{gsrc}"); a(f"v_lshlrev_b32 v{PB+dd}, 16, v{bsrc}")
        a(f"v_mul_f32 v{PA+dd}, v{PA+dd}, v{m2}")
        a(f"v_fma_f32 v{PB+dd}, -v{mu}, v{PA+dd}, v{PB+dd}")
    a(f"s_mul_i32 s24, s11, {G.OUT_B}")
    a("s_add_u32 s28, s28, s24")
    a("s_addc_u32 s29, s29, 0")
    G.make_srd(a, 32, 28, 29, G.OUT_B)
    vO = vT0 + 6
    a("s_lshl_b32 s25, s13, 8")
    a(f"v_lshlrev_b32 v{vO}, 12, v{vG}")
    a(f"v_lshl_add_u32 v{vO}, v{vR}, 4, v{vO}")
    a(f"v_add_u32 v{vO}, s25, v{vO}")
    c0 = -2.0 * math.log2(math.e) * math.sqrt(2.0 / math.pi); c1 = c0 * 0.044715
    a(f"s_mov_b32 s26, {f2h(c1)}")
    a(f"v_mov_b32 v{vT0+7}, {f2h(c0)}")
    st(10)
    T0 = RAW
    cnt = [0]
    def gelu_row(regs, soff_imm):
        ob = RAW + 16 + 4 * (cnt[0] % 8); cnt[0] += 1
        for dd in range(8): a(f"v_fma_f32 v{regs[dd]}, v{regs[dd]}, v{PA+dd}, v{PB+dd}")
        for dd in range(8): a(f"v_mul_f32 v{T0+dd}, v{regs[dd]}, v{regs[dd]}")
        for dd in range(8): a(f"v_fma_f32 v{T0+dd}, v{T0+dd}, s26, v{vT0+7}")
        for dd in range(8): a(f"v_mul_f32 v{T0+dd}, v{T0+dd}, v{regs[dd]}")
        for dd in range(8): a(f"v_exp_f32 v{T0+dd}, v{T0+dd}")
        for dd in range(8): a(f"v_add_f32 v{T0+dd}, 1.0, v{T0+dd}")
        for dd in range(8): a(f"v_rcp_f32 v{T0+dd}, v{T0+dd}")
        for dd in range(8): a(f"v_mul_f32 v{T0+dd}, v{T0+dd}, v{regs[dd]}")
        for q in range(4): a(f"v_cvt_pk_bf16_f32 v{ob+q}, v{T0+2*q}, v{T0+2*q+1}")
        a(f"s_add_u32 s27, s24, {soff_imm}")
        a(f"buffer_store_dwordx4 v[{ob}:{ob+3}], v{vO}, s[32:35], s27 offen {cfg['k5_st']}")
    a("s_cmp_ge_u32 s10, 6")
    a("s_cbranch_scc1 L_k45_hgelu")
    a(f"s_cmp_ge_u32 s14, {G.NBLK}")
    a("s_cbranch_scc1 L_k45_fin")
    a("s_mul_i32 s24, s14, %d" % (48 * 1024))
    for o in range(3):
        for rp in range(4):
            if o == 2 and rp < 3: continue
            gelu_row([hreg(o, dd, rp) for dd in range(8)], (16 * o + rp) * 1024)
    a("s_branch L_k45_fin")
    a.label("L_k45_hgelu")
    a("s_sub_u32 s25, s10, 6")
    a("s_mul_i32 s25, s25, 3")
    a("s_mul_i32 s24, s12, 6")
    a("s_add_u32 s24, s24, s25")
    a("s_mul_i32 s24, s24, %d" % (48 * 1024))
    for j in range(3):
        for rp in range(3):
            gelu_row([hreg(j, dd, rp) for dd in range(8)], j * 48 * 1024 + (32 + rp) * 1024)
    a.label("L_k45_fin")
    st(11)
    if cfg.get('fstamp'):
        a("s_waitcnt vmcnt(0)")
        st(12)
        a("s_lshl_b32 s73, s2, 3"); a("s_add_u32 s73, s73, s10"); a("s_lshl_b32 s73, s73, 8")
        a(f"s_add_u32 s73, s73, {214 << 20}")
        a(f"v_lshlrev_b32 v245, 2, v{vLane}")
        a("buffer_store_dword v244, v245, s[16:19], s73 offen")
    a.label("L_k45_end")
    a("s_endpgm")
    return name, a.lines, 248 if cfg.get('fstamp') else 240, (2 * NG * 4, 512, LDS)
```

```python
from asmlib import *
import gen as G

def gen_k12q(cfg=None):
    cfg = cfg or G.CFG
    a = Asm()
    name = 'xform_kernel'
    G.kernel_header(a, name)
    NX = 2 * G.NGRP * 8
    NW = 1024
    NT = NX + NW
    NWG = cfg.get('k12_nwg', 256)
    st = cfg['k12_st']; ld = cfg.get('k12_ld', '')
    BUF = [0, 64]; AF = 128; BF = 160; ACC = 176; VT = 208
    vLane = VT; vR = VT+1; vG = VT+2; vOff = VT+3; vSt = VT+4; vT0 = VT+5
    vNext = VT + 13; vZ = VT + 14; vL16 = VT + 15
    vXo = VT + 16; vWo = VT + 17; vXs = VT + 18; vWs = VT + 19
    NV = 232
    sCur, sNxt = 40, 42
    a(f"s_cmp_ge_u32 s2, {NWG}")
    a("s_cbranch_scc1 L_k12_end")
    a("s_load_dwordx4 s[4:7], s[0:1], 0")
    a("s_load_dwordx4 s[36:39], s[0:1], 40")
    if cfg.get('pf_code'):
        a(f"v_lshrrev_b32 v{vT0}, 6, v0")
        a("s_cmp_ge_u32 s2, 8"); a("s_cbranch_scc1 L_nopf12")
        a(f"v_readfirstlane_b32 s10, v{vT0}")
        a("s_cmp_lg_u32 s10, 3"); a("s_cbranch_scc1 L_nopf12")
        G.prefetch_code(a, "k12", "xform_kernel", "L_code_end", 10, ACC + 8, sp=60)
        a.label("L_nopf12")
    a(f"v_and_b32 v{vLane}, 63, v0")
    a(f"v_lshrrev_b32 v{vT0}, 6, v0")
    a(f"v_and_b32 v{vR}, 15, v{vLane}")
    a(f"v_readfirstlane_b32 s10, v{vT0}")
    a(f"v_lshrrev_b32 v{vG}, 4, v{vLane}")
    a(f"v_lshlrev_b32 v{vL16}, 4, v{vLane}")
    a(f"v_mov_b32 v{vZ}, 0")
    a("s_mov_b32 s30, 0x05040100")
    a("s_mov_b32 s31, 0x07060302")
    a("s_mov_b32 s32, 0x01000100")
    a("s_mov_b32 s33, 0x03020302")
    a(f"s_mov_b32 s{sCur}, s2")
    a(f"s_add_u32 s{sNxt}, s2, {NWG}")
    a("s_mov_b32 s41, 0")
    remap_later = True
    a("s_mov_b32 s43, 0")
    a(f"v_lshlrev_b32 v{vXo}, 14, v{vG}")
    a(f"v_lshl_add_u32 v{vXo}, v{vR}, 4, v{vXo}")
    a(f"v_lshlrev_b32 v{vWo}, 22, v{vG}")
    a(f"v_lshrrev_b32 v{vT0}, 2, v{vR}")
    a(f"v_lshl_add_u32 v{vWo}, v{vT0}, 6, v{vWo}")
    a(f"v_and_b32 v{vT0}, 1, v{vR}")
    a(f"v_lshl_add_u32 v{vWo}, v{vT0}, 5, v{vWo}")
    a(f"v_bfe_u32 v{vT0}, v{vR}, 1, 1")
    a(f"v_lshl_add_u32 v{vWo}, v{vT0}, 3, v{vWo}")
    XF2 = cfg['xf2']
    if XF2:
        a(f"v_lshrrev_b32 v{vT0}, 3, v{vR}")
        a(f"s_mov_b32 s24, {G.XF_KP}")
        a(f"v_mul_u32_u24 v{vXs}, s24, v{vT0}")
        a(f"v_bfe_u32 v{vT0}, v{vR}, 2, 1")
        a(f"v_lshl_add_u32 v{vXs}, v{vT0}, 6, v{vXs}")
        a(f"s_mov_b32 s24, {2*G.XF2_K}")
        a(f"v_mad_u32_u24 v{vXs}, v{vG}, s24, v{vXs}")
    else:
        a(f"v_lshrrev_b32 v{vT0}, 2, v{vR}")
        a(f"s_mov_b32 s24, {G.XF_KS}")
        a(f"v_mul_u32_u24 v{vXs}, s24, v{vT0}")
        a(f"s_mov_b32 s24, {2*G.XF_K}")
        a(f"v_mad_u32_u24 v{vXs}, v{vG}, s24, v{vXs}")
    a(f"s_mov_b32 s24, {2*G.WF_K}")
    a(f"v_mul_u32_u24 v{vWs}, s24, v{vG}")
    a("s_waitcnt lgkmcnt(0)")
    G.make_srd(a, 16, 38, 39, G.WS_BYTES)
    G.make_srd(a, 44, 36, 37, 256)
    if cfg.get('pf_tlb'):
        a("s_cmp_ge_u32 s2, 8"); a("s_cbranch_scc1 L_notlb")
        a("s_cmp_lg_u32 s10, 2"); a("s_cbranch_scc1 L_notlb")
        a(f"v_lshlrev_b32 v{ACC+8}, 21, v{vLane}")
        a(f"buffer_load_dword v{ACC+9}, v{ACC+8}, s[16:19], 0 offen")
        a(f"s_mov_b32 s24, {128 << 20}")
        a(f"v_cmp_gt_u32 vcc, 8, v{vLane}")
        a("s_and_saveexec_b64 s[26:27], vcc")
        a(f"buffer_load_dword v{ACC+10}, v{ACC+8}, s[16:19], s24 offen")
        a("s_mov_b64 exec, s[26:27]")
        a.label("L_notlb")
    uid = [0]
    MIX = cfg.get('k12_mix')
    def remap(sr):
        if not MIX: return
        u = uid[0]; uid[0] += 1
        if MIX >= 3:
            a(f"s_cmp_ge_u32 s{sr}, {2*NX}")
            a(f"s_cbranch_scc1 L_rm{u}")
            a(f"s_lshr_b32 s28, s{sr}, 1")
            a(f"s_add_u32 s29, s28, {NX}")
            a(f"s_bitcmp1_b32 s{sr}, 0")
            if MIX == 3: a(f"s_cselect_b32 s{sr}, s29, s28")
            else: a(f"s_cselect_b32 s{sr}, s28, s29")
            a.label(f"L_rm{u}")
            return
        a(f"s_cmp_ge_u32 s{sr}, 1680")
        a(f"s_cbranch_scc1 L_rm{u}")
        a(f"s_mul_i32 s26, s{sr}, 52429")
        a("s_lshr_b32 s26, s26, 18")
        a("s_mul_i32 s27, s26, 5")
        a(f"s_sub_u32 s27, s{sr}, s27")
        if MIX == 1:
            a("s_lshl_b32 s28, s26, 1"); a("s_add_u32 s28, s28, s27")
            a("s_mul_i32 s29, s26, 3"); a("s_add_u32 s29, s29, s27"); a(f"s_add_u32 s29, s29, {NX-2}")
            a("s_cmp_lt_u32 s27, 2")
        else:
            a("s_lshr_b32 s28, s27, 1"); a("s_lshl_b32 s29, s26, 1"); a("s_add_u32 s28, s28, s29")
            a("s_add_u32 s29, s27, 1"); a("s_lshr_b32 s29, s29, 1"); a("s_mul_i32 s27, s26, 3") if False else None
            a("s_mul_i32 s35, s26, 3"); a("s_add_u32 s29, s29, s35"); a(f"s_add_u32 s29, s29, {NX}")
            a("s_sub_u32 s29, s29, 0")
            a("s_bitcmp1_b32 s27, 0")
        a(f"s_cselect_b32 s{sr}, s28, s29")
        a.label(f"L_rm{u}")
    def issue_loads(sIdx, buf):
        u = uid[0]; uid[0] += 1
        a(f"s_cmp_ge_u32 s{sIdx}, {NT}")
        a(f"s_cbranch_scc1 L_ld_done{u}")
        a(f"s_cmp_ge_u32 s{sIdx}, {NX}")
        a(f"s_cbranch_scc1 L_ld_w{u}")
        a(f"s_cmp_ge_u32 s{sIdx}, 336")
        a("s_cselect_b32 s11, 1, 0")
        a("s_mul_i32 s12, s11, 336")
        a(f"s_sub_u32 s12, s{sIdx}, s12")
        a("s_and_b32 s13, s12, 7")
        a("s_lshr_b32 s14, s12, 3")
        a("s_lshl_b32 s14, s14, 2")
        a("s_add_u32 s14, s14, s10")
        a(f"s_mul_i32 s15, s11, {G.X_BYTES_B}")
        a("s_add_u32 s34, s4, s15")
        a("s_addc_u32 s35, s5, 0")
        G.make_srd(a, 20, 34, 35, G.X_BYTES_B)
        a("s_mul_i32 s15, s14, %d" % (48 * 2048))
        a("s_lshl_b32 s24, s13, 8")
        a("s_add_u32 s15, s15, s24")
        for s in range(2):
            for i in range(8):
                r = buf + 4 * (8 * s + i)
                a(f"s_add_u32 s25, s15, {(32*s+i)*2048}")
                a(f"buffer_load_dwordx4 v[{r}:{r+3}], v{vXo}, s[20:23], s25 offen {ld}")
        a(f"s_branch L_ld_done{u}")
        a.label(f"L_ld_w{u}")
        a(f"s_sub_u32 s12, s{sIdx}, {NX}")
        a("s_and_b32 s13, s12, 3")
        a("s_lshr_b32 s14, s12, 2")
        a("s_lshl_b32 s14, s14, 2")
        a("s_add_u32 s14, s14, s10")
        G.make_srd(a, 20, 6, 7, G.W_BYTES)
        a("s_lshl_b32 s15, s14, 10")
        a("s_lshl_b32 s24, s13, 8")
        a("s_add_u32 s15, s15, s24")
        for i in range(4):
            r = buf + 4 * i
            a(f"s_add_u32 s25, s15, {i << 20}")
            a(f"buffer_load_dwordx2 v[{r}:{r+1}], v{vWo}, s[20:23], s25 offen {ld}")
            a(f"buffer_load_dwordx2 v[{r+2}:{r+3}], v{vWo}, s[20:23], s25 offen offset:16 {ld}")
        a.label(f"L_ld_done{u}")
    remap(sCur); remap(sNxt)
    issue_loads(sCur, BUF[0])
    vA = vT0; vC = vT0+1; vP = BF
    a(f"v_lshrrev_b32 v{vA}, 2, v{vR}")
    a(f"v_lshlrev_b32 v{vA}, 1, v{vA}")
    a(f"v_bfe_u32 v{vC}, v{vR}, 1, 1")
    a(f"v_add_u32 v{vA}, v{vA}, v{vC}")
    a("s_lshl_b32 s24, s10, 3")
    a(f"v_add_u32 v{vA}, s24, v{vA}")
    a(f"v_lshl_add_u32 v{vA}, v{vA}, 1, 1")
    a(f"v_and_b32 v{vC}, 1, v{vR}")
    a(f"v_lshlrev_b32 v{vC}, 5, v{vC}")
    for s in range(2):
        a(f"v_lshlrev_b32 v{vT0+2}, 3, v{vG}")
        if s: a(f"v_add_u32 v{vT0+2}, 32, v{vT0+2}")
        a(f"v_mad_u32_u24 v{vP}, v{vA}, v{vT0+2}, v{vC}")
        for e in range(1, 8): a(f"v_add_u32 v{vP+e}, v{vP+e-1}, v{vA}")
        G.cos_table(a, None, [vP+e for e in range(8)], ACC, ACC+4)
        a("s_lshl_b32 s24, s10, 11")
        a(f"v_add_u32 v{vT0+3}, s24, v{vL16}")
        a(f"ds_write_b128 v{vT0+3}, v[{ACC}:{ACC+3}] offset:{s*1024}")
    a(f"v_lshlrev_b32 v{vT0+2}, 2, v{vG}")
    a(f"v_mad_u32_u24 v{vP}, v{vA}, v{vT0+2}, v{vC}")
    for e in range(1, 4): a(f"v_add_u32 v{vP+e}, v{vP+e-1}, v{vA}")
    for e in range(4):
        r = vP + e
        a(f"v_and_b32 v{r}, 127, v{r}"); a(f"v_cvt_f32_u32 v{r}, v{r}"); a(f"v_mul_f32 v{r}, 0x3c000000, v{r}"); a(f"v_cos_f32 v{r}, v{r}")
    for e in range(4):
        r = vP + e
        a(f"v_cvt_pk_bf16_f32 v{ACC+4}, v{r}, v{r}")
        a(f"v_lshlrev_b32 v{ACC+5}, 16, v{ACC+4}")
        a(f"v_sub_f32 v{ACC+5}, v{r}, v{ACC+5}")
        a(f"v_cvt_pk_bf16_f32 v{ACC+5}, v{ACC+5}, v{ACC+5}")
        a(f"v_perm_b32 v{ACC+e}, v{ACC+5}, v{ACC+4}, s30")
    a("s_lshl_b32 s24, s10, 10")
    a(f"v_add_u32 v{vT0+3}, s24, v{vL16}")
    a(f"ds_write_b128 v{vT0+3}, v[{ACC}:{ACC+3}] offset:8192")
    a("s_waitcnt lgkmcnt(0)")
    a("s_barrier")
    a.label("L_k12_loop")
    for p in range(2):
        buf = BUF[p]; nbuf = BUF[p ^ 1]
        a("s_cmp_lg_u32 s10, 0")
        a(f"s_cbranch_scc1 L_nofetch{p}")
        a(f"v_mov_b32 v{vNext}, 1")
        a("s_mov_b64 exec, 1")
        a(f"buffer_atomic_add v{vNext}, v{vZ}, s[44:47], 0 offen sc0 sc1")
        a("s_mov_b64 exec, -1")
        a.label(f"L_nofetch{p}")
        issue_loads(sNxt, nbuf)
        def counted(tag, base):
            a(f"s_cmp_ge_u32 s{sNxt}, {NT}")
            a(f"s_cbranch_scc1 L_w0_{tag}")
            a(f"s_cmp_ge_u32 s{sNxt}, {NX}")
            a(f"s_cbranch_scc1 L_w8_{tag}")
            a(f"s_waitcnt vmcnt({base+16})")
            a(f"s_branch L_wd_{tag}")
            a.label(f"L_w8_{tag}")
            a(f"s_waitcnt vmcnt({base+8})")
            a(f"s_branch L_wd_{tag}")
            a.label(f"L_w0_{tag}")
            a(f"s_waitcnt vmcnt({base})")
            a.label(f"L_wd_{tag}")
        if p == 0:
            a("s_cmp_lg_u32 s43, 0")
            a("s_cbranch_scc1 L_notfirst")
            counted("f", 0)
            a("s_mov_b32 s43, 1")
            a("s_branch L_wfin")
            a.label("L_notfirst")
            counted("a0", 16)
            a.label("L_wfin")
        else:
            counted("a1", 16)
        a(f"s_cmp_ge_u32 s{sCur}, {NX}")
        a(f"s_cbranch_scc1 L_cw{p}")
        a(f"s_cmp_ge_u32 s{sCur}, 336")
        a("s_cselect_b32 s11, 1, 0")
        a("s_mul_i32 s12, s11, 336")
        a(f"s_sub_u32 s12, s{sCur}, s12")
        a("s_and_b32 s13, s12, 7")
        a("s_lshr_b32 s14, s12, 3")
        a("s_lshl_b32 s14, s14, 2")
        a("s_add_u32 s14, s14, s10")
        for o in range(4):
            for s in range(2):
                r = AF + 4 * (2 * o + s)
                a(f"ds_read_b128 v[{r}:{r+3}], v{vL16} offset:{(2*o+s)*1024}")
        a("s_bfe_u32 s24, s14, 0x10003")
        a("s_mul_i32 s24, s24, 3")
        a(f"v_and_b32 v{vT0}, 3, v{vR}")
        a(f"v_xor_b32 v{vT0}, s24, v{vT0}")
        a(f"v_lshl_add_u32 v{vSt}, v{vT0}, 4, v{vXs}")
        a(f"s_mul_i32 s24, s11, {G.XF2_B if XF2 else G.XF_B}")
        a(f"s_mul_i32 s25, s13, {2*G.XF_KP if XF2 else 4*G.XF_KS}")
        a("s_add_u32 s24, s24, s25")
        a(f"s_lshl_b32 s25, s14, {7 if XF2 else 6}")
        a("s_add_u32 s24, s24, s25")
        a(f"s_add_u32 s24, s24, {G.XF_BASE}")
        def perms(q):
            for s in range(2):
                for h in range(2):
                    for e in range(4):
                        d = BF + (s * 2 + h) * 4 + e
                        a(f"v_perm_b32 v{d}, v{buf + 4*(8*s+2*e+1) + q}, v{buf + 4*(8*s+2*e) + q}, s{30+h}")
        def mfmas():
            for s in range(2):
                for o in range(4):
                    for h in range(2):
                        d = ACC + (o * 2 + h) * 4
                        A = AF + 4 * (2 * o + s); B = BF + (s * 2 + h) * 4
                        c = "0" if s == 0 else f"v[{d}:{d+3}]"
                        a(f"v_mfma_f32_16x16x32_bf16 v[{d}:{d+3}], v[{A}:{A+3}], v[{B}:{B+3}], {c}")
        def cvts(q):
            for o in range(4):
                for rp in range(4):
                    a(f"v_cvt_pk_bf16_f32 v{buf + 4*(4*o+rp) + q}, v{ACC+(o*2)*4+rp}, v{ACC+(o*2+1)*4+rp}")
        perms(0)
        a("s_waitcnt lgkmcnt(0)")
        for q in range(4):
            mfmas()
            if q < 3: perms(q + 1)
            cvts(q)
        for o in range(4):
            for rp in range(4):
                off = (8 * o + (rp >> 1)) * G.XF_K + (rp & 1) * (G.ROWS * 64)
                if XF2: off = (8 * o + (rp >> 1)) * G.XF2_K + (rp & 1) * (G.ROWS * 128)
                a(f"s_add_u32 s25, s24, {off}")
                r = buf + 4 * (4 * o + rp)
                a(f"buffer_store_dwordx4 v[{r}:{r+3}], v{vSt}, s[16:19], s25 offen {st}")
        a(f"s_branch L_next{p}")
        a.label(f"L_cw{p}")
        a(f"s_sub_u32 s12, s{sCur}, {NX}")
        a("s_and_b32 s13, s12, 3")
        a("s_lshr_b32 s14, s12, 2")
        a("s_lshl_b32 s14, s14, 2")
        a("s_add_u32 s14, s14, s10")
        for o in range(4):
            r = AF + 4 * o
            a(f"ds_read_b128 v[{r}:{r+3}], v{vL16} offset:{8192+o*1024}")
        a("s_and_b32 s24, s14, 3")
        a("s_bfe_u32 s25, s14, 0x10003")
        a("s_lshl_b32 s25, s25, 2")
        a("s_or_b32 s24, s24, s25")
        a("s_lshl_b32 s24, s24, 1")
        a(f"v_xor_b32 v{vT0}, s24, v{vR}")
        a(f"v_lshl_add_u32 v{vSt}, v{vT0}, 4, v{vWs}")
        a(f"s_mul_i32 s24, s13, {G.WF_DQ}")
        a("s_lshr_b32 s25, s14, 5")
        a(f"s_mul_i32 s25, s25, {G.WF_KS}")
        a("s_add_u32 s24, s24, s25")
        a("s_and_b32 s25, s14, 31")
        a("s_lshl_b32 s25, s25, 8")
        a("s_add_u32 s24, s24, s25")
        if G.WF_BASE: a(f"s_add_u32 s24, s24, {G.WF_BASE}")
        FR = buf + 16
        for dd in range(8):
            q = dd >> 1; h = dd & 1
            for e in range(4):
                a(f"v_perm_b32 v{FR+4*dd+e}, v{buf+4*e+q}, v{buf+4*e+q}, s{32+h}")
        a("s_waitcnt lgkmcnt(0)")
        for o in range(4):
            A = AF + 4 * o
            for dd in range(8):
                d = ACC + 4 * dd
                a(f"v_mfma_f32_16x16x32_bf16 v[{d}:{d+3}], v[{A}:{A+3}], v[{FR+4*dd}:{FR+4*dd+3}], 0")
            ob = (buf if (o & 1) == 0 else buf + 48)
            for rp in range(4):
                for q in range(4):
                    a(f"v_cvt_pk_bf16_f32 v{ob+4*rp+q}, v{ACC+8*q+rp}, v{ACC+8*q+4+rp}")
            for rp in range(4):
                off = (8 * o + (rp >> 1)) * G.WF_K + (rp & 1) * 8192
                a(f"s_add_u32 s25, s24, {off}")
                r = ob + 4 * rp
                a(f"buffer_store_dwordx4 v[{r}:{r+3}], v{vSt}, s[16:19], s25 offen {st}")
        a.label(f"L_next{p}")
        a("s_cmp_lg_u32 s10, 0")
        a(f"s_cbranch_scc1 L_pub{p}")
        counted(f"p{p}", 16)
        a(f"v_add_u32 v{vNext}, {2*NWG}, v{vNext}")
        a(f"v_mov_b32 v{vT0}, s41")
        a("s_mov_b64 exec, 1")
        a(f"ds_write_b32 v{vT0}, v{vNext} offset:12288")
        a("s_mov_b64 exec, -1")
        a.label(f"L_pub{p}")
        a("s_waitcnt lgkmcnt(0)")
        a("s_barrier")
        a(f"v_mov_b32 v{vT0}, s41")
        a(f"ds_read_b32 v{vT0+1}, v{vT0} offset:12288")
        a("s_xor_b32 s41, s41, 4")
        a(f"s_mov_b32 s{sCur}, s{sNxt}")
        a("s_waitcnt lgkmcnt(0)")
        a(f"v_readfirstlane_b32 s{sNxt}, v{vT0+1}")
        remap(sNxt)
        a(f"s_cmp_ge_u32 s{sCur}, {NT}")
        a("s_cbranch_scc1 L_k12_fin")
    a("s_branch L_k12_loop")
    a.label("L_k12_fin")
    if cfg.get('pf_late'):
        a("s_cmp_ge_u32 s2, 8"); a("s_cbranch_scc1 L_k12_end")
        a("s_cmp_lg_u32 s10, 3"); a("s_cbranch_scc1 L_k12_end")
        G.prefetch_code_fwd(a, "k12b", "gemm_kernel", "final_kernel", 4, ACC + 8, sp=60)
    a.label("L_k12_end")
    a("s_endpgm")
    return name, a.lines, NV, (NWG, 256, 12288 + 64)
```

```python
from asmlib import *
import gen as G
from gen_k3 import LQ, NSTAGE
XC = 11264
STAGE = 16384 + 2 * XC
LDS_BYTES = STAGE * NSTAGE

T = 11
ACC = 0
WA = 176; WB = 192; NW = 208
XR = 216
vWa = 248; vXa = 250; vSt = 251; vSt2 = 252; vT = 253

def acc(i, c, t): return ACC + ((i * 2 + c) * 2 + t) * 4 if i < 10 else ACC + 160 + 4 * c
def wf(p, which): return (WA if p == 0 else WB) + which * 4
def nw(t): return NW + 4 * t
def xr(slot, c): return XR + slot * 8 + c * 4
def mf(d, A, B): return f"v_mfma_f32_16x16x32_bf16 v[{d}:{d+3}], v[{A}:{A+3}], v[{B}:{B+3}], v[{d}:{d+3}]"

def gemm_wave(a, cfg):
    lq = LQ(a)
    def x_read(step, i, slot):
        for c in range(2):
            r = xr(slot, c)
            off = 16384 + c * XC + i * 1024
            a(f"ds_read_b128 v[{r}:{r+3}], v{vXa} offset:{off}")
            lq.issue(('x', step, i))
    def w_read(step, c):
        p = step & 1
        for t in range(2):
            r = wf(p, c * 2 + t)
            for e in range(2):
                a(f"ds_read_b64_tr_b16 v[{r+2*e}:{r+2*e+1}], v{vWa+t} offset:{c*8192+e*1024}")
                lq.issue(('w', step))
    def w_xor(step):
        p = step & 1
        return [f"v_xor_b32 v{nw(t)+e}, 0x80008000, v{wf(p,2+t)+e}" for t in range(2) for e in range(4)]
    def bump(reg, step):
        d = STAGE if step % NSTAGE else -(NSTAGE - 1) * STAGE
        a(f"v_add_u32 v{reg}, {d & 0xffffffff:#x}, v{reg}")
    def step_code(s, tau0, barrier, nxt):
        p = s & 1
        if barrier:
            if G.CFG.get('gstamp'):
                a("s_memrealtime s[70:71]"); a("s_waitcnt lgkmcnt(0)")
                a("s_mov_b32 m0, s72"); a("v_writelane_b32 v255, s70, m0"); a("s_add_u32 s72, s72, 1")
            a("s_barrier")
            if G.CFG.get('gstamp'):
                a("s_memrealtime s[70:71]"); a("s_waitcnt lgkmcnt(0)")
                a("s_mov_b32 m0, s72"); a("v_writelane_b32 v255, s70, m0"); a("s_add_u32 s72, s72, 1")
        for i in range(T):
            tau = tau0 + i
            slot = tau % 4
            lq.wait(('x', s, i))
            if i < 10:
                ms = [mf(acc(i,0,0), wf(p,0), xr(slot,0)), mf(acc(i,0,1), wf(p,1), xr(slot,0)),
                      mf(acc(i,1,0), nw(0), xr(slot,0)), mf(acc(i,1,1), nw(1), xr(slot,0)),
                      mf(acc(i,0,0), wf(p,2), xr(slot,1)), mf(acc(i,0,1), wf(p,3), xr(slot,1)),
                      mf(acc(i,1,0), wf(p,0), xr(slot,1)), mf(acc(i,1,1), wf(p,1), xr(slot,1))]
            else:
                ms = [mf(acc(i,0,0), wf(p,0), xr(slot,0)), mf(acc(i,1,0), nw(0), xr(slot,0)),
                      mf(acc(i,0,0), wf(p,2), xr(slot,1)), mf(acc(i,1,0), wf(p,0), xr(slot,1))]
            xors = []
            for m in range(len(ms)):
                a(ms[m])
                if m == 0:
                    if i + 2 < T: x_read(s, i + 2, (tau + 2) % 4)
                    elif nxt:
                        if i + 2 == T: bump(vXa, s + 1)
                        x_read(s + 1, i + 2 - T, (tau + 2) % 4)
                if nxt and i == T - 6 and m == 4:
                    bump(vWa, s + 1); bump(vWa + 1, s + 1)
                if m == 3 and nxt and i == T - 5: w_read(s + 1, 0)
                if m == 3 and nxt and i == T - 4: w_read(s + 1, 1)
                if nxt and i == T - 2 and m == 4:
                    lq.wait(('w', s + 1))
                    xors = w_xor(s + 1)[4:]
                if nxt and i == T - 1 and m == 1:
                    xors = w_xor(s + 1)[:4]
                for _ in range(2):
                    if xors: a(xors.pop(0))
            for x in xors: a(x)
    if G.CFG.get('gstamp'):
        a("s_mov_b32 s72, 0"); a("v_mov_b32 v255, 0")
    for r in range(168): a(f"v_mov_b32 v{ACC+r}, 0")
    a("s_barrier")
    w_read(0, 0); w_read(0, 1)
    x_read(0, 0, 0); x_read(0, 1, 1)
    lq.wait(('w', 0))
    for x in w_xor(0): a(x)
    a("s_mov_b32 s46, 7")
    a.label("L_g_loop")
    q0 = list(lq.q)
    for u in range(4):
        step_code(u, u * T, True, True)
    q1 = [(t[0], t[1] - 4) + tuple(t[2:]) for t in lq.q]
    assert q0[len(q0)-len(q1):] == q1, (q0, q1)
    a("s_sub_u32 s46, s46, 1")
    a("s_cmp_lg_u32 s46, 0")
    a("s_cbranch_scc1 L_g_loop")
    lq.q = [(t[0], t[1] + 24) + tuple(t[2:]) for t in lq.q]
    step_code(28, 0 * T, True, True)
    step_code(29, 1 * T, True, True)
    if not G.CFG.get('k3_tail', True):
        step_code(30, 2 * T, True, True)
        step_code(31, 3 * T, False, False)
        a("s_nop 7")
    else:
        a("s_barrier")
    NW2 = 168; vXb = 253
    def epi_list(i, bb):
        l = []
        if i < 10:
            for c in range(2):
                dA = acc(i, c, bb); dB = acc(i, c, 1 - bb)
                l += [f"v_cvt_pk_bf16_f32 v{dA}, v{dA}, v{dA+1}", f"v_cvt_pk_bf16_f32 v{dA+1}, v{dA+2}, v{dA+3}",
                      f"v_cvt_pk_bf16_f32 v{dA+2}, v{dB}, v{dB+1}", f"v_cvt_pk_bf16_f32 v{dA+3}, v{dB+2}, v{dB+3}",
                      f"s_add_u32 s47, s48, {(c * G.YJ3 + i * 16 * 64) if G.CFG['y3'] else (c * G.YF_J + i * 16 * G.YF_ROW)}",
                      f"buffer_store_dwordx4 v[{dA}:{dA+3}], v{vSt}, s[16:19], s47 offen {G.CFG['k3_st']}"]
        else:
            for c in range(2):
                d = acc(10, c, 0)
                l += [f"v_cvt_pk_bf16_f32 v{d}, v{d}, v{d+1}", f"v_cvt_pk_bf16_f32 v{d+1}, v{d+2}, v{d+3}",
                      f"s_add_u32 s47, s49, {c * (G.YJ3 if G.CFG['y3'] else G.YF_J)}",
                      f"buffer_store_dwordx2 v[{d}:{d+1}], v{vSt2}, s[16:19], s47 offen {G.CFG['k3_st']}"]
        return l
    q_save = list(lq.q)
    for bb in range(2):
        if bb == 0:
            a("s_cmp_lg_u32 s13, 0"); a("s_cbranch_scc1 L_epi_b1")
        else:
            a.label("L_epi_b1")
        if not G.CFG.get('k3_tail', True):
            for i in range(T):
                for ins in epi_list(i, bb): a(ins)
        else:
            lq.q = list(q_save)
            bump(vWa, 31); bump(vWa + 1, 31)
            a(f"v_add_u32 v{vXb}, {STAGE}, v{vXa}")
            w_read(31, 0); w_read(31, 1)
            items = [(30, 0), (30, 1)]
            for i in range(T):
                if i + 2 < T: items.append((30, i + 2))
                items.append((31, i))
            def x_read2(step, i, slot):
                for c in range(2):
                    r = xr(slot, c)
                    off = 16384 + c * XC + i * 1024
                    a(f"ds_read_b128 v[{r}:{r+3}], v{vXa if step == 30 else vXb} offset:{off}")
                    lq.issue(('x', step, i))
            pend = []
            xored = False
            for n, (st, i) in enumerate(items):
                slot = (2 * T + n) % 4
                p = st & 1
                nwf = (lambda t: nw(t)) if st == 30 else (lambda t: NW2 + 4 * t)
                if st == 31 and not xored:
                    lq.wait(('w', 31))
                    for t in range(2):
                        for e in range(4): a(f"v_xor_b32 v{NW2+4*t+e}, 0x80008000, v{wf(1,2+t)+e}")
                    xored = True
                lq.wait(('x', st, i))
                if i < 10:
                    ms = [mf(acc(i,0,0), wf(p,0), xr(slot,0)), mf(acc(i,0,1), wf(p,1), xr(slot,0)),
                          mf(acc(i,1,0), nwf(0), xr(slot,0)), mf(acc(i,1,1), nwf(1), xr(slot,0)),
                          mf(acc(i,0,0), wf(p,2), xr(slot,1)), mf(acc(i,0,1), wf(p,3), xr(slot,1)),
                          mf(acc(i,1,0), wf(p,0), xr(slot,1)), mf(acc(i,1,1), wf(p,1), xr(slot,1))]
                else:
                    ms = [mf(acc(i,0,0), wf(p,0), xr(slot,0)), mf(acc(i,1,0), nwf(0), xr(slot,0)),
                          mf(acc(i,0,0), wf(p,2), xr(slot,1)), mf(acc(i,1,0), wf(p,0), xr(slot,1))]
                for m in range(len(ms)):
                    a(ms[m])
                    if m == 0 and n + 2 < len(items): x_read2(items[n + 2][0], items[n + 2][1], (2 * T + n + 2) % 4)
                    if m >= 1:
                        for _ in range(2):
                            if pend and pend[0][0] <= n - 1: a(pend.pop(0)[1])
                if st == 31:
                    pend += [(n + 1, ins) for ins in epi_list(i, bb)]
            a("s_nop 7")
            for _, ins in pend: a(ins)
        if bb == 0: a("s_branch L_epi_done")
    a.label("L_epi_done")
    if G.CFG.get('gstamp'):
        a("s_lshl_b32 s73, s2, 2"); a("s_add_u32 s73, s73, s15"); a("s_lshl_b32 s73, s73, 10")
        a(f"s_add_u32 s73, s73, {212 << 20}")
        a("v_mbcnt_lo_u32_b32 v254, -1, 0")
        a("v_mbcnt_hi_u32_b32 v254, -1, v254")
        a("v_lshlrev_b32 v254, 2, v254")
        a("buffer_store_dword v255, v254, s[16:19], s73 offen")
    a("s_endpgm")

def helper_wave(a, cfg):
    vDW = 1; vDX = 2
    sWo, sXo, sLW, sLX = 40, 41, 42, 43
    vD6 = 5; sX6 = 44
    XF2 = G.CFG['xf2']
    def dma(step):
        buf = step % NSTAGE
        a(f"s_add_u32 m0, s{sLW}, {buf*STAGE}")
        for j in range(4):
            a(f"buffer_load_dwordx4 v{vDW}, s[16:19], s{sWo} offen offset:{j*1024} lds")
        a(f"s_add_u32 s{sWo}, s{sWo}, {G.WF_KS}")
        a(f"s_add_u32 m0, s{sLX}, {buf*STAGE}")
        for j in range(4):
            if XF2 and j:
                a(f"s_add_u32 s49, s{sXo}, {1024*j}")
                a(f"buffer_load_dwordx4 v{vDX}, s[16:19], s49 offen offset:{j*1024} lds")
            else:
                a(f"buffer_load_dwordx4 v{vDX}, s[16:19], s{sXo} offen offset:{j*1024} lds")
        a(f"s_add_u32 m0, s{sLX}, {buf*STAGE+4096}")
        a(f"s_add_u32 s49, s{sXo}, {8192 if XF2 else 4096}")
        a(f"buffer_load_dwordx4 v{vDX}, s[16:19], s49 offen lds")
        a("s_mov_b64 exec, s[50:51]")
        a(f"buffer_load_dwordx4 v{vD6}, s[16:19], s{sX6} offen offset:1024 lds")
        a("s_mov_b64 exec, -1")
        adv = (64 if (step & 1) == 0 else G.XF_KP - 64) if XF2 else G.XF_KS
        a(f"s_add_u32 s{sXo}, s{sXo}, {adv}")
        a(f"s_add_u32 s{sX6}, s{sX6}, {adv}")
    for st in range(3): dma(st)
    a("s_waitcnt vmcnt(20)")
    a("s_barrier")
    a("s_mov_b32 s46, 7")
    a.label("L_h_loop")
    for u in range(4):
        a("s_waitcnt vmcnt(10)")
        a("s_barrier")
        dma(u + 3)
    a("s_sub_u32 s46, s46, 1")
    a("s_cmp_lg_u32 s46, 0")
    a("s_cbranch_scc1 L_h_loop")
    a("s_waitcnt vmcnt(10)"); a("s_barrier"); dma(31)
    a("s_waitcnt vmcnt(10)"); a("s_barrier")
    a("s_waitcnt vmcnt(0)"); a("s_barrier")
    if G.CFG.get('pf_late'):
        a("s_cmp_ge_u32 s2, 8"); a("s_cbranch_scc1 L_h_end")
        a("s_cmp_lg_u32 s15, 3"); a("s_cbranch_scc1 L_h_end")
        G.prefetch_code_fwd(a, "k3b", "final_kernel", "L_code_end", 3, 12, sp=60)
        a.label("L_h_end")
    a("s_endpgm")

def gen_k3c(cfg=None):
    a = Asm()
    name = 'gemm_kernel'
    G.kernel_header(a, name)
    a("s_cmp_ge_u32 s2, 256")
    a("s_cbranch_scc1 L_k3_end")
    a("s_load_dwordx2 s[8:9], s[0:1], 48")
    a(f"v_lshrrev_b32 v{vT}, 6, v0")
    a(f"v_and_b32 v0, 63, v0")
    a(f"v_readfirstlane_b32 s10, v{vT}")
    if G.CFG.get('pf_code'):
        a("s_cmp_ge_u32 s2, 8"); a("s_cbranch_scc1 L_nopf3")
        a("s_cmp_lg_u32 s10, 7"); a("s_cbranch_scc1 L_nopf3")
        G.prefetch_code(a, "k3", "gemm_kernel", "final_kernel", 4, 12, sp=60)
        a.label("L_nopf3")
    a("s_and_b32 s11, s2, 7")
    a("s_lshr_b32 s12, s2, 3")
    a("s_lshr_b32 s13, s12, 3")
    a("s_lshl_b32 s11, s11, 2")
    a("s_add_u32 s11, s11, s13")
    a("s_bfe_u32 s13, s12, 0x10002")
    a("s_and_b32 s14, s12, 3")
    a("s_and_b32 s15, s10, 3")
    a("s_waitcnt lgkmcnt(0)")
    G.make_srd(a, 16, 8, 9, G.WS_BYTES)
    a("s_cmp_ge_u32 s10, 4")
    a("s_cbranch_scc1 L_k3_helper")
    g = vT; c16 = vT + 1; t0 = vT + 2; t1 = XR; t2 = XR + 1
    a(f"v_lshrrev_b32 v{g}, 4, v0")
    a(f"v_and_b32 v{c16}, 15, v0")
    a(f"v_bfe_u32 v{t0}, v{c16}, 3, 1")
    a(f"v_mul_u32_u24 v{t0}, 3, v{t0}")
    a(f"v_xor_b32 v{t0}, v{t0}, v{g}")
    a(f"v_lshlrev_b32 v{t0}, 4, v{t0}")
    a(f"v_lshl_add_u32 v{vXa}, v{c16}, 6, v{t0}")
    a(f"v_lshrrev_b32 v{t0}, 2, v{c16}")
    a(f"v_and_b32 v{t1}, 1, v{g}")
    a(f"v_lshl_or_b32 v{t1}, v{t1}, 2, v{t0}")
    a(f"v_lshl_add_u32 v{t0}, v{g}, 3, v{t0}")
    a(f"v_lshlrev_b32 v{t0}, 8, v{t0}")
    a(f"v_and_b32 v{t2}, 3, v{c16}")
    a(f"v_lshl_add_u32 v{t0}, v{t2}, 3, v{t0}")
    a("s_lshl_b32 s20, s15, 1")
    a("s_add_u32 s20, s20, s13")
    for t in range(2):
        if t: a("s_xor_b32 s20, s20, 1")
        a(f"v_xor_b32 v{t2}, s20, v{t1}")
        a(f"v_lshl_add_u32 v{vWa+t}, v{t2}, 5, v{t0}")
    if G.CFG['y3']:
        a(f"v_lshlrev_b32 v{vSt}, 6, v{c16}")
        a(f"v_lshl_add_u32 v{vSt}, v{g}, 4, v{vSt}")
        a(f"v_and_b32 v{t0}, 7, v{c16}")
        a(f"v_lshlrev_b32 v{vSt2}, 6, v{t0}")
        a(f"v_lshrrev_b32 v{t1}, 3, v{c16}")
        a(f"v_xor_b32 v{t1}, s13, v{t1}")
        a(f"s_mov_b32 s22, {G.YB3}")
        a(f"v_mul_lo_u32 v{t1}, v{t1}, s22")
        a(f"v_add_u32 v{vSt2}, v{vSt2}, v{t1}")
        a(f"v_lshl_add_u32 v{vSt2}, v{g}, 4, v{vSt2}")
        a("s_lshl_b32 s22, s13, 3")
        a(f"v_add_u32 v{vSt2}, s22, v{vSt2}")
        a(f"v_cmp_gt_u32 vcc, 7, v{t0}")
        a(f"v_mov_b32 v{t1}, 0x80000000")
        a(f"v_cndmask_b32 v{vSt2}, v{t1}, v{vSt2}, vcc")
        a("s_lshl_b32 s20, s14, 2")
        a("s_add_u32 s20, s20, s15")
        a(f"s_mul_i32 s48, s20, {G.YS3}")
        a(f"s_mul_i32 s20, s11, {2*G.YJ3}")
        a("s_add_u32 s48, s48, s20")
        a(f"s_add_u32 s48, s48, {G.YF_BASE}")
        a(f"s_add_u32 s49, s48, {160*64}")
        a(f"s_mul_i32 s20, s13, {G.YB3}")
        a("s_add_u32 s48, s48, s20")
    else:
        a(f"s_mov_b32 s21, {G.YF_ROW}")
        a(f"v_mul_u32_u24 v{vSt}, s21, v{c16}")
        a(f"v_lshl_add_u32 v{vSt}, v{g}, 4, v{vSt}")
        a("s_lshl_b32 s23, s15, 6")
        a(f"v_add_u32 v{vSt}, s23, v{vSt}")
        a(f"v_and_b32 v{t0}, 7, v{c16}")
        a(f"v_mul_u32_u24 v{vSt2}, s21, v{t0}")
        a(f"v_lshrrev_b32 v{t1}, 3, v{c16}")
        a(f"v_xor_b32 v{t1}, s13, v{t1}")
        a(f"s_mov_b32 s22, {G.YF_B}")
        a(f"v_mul_lo_u32 v{t1}, v{t1}, s22")
        a(f"v_add_u32 v{vSt2}, v{vSt2}, v{t1}")
        a(f"v_lshl_add_u32 v{vSt2}, v{g}, 4, v{vSt2}")
        a("s_lshl_b32 s22, s13, 3")
        a("s_add_u32 s22, s22, s23")
        a(f"v_add_u32 v{vSt2}, s22, v{vSt2}")
        a(f"v_cmp_gt_u32 vcc, 7, v{t0}")
        a(f"v_mov_b32 v{t1}, 0x80000000")
        a(f"v_cndmask_b32 v{vSt2}, v{t1}, v{vSt2}, vcc")
        a(f"s_mul_i32 s48, s11, {2*G.YF_J}")
        a("s_lshl_b32 s20, s14, 8")
        a("s_add_u32 s48, s48, s20")
        a(f"s_add_u32 s48, s48, {G.YF_BASE}")
        a(f"s_add_u32 s49, s48, {160*G.YF_ROW}")
        a(f"s_mul_i32 s20, s13, {G.YF_B}")
        a("s_add_u32 s48, s48, s20")
    gemm_wave(a, cfg)
    a.label("L_k3_helper")
    a(f"s_mul_i32 s40, s11, {G.WF_K}")
    a(f"s_mul_i32 s20, s14, {G.WF_DQ}")
    a("s_add_u32 s40, s40, s20")
    if G.WF_BASE: a(f"s_add_u32 s40, s40, {G.WF_BASE}")
    a(f"s_mul_i32 s41, s11, {G.XF2_K if G.CFG['xf2'] else G.XF_K}")
    a(f"s_mul_i32 s20, s13, {G.XF2_B if G.CFG['xf2'] else G.XF_B}")
    a("s_add_u32 s41, s41, s20")
    a(f"s_add_u32 s41, s41, {G.XF_BASE}")
    a("s_lshl_b32 s42, s15, 12")
    a("s_mul_i32 s43, s15, 5632")
    a("s_lshr_b32 s20, s15, 1")
    a("s_lshl_b32 s21, s20, 9")
    a("s_sub_u32 s21, s43, s21")
    a("v_lshlrev_b32 v1, 4, v0")
    if G.CFG['xf2']:
        a("v_lshrrev_b32 v3, 2, v0"); a("v_lshlrev_b32 v3, 7, v3")
        a("v_and_b32 v4, 3, v0"); a("v_lshl_add_u32 v3, v4, 4, v3")
        a("s_lshl_b32 s21, s21, 1")
        a("v_add_u32 v2, s21, v3")
        a(f"s_add_u32 s22, s21, {10240-1024}")
        a("v_add_u32 v5, s22, v3")
        a("s_mov_b32 s44, s41")
        a("s_bitcmp1_b32 s15, 0")
        a("s_cbranch_scc0 L_six_even")
        a(f"s_mul_i32 s22, s20, 21504")
        a(f"s_add_u32 s22, s22, {20480-1024}")
        a("v_lshrrev_b32 v5, 2, v0"); a("v_lshlrev_b32 v5, 7, v5")
        a("v_and_b32 v3, 3, v0"); a("v_xor_b32 v3, 3, v3"); a("v_lshl_add_u32 v5, v3, 4, v5")
        a("v_add_u32 v5, s22, v5")
        a(f"s_mul_i32 s44, s11, {G.XF2_K}")
        a("s_xor_b32 s22, s13, 1")
        a(f"s_mul_i32 s22, s22, {G.XF2_B}")
        a("s_add_u32 s44, s44, s22")
        a(f"s_add_u32 s44, s44, {G.XF_BASE}")
    else:
        a("v_lshlrev_b32 v1, 4, v0")
        a("v_add_u32 v2, s21, v1")
        a("s_add_u32 s22, s21, 4096")
        a("v_add_u32 v5, s22, v1")
        a("s_mov_b32 s44, s41")
        a("s_bitcmp1_b32 s15, 0")
        a("s_cbranch_scc0 L_six_even")
        a(f"s_mul_i32 s22, s20, 10752")
        a(f"s_add_u32 s22, s22, {10240-1024}")
        a("v_lshrrev_b32 v5, 2, v0"); a("v_lshlrev_b32 v5, 6, v5")
        a("v_and_b32 v3, 3, v0"); a("v_xor_b32 v3, 3, v3"); a("v_lshl_add_u32 v5, v3, 4, v5")
        a("v_add_u32 v5, s22, v5")
        a(f"s_mul_i32 s44, s11, {G.XF_K}")
        a("s_xor_b32 s22, s13, 1")
        a(f"s_mul_i32 s22, s22, {G.XF_B}")
        a("s_add_u32 s44, s44, s22")
        a(f"s_add_u32 s44, s44, {G.XF_BASE}")
    a.label("L_six_even")
    a("s_mov_b32 s50, -1"); a("s_mov_b32 s51, 0")
    a("v_add_u32 v1, s42, v1")
    a("s_add_u32 s43, s43, 16384")
    a("s_cmp_ge_u32 s2, 8"); a("s_cbranch_scc1 L_nozero")
    a("s_cmp_lg_u32 s15, 0"); a("s_cbranch_scc1 L_nozero")
    a(f"s_mul_i32 s20, s2, {G.CNT_STRIDE}"); a(f"s_add_u32 s20, s20, {G.CNT_BASE}")
    a("v_mov_b32 v3, 0"); a("v_lshlrev_b32 v4, 2, v0")
    a("buffer_store_dword v3, v4, s[16:19], s20 offen")
    a.label("L_nozero")
    a("s_cmp_ge_u32 s2, 224"); a("s_cbranch_scc1 L_nofill")
    a("s_cmp_lg_u32 s15, 1"); a("s_cbranch_scc1 L_nofill")
    a("s_lshl_b32 s20, s2, 10"); a(f"s_add_u32 s20, s20, {G.PART_BASE}")
    a("v_mov_b32 v8, -1"); a("v_mov_b32 v9, -1"); a("v_mov_b32 v10, -1"); a("v_mov_b32 v11, -1"); a("v_lshlrev_b32 v4, 4, v0")
    a("buffer_store_dwordx4 v[8:11], v4, s[16:19], s20 offen")
    a.label("L_nofill")
    helper_wave(a, cfg)
    a.label("L_k3_end")
    a("s_endpgm")
    return name, a.lines, 256, (256, 512, LDS_BYTES)
```

```python
from asmlib import *
import gen as G

def gen_k12q(cfg=None):
    cfg = cfg or G.CFG
    a = Asm()
    def qst(i):
        if cfg.get('qstamp'):
            a("s_memrealtime s[70:71]"); a("s_waitcnt lgkmcnt(0)"); a(f"v_writelane_b32 v{228}, s70, {i}")
    def stn():
        if cfg.get('qstamp'):
            a("s_memrealtime s[70:71]"); a("s_waitcnt lgkmcnt(0)"); a("s_mov_b32 m0, s72"); a("v_writelane_b32 v228, s70, m0"); a("s_add_u32 s72, s72, 1")
    name = 'xform_kernel'
    G.kernel_header(a, name)
    NX = 2 * G.NGRP * 8
    NW = 1024
    NT = NX + NW
    NWG = cfg.get('k12_nwg', 256)
    st = cfg['k12_st']; ld = cfg.get('k12_ld', '')
    BUF = [0, 64]; AF = 128; BF = 160; ACC = 176; VT = 208
    vLane = VT; vR = VT+1; vG = VT+2; vOff = VT+3; vSt = VT+4; vT0 = VT+5
    vNext = VT + 13; vZ = VT + 14; vL16 = VT + 15
    vXo = VT + 16; vWo = VT + 17; vXs = VT + 18; vWs = VT + 19
    NV = 232
    sCur, sNxt = 40, 42
    a(f"s_cmp_ge_u32 s2, {NWG}")
    a("s_cbranch_scc1 L_k12_end")
    if cfg.get('qstamp'): a("v_mov_b32 v228, 0"); a("s_mov_b32 s72, 8")
    qst(0)
    a("s_load_dwordx4 s[4:7], s[0:1], 0")
    a("s_load_dwordx4 s[36:39], s[0:1], 40")
    if cfg.get('pf_code'):
        a(f"v_lshrrev_b32 v{vT0}, 6, v0")
        a("s_cmp_ge_u32 s2, 8"); a("s_cbranch_scc1 L_nopf12")
        a(f"v_readfirstlane_b32 s10, v{vT0}")
        a("s_cmp_lg_u32 s10, 3"); a("s_cbranch_scc1 L_nopf12")
        G.prefetch_code(a, "k12", "xform_kernel", "L_code_end", 10, ACC + 8, sp=60)
        a.label("L_nopf12")
    a(f"v_and_b32 v{vLane}, 63, v0")
    a(f"v_lshrrev_b32 v{vT0}, 6, v0")
    a(f"v_and_b32 v{vR}, 15, v{vLane}")
    a(f"v_readfirstlane_b32 s10, v{vT0}")
    a(f"v_lshrrev_b32 v{vG}, 4, v{vLane}")
    a(f"v_lshlrev_b32 v{vL16}, 4, v{vLane}")
    a(f"v_mov_b32 v{vZ}, 0")
    a("s_mov_b32 s30, 0x05040100")
    a("s_mov_b32 s31, 0x07060302")
    a("s_mov_b32 s32, 0x01000100")
    a("s_mov_b32 s33, 0x03020302")
    a(f"s_mov_b32 s{sCur}, s2")
    a(f"s_add_u32 s{sNxt}, s2, {NWG}")
    a("s_mov_b32 s41, 0")
    remap_later = True
    a("s_mov_b32 s43, 0")
    a(f"v_lshlrev_b32 v{vXo}, 14, v{vG}")
    a(f"v_lshl_add_u32 v{vXo}, v{vR}, 4, v{vXo}")
    a(f"v_lshlrev_b32 v{vWo}, 22, v{vG}")
    a(f"v_lshrrev_b32 v{vT0}, 2, v{vR}")
    a(f"v_lshl_add_u32 v{vWo}, v{vT0}, 6, v{vWo}")
    a(f"v_and_b32 v{vT0}, 1, v{vR}")
    a(f"v_lshl_add_u32 v{vWo}, v{vT0}, 5, v{vWo}")
    a(f"v_bfe_u32 v{vT0}, v{vR}, 1, 1")
    a(f"v_lshl_add_u32 v{vWo}, v{vT0}, 3, v{vWo}")
    XF2 = cfg['xf2']
    if XF2:
        a(f"v_lshrrev_b32 v{vT0}, 3, v{vR}")
        a(f"s_mov_b32 s24, {G.XF_KP}")
        a(f"v_mul_u32_u24 v{vXs}, s24, v{vT0}")
        a(f"v_bfe_u32 v{vT0}, v{vR}, 2, 1")
        a(f"v_lshl_add_u32 v{vXs}, v{vT0}, 6, v{vXs}")
        a(f"s_mov_b32 s24, {2*G.XF2_K}")
        a(f"v_mad_u32_u24 v{vXs}, v{vG}, s24, v{vXs}")
    else:
        a(f"v_lshrrev_b32 v{vT0}, 2, v{vR}")
        a(f"s_mov_b32 s24, {G.XF_KS}")
        a(f"v_mul_u32_u24 v{vXs}, s24, v{vT0}")
        a(f"s_mov_b32 s24, {2*G.XF_K}")
        a(f"v_mad_u32_u24 v{vXs}, v{vG}, s24, v{vXs}")
    a(f"s_mov_b32 s24, {2*G.WF_K}")
    a(f"v_mul_u32_u24 v{vWs}, s24, v{vG}")
    a("s_waitcnt lgkmcnt(0)")
    qst(1)
    G.make_srd(a, 16, 38, 39, G.WS_BYTES)
    G.make_srd(a, 44, 36, 37, 256)
    if cfg.get('pf_tlb'):
        a("s_cmp_ge_u32 s2, 8"); a("s_cbranch_scc1 L_notlb")
        a("s_cmp_lg_u32 s10, 2"); a("s_cbranch_scc1 L_notlb")
        a(f"v_lshlrev_b32 v{ACC+8}, 21, v{vLane}")
        a(f"buffer_load_dword v{ACC+9}, v{ACC+8}, s[16:19], 0 offen")
        a(f"s_mov_b32 s24, {128 << 20}")
        a(f"v_cmp_gt_u32 vcc, 8, v{vLane}")
        a("s_and_saveexec_b64 s[26:27], vcc")
        a(f"buffer_load_dword v{ACC+10}, v{ACC+8}, s[16:19], s24 offen")
        a("s_mov_b64 exec, s[26:27]")
        a.label("L_notlb")
    uid = [0]
    MIX = cfg.get('k12_mix')
    def remap(sr):
        if not MIX: return
        u = uid[0]; uid[0] += 1
        if MIX >= 5:
            NF = cfg.get('k12_nf', {5: 256, 6: 512, 7: 128}[min(MIX, 7)])
            a(f"s_cmp_ge_u32 s{sr}, {NF + NX}")
            a(f"s_cbranch_scc1 L_rm{u}")
            a(f"s_sub_u32 s28, s{sr}, {NF}")
            a(f"s_add_u32 s29, s{sr}, {NX}")
            a(f"s_cmp_ge_u32 s{sr}, {NF}")
            a(f"s_cselect_b32 s{sr}, s28, s29")
            a.label(f"L_rm{u}")
            return
        if MIX >= 3:
            a(f"s_cmp_ge_u32 s{sr}, {2*NX}")
            a(f"s_cbranch_scc1 L_rm{u}")
            a(f"s_lshr_b32 s28, s{sr}, 1")
            a(f"s_add_u32 s29, s28, {NX}")
            a(f"s_bitcmp1_b32 s{sr}, 0")
            if MIX == 3: a(f"s_cselect_b32 s{sr}, s29, s28")
            else: a(f"s_cselect_b32 s{sr}, s28, s29")
            a.label(f"L_rm{u}")
            return
        a(f"s_cmp_ge_u32 s{sr}, 1680")
        a(f"s_cbranch_scc1 L_rm{u}")
        a(f"s_mul_i32 s26, s{sr}, 52429")
        a("s_lshr_b32 s26, s26, 18")
        a("s_mul_i32 s27, s26, 5")
        a(f"s_sub_u32 s27, s{sr}, s27")
        if MIX == 1:
            a("s_lshl_b32 s28, s26, 1"); a("s_add_u32 s28, s28, s27")
            a("s_mul_i32 s29, s26, 3"); a("s_add_u32 s29, s29, s27"); a(f"s_add_u32 s29, s29, {NX-2}")
            a("s_cmp_lt_u32 s27, 2")
        else:
            a("s_lshr_b32 s28, s27, 1"); a("s_lshl_b32 s29, s26, 1"); a("s_add_u32 s28, s28, s29")
            a("s_add_u32 s29, s27, 1"); a("s_lshr_b32 s29, s29, 1"); a("s_mul_i32 s27, s26, 3") if False else None
            a("s_mul_i32 s35, s26, 3"); a("s_add_u32 s29, s29, s35"); a(f"s_add_u32 s29, s29, {NX}")
            a("s_sub_u32 s29, s29, 0")
            a("s_bitcmp1_b32 s27, 0")
        a(f"s_cselect_b32 s{sr}, s28, s29")
        a.label(f"L_rm{u}")
    def issue_loads(sIdx, buf):
        u = uid[0]; uid[0] += 1
        a(f"s_cmp_ge_u32 s{sIdx}, {NT}")
        a(f"s_cbranch_scc1 L_ld_done{u}")
        a(f"s_cmp_ge_u32 s{sIdx}, {NX}")
        a(f"s_cbranch_scc1 L_ld_w{u}")
        a(f"s_cmp_ge_u32 s{sIdx}, 336")
        a("s_cselect_b32 s11, 1, 0")
        a("s_mul_i32 s12, s11, 336")
        a(f"s_sub_u32 s12, s{sIdx}, s12")
        a("s_and_b32 s13, s12, 7")
        a("s_lshr_b32 s14, s12, 3")
        a("s_lshl_b32 s14, s14, 2")
        a("s_add_u32 s14, s14, s10")
        a(f"s_mul_i32 s15, s11, {G.X_BYTES_B}")
        a("s_add_u32 s34, s4, s15")
        a("s_addc_u32 s35, s5, 0")
        G.make_srd(a, 20, 34, 35, G.X_BYTES_B)
        a("s_mul_i32 s15, s14, %d" % (48 * 2048))
        a("s_lshl_b32 s24, s13, 8")
        a("s_add_u32 s15, s15, s24")
        for s in range(2):
            for i in range(8):
                r = buf + 4 * (8 * s + i)
                a(f"s_add_u32 s25, s15, {(32*s+i)*2048}")
                a(f"buffer_load_dwordx4 v[{r}:{r+3}], v{vXo}, s[20:23], s25 offen {ld}")
        a(f"s_branch L_ld_done{u}")
        a.label(f"L_ld_w{u}")
        a(f"s_sub_u32 s12, s{sIdx}, {NX}")
        a("s_and_b32 s13, s12, 3")
        a("s_lshr_b32 s14, s12, 2")
        a("s_lshl_b32 s14, s14, 2")
        a("s_add_u32 s14, s14, s10")
        G.make_srd(a, 20, 6, 7, G.W_BYTES)
        a("s_lshl_b32 s15, s14, 10")
        a("s_lshl_b32 s24, s13, 8")
        a("s_add_u32 s15, s15, s24")
        for i in range(4):
            r = buf + 4 * i
            a(f"s_add_u32 s25, s15, {i << 20}")
            a(f"buffer_load_dwordx2 v[{r}:{r+1}], v{vWo}, s[20:23], s25 offen {ld}")
            a(f"buffer_load_dwordx2 v[{r+2}:{r+3}], v{vWo}, s[20:23], s25 offen offset:16 {ld}")
        a.label(f"L_ld_done{u}")
    remap(sCur); remap(sNxt)
    issue_loads(sCur, BUF[0])
    qst(2)
    vA = vT0; vC = vT0+1; vP = BF
    a(f"v_lshrrev_b32 v{vA}, 2, v{vR}")
    a(f"v_lshlrev_b32 v{vA}, 1, v{vA}")
    a(f"v_bfe_u32 v{vC}, v{vR}, 1, 1")
    a(f"v_add_u32 v{vA}, v{vA}, v{vC}")
    a("s_lshl_b32 s24, s10, 3")
    a(f"v_add_u32 v{vA}, s24, v{vA}")
    a(f"v_lshl_add_u32 v{vA}, v{vA}, 1, 1")
    a(f"v_and_b32 v{vC}, 1, v{vR}")
    a(f"v_lshlrev_b32 v{vC}, 5, v{vC}")
    for s in range(2):
        a(f"v_lshlrev_b32 v{vT0+2}, 3, v{vG}")
        if s: a(f"v_add_u32 v{vT0+2}, 32, v{vT0+2}")
        a(f"v_mad_u32_u24 v{vP}, v{vA}, v{vT0+2}, v{vC}")
        for e in range(1, 8): a(f"v_add_u32 v{vP+e}, v{vP+e-1}, v{vA}")
        G.cos_table(a, None, [vP+e for e in range(8)], ACC, ACC+4)
        a("s_lshl_b32 s24, s10, 11")
        a(f"v_add_u32 v{vT0+3}, s24, v{vL16}")
        a(f"ds_write_b128 v{vT0+3}, v[{ACC}:{ACC+3}] offset:{s*1024}")
    a(f"v_lshlrev_b32 v{vT0+2}, 2, v{vG}")
    a(f"v_mad_u32_u24 v{vP}, v{vA}, v{vT0+2}, v{vC}")
    for e in range(1, 4): a(f"v_add_u32 v{vP+e}, v{vP+e-1}, v{vA}")
    for e in range(4):
        r = vP + e
        a(f"v_and_b32 v{r}, 127, v{r}"); a(f"v_cvt_f32_u32 v{r}, v{r}"); a(f"v_mul_f32 v{r}, 0x3c000000, v{r}"); a(f"v_cos_f32 v{r}, v{r}")
    for e in range(4):
        r = vP + e
        a(f"v_cvt_pk_bf16_f32 v{ACC+4}, v{r}, v{r}")
        a(f"v_lshlrev_b32 v{ACC+5}, 16, v{ACC+4}")
        a(f"v_sub_f32 v{ACC+5}, v{r}, v{ACC+5}")
        a(f"v_cvt_pk_bf16_f32 v{ACC+5}, v{ACC+5}, v{ACC+5}")
        a(f"v_perm_b32 v{ACC+e}, v{ACC+5}, v{ACC+4}, s30")
    a("s_lshl_b32 s24, s10, 10")
    a(f"v_add_u32 v{vT0+3}, s24, v{vL16}")
    a(f"ds_write_b128 v{vT0+3}, v[{ACC}:{ACC+3}] offset:8192")
    a("s_waitcnt lgkmcnt(0)")
    qst(3)
    a("s_barrier")
    qst(4)
    a.label("L_k12_loop")
    for p in range(2):
        buf = BUF[p]; nbuf = BUF[p ^ 1]
        a("s_cmp_lg_u32 s10, 0")
        a(f"s_cbranch_scc1 L_nofetch{p}")
        a(f"v_mov_b32 v{vNext}, 1")
        a("s_mov_b64 exec, 1")
        a(f"buffer_atomic_add v{vNext}, v{vZ}, s[44:47], 0 offen sc0 sc1")
        a("s_mov_b64 exec, -1")
        a.label(f"L_nofetch{p}")
        issue_loads(sNxt, nbuf)
        def counted(tag, base):
            a(f"s_cmp_ge_u32 s{sNxt}, {NT}")
            a(f"s_cbranch_scc1 L_w0_{tag}")
            a(f"s_cmp_ge_u32 s{sNxt}, {NX}")
            a(f"s_cbranch_scc1 L_w8_{tag}")
            a(f"s_waitcnt vmcnt({base+16})")
            a(f"s_branch L_wd_{tag}")
            a.label(f"L_w8_{tag}")
            a(f"s_waitcnt vmcnt({base+8})")
            a(f"s_branch L_wd_{tag}")
            a.label(f"L_w0_{tag}")
            a(f"s_waitcnt vmcnt({base})")
            a.label(f"L_wd_{tag}")
        if p == 0:
            a("s_cmp_lg_u32 s43, 0")
            a("s_cbranch_scc1 L_notfirst")
            counted("f", 0)
            a("s_mov_b32 s43, 1")
            a("s_branch L_wfin")
            a.label("L_notfirst")
            counted("a0", 16)
            a.label("L_wfin")
        else:
            counted("a1", 16)
        stn()
        a(f"s_cmp_ge_u32 s{sCur}, {NX}")
        a(f"s_cbranch_scc1 L_cw{p}")
        a(f"s_cmp_ge_u32 s{sCur}, 336")
        a("s_cselect_b32 s11, 1, 0")
        a("s_mul_i32 s12, s11, 336")
        a(f"s_sub_u32 s12, s{sCur}, s12")
        a("s_and_b32 s13, s12, 7")
        a("s_lshr_b32 s14, s12, 3")
        a("s_lshl_b32 s14, s14, 2")
        a("s_add_u32 s14, s14, s10")
        for o in range(4):
            for s in range(2):
                r = AF + 4 * (2 * o + s)
                a(f"ds_read_b128 v[{r}:{r+3}], v{vL16} offset:{(2*o+s)*1024}")
        a("s_bfe_u32 s24, s14, 0x10003")
        a("s_mul_i32 s24, s24, 3")
        a(f"v_and_b32 v{vT0}, 3, v{vR}")
        a(f"v_xor_b32 v{vT0}, s24, v{vT0}")
        a(f"v_lshl_add_u32 v{vSt}, v{vT0}, 4, v{vXs}")
        a(f"s_mul_i32 s24, s11, {G.XF2_B if XF2 else G.XF_B}")
        a(f"s_mul_i32 s25, s13, {2*G.XF_KP if XF2 else 4*G.XF_KS}")
        a("s_add_u32 s24, s24, s25")
        a(f"s_lshl_b32 s25, s14, {7 if XF2 else 6}")
        a("s_add_u32 s24, s24, s25")
        a(f"s_add_u32 s24, s24, {G.XF_BASE}")
        def perms(q):
            for s in range(2):
                for h in range(2):
                    for e in range(4):
                        d = BF + (s * 2 + h) * 4 + e
                        a(f"v_perm_b32 v{d}, v{buf + 4*(8*s+2*e+1) + q}, v{buf + 4*(8*s+2*e) + q}, s{30+h}")
        def mfmas():
            for s in range(2):
                for o in range(4):
                    for h in range(2):
                        d = ACC + (o * 2 + h) * 4
                        A = AF + 4 * (2 * o + s); B = BF + (s * 2 + h) * 4
                        c = "0" if s == 0 else f"v[{d}:{d+3}]"
                        a(f"v_mfma_f32_16x16x32_bf16 v[{d}:{d+3}], v[{A}:{A+3}], v[{B}:{B+3}], {c}")
        def cvts(q):
            for o in range(4):
                for rp in range(4):
                    a(f"v_cvt_pk_bf16_f32 v{buf + 4*(4*o+rp) + q}, v{ACC+(o*2)*4+rp}, v{ACC+(o*2+1)*4+rp}")
        perms(0)
        a("s_waitcnt lgkmcnt(0)")
        for q in range(4):
            mfmas()
            if q < 3: perms(q + 1)
            cvts(q)
        for o in range(4):
            for rp in range(4):
                off = (8 * o + (rp >> 1)) * G.XF_K + (rp & 1) * (G.ROWS * 64)
                if XF2: off = (8 * o + (rp >> 1)) * G.XF2_K + (rp & 1) * (G.ROWS * 128)
                a(f"s_add_u32 s25, s24, {off}")
                r = buf + 4 * (4 * o + rp)
                a(f"buffer_store_dwordx4 v[{r}:{r+3}], v{vSt}, s[16:19], s25 offen {st}")
        a(f"s_branch L_next{p}")
        a.label(f"L_cw{p}")
        a(f"s_sub_u32 s12, s{sCur}, {NX}")
        a("s_and_b32 s13, s12, 3")
        a("s_lshr_b32 s14, s12, 2")
        a("s_lshl_b32 s14, s14, 2")
        a("s_add_u32 s14, s14, s10")
        for o in range(4):
            r = AF + 4 * o
            a(f"ds_read_b128 v[{r}:{r+3}], v{vL16} offset:{8192+o*1024}")
        a("s_and_b32 s24, s14, 3")
        a("s_bfe_u32 s25, s14, 0x10003")
        a("s_lshl_b32 s25, s25, 2")
        a("s_or_b32 s24, s24, s25")
        a("s_lshl_b32 s24, s24, 1")
        a(f"v_xor_b32 v{vT0}, s24, v{vR}")
        a(f"v_lshl_add_u32 v{vSt}, v{vT0}, 4, v{vWs}")
        a(f"s_mul_i32 s24, s13, {G.WF_DQ}")
        a("s_lshr_b32 s25, s14, 5")
        a(f"s_mul_i32 s25, s25, {G.WF_KS}")
        a("s_add_u32 s24, s24, s25")
        a("s_and_b32 s25, s14, 31")
        a("s_lshl_b32 s25, s25, 8")
        a("s_add_u32 s24, s24, s25")
        if G.WF_BASE: a(f"s_add_u32 s24, s24, {G.WF_BASE}")
        FR = buf + 16
        for dd in range(8):
            q = dd >> 1; h = dd & 1
            for e in range(4):
                a(f"v_perm_b32 v{FR+4*dd+e}, v{buf+4*e+q}, v{buf+4*e+q}, s{32+h}")
        a("s_waitcnt lgkmcnt(0)")
        for o in range(4):
            A = AF + 4 * o
            for dd in range(8):
                d = ACC + 4 * dd
                a(f"v_mfma_f32_16x16x32_bf16 v[{d}:{d+3}], v[{A}:{A+3}], v[{FR+4*dd}:{FR+4*dd+3}], 0")
            ob = (buf if (o & 1) == 0 else buf + 48)
            for rp in range(4):
                for q in range(4):
                    a(f"v_cvt_pk_bf16_f32 v{ob+4*rp+q}, v{ACC+8*q+rp}, v{ACC+8*q+4+rp}")
            for rp in range(4):
                off = (8 * o + (rp >> 1)) * G.WF_K + (rp & 1) * 8192
                a(f"s_add_u32 s25, s24, {off}")
                r = ob + 4 * rp
                a(f"buffer_store_dwordx4 v[{r}:{r+3}], v{vSt}, s[16:19], s25 offen {st}")
        a.label(f"L_next{p}")
        a("s_cmp_lg_u32 s10, 0")
        a(f"s_cbranch_scc1 L_pub{p}")
        counted(f"p{p}", 16)
        a(f"v_add_u32 v{vNext}, {2*NWG}, v{vNext}")
        a(f"v_mov_b32 v{vT0}, s41")
        a("s_mov_b64 exec, 1")
        a(f"ds_write_b32 v{vT0}, v{vNext} offset:12288")
        a("s_mov_b64 exec, -1")
        a.label(f"L_pub{p}")
        a("s_waitcnt lgkmcnt(0)")
        a("s_barrier")
        a(f"v_mov_b32 v{vT0}, s41")
        a(f"ds_read_b32 v{vT0+1}, v{vT0} offset:12288")
        a("s_xor_b32 s41, s41, 4")
        a(f"s_mov_b32 s{sCur}, s{sNxt}")
        a("s_waitcnt lgkmcnt(0)")
        a(f"v_readfirstlane_b32 s{sNxt}, v{vT0+1}")
        remap(sNxt)
        a(f"s_cmp_ge_u32 s{sCur}, {NT}")
        a("s_cbranch_scc1 L_k12_fin")
    a("s_branch L_k12_loop")
    a.label("L_k12_fin")
    if cfg.get('pf_late'):
        a("s_cmp_ge_u32 s2, 8"); a("s_cbranch_scc1 L_k12_end")
        a("s_cmp_lg_u32 s10, 3"); a("s_cbranch_scc1 L_k12_end")
        G.prefetch_code_fwd(a, "k12b", "gemm_kernel", "final_kernel", 4, ACC + 8, sp=60)
    if cfg.get('qstamp'):
        a("s_waitcnt vmcnt(0)")
        qst(5)
        a("s_lshl_b32 s73, s2, 2"); a("s_add_u32 s73, s73, s10"); a("s_lshl_b32 s73, s73, 8")
        a(f"s_add_u32 s73, s73, {216 << 20}")
        a(f"v_lshlrev_b32 v229, 2, v{vLane}")
        a("buffer_store_dword v228, v229, s[16:19], s73 offen")
    a.label("L_k12_end")
    a("s_endpgm")
    return name, a.lines, NV, (NWG, 256, 12288 + 64)
```

```python
from asmlib import *
import gen as G
from gen_k3 import LQ, NSTAGE
XC = 11264
STAGE = 16384 + 2 * XC
LDS_BYTES = STAGE * NSTAGE

T = 11
ACC = 0
WA = 176; WB = 192; NW = 208
XR = 216
vWa = 248; vXa = 250; vSt = 251; vSt2 = 252; vT = 253

def acc(i, c, t): return ACC + ((i * 2 + c) * 2 + t) * 4 if i < 10 else ACC + 160 + 4 * c
def wf(p, which): return (WA if p == 0 else WB) + which * 4
def nw(t): return NW + 4 * t
def xr(slot, c): return XR + slot * 8 + c * 4
def mf(d, A, B): return f"v_mfma_f32_16x16x32_bf16 v[{d}:{d+3}], v[{A}:{A+3}], v[{B}:{B+3}], v[{d}:{d+3}]"

def gemm_wave(a, cfg):
    lq = LQ(a)
    def x_read(step, i, slot):
        for c in range(2):
            r = xr(slot, c)
            off = 16384 + c * XC + i * 1024
            a(f"ds_read_b128 v[{r}:{r+3}], v{vXa} offset:{off}")
            lq.issue(('x', step, i))
    def w_read(step, c):
        p = step & 1
        for t in range(2):
            r = wf(p, c * 2 + t)
            for e in range(2):
                a(f"ds_read_b64_tr_b16 v[{r+2*e}:{r+2*e+1}], v{vWa+t} offset:{c*8192+e*1024}")
                lq.issue(('w', step))
    def w_xor(step):
        p = step & 1
        return [f"v_xor_b32 v{nw(t)+e}, 0x80008000, v{wf(p,2+t)+e}" for t in range(2) for e in range(4)]
    def bump(reg, step):
        d = STAGE if step % NSTAGE else -(NSTAGE - 1) * STAGE
        a(f"v_add_u32 v{reg}, {d & 0xffffffff:#x}, v{reg}")
    def step_code(s, tau0, barrier, nxt):
        p = s & 1
        if barrier:
            if G.CFG.get('gstamp'):
                a("s_memrealtime s[70:71]"); a("s_waitcnt lgkmcnt(0)")
                a("s_mov_b32 m0, s72"); a("v_writelane_b32 v255, s70, m0"); a("s_add_u32 s72, s72, 1")
            a("s_barrier")
            if G.CFG.get('gstamp'):
                a("s_memrealtime s[70:71]"); a("s_waitcnt lgkmcnt(0)")
                a("s_mov_b32 m0, s72"); a("v_writelane_b32 v255, s70, m0"); a("s_add_u32 s72, s72, 1")
        for i in range(T):
            tau = tau0 + i
            slot = tau % 4
            lq.wait(('x', s, i))
            if i < 10:
                ms = [mf(acc(i,0,0), wf(p,0), xr(slot,0)), mf(acc(i,0,1), wf(p,1), xr(slot,0)),
                      mf(acc(i,1,0), nw(0), xr(slot,0)), mf(acc(i,1,1), nw(1), xr(slot,0)),
                      mf(acc(i,0,0), wf(p,2), xr(slot,1)), mf(acc(i,0,1), wf(p,3), xr(slot,1)),
                      mf(acc(i,1,0), wf(p,0), xr(slot,1)), mf(acc(i,1,1), wf(p,1), xr(slot,1))]
            else:
                ms = [mf(acc(i,0,0), wf(p,0), xr(slot,0)), mf(acc(i,1,0), nw(0), xr(slot,0)),
                      mf(acc(i,0,0), wf(p,2), xr(slot,1)), mf(acc(i,1,0), wf(p,0), xr(slot,1))]
            xors = []
            for m in range(len(ms)):
                a(ms[m])
                if m == 0:
                    if i + 2 < T: x_read(s, i + 2, (tau + 2) % 4)
                    elif nxt:
                        if i + 2 == T: bump(vXa, s + 1)
                        x_read(s + 1, i + 2 - T, (tau + 2) % 4)
                if nxt and i == T - 6 and m == 4:
                    bump(vWa, s + 1); bump(vWa + 1, s + 1)
                if m == 3 and nxt and i == T - 5: w_read(s + 1, 0)
                if m == 3 and nxt and i == T - 4: w_read(s + 1, 1)
                if nxt and i == T - 2 and m == 4:
                    lq.wait(('w', s + 1))
                    xors = w_xor(s + 1)[4:]
                if nxt and i == T - 1 and m == 1:
                    xors = w_xor(s + 1)[:4]
                for _ in range(2):
                    if xors: a(xors.pop(0))
            for x in xors: a(x)
    if G.CFG.get('gstamp'):
        a("s_mov_b32 s72, 0"); a("v_mov_b32 v255, 0")
    for r in range(168): a(f"v_mov_b32 v{ACC+r}, 0")
    a("s_barrier")
    w_read(0, 0); w_read(0, 1)
    x_read(0, 0, 0); x_read(0, 1, 1)
    lq.wait(('w', 0))
    for x in w_xor(0): a(x)
    a("s_mov_b32 s46, 7")
    a.label("L_g_loop")
    q0 = list(lq.q)
    for u in range(4):
        step_code(u, u * T, True, True)
    q1 = [(t[0], t[1] - 4) + tuple(t[2:]) for t in lq.q]
    assert q0[len(q0)-len(q1):] == q1, (q0, q1)
    a("s_sub_u32 s46, s46, 1")
    a("s_cmp_lg_u32 s46, 0")
    a("s_cbranch_scc1 L_g_loop")
    lq.q = [(t[0], t[1] + 24) + tuple(t[2:]) for t in lq.q]
    step_code(28, 0 * T, True, True)
    step_code(29, 1 * T, True, True)
    if not G.CFG.get('k3_tail', True):
        step_code(30, 2 * T, True, True)
        step_code(31, 3 * T, False, False)
        a("s_nop 7")
    else:
        a("s_barrier")
    NW2 = 168; vXb = 253
    def epi_list(i, bb):
        l = []
        if i < 10:
            for c in range(2):
                dA = acc(i, c, bb); dB = acc(i, c, 1 - bb)
                l += [f"v_cvt_pk_bf16_f32 v{dA}, v{dA}, v{dA+1}", f"v_cvt_pk_bf16_f32 v{dA+1}, v{dA+2}, v{dA+3}",
                      f"v_cvt_pk_bf16_f32 v{dA+2}, v{dB}, v{dB+1}", f"v_cvt_pk_bf16_f32 v{dA+3}, v{dB+2}, v{dB+3}",
                      f"s_add_u32 s47, s48, {(c * G.YJ3 + i * 16 * 64) if G.CFG['y3'] else (c * G.YF_J + i * 16 * G.YF_ROW)}",
                      f"buffer_store_dwordx4 v[{dA}:{dA+3}], v{vSt}, s[16:19], s47 offen {G.CFG['k3_st']}"]
        else:
            for c in range(2):
                d = acc(10, c, 0)
                l += [f"v_cvt_pk_bf16_f32 v{d}, v{d}, v{d+1}", f"v_cvt_pk_bf16_f32 v{d+1}, v{d+2}, v{d+3}",
                      f"s_add_u32 s47, s49, {c * (G.YJ3 if G.CFG['y3'] else G.YF_J)}",
                      f"buffer_store_dwordx2 v[{d}:{d+1}], v{vSt2}, s[16:19], s47 offen {G.CFG['k3_st']}"]
        return l
    q_save = list(lq.q)
    for bb in range(2):
        if bb == 0:
            a("s_cmp_lg_u32 s13, 0"); a("s_cbranch_scc1 L_epi_b1")
        else:
            a.label("L_epi_b1")
        if not G.CFG.get('k3_tail', True):
            for i in range(T):
                for ins in epi_list(i, bb): a(ins)
        else:
            lq.q = list(q_save)
            bump(vWa, 31); bump(vWa + 1, 31)
            a(f"v_add_u32 v{vXb}, {STAGE}, v{vXa}")
            w_read(31, 0); w_read(31, 1)
            items = [(30, 0), (30, 1)]
            for i in range(T):
                if i + 2 < T: items.append((30, i + 2))
                items.append((31, i))
            def x_read2(step, i, slot):
                for c in range(2):
                    r = xr(slot, c)
                    off = 16384 + c * XC + i * 1024
                    a(f"ds_read_b128 v[{r}:{r+3}], v{vXa if step == 30 else vXb} offset:{off}")
                    lq.issue(('x', step, i))
            pend = []
            xored = False
            for n, (st, i) in enumerate(items):
                slot = (2 * T + n) % 4
                p = st & 1
                nwf = (lambda t: nw(t)) if st == 30 else (lambda t: NW2 + 4 * t)
                if st == 31 and not xored:
                    lq.wait(('w', 31))
                    for t in range(2):
                        for e in range(4): a(f"v_xor_b32 v{NW2+4*t+e}, 0x80008000, v{wf(1,2+t)+e}")
                    xored = True
                lq.wait(('x', st, i))
                if i < 10:
                    ms = [mf(acc(i,0,0), wf(p,0), xr(slot,0)), mf(acc(i,0,1), wf(p,1), xr(slot,0)),
                          mf(acc(i,1,0), nwf(0), xr(slot,0)), mf(acc(i,1,1), nwf(1), xr(slot,0)),
                          mf(acc(i,0,0), wf(p,2), xr(slot,1)), mf(acc(i,0,1), wf(p,3), xr(slot,1)),
                          mf(acc(i,1,0), wf(p,0), xr(slot,1)), mf(acc(i,1,1), wf(p,1), xr(slot,1))]
                else:
                    ms = [mf(acc(i,0,0), wf(p,0), xr(slot,0)), mf(acc(i,1,0), nwf(0), xr(slot,0)),
                          mf(acc(i,0,0), wf(p,2), xr(slot,1)), mf(acc(i,1,0), wf(p,0), xr(slot,1))]
                for m in range(len(ms)):
                    a(ms[m])
                    if m == 0 and n + 2 < len(items): x_read2(items[n + 2][0], items[n + 2][1], (2 * T + n + 2) % 4)
                    if m >= 1:
                        for _ in range(2):
                            if pend and pend[0][0] <= n - 1: a(pend.pop(0)[1])
                if st == 31:
                    pend += [(n + 1, ins) for ins in epi_list(i, bb)]
            a("s_nop 7")
            for _, ins in pend: a(ins)
        if bb == 0: a("s_branch L_epi_done")
    a.label("L_epi_done")
    if G.CFG.get('gstamp'):
        a("s_lshl_b32 s73, s2, 2"); a("s_add_u32 s73, s73, s15"); a("s_lshl_b32 s73, s73, 10")
        a(f"s_add_u32 s73, s73, {212 << 20}")
        a("v_mbcnt_lo_u32_b32 v254, -1, 0")
        a("v_mbcnt_hi_u32_b32 v254, -1, v254")
        a("v_lshlrev_b32 v254, 2, v254")
        a("buffer_store_dword v255, v254, s[16:19], s73 offen")
    a("s_endpgm")

def ws_fill(a):
    if not G.CFG.get('k45g'):
        a("s_cmp_ge_u32 s2, 8"); a("s_cbranch_scc1 L_nozero")
        a("s_cmp_lg_u32 s15, 0"); a("s_cbranch_scc1 L_nozero")
        a(f"s_mul_i32 s20, s2, {G.CNT_STRIDE}"); a(f"s_add_u32 s20, s20, {G.CNT_BASE}")
        a("v_mov_b32 v3, 0"); a("v_lshlrev_b32 v4, 2, v0")
        a("buffer_store_dword v3, v4, s[16:19], s20 offen")
        a.label("L_nozero")
    else:
        a("s_cmp_ge_u32 s2, 224"); a("s_cbranch_scc1 L_nofill")
        a("s_cmp_lg_u32 s15, 1"); a("s_cbranch_scc1 L_nofill")
        a("s_lshl_b32 s20, s2, 10"); a(f"s_add_u32 s20, s20, {G.PART_BASE}")
        a("v_mov_b32 v8, -1"); a("v_mov_b32 v9, -1"); a("v_mov_b32 v10, -1"); a("v_mov_b32 v11, -1"); a("v_lshlrev_b32 v4, 4, v0")
        a("buffer_store_dwordx4 v[8:11], v4, s[16:19], s20 offen")
        a.label("L_nofill")

def helper_wave(a, cfg):
    vDW = 1; vDX = 2
    sWo, sXo, sLW, sLX = 40, 41, 42, 43
    vD6 = 5; sX6 = 44
    XF2 = G.CFG['xf2']
    def dma(step):
        buf = step % NSTAGE
        a(f"s_add_u32 m0, s{sLW}, {buf*STAGE}")
        for j in range(4):
            a(f"buffer_load_dwordx4 v{vDW}, s[16:19], s{sWo} offen offset:{j*1024} lds")
        a(f"s_add_u32 s{sWo}, s{sWo}, {G.WF_KS}")
        a(f"s_add_u32 m0, s{sLX}, {buf*STAGE}")
        for j in range(4):
            if XF2 and j:
                a(f"s_add_u32 s49, s{sXo}, {1024*j}")
                a(f"buffer_load_dwordx4 v{vDX}, s[16:19], s49 offen offset:{j*1024} lds")
            else:
                a(f"buffer_load_dwordx4 v{vDX}, s[16:19], s{sXo} offen offset:{j*1024} lds")
        a(f"s_add_u32 m0, s{sLX}, {buf*STAGE+4096}")
        a(f"s_add_u32 s49, s{sXo}, {8192 if XF2 else 4096}")
        a(f"buffer_load_dwordx4 v{vDX}, s[16:19], s49 offen lds")
        a("s_mov_b64 exec, s[50:51]")
        a(f"buffer_load_dwordx4 v{vD6}, s[16:19], s{sX6} offen offset:1024 lds")
        a("s_mov_b64 exec, -1")
        adv = (64 if (step & 1) == 0 else G.XF_KP - 64) if XF2 else G.XF_KS
        a(f"s_add_u32 s{sXo}, s{sXo}, {adv}")
        a(f"s_add_u32 s{sX6}, s{sX6}, {adv}")
    for st in range(3): dma(st)
    a("s_waitcnt vmcnt(20)")
    a("s_barrier")
    a("s_mov_b32 s46, 7")
    a.label("L_h_loop")
    for u in range(4):
        a("s_waitcnt vmcnt(10)")
        a("s_barrier")
        dma(u + 3)
    a("s_sub_u32 s46, s46, 1")
    a("s_cmp_lg_u32 s46, 0")
    a("s_cbranch_scc1 L_h_loop")
    a("s_waitcnt vmcnt(10)"); a("s_barrier"); dma(31)
    a("s_waitcnt vmcnt(10)"); a("s_barrier")
    a("s_waitcnt vmcnt(0)"); a("s_barrier")
    if G.CFG.get('k3_latewait'): ws_fill(a)
    if G.CFG.get('pf_late'):
        a("s_cmp_ge_u32 s2, 8"); a("s_cbranch_scc1 L_h_end")
        a("s_cmp_lg_u32 s15, 3"); a("s_cbranch_scc1 L_h_end")
        G.prefetch_code_fwd(a, "k3b", "final_kernel", "L_code_end", 3, 12, sp=60)
        a.label("L_h_end")
    a("s_endpgm")

def gen_k3c(cfg=None):
    a = Asm()
    name = 'gemm_kernel'
    G.kernel_header(a, name)
    a("s_cmp_ge_u32 s2, 256")
    a("s_cbranch_scc1 L_k3_end")
    a("s_load_dwordx2 s[8:9], s[0:1], 48")
    a(f"v_lshrrev_b32 v{vT}, 6, v0")
    a(f"v_and_b32 v0, 63, v0")
    a(f"v_readfirstlane_b32 s10, v{vT}")
    if G.CFG.get('pf_code'):
        a("s_cmp_ge_u32 s2, 8"); a("s_cbranch_scc1 L_nopf3")
        a("s_cmp_lg_u32 s10, 7"); a("s_cbranch_scc1 L_nopf3")
        G.prefetch_code(a, "k3", "gemm_kernel", "final_kernel", 4, 12, sp=60)
        a.label("L_nopf3")
    a("s_and_b32 s11, s2, 7")
    a("s_lshr_b32 s12, s2, 3")
    a("s_lshr_b32 s13, s12, 3")
    a("s_lshl_b32 s11, s11, 2")
    a("s_add_u32 s11, s11, s13")
    a("s_bfe_u32 s13, s12, 0x10002")
    a("s_and_b32 s14, s12, 3")
    a("s_and_b32 s15, s10, 3")
    late = G.CFG.get('k3_latewait')
    if not late:
        a("s_waitcnt lgkmcnt(0)")
        G.make_srd(a, 16, 8, 9, G.WS_BYTES)
    a("s_cmp_ge_u32 s10, 4")
    a("s_cbranch_scc1 L_k3_helper")
    g = vT; c16 = vT + 1; t0 = vT + 2; t1 = XR; t2 = XR + 1
    a(f"v_lshrrev_b32 v{g}, 4, v0")
    a(f"v_and_b32 v{c16}, 15, v0")
    a(f"v_bfe_u32 v{t0}, v{c16}, 3, 1")
    a(f"v_mul_u32_u24 v{t0}, 3, v{t0}")
    a(f"v_xor_b32 v{t0}, v{t0}, v{g}")
    a(f"v_lshlrev_b32 v{t0}, 4, v{t0}")
    a(f"v_lshl_add_u32 v{vXa}, v{c16}, 6, v{t0}")
    a(f"v_lshrrev_b32 v{t0}, 2, v{c16}")
    a(f"v_and_b32 v{t1}, 1, v{g}")
    a(f"v_lshl_or_b32 v{t1}, v{t1}, 2, v{t0}")
    a(f"v_lshl_add_u32 v{t0}, v{g}, 3, v{t0}")
    a(f"v_lshlrev_b32 v{t0}, 8, v{t0}")
    a(f"v_and_b32 v{t2}, 3, v{c16}")
    a(f"v_lshl_add_u32 v{t0}, v{t2}, 3, v{t0}")
    a("s_lshl_b32 s20, s15, 1")
    a("s_add_u32 s20, s20, s13")
    for t in range(2):
        if t: a("s_xor_b32 s20, s20, 1")
        a(f"v_xor_b32 v{t2}, s20, v{t1}")
        a(f"v_lshl_add_u32 v{vWa+t}, v{t2}, 5, v{t0}")
    if G.CFG['y3']:
        a(f"v_lshlrev_b32 v{vSt}, 6, v{c16}")
        a(f"v_lshl_add_u32 v{vSt}, v{g}, 4, v{vSt}")
        a(f"v_and_b32 v{t0}, 7, v{c16}")
        a(f"v_lshlrev_b32 v{vSt2}, 6, v{t0}")
        a(f"v_lshrrev_b32 v{t1}, 3, v{c16}")
        a(f"v_xor_b32 v{t1}, s13, v{t1}")
        a(f"s_mov_b32 s22, {G.YB3}")
        a(f"v_mul_lo_u32 v{t1}, v{t1}, s22")
        a(f"v_add_u32 v{vSt2}, v{vSt2}, v{t1}")
        a(f"v_lshl_add_u32 v{vSt2}, v{g}, 4, v{vSt2}")
        a("s_lshl_b32 s22, s13, 3")
        a(f"v_add_u32 v{vSt2}, s22, v{vSt2}")
        a(f"v_cmp_gt_u32 vcc, 7, v{t0}")
        a(f"v_mov_b32 v{t1}, 0x80000000")
        a(f"v_cndmask_b32 v{vSt2}, v{t1}, v{vSt2}, vcc")
        a("s_lshl_b32 s20, s14, 2")
        a("s_add_u32 s20, s20, s15")
        a(f"s_mul_i32 s48, s20, {G.YS3}")
        a(f"s_mul_i32 s20, s11, {2*G.YJ3}")
        a("s_add_u32 s48, s48, s20")
        a(f"s_add_u32 s48, s48, {G.YF_BASE}")
        a(f"s_add_u32 s49, s48, {160*64}")
        a(f"s_mul_i32 s20, s13, {G.YB3}")
        a("s_add_u32 s48, s48, s20")
    else:
        a(f"s_mov_b32 s21, {G.YF_ROW}")
        a(f"v_mul_u32_u24 v{vSt}, s21, v{c16}")
        a(f"v_lshl_add_u32 v{vSt}, v{g}, 4, v{vSt}")
        a("s_lshl_b32 s23, s15, 6")
        a(f"v_add_u32 v{vSt}, s23, v{vSt}")
        a(f"v_and_b32 v{t0}, 7, v{c16}")
        a(f"v_mul_u32_u24 v{vSt2}, s21, v{t0}")
        a(f"v_lshrrev_b32 v{t1}, 3, v{c16}")
        a(f"v_xor_b32 v{t1}, s13, v{t1}")
        a(f"s_mov_b32 s22, {G.YF_B}")
        a(f"v_mul_lo_u32 v{t1}, v{t1}, s22")
        a(f"v_add_u32 v{vSt2}, v{vSt2}, v{t1}")
        a(f"v_lshl_add_u32 v{vSt2}, v{g}, 4, v{vSt2}")
        a("s_lshl_b32 s22, s13, 3")
        a("s_add_u32 s22, s22, s23")
        a(f"v_add_u32 v{vSt2}, s22, v{vSt2}")
        a(f"v_cmp_gt_u32 vcc, 7, v{t0}")
        a(f"v_mov_b32 v{t1}, 0x80000000")
        a(f"v_cndmask_b32 v{vSt2}, v{t1}, v{vSt2}, vcc")
        a(f"s_mul_i32 s48, s11, {2*G.YF_J}")
        a("s_lshl_b32 s20, s14, 8")
        a("s_add_u32 s48, s48, s20")
        a(f"s_add_u32 s48, s48, {G.YF_BASE}")
        a(f"s_add_u32 s49, s48, {160*G.YF_ROW}")
        a(f"s_mul_i32 s20, s13, {G.YF_B}")
        a("s_add_u32 s48, s48, s20")
    if late:
        a("s_waitcnt lgkmcnt(0)")
        G.make_srd(a, 16, 8, 9, G.WS_BYTES)
    gemm_wave(a, cfg)
    a.label("L_k3_helper")
    a(f"s_mul_i32 s40, s11, {G.WF_K}")
    a(f"s_mul_i32 s20, s14, {G.WF_DQ}")
    a("s_add_u32 s40, s40, s20")
    if G.WF_BASE: a(f"s_add_u32 s40, s40, {G.WF_BASE}")
    a(f"s_mul_i32 s41, s11, {G.XF2_K if G.CFG['xf2'] else G.XF_K}")
    a(f"s_mul_i32 s20, s13, {G.XF2_B if G.CFG['xf2'] else G.XF_B}")
    a("s_add_u32 s41, s41, s20")
    a(f"s_add_u32 s41, s41, {G.XF_BASE}")
    a("s_lshl_b32 s42, s15, 12")
    a("s_mul_i32 s43, s15, 5632")
    a("s_lshr_b32 s20, s15, 1")
    a("s_lshl_b32 s21, s20, 9")
    a("s_sub_u32 s21, s43, s21")
    a("v_lshlrev_b32 v1, 4, v0")
    if G.CFG['xf2']:
        a("v_lshrrev_b32 v3, 2, v0"); a("v_lshlrev_b32 v3, 7, v3")
        a("v_and_b32 v4, 3, v0"); a("v_lshl_add_u32 v3, v4, 4, v3")
        a("s_lshl_b32 s21, s21, 1")
        a("v_add_u32 v2, s21, v3")
        a(f"s_add_u32 s22, s21, {10240-1024}")
        a("v_add_u32 v5, s22, v3")
        a("s_mov_b32 s44, s41")
        a("s_bitcmp1_b32 s15, 0")
        a("s_cbranch_scc0 L_six_even")
        a(f"s_mul_i32 s22, s20, 21504")
        a(f"s_add_u32 s22, s22, {20480-1024}")
        a("v_lshrrev_b32 v5, 2, v0"); a("v_lshlrev_b32 v5, 7, v5")
        a("v_and_b32 v3, 3, v0"); a("v_xor_b32 v3, 3, v3"); a("v_lshl_add_u32 v5, v3, 4, v5")
        a("v_add_u32 v5, s22, v5")
        a(f"s_mul_i32 s44, s11, {G.XF2_K}")
        a("s_xor_b32 s22, s13, 1")
        a(f"s_mul_i32 s22, s22, {G.XF2_B}")
        a("s_add_u32 s44, s44, s22")
        a(f"s_add_u32 s44, s44, {G.XF_BASE}")
    else:
        a("v_lshlrev_b32 v1, 4, v0")
        a("v_add_u32 v2, s21, v1")
        a("s_add_u32 s22, s21, 4096")
        a("v_add_u32 v5, s22, v1")
        a("s_mov_b32 s44, s41")
        a("s_bitcmp1_b32 s15, 0")
        a("s_cbranch_scc0 L_six_even")
        a(f"s_mul_i32 s22, s20, 10752")
        a(f"s_add_u32 s22, s22, {10240-1024}")
        a("v_lshrrev_b32 v5, 2, v0"); a("v_lshlrev_b32 v5, 6, v5")
        a("v_and_b32 v3, 3, v0"); a("v_xor_b32 v3, 3, v3"); a("v_lshl_add_u32 v5, v3, 4, v5")
        a("v_add_u32 v5, s22, v5")
        a(f"s_mul_i32 s44, s11, {G.XF_K}")
        a("s_xor_b32 s22, s13, 1")
        a(f"s_mul_i32 s22, s22, {G.XF_B}")
        a("s_add_u32 s44, s44, s22")
        a(f"s_add_u32 s44, s44, {G.XF_BASE}")
    a.label("L_six_even")
    a("s_mov_b32 s50, -1"); a("s_mov_b32 s51, 0")
    a("v_add_u32 v1, s42, v1")
    a("s_add_u32 s43, s43, 16384")
    if late:
        a("s_waitcnt lgkmcnt(0)")
        G.make_srd(a, 16, 8, 9, G.WS_BYTES)
    if not late: ws_fill(a)
    helper_wave(a, cfg)
    a.label("L_k3_end")
    a("s_endpgm")
    return name, a.lines, 256, (256, 512, LDS_BYTES)
```

```python
from asmlib import *
import gen as G
import math, struct
f2h = lambda x: "0x%08x" % struct.unpack('<I', struct.pack('<f', x))[0]

RAW = 0
AF = 64
BF = 88
ACC = 104
VT = 200
NG = 28
L_TAB = 0; L_PART = 8192; L_SUM = L_PART + 6 * 4096; L_OFF = L_SUM + 1024
LDS = L_OFF + 6 * 8192

def hreg(o, dd, rp): return ACC + (o * 8 + dd) * 4 + rp

def gen_k45g(cfg=None):
    cfg = cfg or G.CFG
    a = Asm()
    def st(i):
        if cfg.get('fstamp'):
            a("s_memrealtime s[70:71]"); a("s_waitcnt lgkmcnt(0)"); a(f"v_writelane_b32 v244, s70, {i}")
    name = 'final_kernel'
    G.kernel_header(a, name)
    vLane = VT; vR = VT+1; vG = VT+2; vOff = VT+3; vT0 = VT+4
    VTID4 = 214; PA = 216; PB = 224; GB = 232
    st(0)
    a(f"s_cmp_ge_u32 s2, {2*NG*4}")
    a("s_cbranch_scc1 L_k45_end")
    a("s_load_dwordx2 s[8:9], s[0:1], 48")
    a("s_load_dwordx4 s[4:7], s[0:1], 16")
    a("s_load_dwordx2 s[28:29], s[0:1], 32")
    a(f"v_lshrrev_b32 v{vT0}, 6, v0")
    a(f"v_and_b32 v{vLane}, 63, v0")
    a(f"v_readfirstlane_b32 s10, v{vT0}")
    if cfg.get('pf_code'):
        a("s_cmp_ge_u32 s2, 8"); a("s_cbranch_scc1 L_nopf45")
        a("s_cmp_lg_u32 s10, 7"); a("s_cbranch_scc1 L_nopf45")
        G.prefetch_code(a, "k45", "final_kernel", "L_code_end", 3, ACC + 8, sp=60)
        a.label("L_nopf45")
    a(f"v_lshlrev_b32 v{VTID4}, 2, v0")
    a(f"v_and_b32 v{vR}, 15, v{vLane}")
    a(f"v_lshrrev_b32 v{vG}, 4, v{vLane}")
    a("s_and_b32 s13, s2, 3")
    a("s_lshr_b32 s12, s2, 2")
    a(f"s_cmp_ge_u32 s12, {NG}")
    a("s_cselect_b32 s11, 1, 0")
    a(f"s_mul_i32 s15, s11, {NG}")
    a("s_sub_u32 s12, s12, s15")
    a("s_mul_i32 s14, s12, 6")
    a("s_add_u32 s14, s14, s10")
    if cfg['y3']:
        a(f"s_mov_b32 s24, {8*G.YJ3}")
        a(f"v_mul_u32_u24 v{vOff}, s24, v{vG}")
        a(f"v_lshrrev_b32 v{vT0+1}, 2, v{vR}")
        a(f"s_mov_b32 s24, {G.YS3}")
        a(f"v_mad_u32_u24 v{vOff}, v{vT0+1}, s24, v{vOff}")
        a(f"v_and_b32 v{vT0+1}, 3, v{vR}")
        a(f"v_lshl_add_u32 v{vOff}, v{vT0+1}, 4, v{vOff}")
        a(f"s_mul_i32 s24, s11, {G.YB3}")
        a(f"s_mul_i32 s25, s13, {4*G.YS3}")
        a("s_add_u32 s24, s24, s25")
        a("s_lshl_b32 s25, s14, 6")
        a("s_add_u32 s24, s24, s25")
        a(f"s_add_u32 s24, s24, {G.YF_BASE}")
    else:
        a(f"s_mov_b32 s24, {8*G.YF_J}")
        a(f"v_mul_u32_u24 v{vOff}, s24, v{vG}")
        a(f"v_lshl_add_u32 v{vOff}, v{vR}, 4, v{vOff}")
        a(f"s_mul_i32 s24, s11, {G.YF_B}")
        a(f"s_mul_i32 s25, s14, {G.YF_ROW}")
        a("s_add_u32 s24, s24, s25")
        a("s_lshl_b32 s25, s13, 8")
        a("s_add_u32 s24, s24, s25")
        a(f"s_add_u32 s24, s24, {G.YF_BASE}")
    a("s_mov_b32 s30, 0x05040100")
    a("s_mov_b32 s31, 0x07060302")
    a("s_waitcnt lgkmcnt(0)")
    st(6)
    G.make_srd(a, 16, 8, 9, G.WS_BYTES)
    a("s_cmp_ge_u32 s10, 6")
    a("s_cbranch_scc1 L_k45_gb")
    for s in range(2):
        for i in range(8):
            r = RAW + 4 * (8 * s + i)
            a(f"s_add_u32 s25, s24, {(32*s+i)*(G.YJ3 if cfg['y3'] else G.YF_J)}")
            a(f"buffer_load_dwordx4 v[{r}:{r+3}], v{vOff}, s[16:19], s25 offen")
    st(8)
    vN = vT0; vA = vT0+1; vP = BF
    a("s_lshr_b32 s27, s10, 1")
    a("s_and_b32 s33, s10, 1")
    a("s_lshl_b32 s27, s27, 4")
    a(f"v_add_u32 v{vN}, s27, v{vR}")
    a("s_lshl_b32 s33, s33, 5")
    a("s_add_u32 s33, s33, 1")
    a(f"v_lshlrev_b32 v{vA}, 3, v{vG}")
    a(f"v_add_u32 v{vA}, s33, v{vA}")
    for e2 in range(4):
        a(f"v_mul_u32_u24 v{vP+2*e2}, v{vA}, v{vN}")
        a(f"v_add_u32 v{vP+2*e2+1}, 32, v{vP+2*e2}")
        if e2 < 3: a(f"v_add_u32 v{vA}, 2, v{vA}")
    G.cos_table(a, None, [vP+e for e in range(8)], ACC, ACC+4, scale="0x3d000000")
    a("s_lshl_b32 s26, s10, 10")
    a(f"v_lshlrev_b32 v{vT0+3}, 4, v{vLane}")
    a(f"v_add_u32 v{vT0+3}, s26, v{vT0+3}")
    a(f"ds_write_b128 v{vT0+3}, v[{ACC}:{ACC+3}] offset:{L_TAB}")
    a.label("L_k45_gb")
    if cfg.get('pf_tlb'):
        a("s_cmp_lg_u32 s10, 6"); a("s_cbranch_scc1 L_notlb45")
        a(f"s_mul_i32 s24, s11, {G.OUT_B}")
        a("s_add_u32 s40, s28, s24"); a("s_addc_u32 s41, s29, 0")
        G.make_srd(a, 44, 40, 41, G.OUT_B)
        a("s_mul_i32 s24, s12, %d" % (6 * 48 * 1024))
        a(f"v_lshlrev_b32 v{ACC+8}, 13, v{vLane}")
        a(f"buffer_load_dword v{ACC+9}, v{ACC+8}, s[44:47], s24 offen")
        a.label("L_notlb45")
    G.make_srd(a, 20, 4, 5, 1024)
    G.make_srd(a, 36, 6, 7, 1024)
    a(f"v_lshlrev_b32 v{vT0+6}, 4, v{vR}")
    a("s_lshl_b32 s25, s13, 8")
    a(f"buffer_load_dwordx4 v[{GB}:{GB+3}], v{vT0+6}, s[20:23], s25 offen")
    a(f"buffer_load_dwordx4 v[{GB+4}:{GB+7}], v{vT0+6}, s[36:39], s25 offen")
    st(1)
    a("s_waitcnt lgkmcnt(0)")
    a("s_barrier")
    a("s_cmp_ge_u32 s10, 6")
    a("s_cbranch_scc1 L_k45_red2")
    a(f"v_lshlrev_b32 v{vT0+3}, 4, v{vLane}")
    for o in range(3):
        for s in range(2):
            r = AF + 4 * (2 * o + s)
            a(f"ds_read_b128 v[{r}:{r+3}], v{vT0+3} offset:{L_TAB+(2*o+s)*1024}")
    S1 = PA; S2 = PB
    a(f"s_cmp_ge_u32 s14, {G.NBLK}")
    a("s_cbranch_scc1 L_k45_zero")
    a("s_waitcnt lgkmcnt(0)")
    a(f"s_cmp_lg_u32 s14, {G.NBLK-1}")
    a("s_cbranch_scc1 L_k45_full")
    lastn = G.L_OUT - 48 * (G.NBLK - 1)
    for o in range(3):
        nvalid = lastn - 16 * o
        a(f"v_cmp_gt_i32 vcc, {max(nvalid,0)}, v{vR}")
        for r in range(8):
            a(f"v_cndmask_b32 v{AF+8*o+r}, 0, v{AF+8*o+r}, vcc")
    a.label("L_k45_full")
    a("s_waitcnt vmcnt(2)")
    st(2)
    for q in range(4):
        for s in range(2):
            for h in range(2):
                for e in range(4):
                    a(f"v_perm_b32 v{BF+(s*2+h)*4+e}, v{RAW+4*(8*s+2*e+1)+q}, v{RAW+4*(8*s+2*e)+q}, s{30+h}")
        for s in range(2):
            for o in range(3):
                for h in range(2):
                    d = ACC + (o * 8 + 2 * q + h) * 4
                    A = AF + 4 * (2 * o + s); B = BF + (s * 2 + h) * 4
                    c = "0" if s == 0 else f"v[{d}:{d+3}]"
                    a(f"v_mfma_f32_16x16x32_bf16 v[{d}:{d+3}], v[{A}:{A+3}], v[{B}:{B+3}], {c}")
    st(3)
    a("s_nop 7")
    for dd in range(8):
        first = True
        for o in range(3):
            for rp in range(4):
                h = hreg(o, dd, rp)
                if first:
                    a(f"v_mul_f32 v{S2+dd}, v{h}, v{h}"); a(f"v_mov_b32 v{S1+dd}, v{h}"); first = False
                else:
                    a(f"v_fmac_f32 v{S2+dd}, v{h}, v{h}"); a(f"v_add_f32 v{S1+dd}, v{S1+dd}, v{h}")
    a("s_branch L_k45_red")
    a.label("L_k45_zero")
    a("s_waitcnt vmcnt(0) lgkmcnt(0)")
    for r in range(8):
        a(f"v_mov_b32 v{S1+r}, 0"); a(f"v_mov_b32 v{S2+r}, 0")
    a.label("L_k45_red")
    st(4)
    a("s_lshl_b32 s25, s10, 12")
    a(f"v_lshlrev_b32 v{vT0}, 10, v{vG}")
    a(f"v_lshl_add_u32 v{vT0}, v{vR}, 5, v{vT0}")
    a(f"v_add_u32 v{vT0}, s25, v{vT0}")
    a(f"ds_write_b128 v{vT0}, v[{S1}:{S1+3}] offset:{L_PART}")
    a(f"ds_write_b128 v{vT0}, v[{S1+4}:{S1+7}] offset:{L_PART+16}")
    a(f"ds_write_b128 v{vT0}, v[{S2}:{S2+3}] offset:{L_PART+512}")
    a(f"ds_write_b128 v{vT0}, v[{S2+4}:{S2+7}] offset:{L_PART+512+16}")
    a.label("L_k45_red2")
    a("s_waitcnt lgkmcnt(0)")
    a("s_barrier")
    def offload():
        a("s_lshl_b32 s25, s10, 13")
        a(f"v_lshlrev_b32 v{vT0+1}, 4, v{vLane}")
        a(f"v_add_u32 v{vT0+1}, s25, v{vT0+1}")
        for dd in range(8):
            a(f"ds_write2_b32 v{vT0+1}, v{hreg(0,dd,3)}, v{hreg(1,dd,3)} offset0:0 offset1:1") if False else None
            for o in range(3):
                a(f"ds_write_b32 v{vT0+1}, v{hreg(o,dd,3)} offset:{L_OFF+dd*1024+4*o}")
    a(f"s_mul_i32 s24, s11, {4*NG}")
    a(f"s_mul_i32 s25, s13, {NG}")
    a("s_add_u32 s24, s24, s25")
    a("s_lshl_b32 s26, s24, 10")
    a(f"s_add_u32 s26, s26, {G.PART_BASE}")
    a("s_cmp_ge_u32 s10, 6")
    a("s_cbranch_scc1 L_k45_sumdone")
    a("s_cmp_lt_u32 s10, 4")
    a("s_cbranch_scc1 L_k45_red4")
    offload()
    a("s_branch L_k45_sumdone")
    a.label("L_k45_red4")
    for p in range(24):
        a(f"ds_read_b32 v{RAW+16+p}, v{VTID4} offset:{L_PART+p*1024}")
    a("s_waitcnt lgkmcnt(0)")
    vals = [RAW + 16 + p for p in range(24)]
    while len(vals) > 1:
        nv = []
        for i in range(0, len(vals) - 1, 2):
            a(f"v_add_f32 v{vals[i]}, v{vals[i]}, v{vals[i+1]}"); nv.append(vals[i])
        if len(vals) & 1: nv.append(vals[-1])
        vals = nv
    a("s_lshl_b32 s24, s12, 10")
    a("s_add_u32 s24, s24, s26")
    a(f"buffer_store_dword v{vals[0]}, v{VTID4}, s[16:19], s24 offen sc1")
    st(5)
    offload()
    PT = RAW
    a(f"s_mov_b32 s33, {1 << 14}")
    a.label("L_k45_poll")
    a("s_mov_b32 s27, s26")
    for p in range(NG):
        if p % 4 == 0 and p: a("s_add_u32 s27, s27, 4096")
        a(f"buffer_load_dword v{PT+p}, v{VTID4}, s[16:19], s27 offen offset:{(p%4)*1024} sc1")
    a("s_waitcnt vmcnt(0)")
    t = RAW + 32
    a(f"v_max3_u32 v{t}, v{PT}, v{PT+1}, v{PT+2}")
    for p in range(3, NG - 1, 2):
        a(f"v_max3_u32 v{t}, v{t}, v{PT+p}, v{PT+p+1}")
    a(f"v_max_u32 v{t}, v{t}, v{PT+NG-1}")
    a(f"v_cmp_eq_u32 vcc, -1, v{t}")
    a("s_cmp_eq_u64 vcc, 0")
    a("s_cbranch_scc1 L_k45_got")
    a("s_sub_u32 s33, s33, 1")
    a("s_cmp_eq_u32 s33, 0")
    a("s_cbranch_scc1 L_k45_got")
    if cfg.get('k45_sleep'): a(f"s_sleep {cfg['k45_sleep']}")
    a("s_branch L_k45_poll")
    a.label("L_k45_got")
    st(7)
    vals = [PT + p for p in range(NG)]
    while len(vals) > 1:
        nv = []
        for i in range(0, len(vals) - 1, 2):
            a(f"v_add_f32 v{vals[i]}, v{vals[i]}, v{vals[i+1]}"); nv.append(vals[i])
        if len(vals) & 1: nv.append(vals[-1])
        vals = nv
    a(f"ds_write_b32 v{VTID4}, v{vals[0]} offset:{L_SUM}")
    a.label("L_k45_sumdone")
    st(9)
    a("s_waitcnt lgkmcnt(0)")
    a("s_barrier")
    a("s_cmp_lt_u32 s10, 6")
    a("s_cbranch_scc1 L_k45_nohread")
    a("s_waitcnt vmcnt(0)")
    a("s_sub_u32 s25, s10, 6")
    a("s_mul_i32 s25, s25, 3")
    a("s_lshl_b32 s25, s25, 13")
    a(f"v_lshlrev_b32 v{vT0+1}, 4, v{vLane}")
    a(f"v_add_u32 v{vT0+1}, s25, v{vT0+1}")
    for j in range(3):
        for dd in range(8):
            h = hreg(j, dd, 0)
            a(f"ds_read_b96 v[{h}:{h+2}], v{vT0+1} offset:{L_OFF+j*8192+dd*1024}")
        a("s_waitcnt lgkmcnt(0)") if j < 2 else None
    a.label("L_k45_nohread")
    ST = RAW + 44
    a(f"v_lshlrev_b32 v{vT0+6}, 5, v{vR}")
    a(f"ds_read_b128 v[{ST}:{ST+3}], v{vT0+6} offset:{L_SUM}")
    a(f"ds_read_b128 v[{ST+4}:{ST+7}], v{vT0+6} offset:{L_SUM+16}")
    a(f"ds_read_b128 v[{ST+8}:{ST+11}], v{vT0+6} offset:{L_SUM+512}")
    a(f"ds_read_b128 v[{ST+12}:{ST+15}], v{vT0+6} offset:{L_SUM+512+16}")
    a(f"s_mov_b32 s24, {f2h(1.0 / G.L_OUT)}")
    a("s_mov_b32 s25, 0x3727c5ac")
    a("s_waitcnt vmcnt(0) lgkmcnt(0)")
    for dd in range(8):
        mu = ST + dd; m2 = ST + 8 + dd
        a(f"v_mul_f32 v{mu}, s24, v{mu}")
        a(f"v_mul_f32 v{m2}, s24, v{m2}")
        a(f"v_fma_f32 v{m2}, -v{mu}, v{mu}, v{m2}")
        a(f"v_max_f32 v{m2}, 0, v{m2}")
        a(f"v_add_f32 v{m2}, s25, v{m2}")
        a(f"v_rsq_f32 v{m2}, v{m2}")
        gsrc = GB + (dd >> 1); bsrc = GB + 4 + (dd >> 1)
        if dd & 1:
            a(f"v_and_b32 v{PA+dd}, 0xffff0000, v{gsrc}"); a(f"v_and_b32 v{PB+dd}, 0xffff0000, v{bsrc}")
        else:
            a(f"v_lshlrev_b32 v{PA+dd}, 16, v{gsrc}"); a(f"v_lshlrev_b32 v{PB+dd}, 16, v{bsrc}")
        a(f"v_mul_f32 v{PA+dd}, v{PA+dd}, v{m2}")
        a(f"v_fma_f32 v{PB+dd}, -v{mu}, v{PA+dd}, v{PB+dd}")
    a(f"s_mul_i32 s24, s11, {G.OUT_B}")
    a("s_add_u32 s28, s28, s24")
    a("s_addc_u32 s29, s29, 0")
    G.make_srd(a, 32, 28, 29, G.OUT_B)
    vO = vT0 + 6
    a("s_lshl_b32 s25, s13, 8")
    a(f"v_lshlrev_b32 v{vO}, 12, v{vG}")
    a(f"v_lshl_add_u32 v{vO}, v{vR}, 4, v{vO}")
    a(f"v_add_u32 v{vO}, s25, v{vO}")
    c0 = -2.0 * math.log2(math.e) * math.sqrt(2.0 / math.pi); c1 = c0 * 0.044715
    a(f"s_mov_b32 s26, {f2h(c1)}")
    a(f"v_mov_b32 v{vT0+7}, {f2h(c0)}")
    st(10)
    T0 = RAW
    cnt = [0]
    def gelu_row(regs, sreg):
        ob = RAW + 16 + 4 * (cnt[0] % 8); cnt[0] += 1
        for dd in range(8): a(f"v_fma_f32 v{regs[dd]}, v{regs[dd]}, v{PA+dd}, v{PB+dd}")
        for dd in range(8): a(f"v_mul_f32 v{T0+dd}, v{regs[dd]}, v{regs[dd]}")
        for dd in range(8): a(f"v_fma_f32 v{T0+dd}, v{T0+dd}, s26, v{vT0+7}")
        for dd in range(8): a(f"v_mul_f32 v{T0+dd}, v{T0+dd}, v{regs[dd]}")
        for dd in range(8): a(f"v_exp_f32 v{T0+dd}, v{T0+dd}")
        for dd in range(8): a(f"v_add_f32 v{T0+dd}, 1.0, v{T0+dd}")
        for dd in range(8): a(f"v_rcp_f32 v{T0+dd}, v{T0+dd}")
        for dd in range(8): a(f"v_mul_f32 v{T0+dd}, v{T0+dd}, v{regs[dd]}")
        for q in range(4): a(f"v_cvt_pk_bf16_f32 v{ob+q}, v{T0+2*q}, v{T0+2*q+1}")
        a(f"buffer_store_dwordx4 v[{ob}:{ob+3}], v{vO}, s[32:35], s{sreg} offen {cfg['k5_st']}")
    if cfg.get('gelu_loop'):
        a("s_cmp_ge_u32 s10, 6")
        a("s_cbranch_scc1 L_k45_hoff")
        a(f"s_cmp_ge_u32 s14, {G.NBLK}")
        a("s_cbranch_scc1 L_k45_fin")
        a("s_mul_i32 s52, s14, %d" % (48 * 1024))
        a(f"s_mov_b32 s53, {1*1024}"); a(f"s_mov_b32 s54, {14*1024}")
        a("s_branch L_k45_gelu")
        a.label("L_k45_hoff")
        a("s_sub_u32 s25, s10, 6")
        a("s_mul_i32 s25, s25, 3")
        a("s_mul_i32 s52, s12, 6")
        a("s_add_u32 s52, s52, s25")
        a("s_mul_i32 s52, s52, %d" % (48 * 1024))
        a(f"s_add_u32 s52, s52, {3*1024}")
        a(f"s_mov_b32 s53, {16*1024}"); a(f"s_mov_b32 s54, {16*1024}")
        a.label("L_k45_gelu")
        a("s_mov_b32 s55, 0")
        a("s_mov_b32 s56, 0")
        a("s_mov_b32 s57, 9")
        a.label("L_k45_gloop")
        H = [hreg(0, dd, 0) for dd in range(8)]
        ob = RAW + 16
        a("s_set_gpr_idx_on s55, gpr_idx(SRC0,DST)")
        for dd in range(8): a(f"v_fma_f32 v{H[dd]}, v{H[dd]}, v{PA+dd}, v{PB+dd}")
        a("s_set_gpr_idx_mode gpr_idx(SRC0,SRC1)")
        for dd in range(8): a(f"v_mul_f32 v{T0+dd}, v{H[dd]}, v{H[dd]}")
        a("s_set_gpr_idx_off")
        for dd in range(8): a(f"v_fma_f32 v{T0+dd}, v{T0+dd}, s26, v{vT0+7}")
        a("s_set_gpr_idx_on s55, gpr_idx(SRC0)")
        for dd in range(8): a(f"v_mul_f32 v{T0+dd}, v{H[dd]}, v{T0+dd}")
        a("s_set_gpr_idx_off")
        for dd in range(8): a(f"v_exp_f32 v{T0+dd}, v{T0+dd}")
        for dd in range(8): a(f"v_add_f32 v{T0+dd}, 1.0, v{T0+dd}")
        for dd in range(8): a(f"v_rcp_f32 v{T0+dd}, v{T0+dd}")
        a("s_set_gpr_idx_on s55, gpr_idx(SRC0)")
        for dd in range(8): a(f"v_mul_f32 v{T0+dd}, v{H[dd]}, v{T0+dd}")
        a("s_set_gpr_idx_off")
        for q in range(4): a(f"v_cvt_pk_bf16_f32 v{ob+q}, v{T0+2*q}, v{T0+2*q+1}")
        a(f"buffer_store_dwordx4 v[{ob}:{ob+3}], v{vO}, s[32:35], s52 offen {cfg['k5_st']}")
        a("s_add_u32 s55, s55, 1")
        a("s_add_u32 s56, s56, 1")
        a("s_cmp_eq_u32 s56, 3")
        a("s_cbranch_scc1 L_k45_gwrap")
        a("s_add_u32 s52, s52, s53")
        a("s_branch L_k45_gnext")
        a.label("L_k45_gwrap")
        a("s_add_u32 s52, s52, s54")
        a("s_add_u32 s55, s55, 29")
        a("s_mov_b32 s56, 0")
        a.label("L_k45_gnext")
        a("s_sub_u32 s57, s57, 1")
        a("s_cmp_lg_u32 s57, 0")
        a("s_cbranch_scc1 L_k45_gloop")
    else:
        a("s_cmp_ge_u32 s10, 6")
        a("s_cbranch_scc1 L_k45_hoff")
        a(f"s_cmp_ge_u32 s14, {G.NBLK}")
        a("s_cbranch_scc1 L_k45_fin")
        a("s_mul_i32 s24, s14, %d" % (48 * 1024))
        for jj in range(3):
            for rr in range(3): a(f"s_add_u32 s{52+3*jj+rr}, s24, {(16*jj+rr)*1024}")
        a("s_branch L_k45_gelu")
        a.label("L_k45_hoff")
        a("s_sub_u32 s25, s10, 6")
        a("s_mul_i32 s25, s25, 3")
        a("s_mul_i32 s24, s12, 6")
        a("s_add_u32 s24, s24, s25")
        a("s_mul_i32 s24, s24, %d" % (48 * 1024))
        for jj in range(3):
            for rr in range(3): a(f"s_add_u32 s{52+3*jj+rr}, s24, {(48*jj+16*rr+3)*1024}")
        a.label("L_k45_gelu")
        for jj in range(3):
            for rr in range(3):
                gelu_row([hreg(jj, dd, rr) for dd in range(8)], 52 + 3 * jj + rr)
    a.label("L_k45_fin")
    st(11)
    if cfg.get('fstamp'):
        a("s_waitcnt vmcnt(0)")
        st(12)
        a("s_lshl_b32 s73, s2, 3"); a("s_add_u32 s73, s73, s10"); a("s_lshl_b32 s73, s73, 8")
        a(f"s_add_u32 s73, s73, {214 << 20}")
        a(f"v_lshlrev_b32 v245, 2, v{vLane}")
        a("buffer_store_dword v244, v245, s[16:19], s73 offen")
    a.label("L_k45_end")
    a("s_endpgm")
    return name, a.lines, 248 if cfg.get('fstamp') else 240, (2 * NG * 4, 512, LDS)
```

```python
import sys, os
sys.path.insert(0, os.path.dirname(os.path.abspath(__file__)))
from asmlib import *

NAME = 'standalone__self_sup_conv_stem_wavlm__speech'

L_OUT = 7985
NBLK = 167
ROWS = 168
X_BYTES_B = 8000 * 2048
W_BYTES = 31 * 524288
WS_BYTES = 268435456
WF_BASE = 0
WF_K = 4 * 32 * 16384
XF_BASE = 64 << 20
XF_TILE = 2 * ROWS * 64
XF_B = 32 * XF_TILE
XF_K = 2 * XF_B
YF_BASE = 112 << 20
YF_B = 176 * 1024
YF_J = 2 * YF_B
PART_BASE = 140 << 20
NGRP = 42
CNT_BASE = 141 << 20
CNT_STRIDE = 8192 + 256
OUT_B = L_OUT * 1024

import json
CFG = dict(
    k3_nodma=False,
    k3_nomfma=False,
    k3_stamp=False,
    k3b=True,
    k3c=True,
    k12p=False,
    k12q=True,
    k12_nwg=256,
    k12_mix=7,
    k12_nf=96,
    w_nodup=True,
    k45f=True,
    k45g=True,
    pf_code=True,
    pf_late=False,
    y3=True,
    k3_latewait=True,
    gelu_loop=False,
    xf2=False,
    pf_tlb=False,
    k45_sleep=2,
    k45_wpg=6,
    k12_st='sc1',
    k3_st='sc1',
    k5_st='sc1',
    half=False,
    wfuse=False,
    c0=4,
    ldist=[6,5,5,0],
    xfull=True,
    layout=2,
    ypad=256,
    fused=False,
    hprio=0,
    st_flags='sc1',
    dma_flags='',
    timeline=False,
    k3_nolds=False,
)
CFG.update(json.loads(os.environ.get('GENCFG', '{}')))
if CFG['layout'] == 2:
    WF_K = 16384; WF_KS = 32 * 16384; WF_DQ = 32 * WF_KS
    XF_K = XF_TILE; XF_KS = 32 * XF_TILE; XF_B = 32 * XF_KS
    YF_J = 1024; YF_ROW = 65536 + CFG['ypad']; YF_B = 176 * YF_ROW
else:
    WF_KS = 16384; WF_DQ = 32 * 16384; XF_KS = XF_TILE; YF_ROW = 1024
YJ3 = 176 * 64; YS3 = 64 * YJ3; YB3 = 16 * YS3
XF2_K = 2 * XF_TILE; XF_KP = 32 * XF2_K; XF2_B = 16 * XF_KP

def kernel_header(a, name):
    a(f".globl {name}")
    a(".p2align 8")
    a(f".type {name},@function")
    a.label(name)

def kernel_desc(name, vgpr, sgpr=96, accum=None):
    accum = accum or ((vgpr + 3) // 4 * 4)
    return f""".amdhsa_kernel {name}
  .amdhsa_next_free_vgpr {vgpr}
  .amdhsa_next_free_sgpr {sgpr}
  .amdhsa_accum_offset {accum}
  .amdhsa_group_segment_fixed_size 0
  .amdhsa_kernarg_size 56
  .amdhsa_user_sgpr_count 2
  .amdhsa_user_sgpr_kernarg_segment_ptr 1
  .amdhsa_system_sgpr_workgroup_id_x 1
  .amdhsa_float_denorm_mode_32 3
.end_amdhsa_kernel
"""

def prefetch_code(a, tag, start, end, nloads, v, sp=50):
    a(f"s_getpc_b64 s[{sp}:{sp+1}]")
    a.label(f"L_pf_{tag}")
    a(f"s_sub_u32 s{sp}, s{sp}, L_pf_{tag}-{start}")
    a(f"s_subb_u32 s{sp+1}, s{sp+1}, 0")
    a(f"v_mbcnt_lo_u32_b32 v{v}, -1, 0")
    a(f"v_mbcnt_hi_u32_b32 v{v}, -1, v{v}")
    a(f"v_lshlrev_b32 v{v}, 6, v{v}")
    for j in range(nloads):
        a(f"v_add_u32 v{v+1}, {j*4096}, v{v}")
        a(f"v_min_u32 v{v+1}, {end}-{start}-4, v{v+1}")
        a(f"v_mov_b32 v{v+3}, s{sp+1}")
        a(f"v_add_co_u32 v{v+2}, vcc, s{sp}, v{v+1}")
        a(f"v_addc_co_u32 v{v+3}, vcc, 0, v{v+3}, vcc")
        a(f"global_load_dword v{v+4}, v[{v+2}:{v+3}], off")

def prefetch_code_fwd(a, tag, start, end, nloads, v, sp=50):
    a(f"s_getpc_b64 s[{sp}:{sp+1}]")
    a.label(f"L_pf_{tag}")
    a(f"s_add_u32 s{sp}, s{sp}, {start}-L_pf_{tag}")
    a(f"s_addc_u32 s{sp+1}, s{sp+1}, 0")
    a(f"v_mbcnt_lo_u32_b32 v{v}, -1, 0")
    a(f"v_mbcnt_hi_u32_b32 v{v}, -1, v{v}")
    a(f"v_lshlrev_b32 v{v}, 6, v{v}")
    for j in range(nloads):
        a(f"v_add_u32 v{v+1}, {j*4096}, v{v}")
        a(f"v_min_u32 v{v+1}, {end}-{start}-4, v{v+1}")
        a(f"v_mov_b32 v{v+3}, s{sp+1}")
        a(f"v_add_co_u32 v{v+2}, vcc, s{sp}, v{v+1}")
        a(f"v_addc_co_u32 v{v+3}, vcc, 0, v{v+3}, vcc")
        a(f"global_load_dword v{v+4}, v[{v+2}:{v+3}], off")

def make_srd(a, s, base_lo, base_hi, size):
    a(f"s_mov_b32 s{s}, s{base_lo}")
    a(f"s_and_b32 s{s+1}, s{base_hi}, 0xffff")
    a(f"s_mov_b32 s{s+2}, {size}")
    a(f"s_mov_b32 s{s+3}, 0x00020000")

def cos_table(a, vp0, vstep_list, dst, tmp, scale=None, lo_sel=None):
    for e in range(8):
        r = vstep_list[e]
        a(f"v_and_b32 v{r}, 127, v{r}")
        a(f"v_cvt_f32_u32 v{r}, v{r}")
        a(f"v_mul_f32 v{r}, 0x3c000000, v{r}")
        a(f"v_cos_f32 v{r}, v{r}")
    if scale is not None:
        for e in range(8):
            r = vstep_list[e]
            a(f"v_mul_f32 v{r}, {scale}, v{r}")
    for e2 in range(4):
        r0, r1 = vstep_list[2*e2], vstep_list[2*e2+1]
        a(f"v_cvt_pk_bf16_f32 v{dst+e2}, v{r0}, v{r1}")
    if lo_sel is not None:
        for e2 in range(4):
            r0, r1 = vstep_list[2*e2], vstep_list[2*e2+1]
            a(f"v_lshlrev_b32 v{tmp}, 16, v{dst+e2}")
            a(f"v_and_b32 v{tmp+1}, 0xffff0000, v{dst+e2}")
            a(f"v_sub_f32 v{r0}, v{r0}, v{tmp}")
            a(f"v_sub_f32 v{r1}, v{r1}, v{tmp+1}")
            a(f"v_cvt_pk_bf16_f32 v{tmp}, v{r0}, v{r1}")
            a(f"v_cndmask_b32 v{dst+e2}, v{dst+e2}, v{tmp}, s[{lo_sel}:{lo_sel+1}]")

def gen_k12():
    a = Asm()
    name = 'xform_kernel'
    kernel_header(a, name)
    NCG = CFG['c0'] if CFG['half'] else 8
    XFULL = CFG['half'] or CFG['wfuse']
    XF2_K = 2 * XF_TILE; XF_KP = 32 * XF2_K; XF2_B = 16 * XF_KP
    NX = 2 * NGRP * NCG
    NW = 128 * (CFG['c0'] if CFG['wfuse'] else NCG)
    RAW = 0
    AF = 64
    BF = 96
    ACC = 112
    VT = 144
    vLane = VT; vR = VT+1; vG = VT+2; vOff = VT+3; vSt = VT+4; vT0 = VT+5
    NV = 160
    a("s_cmp_ge_u32 s2, %d" % (NX + NW))
    a("s_cbranch_scc1 L_k12_end")
    a("s_load_dwordx4 s[4:7], s[0:1], 0")
    a("s_load_dwordx2 s[8:9], s[0:1], 48")
    a(f"v_and_b32 v{vLane}, 63, v0")
    a(f"v_lshrrev_b32 v{vT0}, 6, v0")
    a(f"v_and_b32 v{vR}, 15, v{vLane}")
    a(f"v_readfirstlane_b32 s10, v{vT0}")
    a(f"v_lshrrev_b32 v{vG}, 4, v{vLane}")
    a("s_mov_b32 s30, 0x05040100")
    a("s_mov_b32 s31, 0x07060302")
    a("s_waitcnt lgkmcnt(0)")
    make_srd(a, 16, 8, 9, WS_BYTES)
    a("s_cmp_ge_u32 s2, %d" % NX)
    a("s_cbranch_scc1 L_k12_w")
    a.c("X item: b, cg, grp")
    a(f"s_cmp_ge_u32 s2, {NGRP*NCG}")
    a("s_cselect_b32 s11, 1, 0")
    a(f"s_mul_i32 s12, s11, {NGRP*NCG}")
    a("s_sub_u32 s12, s2, s12")
    a(f"s_mul_hi_u32 s14, s12, {((1 << 32) + NCG - 1) // NCG if NCG > 1 else 0}")
    a(f"s_mul_i32 s13, s14, {NCG}")
    a("s_sub_u32 s13, s12, s13")
    a("s_lshl_b32 s14, s14, 2")
    a("s_add_u32 s14, s14, s10")
    a(f"s_mul_i32 s15, s11, {X_BYTES_B}")
    a("s_add_u32 s4, s4, s15")
    a("s_addc_u32 s5, s5, 0")
    make_srd(a, 12+8, 4, 5, X_BYTES_B)
    a("s_mul_i32 s15, s14, %d" % (48 * 2048))
    a("s_lshl_b32 s24, s13, 8")
    a("s_add_u32 s15, s15, s24")
    a(f"v_lshlrev_b32 v{vOff}, 14, v{vG}")
    a(f"v_lshl_add_u32 v{vOff}, v{vR}, 4, v{vOff}")
    a(f"v_add_u32 v{vOff}, s15, v{vOff}")
    for s in range(2):
        for i in range(8):
            off = (32 * s + i) * 2048
            if off == 0:
                a(f"buffer_load_dwordx4 v[{RAW}:{RAW+3}], v{vOff}, s[20:23], 0 offen")
            else:
                a(f"v_add_u32 v{vT0}, {off}, v{vOff}")
                r = RAW + 4 * (8 * s + i)
                a(f"buffer_load_dwordx4 v[{r}:{r+3}], v{vT0}, s[20:23], 0 offen")
    a.c("table generation: wave w -> o = w, s = 0,1")
    vA = vT0; vC = vT0+1; vP = BF
    a(f"v_lshrrev_b32 v{vA}, 2, v{vR}")
    a(f"v_lshlrev_b32 v{vA}, 1, v{vA}")
    a(f"v_bfe_u32 v{vC}, v{vR}, 1, 1")
    a(f"v_add_u32 v{vA}, v{vA}, v{vC}")
    a("s_lshl_b32 s24, s10, 3")
    a(f"v_add_u32 v{vA}, s24, v{vA}")
    a(f"v_lshl_add_u32 v{vA}, v{vA}, 1, 1")
    a(f"v_and_b32 v{vC}, 1, v{vR}")
    a(f"v_lshlrev_b32 v{vC}, 5, v{vC}")
    for s in range(2):
        a(f"v_lshlrev_b32 v{vT0+2}, 3, v{vG}")
        if s: a(f"v_add_u32 v{vT0+2}, 32, v{vT0+2}")
        a(f"v_mad_u32_u24 v{vP}, v{vA}, v{vT0+2}, v{vC}")
        for e in range(1, 8):
            a(f"v_add_u32 v{vP+e}, v{vP+e-1}, v{vA}")
        cos_table(a, None, [vP+e for e in range(8)], ACC, ACC+4)
        a("s_lshl_b32 s24, s10, 11")
        a(f"v_lshlrev_b32 v{vT0+3}, 4, v{vLane}")
        a(f"v_add_u32 v{vT0+3}, s24, v{vT0+3}")
        a(f"ds_write_b128 v{vT0+3}, v[{ACC}:{ACC+3}] offset:{s*1024}")
    a("s_waitcnt lgkmcnt(0)")
    a("s_barrier")
    a(f"v_lshlrev_b32 v{vT0+3}, 4, v{vLane}")
    for o in range(4):
        for s in range(2):
            r = AF + 4 * (2 * o + s)
            a(f"ds_read_b128 v[{r}:{r+3}], v{vT0+3} offset:{(2*o+s)*1024}")
    a("s_bfe_u32 s24, s14, 0x10003")
    a("s_mul_i32 s24, s24, 3")
    a(f"v_and_b32 v{vT0}, 3, v{vR}")
    a(f"v_xor_b32 v{vT0}, s24, v{vT0}")
    a(f"v_lshlrev_b32 v{vT0}, 4, v{vT0}")
    if XFULL:
        a(f"v_bfe_u32 v{vT0+1}, v{vR}, 2, 1")
        a(f"v_lshl_add_u32 v{vT0}, v{vT0+1}, 6, v{vT0}")
        a(f"v_lshrrev_b32 v{vT0+1}, 3, v{vR}")
        a(f"s_mov_b32 s24, {XF_KP}")
    else:
        a(f"v_lshrrev_b32 v{vT0+1}, 2, v{vR}")
        a(f"s_mov_b32 s24, {XF_KS}")
    a(f"v_mad_u32_u24 v{vT0}, v{vT0+1}, s24, v{vT0}")
    a(f"s_mov_b32 s24, {2*(XF2_K if XFULL else XF_K)}")
    a(f"v_mad_u32_u24 v{vSt}, v{vG}, s24, v{vT0}")
    a(f"s_mul_i32 s24, s11, {XF2_B if XFULL else XF_B}")
    a(f"s_mul_i32 s25, s13, {2*XF_KP if XFULL else 4*XF_KS}")
    a("s_add_u32 s24, s24, s25")
    a(f"s_lshl_b32 s25, s14, {7 if XFULL else 6}")
    a("s_add_u32 s24, s24, s25")
    a(f"s_add_u32 s24, s24, {XF_BASE}")
    a("s_waitcnt vmcnt(0) lgkmcnt(0)")
    def perms(q):
        for s in range(2):
            for h in range(2):
                for e in range(4):
                    d = BF + (s * 2 + h) * 4 + e
                    r0 = RAW + 4 * (8 * s + 2 * e) + q
                    r1 = RAW + 4 * (8 * s + 2 * e + 1) + q
                    a(f"v_perm_b32 v{d}, v{r1}, v{r0}, s{30+h}")
    def mfmas():
        for s in range(2):
            for o in range(4):
                for h in range(2):
                    d = ACC + (o * 2 + h) * 4
                    A = AF + 4 * (2 * o + s)
                    B = BF + (s * 2 + h) * 4
                    c = "0" if s == 0 else f"v[{d}:{d+3}]"
                    a(f"v_mfma_f32_16x16x32_bf16 v[{d}:{d+3}], v[{A}:{A+3}], v[{B}:{B+3}], {c}")
    def cvts(q):
        for o in range(4):
            for rp in range(4):
                d = RAW + 4 * (4 * o + rp) + q
                a(f"v_cvt_pk_bf16_f32 v{d}, v{ACC+(o*2)*4+rp}, v{ACC+(o*2+1)*4+rp}")
    perms(0)
    for q in range(4):
        mfmas()
        if q < 3: perms(q + 1)
        cvts(q)
    for o in range(4):
        for rp in range(4):
            off = (8 * o + (rp >> 1)) * XF_K + (rp & 1) * (ROWS * 64)
            if XFULL: off = (8 * o + (rp >> 1)) * XF2_K + (rp & 1) * (ROWS * 128)
            a(f"s_add_u32 s25, s24, {off}")
            r = RAW + 4 * (4 * o + rp)
            a(f"buffer_store_dwordx4 v[{r}:{r+3}], v{vSt}, s[16:19], s25 offen {CFG['k12_st']}")
    a("s_endpgm")
    a.label("L_k12_w")
    a(f"s_sub_u32 s12, s2, {NX}")
    a("s_and_b32 s13, s12, 3")
    a("s_lshr_b32 s14, s12, 2")
    a("s_lshl_b32 s14, s14, 2")
    a("s_add_u32 s14, s14, s10")
    make_srd(a, 20, 6, 7, W_BYTES)
    a(f"v_and_b32 v{vT0}, 1, v{vG}")
    a(f"v_lshlrev_b32 v{vOff}, 23, v{vT0}")
    a(f"v_lshrrev_b32 v{vT0}, 2, v{vR}")
    a(f"v_lshl_add_u32 v{vOff}, v{vT0}, 6, v{vOff}")
    a(f"v_and_b32 v{vT0}, 1, v{vR}")
    a(f"v_lshl_add_u32 v{vOff}, v{vT0}, 5, v{vOff}")
    a(f"v_bfe_u32 v{vT0}, v{vR}, 1, 1")
    a(f"v_lshl_add_u32 v{vOff}, v{vT0}, 3, v{vOff}")
    a("s_lshl_b32 s15, s14, 10")
    a("s_lshl_b32 s24, s13, 8")
    a("s_add_u32 s15, s15, s24")
    a(f"v_add_u32 v{vOff}, s15, v{vOff}")
    for i in range(8):
        r = RAW + 4 * i
        if i == 0:
            src = vOff
        else:
            a(f"v_add_u32 v{vT0}, {i << 20}, v{vOff}")
            src = vT0
        a(f"buffer_load_dwordx2 v[{r}:{r+1}], v{src}, s[20:23], 0 offen")
        a(f"buffer_load_dwordx2 v[{r+2}:{r+3}], v{src}, s[20:23], 0 offen offset:16")
    a.c("table: wave w -> o = w")
    vA = vT0; vC = vT0+1; vP = BF
    a(f"v_lshrrev_b32 v{vA}, 2, v{vR}")
    a(f"v_lshlrev_b32 v{vA}, 1, v{vA}")
    a(f"v_bfe_u32 v{vC}, v{vR}, 1, 1")
    a(f"v_add_u32 v{vA}, v{vA}, v{vC}")
    a("s_lshl_b32 s24, s10, 3")
    a(f"v_add_u32 v{vA}, s24, v{vA}")
    a(f"v_lshl_add_u32 v{vA}, v{vA}, 1, 1")
    a(f"v_and_b32 v{vC}, 1, v{vR}")
    a(f"v_lshlrev_b32 v{vC}, 5, v{vC}")
    a(f"v_and_b32 v{vT0+2}, 1, v{vG}")
    a(f"v_lshlrev_b32 v{vT0+2}, 3, v{vT0+2}")
    a(f"v_mad_u32_u24 v{vP}, v{vA}, v{vT0+2}, v{vC}")
    for e in range(1, 8):
        a(f"v_add_u32 v{vP+e}, v{vP+e-1}, v{vA}")
    a(f"v_cmp_lt_u32 s[26:27], 1, v{vG}")
    cos_table(a, None, [vP+e for e in range(8)], ACC, ACC+4, lo_sel=26)
    a("s_lshl_b32 s24, s10, 10")
    a(f"v_lshlrev_b32 v{vT0+3}, 4, v{vLane}")
    a(f"v_add_u32 v{vT0+3}, s24, v{vT0+3}")
    a(f"ds_write_b128 v{vT0+3}, v[{ACC}:{ACC+3}]")
    a("s_waitcnt lgkmcnt(0)")
    a("s_barrier")
    a(f"v_lshlrev_b32 v{vT0+3}, 4, v{vLane}")
    for o in range(4):
        r = AF + 4 * o
        a(f"ds_read_b128 v[{r}:{r+3}], v{vT0+3} offset:{o*1024}")
    a("s_and_b32 s24, s14, 3")
    a("s_bfe_u32 s25, s14, 0x10003")
    a("s_lshl_b32 s25, s25, 2")
    a("s_or_b32 s24, s24, s25")
    a("s_lshl_b32 s24, s24, 1")
    a(f"v_xor_b32 v{vT0}, s24, v{vR}")
    a(f"v_lshlrev_b32 v{vT0}, 4, v{vT0}")
    a(f"s_mov_b32 s25, {2*WF_K}")
    a(f"v_mul_u32_u24 v{vSt}, s25, v{vG}")
    a(f"v_add_u32 v{vSt}, v{vSt}, v{vT0}")
    a(f"s_mul_i32 s24, s13, {WF_DQ}")
    a("s_lshr_b32 s25, s14, 5")
    a(f"s_mul_i32 s25, s25, {WF_KS}")
    a("s_add_u32 s24, s24, s25")
    a("s_and_b32 s25, s14, 31")
    a("s_lshl_b32 s25, s25, 8")
    a("s_add_u32 s24, s24, s25")
    if WF_BASE: a(f"s_add_u32 s24, s24, {WF_BASE}")
    a("s_waitcnt vmcnt(0) lgkmcnt(0)")
    OUT = 32
    FR = 32
    for dd in range(8):
        q = dd >> 1; h = dd & 1
        for e in range(4):
            r0 = RAW + 4 * (2 * e) + q
            r1 = RAW + 4 * (2 * e + 1) + q
            a(f"v_perm_b32 v{FR+4*dd+e}, v{r1}, v{r0}, s{30+h}")
    for o in range(4):
        A = AF + 4 * o
        for dd in range(8):
            d = ACC + 4 * dd
            a(f"v_mfma_f32_16x16x32_bf16 v[{d}:{d+3}], v[{A}:{A+3}], v[{FR+4*dd}:{FR+4*dd+3}], 0")
        ob = RAW + 16 * (o & 1)
        for rp in range(4):
            for q in range(4):
                a(f"v_cvt_pk_bf16_f32 v{ob+4*rp+q}, v{ACC+8*q+rp}, v{ACC+8*q+4+rp}")
        for rp in range(4):
            off = (8 * o + (rp >> 1)) * WF_K + (rp & 1) * 8192
            a(f"s_add_u32 s25, s24, {off}")
            r = ob + 4 * rp
            a(f"buffer_store_dwordx4 v[{r}:{r+3}], v{vSt}, s[16:19], s25 offen {CFG['k12_st']}")
    a.label("L_k12_end")
    a("s_endpgm")
    return name, a.lines, NV, (NX + NW, 256, 16384)

STAMP_BASE = 200 << 20
def add_timeline(name, lines, kidx):
    out = []
    started = False
    n = 0
    for l in lines:
        t = l.strip()
        out.append(l)
        if not started and t == name + ':':
            out.append("    s_memrealtime s[92:93]")
            out.append("    v_lshrrev_b32 v1, 6, v0")
            out.append("    s_nop 1")
            out.append("    v_readfirstlane_b32 s91, v1")
            out.append("    s_waitcnt lgkmcnt(0)")
            started = True
        if t == 's_endpgm':
            out.pop()
            n += 1
            out.append("    s_waitcnt vmcnt(0) lgkmcnt(0)")
            out.append("    s_memrealtime s[94:95]")
            out.append("    s_load_dwordx2 s[80:81], s[0:1], 48")
            out.append("    s_mov_b64 exec, -1")
            out.append("    s_waitcnt lgkmcnt(0)")
            out.append("    s_mov_b32 s84, s80"); out.append("    s_and_b32 s85, s81, 0xffff")
            out.append(f"    s_mov_b32 s86, {WS_BYTES}"); out.append("    s_mov_b32 s87, 0x00020000")
            out.append("    s_lshl_b32 s88, s2, 4"); out.append("    s_add_u32 s88, s88, s91"); out.append("    s_lshl_b32 s88, s88, 4")
            out.append(f"    s_add_u32 s88, s88, {STAMP_BASE + kidx * (1 << 20)}")
            out.append("    v_mov_b32 v0, s92"); out.append("    v_mov_b32 v1, s93"); out.append("    v_mov_b32 v2, s94"); out.append("    v_mov_b32 v3, s95")
            out.append("    v_mov_b32 v4, 0")
            out.append("    buffer_store_dwordx4 v[0:3], v4, s[84:87], s88 offen")
            out.append("    s_endpgm")
    return out

def build(kernels):
    if CFG['timeline']:
        kernels = [(n, add_timeline(n, l, i), nv, g) for i, (n, l, nv, g) in enumerate(kernels)]
    hdr = open(os.path.join(os.path.dirname(os.path.abspath(__file__)), '..', NAME + '.s.ref')).read().split('\n')
    out = []
    for l in hdr:
        if l.startswith('; Override launch') or l.startswith('; grid=ceil') or l.startswith('; @launch'): continue
        if l.startswith(';'): out.append(l)
        else: break
    for (name, lines, nv, (g, blk, lds)) in kernels:
        out.append(f"; @launch kernel={name} grid=({g},1,1) block=({blk},1,1) lds={lds}")
    out.append('.amdgcn_target "amdgcn-amd-amdhsa--gfx950"')
    out.append('.text')
    for (name, lines, nv, _) in kernels:
        out += hazard_pass(lines)
    out.append('L_code_end:')
    out.append('    s_endpgm')
    out.append('.section .rodata,"a"')
    for (name, lines, nv, _) in kernels:
        out.append('.p2align 6')
        out.append(kernel_desc(name, nv))
    return '\n'.join(out) + '\n'

if __name__ == '__main__':
    from gen_k3 import gen_k3
    from gen_k45 import gen_k4, gen_k5
    from gen_k3b import gen_k3b
    from gen_k123 import gen_k123
    from gen_k3h import gen_k3h
    from gen_k3w import gen_k3w
    if CFG['wfuse']:
        ks = [gen_k12(), gen_k3w(), gen_k4(), gen_k5()]
    elif CFG['half']:
        ks = [gen_k12(), gen_k3h(), gen_k4(), gen_k5()]
    elif CFG['fused']:
        ks = [gen_k123(), gen_k4(), gen_k5()]
    else:
        ks = [gen_k12(), gen_k3b() if CFG['k3b'] else gen_k3(), gen_k4(), gen_k5()]
    if CFG['k12p']:
        from gen_k12p import gen_k12p
        ks[0] = gen_k12p()
    if CFG['k12q']:
        from gen_k12q import gen_k12q
        ks[0] = gen_k12q()
    if CFG['k3c']:
        from gen_k3c import gen_k3c
        ks[1] = gen_k3c()
    if CFG['k45g']:
        from gen_k45g import gen_k45g
        ks = ks[:-2] + [gen_k45g()]
    elif CFG['k45f']:
        from gen_k45 import gen_k45f
        ks = ks[:-2] + [gen_k45f()]
    dst = sys.argv[1] if len(sys.argv) > 1 else os.path.join(os.path.dirname(os.path.abspath(__file__)), '..', NAME + '.s')
    open(dst, 'w').write(build(ks))
    print('wrote', dst)
```

```python
from asmlib import *
import gen as G
import gen_k3c as K3
from gen_k3c import STAGE, NSTAGE, LDS_BYTES, XC
from gen_k123 import VQ, Null

FLAG_BASE = 150 << 20
SPIN_MAX = 1 << 15
NX = 672; NW = 1024; NT = NX + NW; NWG = 256
CH = 212
TB = 3 * STAGE

def xform_phase(a, cfg):
    st = cfg['k12_st']; ld = cfg.get('k12_ld', '')
    BUF = [0 + 8, 64 + 8]; AF = 136; BF = 168; ACC = 184; VT = 216
    vR = VT+1; vG = VT+2; vSt = VT+4; vT0 = VT+5
    vNext = VT + 13; vZ = VT + 14; vL16 = VT + 15
    vXo = VT + 16; vWo = VT + 17; vXs = VT + 18; vWs = VT + 19; vNon = VT + 20; vTag = VT + 21
    sCur, sNxt = 40, 42
    sRawCur, sRawNxt, sNon, sRawPrev = 52, 53, 54, 55
    uid = [0]
    NF = cfg.get('k12_nf', 96)
    def remap(sr):
        u = uid[0]; uid[0] += 1
        a(f"s_cmp_ge_u32 s{sr}, {NF + NX}")
        a(f"s_cbranch_scc1 L_rm{u}")
        a(f"s_sub_u32 s28, s{sr}, {NF}")
        a(f"s_add_u32 s29, s{sr}, {NX}")
        a(f"s_cmp_ge_u32 s{sr}, {NF}")
        a(f"s_cselect_b32 s{sr}, s28, s29")
        a.label(f"L_rm{u}")
    def zs(i):
        if cfg.get('zstamp'):
            a("s_memrealtime s[70:71]"); a("s_waitcnt lgkmcnt(0)"); a(f"v_writelane_b32 v240, s70, {i}")
    def zsn():
        if cfg.get('zstamp'):
            a("s_memrealtime s[70:71]"); a("s_waitcnt lgkmcnt(0)"); a("s_mov_b32 m0, s72"); a("v_writelane_b32 v240, s70, m0"); a("s_add_u32 s72, s72, 1")
    if cfg.get('zstamp'):
        a("v_mov_b32 v240, 0"); a("v_mov_b32 v241, 0"); a("v_mov_b32 v242, 0"); a("s_mov_b32 s72, 8")
    zs(0)
    a(f"v_and_b32 v{vR}, 15, v0")
    a(f"v_lshrrev_b32 v{vG}, 4, v0")
    a(f"v_lshlrev_b32 v{vL16}, 4, v0")
    a(f"v_add_u32 v{vL16}, {TB}, v{vL16}")
    a(f"v_mov_b32 v{vZ}, 0")
    a("s_mov_b32 s30, 0x05040100")
    a("s_mov_b32 s31, 0x07060302")
    a("s_mov_b32 s32, 0x01000100")
    a("s_mov_b32 s33, 0x03020302")
    a(f"s_mov_b32 s{sCur}, s2")
    a(f"s_add_u32 s{sNxt}, s2, {NWG}")
    a(f"s_mov_b32 s{sRawPrev}, -1")
    a(f"s_mov_b32 s41, {TB + 12288}")
    a("s_mov_b32 s43, 0")
    a(f"v_lshlrev_b32 v{vXo}, 14, v{vG}")
    a(f"v_lshl_add_u32 v{vXo}, v{vR}, 4, v{vXo}")
    a(f"v_lshlrev_b32 v{vWo}, 22, v{vG}")
    a(f"v_lshrrev_b32 v{vT0}, 2, v{vR}")
    a(f"v_lshl_add_u32 v{vWo}, v{vT0}, 6, v{vWo}")
    a(f"v_and_b32 v{vT0}, 1, v{vR}")
    a(f"v_lshl_add_u32 v{vWo}, v{vT0}, 5, v{vWo}")
    a(f"v_bfe_u32 v{vT0}, v{vR}, 1, 1")
    a(f"v_lshl_add_u32 v{vWo}, v{vT0}, 3, v{vWo}")
    a(f"v_lshrrev_b32 v{vT0}, 2, v{vR}")
    a(f"s_mov_b32 s24, {G.XF_KS}")
    a(f"v_mul_u32_u24 v{vXs}, s24, v{vT0}")
    a(f"s_mov_b32 s24, {2*G.XF_K}")
    a(f"v_mad_u32_u24 v{vXs}, v{vG}, s24, v{vXs}")
    a(f"s_mov_b32 s24, {2*G.WF_K}")
    a(f"v_mul_u32_u24 v{vWs}, s24, v{vG}")
    remap(sCur); remap(sNxt)
    a("s_waitcnt lgkmcnt(0)")
    G.make_srd(a, 16, 38, 39, G.WS_BYTES)
    G.make_srd(a, 44, 36, 37, 256)
    a("s_or_b32 s24, s2, s10")
    a("s_cmp_lg_u32 s24, 0")
    a("s_cbranch_scc1 L_nononce")
    a("s_memrealtime s[24:25]")
    a("s_waitcnt lgkmcnt(0)")
    a("s_or_b32 s24, s24, 1")
    a(f"v_mov_b32 v{vTag}, s24")
    a("s_mov_b64 exec, 1")
    a(f"buffer_store_dword v{vTag}, v{vZ}, s[44:47], 0 offen offset:128 sc1")
    a("s_mov_b64 exec, -1")
    a.label("L_nononce")
    a(f"s_mov_b32 s{sNon}, 0")
    def issue_loads(sIdx, buf):
        u = uid[0]; uid[0] += 1
        a(f"s_cmp_ge_u32 s{sIdx}, {NT}")
        a(f"s_cbranch_scc1 L_ld_done{u}")
        a(f"s_cmp_ge_u32 s{sIdx}, {NX}")
        a(f"s_cbranch_scc1 L_ld_w{u}")
        a(f"s_cmp_ge_u32 s{sIdx}, 336")
        a("s_cselect_b32 s11, 1, 0")
        a("s_mul_i32 s12, s11, 336")
        a(f"s_sub_u32 s12, s{sIdx}, s12")
        a("s_and_b32 s13, s12, 7")
        a("s_lshr_b32 s14, s12, 3")
        a("s_lshl_b32 s14, s14, 2")
        a("s_add_u32 s14, s14, s10")
        a(f"s_mul_i32 s15, s11, {G.X_BYTES_B}")
        a("s_add_u32 s34, s4, s15")
        a("s_addc_u32 s35, s5, 0")
        G.make_srd(a, 20, 34, 35, G.X_BYTES_B)
        a("s_mul_i32 s15, s14, %d" % (48 * 2048))
        a("s_lshl_b32 s24, s13, 8")
        a("s_add_u32 s15, s15, s24")
        for s in range(2):
            for i in range(8):
                r = buf + 4 * (8 * s + i)
                a(f"s_add_u32 s25, s15, {(32*s+i)*2048}")
                a(f"buffer_load_dwordx4 v[{r}:{r+3}], v{vXo}, s[20:23], s25 offen {ld}")
        a(f"s_branch L_ld_done{u}")
        a.label(f"L_ld_w{u}")
        a(f"s_sub_u32 s12, s{sIdx}, {NX}")
        a("s_and_b32 s13, s12, 3")
        a("s_lshr_b32 s14, s12, 2")
        a("s_lshl_b32 s14, s14, 2")
        a("s_add_u32 s14, s14, s10")
        G.make_srd(a, 20, 6, 7, G.W_BYTES)
        a("s_lshl_b32 s15, s14, 10")
        a("s_lshl_b32 s24, s13, 8")
        a("s_add_u32 s15, s15, s24")
        for i in range(4):
            r = buf + 4 * i
            a(f"s_add_u32 s25, s15, {i << 20}")
            a(f"buffer_load_dwordx2 v[{r}:{r+1}], v{vWo}, s[20:23], s25 offen {ld}")
            a(f"buffer_load_dwordx2 v[{r+2}:{r+3}], v{vWo}, s[20:23], s25 offen offset:16 {ld}")
        a.label(f"L_ld_done{u}")
    issue_loads(sCur, BUF[0])
    vA = vT0; vC = vT0+1; vP = BF
    a(f"v_lshrrev_b32 v{vA}, 2, v{vR}")
    a(f"v_lshlrev_b32 v{vA}, 1, v{vA}")
    a(f"v_bfe_u32 v{vC}, v{vR}, 1, 1")
    a(f"v_add_u32 v{vA}, v{vA}, v{vC}")
    a("s_lshl_b32 s24, s10, 3")
    a(f"v_add_u32 v{vA}, s24, v{vA}")
    a(f"v_lshl_add_u32 v{vA}, v{vA}, 1, 1")
    a(f"v_and_b32 v{vC}, 1, v{vR}")
    a(f"v_lshlrev_b32 v{vC}, 5, v{vC}")
    for s in range(2):
        a(f"v_lshlrev_b32 v{vT0+2}, 3, v{vG}")
        if s: a(f"v_add_u32 v{vT0+2}, 32, v{vT0+2}")
        a(f"v_mad_u32_u24 v{vP}, v{vA}, v{vT0+2}, v{vC}")
        for e in range(1, 8): a(f"v_add_u32 v{vP+e}, v{vP+e-1}, v{vA}")
        G.cos_table(a, None, [vP+e for e in range(8)], ACC, ACC+4)
        a("s_lshl_b32 s24, s10, 11")
        a(f"v_add_u32 v{vT0+3}, s24, v{vL16}")
        a(f"ds_write_b128 v{vT0+3}, v[{ACC}:{ACC+3}] offset:{s*1024}")
    a(f"v_lshlrev_b32 v{vT0+2}, 2, v{vG}")
    a(f"v_mad_u32_u24 v{vP}, v{vA}, v{vT0+2}, v{vC}")
    for e in range(1, 4): a(f"v_add_u32 v{vP+e}, v{vP+e-1}, v{vA}")
    for e in range(4):
        r = vP + e
        a(f"v_and_b32 v{r}, 127, v{r}"); a(f"v_cvt_f32_u32 v{r}, v{r}"); a(f"v_mul_f32 v{r}, 0x3c000000, v{r}"); a(f"v_cos_f32 v{r}, v{r}")
    for e in range(4):
        r = vP + e
        a(f"v_cvt_pk_bf16_f32 v{ACC+4}, v{r}, v{r}")
        a(f"v_lshlrev_b32 v{ACC+5}, 16, v{ACC+4}")
        a(f"v_sub_f32 v{ACC+5}, v{r}, v{ACC+5}")
        a(f"v_cvt_pk_bf16_f32 v{ACC+5}, v{ACC+5}, v{ACC+5}")
        a(f"v_perm_b32 v{ACC+e}, v{ACC+5}, v{ACC+4}, s30")
    a("s_lshl_b32 s24, s10, 10")
    a(f"v_add_u32 v{vT0+3}, s24, v{vL16}")
    a(f"ds_write_b128 v{vT0+3}, v[{ACC}:{ACC+3}] offset:8192")
    a("s_waitcnt lgkmcnt(0)")
    a("s_barrier")
    def write_flag(tag):
        a("s_cmp_lg_u32 s10, 0")
        a(f"s_cbranch_scc1 L_nofl{tag}")
        a(f"s_cmp_ge_u32 s{sRawPrev}, {NT}")
        a(f"s_cbranch_scc1 L_nofl{tag}")
        a(f"s_lshl_b32 s24, s{sRawPrev}, 2")
        a(f"s_add_u32 s24, s24, {FLAG_BASE}")
        a(f"v_mov_b32 v{vTag}, s{sNon}")
        a("s_mov_b64 exec, 1")
        a(f"buffer_store_dword v{vTag}, v{vZ}, s[16:19], s24 offen sc1")
        a("s_mov_b64 exec, -1")
        a.label(f"L_nofl{tag}")
    a.label("L_x_loop")
    for p in range(2):
        buf = BUF[p]; nbuf = BUF[p ^ 1]
        if p == 1:
            a("s_cmp_lg_u32 s43, 1"); a("s_cbranch_scc1 L_non_skip0")
            a(f"buffer_load_dword v{vNon}, v{vZ}, s[44:47], 0 offen offset:128 sc1")
            a.label("L_non_skip0")
        a("s_cmp_lg_u32 s10, 0")
        a(f"s_cbranch_scc1 L_nofetch{p}")
        a(f"v_mov_b32 v{vNext}, 1")
        a("s_mov_b64 exec, 1")
        a(f"buffer_atomic_add v{vNext}, v{vZ}, s[44:47], 0 offen sc0 sc1")
        a("s_mov_b64 exec, -1")
        a.label(f"L_nofetch{p}")
        issue_loads(sNxt, nbuf)
        def counted(tag, base):
            a(f"s_cmp_ge_u32 s{sNxt}, {NT}")
            a(f"s_cbranch_scc1 L_w0_{tag}")
            a(f"s_cmp_ge_u32 s{sNxt}, {NX}")
            a(f"s_cbranch_scc1 L_w8_{tag}")
            a(f"s_waitcnt vmcnt({base+16})")
            a(f"s_branch L_wd_{tag}")
            a.label(f"L_w8_{tag}")
            a(f"s_waitcnt vmcnt({base+8})")
            a(f"s_branch L_wd_{tag}")
            a.label(f"L_w0_{tag}")
            a(f"s_waitcnt vmcnt({base})")
            a.label(f"L_wd_{tag}")
        if p == 0:
            a("s_cmp_lg_u32 s43, 0")
            a("s_cbranch_scc1 L_notfirst")
            counted("f", 0)
            a("s_mov_b32 s43, 1")
            a("s_branch L_wfin")
            a.label("L_notfirst")
            counted("a0", 16)
            a.label("L_wfin")
        else:
            counted("a1", 16)
        zsn()
        a(f"s_cmp_ge_u32 s{sCur}, {NX}")
        a(f"s_cbranch_scc1 L_cw{p}")
        a(f"s_cmp_ge_u32 s{sCur}, 336")
        a("s_cselect_b32 s11, 1, 0")
        a("s_mul_i32 s12, s11, 336")
        a(f"s_sub_u32 s12, s{sCur}, s12")
        a("s_and_b32 s13, s12, 7")
        a("s_lshr_b32 s14, s12, 3")
        a("s_lshl_b32 s14, s14, 2")
        a("s_add_u32 s14, s14, s10")
        for o in range(4):
            for s in range(2):
                r = AF + 4 * (2 * o + s)
                a(f"ds_read_b128 v[{r}:{r+3}], v{vL16} offset:{(2*o+s)*1024}")
        a("s_bfe_u32 s24, s14, 0x10003")
        a("s_mul_i32 s24, s24, 3")
        a(f"v_and_b32 v{vT0}, 3, v{vR}")
        a(f"v_xor_b32 v{vT0}, s24, v{vT0}")
        a(f"v_lshl_add_u32 v{vSt}, v{vT0}, 4, v{vXs}")
        a(f"s_mul_i32 s24, s11, {G.XF_B}")
        a(f"s_mul_i32 s25, s13, {4*G.XF_KS}")
        a("s_add_u32 s24, s24, s25")
        a("s_lshl_b32 s25, s14, 6")
        a("s_add_u32 s24, s24, s25")
        a(f"s_add_u32 s24, s24, {G.XF_BASE}")
        def perms(q):
            for s in range(2):
                for h in range(2):
                    for e in range(4):
                        d = BF + (s * 2 + h) * 4 + e
                        a(f"v_perm_b32 v{d}, v{buf + 4*(8*s+2*e+1) + q}, v{buf + 4*(8*s+2*e) + q}, s{30+h}")
        def mfmas():
            for s in range(2):
                for o in range(4):
                    for h in range(2):
                        d = ACC + (o * 2 + h) * 4
                        A = AF + 4 * (2 * o + s); B = BF + (s * 2 + h) * 4
                        c = "0" if s == 0 else f"v[{d}:{d+3}]"
                        a(f"v_mfma_f32_16x16x32_bf16 v[{d}:{d+3}], v[{A}:{A+3}], v[{B}:{B+3}], {c}")
        def cvts(q):
            for o in range(4):
                for rp in range(4):
                    a(f"v_cvt_pk_bf16_f32 v{buf + 4*(4*o+rp) + q}, v{ACC+(o*2)*4+rp}, v{ACC+(o*2+1)*4+rp}")
        perms(0)
        a("s_waitcnt lgkmcnt(0)")
        for q in range(4):
            mfmas()
            if q < 3: perms(q + 1)
            cvts(q)
        for o in range(4):
            for rp in range(4):
                off = (8 * o + (rp >> 1)) * G.XF_K + (rp & 1) * (G.ROWS * 64)
                a(f"s_add_u32 s25, s24, {off}")
                r = buf + 4 * (4 * o + rp)
                a(f"buffer_store_dwordx4 v[{r}:{r+3}], v{vSt}, s[16:19], s25 offen {st}")
        a(f"s_branch L_next{p}")
        a.label(f"L_cw{p}")
        a(f"s_sub_u32 s12, s{sCur}, {NX}")
        a("s_and_b32 s13, s12, 3")
        a("s_lshr_b32 s14, s12, 2")
        a("s_lshl_b32 s14, s14, 2")
        a("s_add_u32 s14, s14, s10")
        for o in range(4):
            r = AF + 4 * o
            a(f"ds_read_b128 v[{r}:{r+3}], v{vL16} offset:{8192+o*1024}")
        a("s_and_b32 s24, s14, 3")
        a("s_bfe_u32 s25, s14, 0x10003")
        a("s_lshl_b32 s25, s25, 2")
        a("s_or_b32 s24, s24, s25")
        a("s_lshl_b32 s24, s24, 1")
        a(f"v_xor_b32 v{vT0}, s24, v{vR}")
        a(f"v_lshl_add_u32 v{vSt}, v{vT0}, 4, v{vWs}")
        a(f"s_mul_i32 s24, s13, {G.WF_DQ}")
        a("s_lshr_b32 s25, s14, 5")
        a(f"s_mul_i32 s25, s25, {G.WF_KS}")
        a("s_add_u32 s24, s24, s25")
        a("s_and_b32 s25, s14, 31")
        a("s_lshl_b32 s25, s25, 8")
        a("s_add_u32 s24, s24, s25")
        if G.WF_BASE: a(f"s_add_u32 s24, s24, {G.WF_BASE}")
        FR = buf + 16
        for dd in range(8):
            q = dd >> 1; h = dd & 1
            for e in range(4):
                a(f"v_perm_b32 v{FR+4*dd+e}, v{buf+4*e+q}, v{buf+4*e+q}, s{32+h}")
        a("s_waitcnt lgkmcnt(0)")
        for o in range(4):
            A = AF + 4 * o
            for dd in range(8):
                d = ACC + 4 * dd
                a(f"v_mfma_f32_16x16x32_bf16 v[{d}:{d+3}], v[{A}:{A+3}], v[{FR+4*dd}:{FR+4*dd+3}], 0")
            ob = (buf if (o & 1) == 0 else buf + 48)
            for rp in range(4):
                for q in range(4):
                    a(f"v_cvt_pk_bf16_f32 v{ob+4*rp+q}, v{ACC+8*q+rp}, v{ACC+8*q+4+rp}")
            for rp in range(4):
                off = (8 * o + (rp >> 1)) * G.WF_K + (rp & 1) * 8192
                a(f"s_add_u32 s25, s24, {off}")
                r = ob + 4 * rp
                a(f"buffer_store_dwordx4 v[{r}:{r+3}], v{vSt}, s[16:19], s25 offen {st}")
        a.label(f"L_next{p}")
        counted(f"p{p}", 16)
        if p == 1:
            a("s_cmp_lg_u32 s43, 1"); a("s_cbranch_scc1 L_nonok")
            a("s_mov_b32 s43, 2")
            a(f"s_mov_b32 s57, {SPIN_MAX}")
            a.label("L_non")
            a(f"v_readfirstlane_b32 s{sNon}, v{vNon}")
            a(f"s_cmp_lg_u32 s{sNon}, 0")
            a("s_cbranch_scc1 L_nonok")
            a("s_sub_u32 s57, s57, 1")
            a("s_cmp_eq_u32 s57, 0")
            a("s_cbranch_scc1 L_nonok")
            a(f"buffer_load_dword v{vNon}, v{vZ}, s[44:47], 0 offen offset:128 sc1")
            a("s_waitcnt vmcnt(0)")
            a("s_branch L_non")
            a.label("L_nonok")
        a("s_cmp_lg_u32 s10, 0")
        a(f"s_cbranch_scc1 L_pub{p}")
        a(f"v_add_u32 v{vNext}, {2*NWG}, v{vNext}")
        a(f"v_mov_b32 v{vT0}, s41")
        a("s_mov_b64 exec, 1")
        a(f"ds_write_b32 v{vT0}, v{vNext}")
        a("s_mov_b64 exec, -1")
        a.label(f"L_pub{p}")
        a("s_waitcnt lgkmcnt(0)")
        a("s_barrier")
        write_flag(f"{p}")
        a(f"v_mov_b32 v{vT0}, s41")
        a(f"ds_read_b32 v{vT0+1}, v{vT0}")
        a("s_xor_b32 s41, s41, 4")
        a(f"s_mov_b32 s{sRawPrev}, s{sCur}")
        a(f"s_mov_b32 s{sCur}, s{sNxt}")
        a("s_waitcnt lgkmcnt(0)")
        a(f"v_readfirstlane_b32 s{sNxt}, v{vT0+1}")
        remap(sNxt)
        a(f"s_cmp_ge_u32 s{sCur}, {NT}")
        a("s_cbranch_scc1 L_x_fin")
    a("s_branch L_x_loop")
    a.label("L_x_fin")
    zs(1)
    a("s_waitcnt vmcnt(0)")
    a("s_barrier")
    zs(2)
    write_flag("f")

def follow_phase(a):
    vA, vB = 254, 255
    a("s_mov_b32 s40, s2")
    a(f"s_add_u32 s42, s2, {NWG}")
    a(f"s_mov_b32 s41, {TB + 12288}")
    a("s_barrier")
    a.label("L_f_loop")
    a("s_barrier")
    a(f"v_mov_b32 v{vA}, s41")
    a(f"ds_read_b32 v{vB}, v{vA}")
    a("s_xor_b32 s41, s41, 4")
    a("s_mov_b32 s40, s42")
    a("s_waitcnt lgkmcnt(0)")
    a(f"v_readfirstlane_b32 s42, v{vB}")
    a(f"s_cmp_lt_u32 s40, {NT}")
    a("s_cbranch_scc1 L_f_loop")
    a("s_barrier")

def helper_gemm(a_real, cfg):
    table = {}
    for final in (False, True):
        a = a_real if final else Null()
        vq = VQ(a, table, not final)
        vDW = 1; vDX = 2; vD6 = 5; vPA = 6; vP = 8; vT = 24
        sWo, sXo, sLW, sLX, sX6 = 40, 41, 42, 43, 44
        sNon, sPl = 54, 56
        def dma(step):
            buf = step % NSTAGE; tag = ('dma', step)
            a(f"s_add_u32 m0, s{sLW}, {buf*STAGE}")
            for j in range(4):
                a(f"buffer_load_dwordx4 v{vDW}, s[16:19], s{sWo} offen offset:{j*1024} lds"); vq.issue(tag)
            a(f"s_add_u32 s{sWo}, s{sWo}, {G.WF_KS}")
            a(f"s_add_u32 m0, s{sLX}, {buf*STAGE}")
            for j in range(4):
                a(f"buffer_load_dwordx4 v{vDX}, s[16:19], s{sXo} offen offset:{j*1024} lds"); vq.issue(tag)
            a(f"s_add_u32 m0, s{sLX}, {buf*STAGE+4096}")
            a(f"s_add_u32 s49, s{sXo}, 4096")
            a(f"buffer_load_dwordx4 v{vDX}, s[16:19], s49 offen lds"); vq.issue(tag)
            a("s_mov_b64 exec, s[50:51]")
            a(f"buffer_load_dwordx4 v{vD6}, s[16:19], s{sX6} offen offset:1024 lds"); vq.issue(tag)
            a("s_mov_b64 exec, -1")
            a(f"s_add_u32 s{sXo}, s{sXo}, {G.XF_KS}")
            a(f"s_add_u32 s{sX6}, s{sX6}, {G.XF_KS}")
        vPB = 7
        def poll_issue(c, model=True):
            if c == 0:
                for j in range(4):
                    a(f"s_mov_b32 s58, {FLAG_BASE + min(j * 1024, 3200 - 1024)}")
                    a(f"buffer_load_dwordx4 v[{vP+4*j}:{vP+4*j+3}], v{vPA}, s[16:19], s58 offen sc1")
                    if model: vq.issue(('pl', c))
            else:
                a(f"s_mov_b32 s58, {FLAG_BASE + (NX + 128 * c) * 4}")
                a(f"buffer_load_dwordx4 v[{vP}:{vP+3}], v{vPB}, s[16:19], s58 offen sc1")
                if model: vq.issue(('pl', c))
        def check(c):
            n = 16 if c == 0 else 4
            vq.wait(('pl', c), f"c{c}")
            a(f"s_mov_b32 s57, {SPIN_MAX}")
            a.label(f"L_chk{c}")
            for e in range(n): a(f"v_xor_b32 v{vT+e}, s{sNon}, v{vP+e}")
            for e in range(1, n - 1, 2): a(f"v_or3_b32 v{vT}, v{vT}, v{vT+e}, v{vT+e+1}")
            a(f"v_or_b32 v{vT}, v{vT}, v{vT+n-1}")
            a(f"v_cmp_ne_u32 vcc, 0, v{vT}")
            a("s_cmp_eq_u64 vcc, 0")
            a(f"s_cbranch_scc1 L_ok{c}")
            a("s_sub_u32 s57, s57, 1")
            a("s_cmp_eq_u32 s57, 0")
            a(f"s_cbranch_scc1 L_ok{c}")
            if cfg.get('fz_sleep'): a(f"s_sleep {cfg['fz_sleep']}")
            poll_issue(c, model=False)
            a("s_waitcnt vmcnt(0)")
            a(f"s_branch L_chk{c}")
            a.label(f"L_ok{c}")
            if cfg.get('zstamp'):
                a(f"s_sub_u32 s74, {SPIN_MAX}, s57"); a(f"v_writelane_b32 v242, s74, {c}")
        a(f"v_lshlrev_b32 v{vPA}, 4, v0")
        a(f"v_min_u32 v{vPB}, 31, v0")
        a(f"v_lshlrev_b32 v{vPB}, 4, v{vPB}")
        def zs(reg, i):
            if cfg.get('zstamp'):
                a("s_memrealtime s[70:71]"); a("s_waitcnt lgkmcnt(0)"); a(f"v_writelane_b32 v{reg}, s70, {i}")
        poll_issue(0); check(0)
        zs(240, 3)
        dma(0); dma(1); dma(2)
        poll_issue(1)
        vq.wait(('dma', 0), 'pd0')
        a("s_barrier")
        for s in range(31):
            vq.wait(('dma', s + 1), f"b{s}")
            zs(241, 2 * s)
            a("s_barrier")
            zs(241, 2 * s + 1)
            if s % 4 == 1 and (s + 3) // 4 <= 7: check((s + 3) // 4)
            if s + 3 <= 31: dma(s + 3)
            if s % 4 == 0 and s >= 4 and (s + 4) // 4 <= 7: poll_issue((s + 4) // 4)

def gen_fused(cfg=None):
    cfg = cfg or G.CFG
    a = Asm()
    name = 'conv_kernel'
    G.kernel_header(a, name)
    vT = K3.vT; XR = K3.XR; vXa = K3.vXa; vWa = K3.vWa; vSt = K3.vSt; vSt2 = K3.vSt2
    a("s_cmp_ge_u32 s2, 256")
    a("s_cbranch_scc1 L_fz_end")
    a("s_load_dwordx4 s[4:7], s[0:1], 0")
    a("s_load_dwordx4 s[36:39], s[0:1], 40")
    a(f"v_lshrrev_b32 v{vT}, 6, v0")
    a(f"v_and_b32 v0, 63, v0")
    a(f"v_readfirstlane_b32 s10, v{vT}")
    a("s_cmp_ge_u32 s10, 4")
    a("s_cbranch_scc1 L_fz_helper")
    if cfg.get('pf_code'):
        a("s_cmp_ge_u32 s2, 8"); a("s_cbranch_scc1 L_nopf")
        a("s_cmp_lg_u32 s10, 3"); a("s_cbranch_scc1 L_nopf")
        G.prefetch_code(a, "fz", "conv_kernel", "L_code_end", 11, 200, sp=60)
        a.label("L_nopf")
    K3.decode_ids(a)
    K3.gemm_setup(a)
    a("s_waitcnt vmcnt(0) lgkmcnt(0)")
    G.make_srd(a, 16, 38, 39, G.WS_BYTES)
    for r in range(168): a(f"v_mov_b32 v{r}, 0")
    follow_phase(a)
    K3.gemm_wave(a, cfg, zero=False)
    a.label("L_fz_helper")
    a("s_sub_u32 s10, s10, 4")
    xform_phase(a, cfg)
    a("s_add_u32 s10, s10, 4")
    K3.decode_ids(a)
    K3.helper_setup(a)
    helper_gemm(a, cfg)
    if cfg.get('zstamp'):
        a("s_lshl_b32 s73, s2, 2"); a("s_add_u32 s73, s73, s15"); a("s_lshl_b32 s73, s73, 10")
        a(f"s_add_u32 s73, s73, {218 << 20}")
        a("v_lshlrev_b32 v243, 2, v0")
        a("buffer_store_dword v240, v243, s[16:19], s73 offen")
        a("buffer_store_dword v241, v243, s[16:19], s73 offen offset:256")
        a("buffer_store_dword v242, v243, s[16:19], s73 offen offset:512")
    K3.ws_fill(a)
    a.label("L_fz_end")
    a("s_endpgm")
    return name, a.lines, 256, (256, 512, LDS_BYTES)
```

```python
from asmlib import *
import gen as G
from gen_k3 import LQ, NSTAGE
XC = 11264
STAGE = 16384 + 2 * XC
LDS_BYTES = STAGE * NSTAGE

T = 11
ACC = 0
WA = 176; WB = 192; NW = 208
XR = 216
vWa = 248; vXa = 250; vSt = 251; vSt2 = 252; vT = 253

def acc(i, c, t): return ACC + ((i * 2 + c) * 2 + t) * 4 if i < 10 else ACC + 160 + 4 * c
def wf(p, which): return (WA if p == 0 else WB) + which * 4
def nw(t): return NW + 4 * t
def xr(slot, c): return XR + slot * 8 + c * 4
def mf(d, A, B): return f"v_mfma_f32_16x16x32_bf16 v[{d}:{d+3}], v[{A}:{A+3}], v[{B}:{B+3}], v[{d}:{d+3}]"

def gemm_wave(a, cfg, zero=True):
    lq = LQ(a)
    def x_read(step, i, slot):
        for c in range(2):
            r = xr(slot, c)
            off = 16384 + c * XC + i * 1024
            a(f"ds_read_b128 v[{r}:{r+3}], v{vXa} offset:{off}")
            lq.issue(('x', step, i))
    def w_read(step, c):
        p = step & 1
        for t in range(2):
            r = wf(p, c * 2 + t)
            for e in range(2):
                a(f"ds_read_b64_tr_b16 v[{r+2*e}:{r+2*e+1}], v{vWa+t} offset:{c*8192+e*1024}")
                lq.issue(('w', step))
    def w_xor(step):
        p = step & 1
        return [f"v_xor_b32 v{nw(t)+e}, 0x80008000, v{wf(p,2+t)+e}" for t in range(2) for e in range(4)]
    def bump(reg, step):
        d = STAGE if step % NSTAGE else -(NSTAGE - 1) * STAGE
        a(f"v_add_u32 v{reg}, {d & 0xffffffff:#x}, v{reg}")
    def step_code(s, tau0, barrier, nxt):
        p = s & 1
        if barrier:
            if G.CFG.get('gstamp'):
                a("s_memrealtime s[70:71]"); a("s_waitcnt lgkmcnt(0)")
                a("s_mov_b32 m0, s72"); a("v_writelane_b32 v255, s70, m0"); a("s_add_u32 s72, s72, 1")
            a("s_barrier")
            if G.CFG.get('gstamp'):
                a("s_memrealtime s[70:71]"); a("s_waitcnt lgkmcnt(0)")
                a("s_mov_b32 m0, s72"); a("v_writelane_b32 v255, s70, m0"); a("s_add_u32 s72, s72, 1")
        for i in range(T):
            tau = tau0 + i
            slot = tau % 4
            lq.wait(('x', s, i))
            if i < 10:
                ms = [mf(acc(i,0,0), wf(p,0), xr(slot,0)), mf(acc(i,0,1), wf(p,1), xr(slot,0)),
                      mf(acc(i,1,0), nw(0), xr(slot,0)), mf(acc(i,1,1), nw(1), xr(slot,0)),
                      mf(acc(i,0,0), wf(p,2), xr(slot,1)), mf(acc(i,0,1), wf(p,3), xr(slot,1)),
                      mf(acc(i,1,0), wf(p,0), xr(slot,1)), mf(acc(i,1,1), wf(p,1), xr(slot,1))]
            else:
                ms = [mf(acc(i,0,0), wf(p,0), xr(slot,0)), mf(acc(i,1,0), nw(0), xr(slot,0)),
                      mf(acc(i,0,0), wf(p,2), xr(slot,1)), mf(acc(i,1,0), wf(p,0), xr(slot,1))]
            xors = []
            for m in range(len(ms)):
                a(ms[m])
                if m == 0:
                    if i + 2 < T: x_read(s, i + 2, (tau + 2) % 4)
                    elif nxt:
                        if i + 2 == T: bump(vXa, s + 1)
                        x_read(s + 1, i + 2 - T, (tau + 2) % 4)
                if nxt and i == T - 6 and m == 4:
                    bump(vWa, s + 1); bump(vWa + 1, s + 1)
                if m == 3 and nxt and i == T - 5: w_read(s + 1, 0)
                if m == 3 and nxt and i == T - 4: w_read(s + 1, 1)
                if nxt and i == T - 2 and m == 4:
                    lq.wait(('w', s + 1))
                    xors = w_xor(s + 1)[4:]
                if nxt and i == T - 1 and m == 1:
                    xors = w_xor(s + 1)[:4]
                for _ in range(2):
                    if xors: a(xors.pop(0))
            for x in xors: a(x)
    if G.CFG.get('gstamp'):
        a("s_mov_b32 s72, 0"); a("v_mov_b32 v255, 0")
    if zero:
        for r in range(168): a(f"v_mov_b32 v{ACC+r}, 0")
    a("s_barrier")
    w_read(0, 0); w_read(0, 1)
    x_read(0, 0, 0); x_read(0, 1, 1)
    lq.wait(('w', 0))
    for x in w_xor(0): a(x)
    a("s_mov_b32 s46, 7")
    a.label("L_g_loop")
    q0 = list(lq.q)
    for u in range(4):
        step_code(u, u * T, True, True)
    q1 = [(t[0], t[1] - 4) + tuple(t[2:]) for t in lq.q]
    assert q0[len(q0)-len(q1):] == q1, (q0, q1)
    a("s_sub_u32 s46, s46, 1")
    a("s_cmp_lg_u32 s46, 0")
    a("s_cbranch_scc1 L_g_loop")
    lq.q = [(t[0], t[1] + 24) + tuple(t[2:]) for t in lq.q]
    step_code(28, 0 * T, True, True)
    step_code(29, 1 * T, True, True)
    if not G.CFG.get('k3_tail', True):
        step_code(30, 2 * T, True, True)
        step_code(31, 3 * T, False, False)
        a("s_nop 7")
    else:
        a("s_barrier")
    NW2 = 168; vXb = 253
    def epi_list(i, bb):
        l = []
        if i < 10:
            for c in range(2):
                dA = acc(i, c, bb); dB = acc(i, c, 1 - bb)
                l += [f"v_cvt_pk_bf16_f32 v{dA}, v{dA}, v{dA+1}", f"v_cvt_pk_bf16_f32 v{dA+1}, v{dA+2}, v{dA+3}",
                      f"v_cvt_pk_bf16_f32 v{dA+2}, v{dB}, v{dB+1}", f"v_cvt_pk_bf16_f32 v{dA+3}, v{dB+2}, v{dB+3}",
                      f"s_add_u32 s47, s48, {(c * G.YJ3 + i * 16 * 64) if G.CFG['y3'] else (c * G.YF_J + i * 16 * G.YF_ROW)}",
                      f"buffer_store_dwordx4 v[{dA}:{dA+3}], v{vSt}, s[16:19], s47 offen {G.CFG['k3_st']}"]
        else:
            for c in range(2):
                d = acc(10, c, 0)
                l += [f"v_cvt_pk_bf16_f32 v{d}, v{d}, v{d+1}", f"v_cvt_pk_bf16_f32 v{d+1}, v{d+2}, v{d+3}",
                      f"s_add_u32 s47, s49, {c * (G.YJ3 if G.CFG['y3'] else G.YF_J)}",
                      f"buffer_store_dwordx2 v[{d}:{d+1}], v{vSt2}, s[16:19], s47 offen {G.CFG['k3_st']}"]
        return l
    q_save = list(lq.q)
    for bb in range(2):
        if bb == 0:
            a("s_cmp_lg_u32 s13, 0"); a("s_cbranch_scc1 L_epi_b1")
        else:
            a.label("L_epi_b1")
        if not G.CFG.get('k3_tail', True):
            for i in range(T):
                for ins in epi_list(i, bb): a(ins)
        else:
            lq.q = list(q_save)
            bump(vWa, 31); bump(vWa + 1, 31)
            a(f"v_add_u32 v{vXb}, {STAGE}, v{vXa}")
            w_read(31, 0); w_read(31, 1)
            items = [(30, 0), (30, 1)]
            for i in range(T):
                if i + 2 < T: items.append((30, i + 2))
                items.append((31, i))
            def x_read2(step, i, slot):
                for c in range(2):
                    r = xr(slot, c)
                    off = 16384 + c * XC + i * 1024
                    a(f"ds_read_b128 v[{r}:{r+3}], v{vXa if step == 30 else vXb} offset:{off}")
                    lq.issue(('x', step, i))
            pend = []
            xored = False
            for n, (st, i) in enumerate(items):
                slot = (2 * T + n) % 4
                p = st & 1
                nwf = (lambda t: nw(t)) if st == 30 else (lambda t: NW2 + 4 * t)
                if st == 31 and not xored:
                    lq.wait(('w', 31))
                    for t in range(2):
                        for e in range(4): a(f"v_xor_b32 v{NW2+4*t+e}, 0x80008000, v{wf(1,2+t)+e}")
                    xored = True
                lq.wait(('x', st, i))
                if i < 10:
                    ms = [mf(acc(i,0,0), wf(p,0), xr(slot,0)), mf(acc(i,0,1), wf(p,1), xr(slot,0)),
                          mf(acc(i,1,0), nwf(0), xr(slot,0)), mf(acc(i,1,1), nwf(1), xr(slot,0)),
                          mf(acc(i,0,0), wf(p,2), xr(slot,1)), mf(acc(i,0,1), wf(p,3), xr(slot,1)),
                          mf(acc(i,1,0), wf(p,0), xr(slot,1)), mf(acc(i,1,1), wf(p,1), xr(slot,1))]
                else:
                    ms = [mf(acc(i,0,0), wf(p,0), xr(slot,0)), mf(acc(i,1,0), nwf(0), xr(slot,0)),
                          mf(acc(i,0,0), wf(p,2), xr(slot,1)), mf(acc(i,1,0), wf(p,0), xr(slot,1))]
                for m in range(len(ms)):
                    a(ms[m])
                    if m == 0 and n + 2 < len(items): x_read2(items[n + 2][0], items[n + 2][1], (2 * T + n + 2) % 4)
                    if m >= 1:
                        for _ in range(2):
                            if pend and pend[0][0] <= n - 1: a(pend.pop(0)[1])
                if st == 31:
                    pend += [(n + 1, ins) for ins in epi_list(i, bb)]
            a("s_nop 7")
            for _, ins in pend: a(ins)
        if bb == 0: a("s_branch L_epi_done")
    a.label("L_epi_done")
    if G.CFG.get('gstamp'):
        a("s_lshl_b32 s73, s2, 2"); a("s_add_u32 s73, s73, s15"); a("s_lshl_b32 s73, s73, 10")
        a(f"s_add_u32 s73, s73, {212 << 20}")
        a("v_mbcnt_lo_u32_b32 v254, -1, 0")
        a("v_mbcnt_hi_u32_b32 v254, -1, v254")
        a("v_lshlrev_b32 v254, 2, v254")
        a("buffer_store_dword v255, v254, s[16:19], s73 offen")
    a("s_endpgm")

def ws_fill(a):
    if not G.CFG.get('k45g'):
        a("s_cmp_ge_u32 s2, 8"); a("s_cbranch_scc1 L_nozero")
        a("s_cmp_lg_u32 s15, 0"); a("s_cbranch_scc1 L_nozero")
        a(f"s_mul_i32 s20, s2, {G.CNT_STRIDE}"); a(f"s_add_u32 s20, s20, {G.CNT_BASE}")
        a("v_mov_b32 v3, 0"); a("v_lshlrev_b32 v4, 2, v0")
        a("buffer_store_dword v3, v4, s[16:19], s20 offen")
        a.label("L_nozero")
    else:
        a("s_cmp_ge_u32 s2, 224"); a("s_cbranch_scc1 L_nofill")
        a("s_cmp_lg_u32 s15, 1"); a("s_cbranch_scc1 L_nofill")
        a("s_lshl_b32 s20, s2, 10"); a(f"s_add_u32 s20, s20, {G.PART_BASE}")
        a("v_mov_b32 v8, -1"); a("v_mov_b32 v9, -1"); a("v_mov_b32 v10, -1"); a("v_mov_b32 v11, -1"); a("v_lshlrev_b32 v4, 4, v0")
        a("buffer_store_dwordx4 v[8:11], v4, s[16:19], s20 offen")
        a.label("L_nofill")

def helper_wave(a, cfg):
    vDW = 1; vDX = 2
    sWo, sXo, sLW, sLX = 40, 41, 42, 43
    vD6 = 5; sX6 = 44
    XF2 = G.CFG['xf2']
    def dma(step):
        buf = step % NSTAGE
        a(f"s_add_u32 m0, s{sLW}, {buf*STAGE}")
        for j in range(4):
            a(f"buffer_load_dwordx4 v{vDW}, s[16:19], s{sWo} offen offset:{j*1024} lds")
        a(f"s_add_u32 s{sWo}, s{sWo}, {G.WF_KS}")
        a(f"s_add_u32 m0, s{sLX}, {buf*STAGE}")
        for j in range(4):
            if XF2 and j:
                a(f"s_add_u32 s49, s{sXo}, {1024*j}")
                a(f"buffer_load_dwordx4 v{vDX}, s[16:19], s49 offen offset:{j*1024} lds")
            else:
                a(f"buffer_load_dwordx4 v{vDX}, s[16:19], s{sXo} offen offset:{j*1024} lds")
        a(f"s_add_u32 m0, s{sLX}, {buf*STAGE+4096}")
        a(f"s_add_u32 s49, s{sXo}, {8192 if XF2 else 4096}")
        a(f"buffer_load_dwordx4 v{vDX}, s[16:19], s49 offen lds")
        a("s_mov_b64 exec, s[50:51]")
        a(f"buffer_load_dwordx4 v{vD6}, s[16:19], s{sX6} offen offset:1024 lds")
        a("s_mov_b64 exec, -1")
        adv = (64 if (step & 1) == 0 else G.XF_KP - 64) if XF2 else G.XF_KS
        a(f"s_add_u32 s{sXo}, s{sXo}, {adv}")
        a(f"s_add_u32 s{sX6}, s{sX6}, {adv}")
    for st in range(3): dma(st)
    a("s_waitcnt vmcnt(20)")
    a("s_barrier")
    a("s_mov_b32 s46, 7")
    a.label("L_h_loop")
    for u in range(4):
        a("s_waitcnt vmcnt(10)")
        a("s_barrier")
        dma(u + 3)
    a("s_sub_u32 s46, s46, 1")
    a("s_cmp_lg_u32 s46, 0")
    a("s_cbranch_scc1 L_h_loop")
    a("s_waitcnt vmcnt(10)"); a("s_barrier"); dma(31)
    a("s_waitcnt vmcnt(10)"); a("s_barrier")
    a("s_waitcnt vmcnt(0)"); a("s_barrier")
    if G.CFG.get('k3_latewait'): ws_fill(a)
    if G.CFG.get('pf_late'):
        a("s_cmp_ge_u32 s2, 8"); a("s_cbranch_scc1 L_h_end")
        a("s_cmp_lg_u32 s15, 3"); a("s_cbranch_scc1 L_h_end")
        G.prefetch_code_fwd(a, "k3b", "final_kernel", "L_code_end", 3, 12, sp=60)
        a.label("L_h_end")
    a("s_endpgm")

def decode_ids(a):
    a("s_and_b32 s11, s2, 7")
    a("s_lshr_b32 s12, s2, 3")
    a("s_lshr_b32 s13, s12, 3")
    a("s_lshl_b32 s11, s11, 2")
    a("s_add_u32 s11, s11, s13")
    a("s_bfe_u32 s13, s12, 0x10002")
    a("s_and_b32 s14, s12, 3")
    a("s_and_b32 s15, s10, 3")

def gemm_setup(a):
    g = vT; c16 = vT + 1; t0 = vT + 2; t1 = XR; t2 = XR + 1
    a(f"v_lshrrev_b32 v{g}, 4, v0")
    a(f"v_and_b32 v{c16}, 15, v0")
    a(f"v_bfe_u32 v{t0}, v{c16}, 3, 1")
    a(f"v_mul_u32_u24 v{t0}, 3, v{t0}")
    a(f"v_xor_b32 v{t0}, v{t0}, v{g}")
    a(f"v_lshlrev_b32 v{t0}, 4, v{t0}")
    a(f"v_lshl_add_u32 v{vXa}, v{c16}, 6, v{t0}")
    a(f"v_lshrrev_b32 v{t0}, 2, v{c16}")
    a(f"v_and_b32 v{t1}, 1, v{g}")
    a(f"v_lshl_or_b32 v{t1}, v{t1}, 2, v{t0}")
    a(f"v_lshl_add_u32 v{t0}, v{g}, 3, v{t0}")
    a(f"v_lshlrev_b32 v{t0}, 8, v{t0}")
    a(f"v_and_b32 v{t2}, 3, v{c16}")
    a(f"v_lshl_add_u32 v{t0}, v{t2}, 3, v{t0}")
    a("s_lshl_b32 s20, s15, 1")
    a("s_add_u32 s20, s20, s13")
    for t in range(2):
        if t: a("s_xor_b32 s20, s20, 1")
        a(f"v_xor_b32 v{t2}, s20, v{t1}")
        a(f"v_lshl_add_u32 v{vWa+t}, v{t2}, 5, v{t0}")
    if G.CFG['y3']:
        a(f"v_lshlrev_b32 v{vSt}, 6, v{c16}")
        a(f"v_lshl_add_u32 v{vSt}, v{g}, 4, v{vSt}")
        a(f"v_and_b32 v{t0}, 7, v{c16}")
        a(f"v_lshlrev_b32 v{vSt2}, 6, v{t0}")
        a(f"v_lshrrev_b32 v{t1}, 3, v{c16}")
        a(f"v_xor_b32 v{t1}, s13, v{t1}")
        a(f"s_mov_b32 s22, {G.YB3}")
        a(f"v_mul_lo_u32 v{t1}, v{t1}, s22")
        a(f"v_add_u32 v{vSt2}, v{vSt2}, v{t1}")
        a(f"v_lshl_add_u32 v{vSt2}, v{g}, 4, v{vSt2}")
        a("s_lshl_b32 s22, s13, 3")
        a(f"v_add_u32 v{vSt2}, s22, v{vSt2}")
        a(f"v_cmp_gt_u32 vcc, 7, v{t0}")
        a(f"v_mov_b32 v{t1}, 0x80000000")
        a(f"v_cndmask_b32 v{vSt2}, v{t1}, v{vSt2}, vcc")
        a("s_lshl_b32 s20, s14, 2")
        a("s_add_u32 s20, s20, s15")
        a(f"s_mul_i32 s48, s20, {G.YS3}")
        a(f"s_mul_i32 s20, s11, {2*G.YJ3}")
        a("s_add_u32 s48, s48, s20")
        a(f"s_add_u32 s48, s48, {G.YF_BASE}")
        a(f"s_add_u32 s49, s48, {160*64}")
        a(f"s_mul_i32 s20, s13, {G.YB3}")
        a("s_add_u32 s48, s48, s20")
    else:
        a(f"s_mov_b32 s21, {G.YF_ROW}")
        a(f"v_mul_u32_u24 v{vSt}, s21, v{c16}")
        a(f"v_lshl_add_u32 v{vSt}, v{g}, 4, v{vSt}")
        a("s_lshl_b32 s23, s15, 6")
        a(f"v_add_u32 v{vSt}, s23, v{vSt}")
        a(f"v_and_b32 v{t0}, 7, v{c16}")
        a(f"v_mul_u32_u24 v{vSt2}, s21, v{t0}")
        a(f"v_lshrrev_b32 v{t1}, 3, v{c16}")
        a(f"v_xor_b32 v{t1}, s13, v{t1}")
        a(f"s_mov_b32 s22, {G.YF_B}")
        a(f"v_mul_lo_u32 v{t1}, v{t1}, s22")
        a(f"v_add_u32 v{vSt2}, v{vSt2}, v{t1}")
        a(f"v_lshl_add_u32 v{vSt2}, v{g}, 4, v{vSt2}")
        a("s_lshl_b32 s22, s13, 3")
        a("s_add_u32 s22, s22, s23")
        a(f"v_add_u32 v{vSt2}, s22, v{vSt2}")
        a(f"v_cmp_gt_u32 vcc, 7, v{t0}")
        a(f"v_mov_b32 v{t1}, 0x80000000")
        a(f"v_cndmask_b32 v{vSt2}, v{t1}, v{vSt2}, vcc")
        a(f"s_mul_i32 s48, s11, {2*G.YF_J}")
        a("s_lshl_b32 s20, s14, 8")
        a("s_add_u32 s48, s48, s20")
        a(f"s_add_u32 s48, s48, {G.YF_BASE}")
        a(f"s_add_u32 s49, s48, {160*G.YF_ROW}")
        a(f"s_mul_i32 s20, s13, {G.YF_B}")
        a("s_add_u32 s48, s48, s20")

def helper_setup(a):
    a(f"s_mul_i32 s40, s11, {G.WF_K}")
    a(f"s_mul_i32 s20, s14, {G.WF_DQ}")
    a("s_add_u32 s40, s40, s20")
    if G.WF_BASE: a(f"s_add_u32 s40, s40, {G.WF_BASE}")
    a(f"s_mul_i32 s41, s11, {G.XF2_K if G.CFG['xf2'] else G.XF_K}")
    a(f"s_mul_i32 s20, s13, {G.XF2_B if G.CFG['xf2'] else G.XF_B}")
    a("s_add_u32 s41, s41, s20")
    a(f"s_add_u32 s41, s41, {G.XF_BASE}")
    a("s_lshl_b32 s42, s15, 12")
    a("s_mul_i32 s43, s15, 5632")
    a("s_lshr_b32 s20, s15, 1")
    a("s_lshl_b32 s21, s20, 9")
    a("s_sub_u32 s21, s43, s21")
    a("v_lshlrev_b32 v1, 4, v0")
    if G.CFG['xf2']:
        a("v_lshrrev_b32 v3, 2, v0"); a("v_lshlrev_b32 v3, 7, v3")
        a("v_and_b32 v4, 3, v0"); a("v_lshl_add_u32 v3, v4, 4, v3")
        a("s_lshl_b32 s21, s21, 1")
        a("v_add_u32 v2, s21, v3")
        a(f"s_add_u32 s22, s21, {10240-1024}")
        a("v_add_u32 v5, s22, v3")
        a("s_mov_b32 s44, s41")
        a("s_bitcmp1_b32 s15, 0")
        a("s_cbranch_scc0 L_six_even")
        a(f"s_mul_i32 s22, s20, 21504")
        a(f"s_add_u32 s22, s22, {20480-1024}")
        a("v_lshrrev_b32 v5, 2, v0"); a("v_lshlrev_b32 v5, 7, v5")
        a("v_and_b32 v3, 3, v0"); a("v_xor_b32 v3, 3, v3"); a("v_lshl_add_u32 v5, v3, 4, v5")
        a("v_add_u32 v5, s22, v5")
        a(f"s_mul_i32 s44, s11, {G.XF2_K}")
        a("s_xor_b32 s22, s13, 1")
        a(f"s_mul_i32 s22, s22, {G.XF2_B}")
        a("s_add_u32 s44, s44, s22")
        a(f"s_add_u32 s44, s44, {G.XF_BASE}")
    else:
        a("v_lshlrev_b32 v1, 4, v0")
        a("v_add_u32 v2, s21, v1")
        a("s_add_u32 s22, s21, 4096")
        a("v_add_u32 v5, s22, v1")
        a("s_mov_b32 s44, s41")
        a("s_bitcmp1_b32 s15, 0")
        a("s_cbranch_scc0 L_six_even")
        a(f"s_mul_i32 s22, s20, 10752")
        a(f"s_add_u32 s22, s22, {10240-1024}")
        a("v_lshrrev_b32 v5, 2, v0"); a("v_lshlrev_b32 v5, 6, v5")
        a("v_and_b32 v3, 3, v0"); a("v_xor_b32 v3, 3, v3"); a("v_lshl_add_u32 v5, v3, 4, v5")
        a("v_add_u32 v5, s22, v5")
        a(f"s_mul_i32 s44, s11, {G.XF_K}")
        a("s_xor_b32 s22, s13, 1")
        a(f"s_mul_i32 s22, s22, {G.XF_B}")
        a("s_add_u32 s44, s44, s22")
        a(f"s_add_u32 s44, s44, {G.XF_BASE}")
    a.label("L_six_even")
    a("s_mov_b32 s50, -1"); a("s_mov_b32 s51, 0")
    a("v_add_u32 v1, s42, v1")
    a("s_add_u32 s43, s43, 16384")

def gen_k3c(cfg=None):
    a = Asm()
    name = 'gemm_kernel'
    G.kernel_header(a, name)
    a("s_cmp_ge_u32 s2, 256")
    a("s_cbranch_scc1 L_k3_end")
    a("s_load_dwordx2 s[8:9], s[0:1], 48")
    a(f"v_lshrrev_b32 v{vT}, 6, v0")
    a(f"v_and_b32 v0, 63, v0")
    a(f"v_readfirstlane_b32 s10, v{vT}")
    if G.CFG.get('pf_code'):
        a("s_cmp_ge_u32 s2, 8"); a("s_cbranch_scc1 L_nopf3")
        a("s_cmp_lg_u32 s10, 7"); a("s_cbranch_scc1 L_nopf3")
        G.prefetch_code(a, "k3", "gemm_kernel", "final_kernel", 4, 12, sp=60)
        a.label("L_nopf3")
    decode_ids(a)
    late = G.CFG.get('k3_latewait')
    if not late:
        a("s_waitcnt lgkmcnt(0)")
        G.make_srd(a, 16, 8, 9, G.WS_BYTES)
    a("s_cmp_ge_u32 s10, 4")
    a("s_cbranch_scc1 L_k3_helper")
    gemm_setup(a)
    if late:
        a("s_waitcnt lgkmcnt(0)")
        G.make_srd(a, 16, 8, 9, G.WS_BYTES)
    gemm_wave(a, cfg)
    a.label("L_k3_helper")
    helper_setup(a)
    if late:
        a("s_waitcnt lgkmcnt(0)")
        G.make_srd(a, 16, 8, 9, G.WS_BYTES)
    if not late: ws_fill(a)
    helper_wave(a, cfg)
    a.label("L_k3_end")
    a("s_endpgm")
    return name, a.lines, 256, (256, 512, LDS_BYTES)
```

```python
import sys, os
sys.path.insert(0, os.path.dirname(os.path.abspath(__file__)))
from asmlib import *

NAME = 'standalone__self_sup_conv_stem_wavlm__speech'

L_OUT = 7985
NBLK = 167
ROWS = 168
X_BYTES_B = 8000 * 2048
W_BYTES = 31 * 524288
WS_BYTES = 268435456
WF_BASE = 0
WF_K = 4 * 32 * 16384
XF_BASE = 64 << 20
XF_TILE = 2 * ROWS * 64
XF_B = 32 * XF_TILE
XF_K = 2 * XF_B
YF_BASE = 112 << 20
YF_B = 176 * 1024
YF_J = 2 * YF_B
PART_BASE = 140 << 20
NGRP = 42
CNT_BASE = 141 << 20
CNT_STRIDE = 8192 + 256
OUT_B = L_OUT * 1024

import json
CFG = dict(
    k3_nodma=False,
    k3_nomfma=False,
    k3_stamp=False,
    k3b=True,
    k3c=True,
    k12p=False,
    k12q=True,
    k12_nwg=256,
    k12_mix=7,
    k12_nf=96,
    w_nodup=True,
    k45f=True,
    k45g=True,
    pf_code=True,
    pf_late=False,
    y3=True,
    fuse12=False,
    fz_sleep=2,
    k3_latewait=True,
    gelu_loop=False,
    xf2=False,
    pf_tlb=False,
    k45_sleep=2,
    k45_wpg=6,
    k12_st='sc1',
    k3_st='sc1',
    k5_st='sc1',
    half=False,
    wfuse=False,
    c0=4,
    ldist=[6,5,5,0],
    xfull=True,
    layout=2,
    ypad=256,
    fused=False,
    hprio=0,
    st_flags='sc1',
    dma_flags='',
    timeline=False,
    k3_nolds=False,
)
CFG.update(json.loads(os.environ.get('GENCFG', '{}')))
if CFG['layout'] == 2:
    WF_K = 16384; WF_KS = 32 * 16384; WF_DQ = 32 * WF_KS
    XF_K = XF_TILE; XF_KS = 32 * XF_TILE; XF_B = 32 * XF_KS
    YF_J = 1024; YF_ROW = 65536 + CFG['ypad']; YF_B = 176 * YF_ROW
else:
    WF_KS = 16384; WF_DQ = 32 * 16384; XF_KS = XF_TILE; YF_ROW = 1024
YJ3 = 176 * 64; YS3 = 64 * YJ3; YB3 = 16 * YS3
XF2_K = 2 * XF_TILE; XF_KP = 32 * XF2_K; XF2_B = 16 * XF_KP

def kernel_header(a, name):
    a(f".globl {name}")
    a(".p2align 8")
    a(f".type {name},@function")
    a.label(name)

def kernel_desc(name, vgpr, sgpr=96, accum=None):
    accum = accum or ((vgpr + 3) // 4 * 4)
    return f""".amdhsa_kernel {name}
  .amdhsa_next_free_vgpr {vgpr}
  .amdhsa_next_free_sgpr {sgpr}
  .amdhsa_accum_offset {accum}
  .amdhsa_group_segment_fixed_size 0
  .amdhsa_kernarg_size 56
  .amdhsa_user_sgpr_count 2
  .amdhsa_user_sgpr_kernarg_segment_ptr 1
  .amdhsa_system_sgpr_workgroup_id_x 1
  .amdhsa_float_denorm_mode_32 3
.end_amdhsa_kernel
"""

def prefetch_code(a, tag, start, end, nloads, v, sp=50):
    a(f"s_getpc_b64 s[{sp}:{sp+1}]")
    a.label(f"L_pf_{tag}")
    a(f"s_sub_u32 s{sp}, s{sp}, L_pf_{tag}-{start}")
    a(f"s_subb_u32 s{sp+1}, s{sp+1}, 0")
    a(f"v_mbcnt_lo_u32_b32 v{v}, -1, 0")
    a(f"v_mbcnt_hi_u32_b32 v{v}, -1, v{v}")
    a(f"v_lshlrev_b32 v{v}, 6, v{v}")
    for j in range(nloads):
        a(f"v_add_u32 v{v+1}, {j*4096}, v{v}")
        a(f"v_min_u32 v{v+1}, {end}-{start}-4, v{v+1}")
        a(f"v_mov_b32 v{v+3}, s{sp+1}")
        a(f"v_add_co_u32 v{v+2}, vcc, s{sp}, v{v+1}")
        a(f"v_addc_co_u32 v{v+3}, vcc, 0, v{v+3}, vcc")
        a(f"global_load_dword v{v+4}, v[{v+2}:{v+3}], off")

def prefetch_code_fwd(a, tag, start, end, nloads, v, sp=50):
    a(f"s_getpc_b64 s[{sp}:{sp+1}]")
    a.label(f"L_pf_{tag}")
    a(f"s_add_u32 s{sp}, s{sp}, {start}-L_pf_{tag}")
    a(f"s_addc_u32 s{sp+1}, s{sp+1}, 0")
    a(f"v_mbcnt_lo_u32_b32 v{v}, -1, 0")
    a(f"v_mbcnt_hi_u32_b32 v{v}, -1, v{v}")
    a(f"v_lshlrev_b32 v{v}, 6, v{v}")
    for j in range(nloads):
        a(f"v_add_u32 v{v+1}, {j*4096}, v{v}")
        a(f"v_min_u32 v{v+1}, {end}-{start}-4, v{v+1}")
        a(f"v_mov_b32 v{v+3}, s{sp+1}")
        a(f"v_add_co_u32 v{v+2}, vcc, s{sp}, v{v+1}")
        a(f"v_addc_co_u32 v{v+3}, vcc, 0, v{v+3}, vcc")
        a(f"global_load_dword v{v+4}, v[{v+2}:{v+3}], off")

def make_srd(a, s, base_lo, base_hi, size):
    a(f"s_mov_b32 s{s}, s{base_lo}")
    a(f"s_and_b32 s{s+1}, s{base_hi}, 0xffff")
    a(f"s_mov_b32 s{s+2}, {size}")
    a(f"s_mov_b32 s{s+3}, 0x00020000")

def cos_table(a, vp0, vstep_list, dst, tmp, scale=None, lo_sel=None):
    for e in range(8):
        r = vstep_list[e]
        a(f"v_and_b32 v{r}, 127, v{r}")
        a(f"v_cvt_f32_u32 v{r}, v{r}")
        a(f"v_mul_f32 v{r}, 0x3c000000, v{r}")
        a(f"v_cos_f32 v{r}, v{r}")
    if scale is not None:
        for e in range(8):
            r = vstep_list[e]
            a(f"v_mul_f32 v{r}, {scale}, v{r}")
    for e2 in range(4):
        r0, r1 = vstep_list[2*e2], vstep_list[2*e2+1]
        a(f"v_cvt_pk_bf16_f32 v{dst+e2}, v{r0}, v{r1}")
    if lo_sel is not None:
        for e2 in range(4):
            r0, r1 = vstep_list[2*e2], vstep_list[2*e2+1]
            a(f"v_lshlrev_b32 v{tmp}, 16, v{dst+e2}")
            a(f"v_and_b32 v{tmp+1}, 0xffff0000, v{dst+e2}")
            a(f"v_sub_f32 v{r0}, v{r0}, v{tmp}")
            a(f"v_sub_f32 v{r1}, v{r1}, v{tmp+1}")
            a(f"v_cvt_pk_bf16_f32 v{tmp}, v{r0}, v{r1}")
            a(f"v_cndmask_b32 v{dst+e2}, v{dst+e2}, v{tmp}, s[{lo_sel}:{lo_sel+1}]")

def gen_k12():
    a = Asm()
    name = 'xform_kernel'
    kernel_header(a, name)
    NCG = CFG['c0'] if CFG['half'] else 8
    XFULL = CFG['half'] or CFG['wfuse']
    XF2_K = 2 * XF_TILE; XF_KP = 32 * XF2_K; XF2_B = 16 * XF_KP
    NX = 2 * NGRP * NCG
    NW = 128 * (CFG['c0'] if CFG['wfuse'] else NCG)
    RAW = 0
    AF = 64
    BF = 96
    ACC = 112
    VT = 144
    vLane = VT; vR = VT+1; vG = VT+2; vOff = VT+3; vSt = VT+4; vT0 = VT+5
    NV = 160
    a("s_cmp_ge_u32 s2, %d" % (NX + NW))
    a("s_cbranch_scc1 L_k12_end")
    a("s_load_dwordx4 s[4:7], s[0:1], 0")
    a("s_load_dwordx2 s[8:9], s[0:1], 48")
    a(f"v_and_b32 v{vLane}, 63, v0")
    a(f"v_lshrrev_b32 v{vT0}, 6, v0")
    a(f"v_and_b32 v{vR}, 15, v{vLane}")
    a(f"v_readfirstlane_b32 s10, v{vT0}")
    a(f"v_lshrrev_b32 v{vG}, 4, v{vLane}")
    a("s_mov_b32 s30, 0x05040100")
    a("s_mov_b32 s31, 0x07060302")
    a("s_waitcnt lgkmcnt(0)")
    make_srd(a, 16, 8, 9, WS_BYTES)
    a("s_cmp_ge_u32 s2, %d" % NX)
    a("s_cbranch_scc1 L_k12_w")
    a.c("X item: b, cg, grp")
    a(f"s_cmp_ge_u32 s2, {NGRP*NCG}")
    a("s_cselect_b32 s11, 1, 0")
    a(f"s_mul_i32 s12, s11, {NGRP*NCG}")
    a("s_sub_u32 s12, s2, s12")
    a(f"s_mul_hi_u32 s14, s12, {((1 << 32) + NCG - 1) // NCG if NCG > 1 else 0}")
    a(f"s_mul_i32 s13, s14, {NCG}")
    a("s_sub_u32 s13, s12, s13")
    a("s_lshl_b32 s14, s14, 2")
    a("s_add_u32 s14, s14, s10")
    a(f"s_mul_i32 s15, s11, {X_BYTES_B}")
    a("s_add_u32 s4, s4, s15")
    a("s_addc_u32 s5, s5, 0")
    make_srd(a, 12+8, 4, 5, X_BYTES_B)
    a("s_mul_i32 s15, s14, %d" % (48 * 2048))
    a("s_lshl_b32 s24, s13, 8")
    a("s_add_u32 s15, s15, s24")
    a(f"v_lshlrev_b32 v{vOff}, 14, v{vG}")
    a(f"v_lshl_add_u32 v{vOff}, v{vR}, 4, v{vOff}")
    a(f"v_add_u32 v{vOff}, s15, v{vOff}")
    for s in range(2):
        for i in range(8):
            off = (32 * s + i) * 2048
            if off == 0:
                a(f"buffer_load_dwordx4 v[{RAW}:{RAW+3}], v{vOff}, s[20:23], 0 offen")
            else:
                a(f"v_add_u32 v{vT0}, {off}, v{vOff}")
                r = RAW + 4 * (8 * s + i)
                a(f"buffer_load_dwordx4 v[{r}:{r+3}], v{vT0}, s[20:23], 0 offen")
    a.c("table generation: wave w -> o = w, s = 0,1")
    vA = vT0; vC = vT0+1; vP = BF
    a(f"v_lshrrev_b32 v{vA}, 2, v{vR}")
    a(f"v_lshlrev_b32 v{vA}, 1, v{vA}")
    a(f"v_bfe_u32 v{vC}, v{vR}, 1, 1")
    a(f"v_add_u32 v{vA}, v{vA}, v{vC}")
    a("s_lshl_b32 s24, s10, 3")
    a(f"v_add_u32 v{vA}, s24, v{vA}")
    a(f"v_lshl_add_u32 v{vA}, v{vA}, 1, 1")
    a(f"v_and_b32 v{vC}, 1, v{vR}")
    a(f"v_lshlrev_b32 v{vC}, 5, v{vC}")
    for s in range(2):
        a(f"v_lshlrev_b32 v{vT0+2}, 3, v{vG}")
        if s: a(f"v_add_u32 v{vT0+2}, 32, v{vT0+2}")
        a(f"v_mad_u32_u24 v{vP}, v{vA}, v{vT0+2}, v{vC}")
        for e in range(1, 8):
            a(f"v_add_u32 v{vP+e}, v{vP+e-1}, v{vA}")
        cos_table(a, None, [vP+e for e in range(8)], ACC, ACC+4)
        a("s_lshl_b32 s24, s10, 11")
        a(f"v_lshlrev_b32 v{vT0+3}, 4, v{vLane}")
        a(f"v_add_u32 v{vT0+3}, s24, v{vT0+3}")
        a(f"ds_write_b128 v{vT0+3}, v[{ACC}:{ACC+3}] offset:{s*1024}")
    a("s_waitcnt lgkmcnt(0)")
    a("s_barrier")
    a(f"v_lshlrev_b32 v{vT0+3}, 4, v{vLane}")
    for o in range(4):
        for s in range(2):
            r = AF + 4 * (2 * o + s)
            a(f"ds_read_b128 v[{r}:{r+3}], v{vT0+3} offset:{(2*o+s)*1024}")
    a("s_bfe_u32 s24, s14, 0x10003")
    a("s_mul_i32 s24, s24, 3")
    a(f"v_and_b32 v{vT0}, 3, v{vR}")
    a(f"v_xor_b32 v{vT0}, s24, v{vT0}")
    a(f"v_lshlrev_b32 v{vT0}, 4, v{vT0}")
    if XFULL:
        a(f"v_bfe_u32 v{vT0+1}, v{vR}, 2, 1")
        a(f"v_lshl_add_u32 v{vT0}, v{vT0+1}, 6, v{vT0}")
        a(f"v_lshrrev_b32 v{vT0+1}, 3, v{vR}")
        a(f"s_mov_b32 s24, {XF_KP}")
    else:
        a(f"v_lshrrev_b32 v{vT0+1}, 2, v{vR}")
        a(f"s_mov_b32 s24, {XF_KS}")
    a(f"v_mad_u32_u24 v{vT0}, v{vT0+1}, s24, v{vT0}")
    a(f"s_mov_b32 s24, {2*(XF2_K if XFULL else XF_K)}")
    a(f"v_mad_u32_u24 v{vSt}, v{vG}, s24, v{vT0}")
    a(f"s_mul_i32 s24, s11, {XF2_B if XFULL else XF_B}")
    a(f"s_mul_i32 s25, s13, {2*XF_KP if XFULL else 4*XF_KS}")
    a("s_add_u32 s24, s24, s25")
    a(f"s_lshl_b32 s25, s14, {7 if XFULL else 6}")
    a("s_add_u32 s24, s24, s25")
    a(f"s_add_u32 s24, s24, {XF_BASE}")
    a("s_waitcnt vmcnt(0) lgkmcnt(0)")
    def perms(q):
        for s in range(2):
            for h in range(2):
                for e in range(4):
                    d = BF + (s * 2 + h) * 4 + e
                    r0 = RAW + 4 * (8 * s + 2 * e) + q
                    r1 = RAW + 4 * (8 * s + 2 * e + 1) + q
                    a(f"v_perm_b32 v{d}, v{r1}, v{r0}, s{30+h}")
    def mfmas():
        for s in range(2):
            for o in range(4):
                for h in range(2):
                    d = ACC + (o * 2 + h) * 4
                    A = AF + 4 * (2 * o + s)
                    B = BF + (s * 2 + h) * 4
                    c = "0" if s == 0 else f"v[{d}:{d+3}]"
                    a(f"v_mfma_f32_16x16x32_bf16 v[{d}:{d+3}], v[{A}:{A+3}], v[{B}:{B+3}], {c}")
    def cvts(q):
        for o in range(4):
            for rp in range(4):
                d = RAW + 4 * (4 * o + rp) + q
                a(f"v_cvt_pk_bf16_f32 v{d}, v{ACC+(o*2)*4+rp}, v{ACC+(o*2+1)*4+rp}")
    perms(0)
    for q in range(4):
        mfmas()
        if q < 3: perms(q + 1)
        cvts(q)
    for o in range(4):
        for rp in range(4):
            off = (8 * o + (rp >> 1)) * XF_K + (rp & 1) * (ROWS * 64)
            if XFULL: off = (8 * o + (rp >> 1)) * XF2_K + (rp & 1) * (ROWS * 128)
            a(f"s_add_u32 s25, s24, {off}")
            r = RAW + 4 * (4 * o + rp)
            a(f"buffer_store_dwordx4 v[{r}:{r+3}], v{vSt}, s[16:19], s25 offen {CFG['k12_st']}")
    a("s_endpgm")
    a.label("L_k12_w")
    a(f"s_sub_u32 s12, s2, {NX}")
    a("s_and_b32 s13, s12, 3")
    a("s_lshr_b32 s14, s12, 2")
    a("s_lshl_b32 s14, s14, 2")
    a("s_add_u32 s14, s14, s10")
    make_srd(a, 20, 6, 7, W_BYTES)
    a(f"v_and_b32 v{vT0}, 1, v{vG}")
    a(f"v_lshlrev_b32 v{vOff}, 23, v{vT0}")
    a(f"v_lshrrev_b32 v{vT0}, 2, v{vR}")
    a(f"v_lshl_add_u32 v{vOff}, v{vT0}, 6, v{vOff}")
    a(f"v_and_b32 v{vT0}, 1, v{vR}")
    a(f"v_lshl_add_u32 v{vOff}, v{vT0}, 5, v{vOff}")
    a(f"v_bfe_u32 v{vT0}, v{vR}, 1, 1")
    a(f"v_lshl_add_u32 v{vOff}, v{vT0}, 3, v{vOff}")
    a("s_lshl_b32 s15, s14, 10")
    a("s_lshl_b32 s24, s13, 8")
    a("s_add_u32 s15, s15, s24")
    a(f"v_add_u32 v{vOff}, s15, v{vOff}")
    for i in range(8):
        r = RAW + 4 * i
        if i == 0:
            src = vOff
        else:
            a(f"v_add_u32 v{vT0}, {i << 20}, v{vOff}")
            src = vT0
        a(f"buffer_load_dwordx2 v[{r}:{r+1}], v{src}, s[20:23], 0 offen")
        a(f"buffer_load_dwordx2 v[{r+2}:{r+3}], v{src}, s[20:23], 0 offen offset:16")
    a.c("table: wave w -> o = w")
    vA = vT0; vC = vT0+1; vP = BF
    a(f"v_lshrrev_b32 v{vA}, 2, v{vR}")
    a(f"v_lshlrev_b32 v{vA}, 1, v{vA}")
    a(f"v_bfe_u32 v{vC}, v{vR}, 1, 1")
    a(f"v_add_u32 v{vA}, v{vA}, v{vC}")
    a("s_lshl_b32 s24, s10, 3")
    a(f"v_add_u32 v{vA}, s24, v{vA}")
    a(f"v_lshl_add_u32 v{vA}, v{vA}, 1, 1")
    a(f"v_and_b32 v{vC}, 1, v{vR}")
    a(f"v_lshlrev_b32 v{vC}, 5, v{vC}")
    a(f"v_and_b32 v{vT0+2}, 1, v{vG}")
    a(f"v_lshlrev_b32 v{vT0+2}, 3, v{vT0+2}")
    a(f"v_mad_u32_u24 v{vP}, v{vA}, v{vT0+2}, v{vC}")
    for e in range(1, 8):
        a(f"v_add_u32 v{vP+e}, v{vP+e-1}, v{vA}")
    a(f"v_cmp_lt_u32 s[26:27], 1, v{vG}")
    cos_table(a, None, [vP+e for e in range(8)], ACC, ACC+4, lo_sel=26)
    a("s_lshl_b32 s24, s10, 10")
    a(f"v_lshlrev_b32 v{vT0+3}, 4, v{vLane}")
    a(f"v_add_u32 v{vT0+3}, s24, v{vT0+3}")
    a(f"ds_write_b128 v{vT0+3}, v[{ACC}:{ACC+3}]")
    a("s_waitcnt lgkmcnt(0)")
    a("s_barrier")
    a(f"v_lshlrev_b32 v{vT0+3}, 4, v{vLane}")
    for o in range(4):
        r = AF + 4 * o
        a(f"ds_read_b128 v[{r}:{r+3}], v{vT0+3} offset:{o*1024}")
    a("s_and_b32 s24, s14, 3")
    a("s_bfe_u32 s25, s14, 0x10003")
    a("s_lshl_b32 s25, s25, 2")
    a("s_or_b32 s24, s24, s25")
    a("s_lshl_b32 s24, s24, 1")
    a(f"v_xor_b32 v{vT0}, s24, v{vR}")
    a(f"v_lshlrev_b32 v{vT0}, 4, v{vT0}")
    a(f"s_mov_b32 s25, {2*WF_K}")
    a(f"v_mul_u32_u24 v{vSt}, s25, v{vG}")
    a(f"v_add_u32 v{vSt}, v{vSt}, v{vT0}")
    a(f"s_mul_i32 s24, s13, {WF_DQ}")
    a("s_lshr_b32 s25, s14, 5")
    a(f"s_mul_i32 s25, s25, {WF_KS}")
    a("s_add_u32 s24, s24, s25")
    a("s_and_b32 s25, s14, 31")
    a("s_lshl_b32 s25, s25, 8")
    a("s_add_u32 s24, s24, s25")
    if WF_BASE: a(f"s_add_u32 s24, s24, {WF_BASE}")
    a("s_waitcnt vmcnt(0) lgkmcnt(0)")
    OUT = 32
    FR = 32
    for dd in range(8):
        q = dd >> 1; h = dd & 1
        for e in range(4):
            r0 = RAW + 4 * (2 * e) + q
            r1 = RAW + 4 * (2 * e + 1) + q
            a(f"v_perm_b32 v{FR+4*dd+e}, v{r1}, v{r0}, s{30+h}")
    for o in range(4):
        A = AF + 4 * o
        for dd in range(8):
            d = ACC + 4 * dd
            a(f"v_mfma_f32_16x16x32_bf16 v[{d}:{d+3}], v[{A}:{A+3}], v[{FR+4*dd}:{FR+4*dd+3}], 0")
        ob = RAW + 16 * (o & 1)
        for rp in range(4):
            for q in range(4):
                a(f"v_cvt_pk_bf16_f32 v{ob+4*rp+q}, v{ACC+8*q+rp}, v{ACC+8*q+4+rp}")
        for rp in range(4):
            off = (8 * o + (rp >> 1)) * WF_K + (rp & 1) * 8192
            a(f"s_add_u32 s25, s24, {off}")
            r = ob + 4 * rp
            a(f"buffer_store_dwordx4 v[{r}:{r+3}], v{vSt}, s[16:19], s25 offen {CFG['k12_st']}")
    a.label("L_k12_end")
    a("s_endpgm")
    return name, a.lines, NV, (NX + NW, 256, 16384)

STAMP_BASE = 200 << 20
def add_timeline(name, lines, kidx):
    out = []
    started = False
    n = 0
    for l in lines:
        t = l.strip()
        out.append(l)
        if not started and t == name + ':':
            out.append("    s_memrealtime s[92:93]")
            out.append("    v_lshrrev_b32 v1, 6, v0")
            out.append("    s_nop 1")
            out.append("    v_readfirstlane_b32 s91, v1")
            out.append("    s_waitcnt lgkmcnt(0)")
            started = True
        if t == 's_endpgm':
            out.pop()
            n += 1
            out.append("    s_waitcnt vmcnt(0) lgkmcnt(0)")
            out.append("    s_memrealtime s[94:95]")
            out.append("    s_load_dwordx2 s[80:81], s[0:1], 48")
            out.append("    s_mov_b64 exec, -1")
            out.append("    s_waitcnt lgkmcnt(0)")
            out.append("    s_mov_b32 s84, s80"); out.append("    s_and_b32 s85, s81, 0xffff")
            out.append(f"    s_mov_b32 s86, {WS_BYTES}"); out.append("    s_mov_b32 s87, 0x00020000")
            out.append("    s_lshl_b32 s88, s2, 4"); out.append("    s_add_u32 s88, s88, s91"); out.append("    s_lshl_b32 s88, s88, 4")
            out.append(f"    s_add_u32 s88, s88, {STAMP_BASE + kidx * (1 << 20)}")
            out.append("    v_mov_b32 v0, s92"); out.append("    v_mov_b32 v1, s93"); out.append("    v_mov_b32 v2, s94"); out.append("    v_mov_b32 v3, s95")
            out.append("    v_mov_b32 v4, 0")
            out.append("    buffer_store_dwordx4 v[0:3], v4, s[84:87], s88 offen")
            out.append("    s_endpgm")
    return out

def build(kernels):
    if CFG['timeline']:
        kernels = [(n, add_timeline(n, l, i), nv, g) for i, (n, l, nv, g) in enumerate(kernels)]
    hdr = open(os.path.join(os.path.dirname(os.path.abspath(__file__)), '..', NAME + '.s.ref')).read().split('\n')
    out = []
    for l in hdr:
        if l.startswith('; Override launch') or l.startswith('; grid=ceil') or l.startswith('; @launch'): continue
        if l.startswith(';'): out.append(l)
        else: break
    for (name, lines, nv, (g, blk, lds)) in kernels:
        out.append(f"; @launch kernel={name} grid=({g},1,1) block=({blk},1,1) lds={lds}")
    out.append('.amdgcn_target "amdgcn-amd-amdhsa--gfx950"')
    out.append('.text')
    for (name, lines, nv, _) in kernels:
        out += hazard_pass(lines)
    out.append('L_code_end:')
    out.append('    s_endpgm')
    out.append('.section .rodata,"a"')
    for (name, lines, nv, _) in kernels:
        out.append('.p2align 6')
        out.append(kernel_desc(name, nv))
    return '\n'.join(out) + '\n'

if __name__ == '__main__':
    from gen_k3 import gen_k3
    from gen_k45 import gen_k4, gen_k5
    from gen_k3b import gen_k3b
    from gen_k123 import gen_k123
    from gen_k3h import gen_k3h
    from gen_k3w import gen_k3w
    if CFG['wfuse']:
        ks = [gen_k12(), gen_k3w(), gen_k4(), gen_k5()]
    elif CFG['half']:
        ks = [gen_k12(), gen_k3h(), gen_k4(), gen_k5()]
    elif CFG['fused']:
        ks = [gen_k123(), gen_k4(), gen_k5()]
    else:
        ks = [gen_k12(), gen_k3b() if CFG['k3b'] else gen_k3(), gen_k4(), gen_k5()]
    if CFG['k12p']:
        from gen_k12p import gen_k12p
        ks[0] = gen_k12p()
    if CFG['k12q']:
        from gen_k12q import gen_k12q
        ks[0] = gen_k12q()
    if CFG['k3c']:
        from gen_k3c import gen_k3c
        ks[1] = gen_k3c()
    if CFG['fuse12']:
        from gen_fuse import gen_fused
        ks = [gen_fused()] + ks[2:]
    if CFG['k45g']:
        from gen_k45g import gen_k45g
        ks = ks[:-2] + [gen_k45g()]
    elif CFG['k45f']:
        from gen_k45 import gen_k45f
        ks = ks[:-2] + [gen_k45f()]
    dst = sys.argv[1] if len(sys.argv) > 1 else os.path.join(os.path.dirname(os.path.abspath(__file__)), '..', NAME + '.s')
    open(dst, 'w').write(build(ks))
    print('wrote', dst)
```

```python
from asmlib import *
import gen as G
import gen_k3c as K3
from gen_k3c import STAGE, NSTAGE, LDS_BYTES, XC
from gen_k123 import VQ, Null

FLAG_BASE = 150 << 20
SPIN_MAX = 1 << 15
NX = 672; NW = 1024; NT = NX + NW; NWG = 256
CH = 212
TB = 3 * STAGE

def xform_phase(a, cfg):
    st = cfg['k12_st']; ld = cfg.get('k12_ld', '')
    BUF = [0 + 8, 64 + 8]; AF = 136; BF = 168; ACC = 184; VT = 216
    vR = VT+1; vG = VT+2; vSt = VT+4; vT0 = VT+5
    vNext = VT + 13; vZ = VT + 14; vL16 = VT + 15
    vXo = VT + 16; vWo = VT + 17; vXs = VT + 18; vWs = VT + 19; vNon = VT + 20; vTag = VT + 21
    sCur, sNxt = 40, 42
    sRawCur, sRawNxt, sNon, sRawPrev = 52, 53, 54, 55
    uid = [0]
    NF = cfg.get('k12_nf', 96)
    def remap(sr):
        u = uid[0]; uid[0] += 1
        a(f"s_cmp_ge_u32 s{sr}, {NF + NX}")
        a(f"s_cbranch_scc1 L_rm{u}")
        a(f"s_sub_u32 s28, s{sr}, {NF}")
        a(f"s_add_u32 s29, s{sr}, {NX}")
        a(f"s_cmp_ge_u32 s{sr}, {NF}")
        a(f"s_cselect_b32 s{sr}, s28, s29")
        a.label(f"L_rm{u}")
    def zs(i):
        if cfg.get('zstamp'):
            a("s_memrealtime s[70:71]"); a("s_waitcnt lgkmcnt(0)"); a(f"v_writelane_b32 v240, s70, {i}")
    def zsn():
        if cfg.get('zstamp'):
            a("s_memrealtime s[70:71]"); a("s_waitcnt lgkmcnt(0)"); a("s_mov_b32 m0, s72"); a("v_writelane_b32 v240, s70, m0"); a("s_add_u32 s72, s72, 1")
    if cfg.get('zstamp'):
        a("v_mov_b32 v240, 0"); a("v_mov_b32 v241, 0"); a("v_mov_b32 v242, 0"); a("s_mov_b32 s72, 8")
    zs(0)
    a(f"v_and_b32 v{vR}, 15, v0")
    a(f"v_lshrrev_b32 v{vG}, 4, v0")
    a(f"v_lshlrev_b32 v{vL16}, 4, v0")
    a(f"v_add_u32 v{vL16}, {TB}, v{vL16}")
    a(f"v_mov_b32 v{vZ}, 0")
    a("s_mov_b32 s30, 0x05040100")
    a("s_mov_b32 s31, 0x07060302")
    a("s_mov_b32 s32, 0x01000100")
    a("s_mov_b32 s33, 0x03020302")
    a(f"s_mov_b32 s{sCur}, s2")
    a(f"s_add_u32 s{sNxt}, s2, {NWG}")
    a(f"s_mov_b32 s{sRawPrev}, -1")
    a(f"s_mov_b32 s41, {TB + 12288}")
    a("s_mov_b32 s43, 0")
    a(f"v_lshlrev_b32 v{vXo}, 14, v{vG}")
    a(f"v_lshl_add_u32 v{vXo}, v{vR}, 4, v{vXo}")
    a(f"v_lshlrev_b32 v{vWo}, 22, v{vG}")
    a(f"v_lshrrev_b32 v{vT0}, 2, v{vR}")
    a(f"v_lshl_add_u32 v{vWo}, v{vT0}, 6, v{vWo}")
    a(f"v_and_b32 v{vT0}, 1, v{vR}")
    a(f"v_lshl_add_u32 v{vWo}, v{vT0}, 5, v{vWo}")
    a(f"v_bfe_u32 v{vT0}, v{vR}, 1, 1")
    a(f"v_lshl_add_u32 v{vWo}, v{vT0}, 3, v{vWo}")
    a(f"v_lshrrev_b32 v{vT0}, 2, v{vR}")
    a(f"s_mov_b32 s24, {G.XF_KS}")
    a(f"v_mul_u32_u24 v{vXs}, s24, v{vT0}")
    a(f"s_mov_b32 s24, {2*G.XF_K}")
    a(f"v_mad_u32_u24 v{vXs}, v{vG}, s24, v{vXs}")
    a(f"s_mov_b32 s24, {2*G.WF_K}")
    a(f"v_mul_u32_u24 v{vWs}, s24, v{vG}")
    remap(sCur); remap(sNxt)
    a("s_waitcnt lgkmcnt(0)")
    G.make_srd(a, 16, 38, 39, G.WS_BYTES)
    G.make_srd(a, 44, 36, 37, 256)
    a("s_or_b32 s24, s2, s10")
    a("s_cmp_lg_u32 s24, 0")
    a("s_cbranch_scc1 L_nononce")
    a("s_memrealtime s[24:25]")
    a("s_waitcnt lgkmcnt(0)")
    a("s_or_b32 s24, s24, 1")
    a(f"v_mov_b32 v{vTag}, s24")
    a("s_mov_b64 exec, 1")
    a(f"buffer_store_dword v{vTag}, v{vZ}, s[44:47], 0 offen offset:128 sc1")
    a("s_mov_b64 exec, -1")
    a.label("L_nononce")
    a(f"s_mov_b32 s{sNon}, 0")
    def issue_loads(sIdx, buf):
        u = uid[0]; uid[0] += 1
        a(f"s_cmp_ge_u32 s{sIdx}, {NT}")
        a(f"s_cbranch_scc1 L_ld_done{u}")
        a(f"s_cmp_ge_u32 s{sIdx}, {NX}")
        a(f"s_cbranch_scc1 L_ld_w{u}")
        a(f"s_cmp_ge_u32 s{sIdx}, 336")
        a("s_cselect_b32 s11, 1, 0")
        a("s_mul_i32 s12, s11, 336")
        a(f"s_sub_u32 s12, s{sIdx}, s12")
        a("s_and_b32 s13, s12, 7")
        a("s_lshr_b32 s14, s12, 3")
        a("s_lshl_b32 s14, s14, 2")
        a("s_add_u32 s14, s14, s10")
        a(f"s_mul_i32 s15, s11, {G.X_BYTES_B}")
        a("s_add_u32 s34, s4, s15")
        a("s_addc_u32 s35, s5, 0")
        G.make_srd(a, 20, 34, 35, G.X_BYTES_B)
        a("s_mul_i32 s15, s14, %d" % (48 * 2048))
        a("s_lshl_b32 s24, s13, 8")
        a("s_add_u32 s15, s15, s24")
        for s in range(2):
            for i in range(8):
                r = buf + 4 * (8 * s + i)
                a(f"s_add_u32 s25, s15, {(32*s+i)*2048}")
                a(f"buffer_load_dwordx4 v[{r}:{r+3}], v{vXo}, s[20:23], s25 offen {ld}")
        a(f"s_branch L_ld_done{u}")
        a.label(f"L_ld_w{u}")
        a(f"s_sub_u32 s12, s{sIdx}, {NX}")
        a("s_and_b32 s13, s12, 3")
        a("s_lshr_b32 s14, s12, 2")
        a("s_lshl_b32 s14, s14, 2")
        a("s_add_u32 s14, s14, s10")
        G.make_srd(a, 20, 6, 7, G.W_BYTES)
        a("s_lshl_b32 s15, s14, 10")
        a("s_lshl_b32 s24, s13, 8")
        a("s_add_u32 s15, s15, s24")
        for i in range(4):
            r = buf + 4 * i
            a(f"s_add_u32 s25, s15, {i << 20}")
            a(f"buffer_load_dwordx2 v[{r}:{r+1}], v{vWo}, s[20:23], s25 offen {ld}")
            a(f"buffer_load_dwordx2 v[{r+2}:{r+3}], v{vWo}, s[20:23], s25 offen offset:16 {ld}")
        a.label(f"L_ld_done{u}")
    if cfg.get('fuse45'):
        K3.ws_fill(a, sw=10)
    issue_loads(sCur, BUF[0])
    vA = vT0; vC = vT0+1; vP = BF
    a(f"v_lshrrev_b32 v{vA}, 2, v{vR}")
    a(f"v_lshlrev_b32 v{vA}, 1, v{vA}")
    a(f"v_bfe_u32 v{vC}, v{vR}, 1, 1")
    a(f"v_add_u32 v{vA}, v{vA}, v{vC}")
    a("s_lshl_b32 s24, s10, 3")
    a(f"v_add_u32 v{vA}, s24, v{vA}")
    a(f"v_lshl_add_u32 v{vA}, v{vA}, 1, 1")
    a(f"v_and_b32 v{vC}, 1, v{vR}")
    a(f"v_lshlrev_b32 v{vC}, 5, v{vC}")
    for s in range(2):
        a(f"v_lshlrev_b32 v{vT0+2}, 3, v{vG}")
        if s: a(f"v_add_u32 v{vT0+2}, 32, v{vT0+2}")
        a(f"v_mad_u32_u24 v{vP}, v{vA}, v{vT0+2}, v{vC}")
        for e in range(1, 8): a(f"v_add_u32 v{vP+e}, v{vP+e-1}, v{vA}")
        G.cos_table(a, None, [vP+e for e in range(8)], ACC, ACC+4)
        a("s_lshl_b32 s24, s10, 11")
        a(f"v_add_u32 v{vT0+3}, s24, v{vL16}")
        a(f"ds_write_b128 v{vT0+3}, v[{ACC}:{ACC+3}] offset:{s*1024}")
    a(f"v_lshlrev_b32 v{vT0+2}, 2, v{vG}")
    a(f"v_mad_u32_u24 v{vP}, v{vA}, v{vT0+2}, v{vC}")
    for e in range(1, 4): a(f"v_add_u32 v{vP+e}, v{vP+e-1}, v{vA}")
    for e in range(4):
        r = vP + e
        a(f"v_and_b32 v{r}, 127, v{r}"); a(f"v_cvt_f32_u32 v{r}, v{r}"); a(f"v_mul_f32 v{r}, 0x3c000000, v{r}"); a(f"v_cos_f32 v{r}, v{r}")
    for e in range(4):
        r = vP + e
        a(f"v_cvt_pk_bf16_f32 v{ACC+4}, v{r}, v{r}")
        a(f"v_lshlrev_b32 v{ACC+5}, 16, v{ACC+4}")
        a(f"v_sub_f32 v{ACC+5}, v{r}, v{ACC+5}")
        a(f"v_cvt_pk_bf16_f32 v{ACC+5}, v{ACC+5}, v{ACC+5}")
        a(f"v_perm_b32 v{ACC+e}, v{ACC+5}, v{ACC+4}, s30")
    a("s_lshl_b32 s24, s10, 10")
    a(f"v_add_u32 v{vT0+3}, s24, v{vL16}")
    a(f"ds_write_b128 v{vT0+3}, v[{ACC}:{ACC+3}] offset:8192")
    a("s_waitcnt lgkmcnt(0)")
    a("s_barrier")
    def write_flag(tag):
        a("s_cmp_lg_u32 s10, 0")
        a(f"s_cbranch_scc1 L_nofl{tag}")
        a(f"s_cmp_ge_u32 s{sRawPrev}, {NT}")
        a(f"s_cbranch_scc1 L_nofl{tag}")
        a(f"s_lshl_b32 s24, s{sRawPrev}, 2")
        a(f"s_add_u32 s24, s24, {FLAG_BASE}")
        a(f"v_mov_b32 v{vTag}, s{sNon}")
        a("s_mov_b64 exec, 1")
        a(f"buffer_store_dword v{vTag}, v{vZ}, s[16:19], s24 offen sc1")
        a("s_mov_b64 exec, -1")
        a.label(f"L_nofl{tag}")
    a.label("L_x_loop")
    for p in range(2):
        buf = BUF[p]; nbuf = BUF[p ^ 1]
        if p == 1:
            a("s_cmp_lg_u32 s43, 1"); a("s_cbranch_scc1 L_non_skip0")
            a(f"buffer_load_dword v{vNon}, v{vZ}, s[44:47], 0 offen offset:128 sc1")
            a.label("L_non_skip0")
        a("s_cmp_lg_u32 s10, 0")
        a(f"s_cbranch_scc1 L_nofetch{p}")
        a(f"v_mov_b32 v{vNext}, 1")
        a("s_mov_b64 exec, 1")
        a(f"buffer_atomic_add v{vNext}, v{vZ}, s[44:47], 0 offen sc0 sc1")
        a("s_mov_b64 exec, -1")
        a.label(f"L_nofetch{p}")
        issue_loads(sNxt, nbuf)
        def counted(tag, base):
            a(f"s_cmp_ge_u32 s{sNxt}, {NT}")
            a(f"s_cbranch_scc1 L_w0_{tag}")
            a(f"s_cmp_ge_u32 s{sNxt}, {NX}")
            a(f"s_cbranch_scc1 L_w8_{tag}")
            a(f"s_waitcnt vmcnt({base+16})")
            a(f"s_branch L_wd_{tag}")
            a.label(f"L_w8_{tag}")
            a(f"s_waitcnt vmcnt({base+8})")
            a(f"s_branch L_wd_{tag}")
            a.label(f"L_w0_{tag}")
            a(f"s_waitcnt vmcnt({base})")
            a.label(f"L_wd_{tag}")
        if p == 0:
            a("s_cmp_lg_u32 s43, 0")
            a("s_cbranch_scc1 L_notfirst")
            counted("f", 0)
            a("s_mov_b32 s43, 1")
            a("s_branch L_wfin")
            a.label("L_notfirst")
            counted("a0", 16)
            a.label("L_wfin")
        else:
            counted("a1", 16)
        zsn()
        a(f"s_cmp_ge_u32 s{sCur}, {NX}")
        a(f"s_cbranch_scc1 L_cw{p}")
        a(f"s_cmp_ge_u32 s{sCur}, 336")
        a("s_cselect_b32 s11, 1, 0")
        a("s_mul_i32 s12, s11, 336")
        a(f"s_sub_u32 s12, s{sCur}, s12")
        a("s_and_b32 s13, s12, 7")
        a("s_lshr_b32 s14, s12, 3")
        a("s_lshl_b32 s14, s14, 2")
        a("s_add_u32 s14, s14, s10")
        for o in range(4):
            for s in range(2):
                r = AF + 4 * (2 * o + s)
                a(f"ds_read_b128 v[{r}:{r+3}], v{vL16} offset:{(2*o+s)*1024}")
        a("s_bfe_u32 s24, s14, 0x10003")
        a("s_mul_i32 s24, s24, 3")
        a(f"v_and_b32 v{vT0}, 3, v{vR}")
        a(f"v_xor_b32 v{vT0}, s24, v{vT0}")
        a(f"v_lshl_add_u32 v{vSt}, v{vT0}, 4, v{vXs}")
        a(f"s_mul_i32 s24, s11, {G.XF_B}")
        a(f"s_mul_i32 s25, s13, {4*G.XF_KS}")
        a("s_add_u32 s24, s24, s25")
        a("s_lshl_b32 s25, s14, 6")
        a("s_add_u32 s24, s24, s25")
        a(f"s_add_u32 s24, s24, {G.XF_BASE}")
        def perms(q):
            for s in range(2):
                for h in range(2):
                    for e in range(4):
                        d = BF + (s * 2 + h) * 4 + e
                        a(f"v_perm_b32 v{d}, v{buf + 4*(8*s+2*e+1) + q}, v{buf + 4*(8*s+2*e) + q}, s{30+h}")
        def mfmas():
            for s in range(2):
                for o in range(4):
                    for h in range(2):
                        d = ACC + (o * 2 + h) * 4
                        A = AF + 4 * (2 * o + s); B = BF + (s * 2 + h) * 4
                        c = "0" if s == 0 else f"v[{d}:{d+3}]"
                        a(f"v_mfma_f32_16x16x32_bf16 v[{d}:{d+3}], v[{A}:{A+3}], v[{B}:{B+3}], {c}")
        def cvts(q):
            for o in range(4):
                for rp in range(4):
                    a(f"v_cvt_pk_bf16_f32 v{buf + 4*(4*o+rp) + q}, v{ACC+(o*2)*4+rp}, v{ACC+(o*2+1)*4+rp}")
        perms(0)
        a("s_waitcnt lgkmcnt(0)")
        for q in range(4):
            mfmas()
            if q < 3: perms(q + 1)
            cvts(q)
        for o in range(4):
            for rp in range(4):
                off = (8 * o + (rp >> 1)) * G.XF_K + (rp & 1) * (G.ROWS * 64)
                a(f"s_add_u32 s25, s24, {off}")
                r = buf + 4 * (4 * o + rp)
                a(f"buffer_store_dwordx4 v[{r}:{r+3}], v{vSt}, s[16:19], s25 offen {st}")
        a(f"s_branch L_next{p}")
        a.label(f"L_cw{p}")
        a(f"s_sub_u32 s12, s{sCur}, {NX}")
        a("s_and_b32 s13, s12, 3")
        a("s_lshr_b32 s14, s12, 2")
        a("s_lshl_b32 s14, s14, 2")
        a("s_add_u32 s14, s14, s10")
        for o in range(4):
            r = AF + 4 * o
            a(f"ds_read_b128 v[{r}:{r+3}], v{vL16} offset:{8192+o*1024}")
        a("s_and_b32 s24, s14, 3")
        a("s_bfe_u32 s25, s14, 0x10003")
        a("s_lshl_b32 s25, s25, 2")
        a("s_or_b32 s24, s24, s25")
        a("s_lshl_b32 s24, s24, 1")
        a(f"v_xor_b32 v{vT0}, s24, v{vR}")
        a(f"v_lshl_add_u32 v{vSt}, v{vT0}, 4, v{vWs}")
        a(f"s_mul_i32 s24, s13, {G.WF_DQ}")
        a("s_lshr_b32 s25, s14, 5")
        a(f"s_mul_i32 s25, s25, {G.WF_KS}")
        a("s_add_u32 s24, s24, s25")
        a("s_and_b32 s25, s14, 31")
        a("s_lshl_b32 s25, s25, 8")
        a("s_add_u32 s24, s24, s25")
        if G.WF_BASE: a(f"s_add_u32 s24, s24, {G.WF_BASE}")
        FR = buf + 16
        for dd in range(8):
            q = dd >> 1; h = dd & 1
            for e in range(4):
                a(f"v_perm_b32 v{FR+4*dd+e}, v{buf+4*e+q}, v{buf+4*e+q}, s{32+h}")
        a("s_waitcnt lgkmcnt(0)")
        for o in range(4):
            A = AF + 4 * o
            for dd in range(8):
                d = ACC + 4 * dd
                a(f"v_mfma_f32_16x16x32_bf16 v[{d}:{d+3}], v[{A}:{A+3}], v[{FR+4*dd}:{FR+4*dd+3}], 0")
            ob = (buf if (o & 1) == 0 else buf + 48)
            for rp in range(4):
                for q in range(4):
                    a(f"v_cvt_pk_bf16_f32 v{ob+4*rp+q}, v{ACC+8*q+rp}, v{ACC+8*q+4+rp}")
            for rp in range(4):
                off = (8 * o + (rp >> 1)) * G.WF_K + (rp & 1) * 8192
                a(f"s_add_u32 s25, s24, {off}")
                r = ob + 4 * rp
                a(f"buffer_store_dwordx4 v[{r}:{r+3}], v{vSt}, s[16:19], s25 offen {st}")
        a.label(f"L_next{p}")
        counted(f"p{p}", 16)
        if p == 1:
            a("s_cmp_lg_u32 s43, 1"); a("s_cbranch_scc1 L_nonok")
            a("s_mov_b32 s43, 2")
            a(f"s_mov_b32 s57, {SPIN_MAX}")
            a.label("L_non")
            a(f"v_readfirstlane_b32 s{sNon}, v{vNon}")
            a(f"s_cmp_lg_u32 s{sNon}, 0")
            a("s_cbranch_scc1 L_nonok")
            a("s_sub_u32 s57, s57, 1")
            a("s_cmp_eq_u32 s57, 0")
            a("s_cbranch_scc1 L_nonok")
            a(f"buffer_load_dword v{vNon}, v{vZ}, s[44:47], 0 offen offset:128 sc1")
            a("s_waitcnt vmcnt(0)")
            a("s_branch L_non")
            a.label("L_nonok")
        a("s_cmp_lg_u32 s10, 0")
        a(f"s_cbranch_scc1 L_pub{p}")
        a(f"v_add_u32 v{vNext}, {2*NWG}, v{vNext}")
        a(f"v_mov_b32 v{vT0}, s41")
        a("s_mov_b64 exec, 1")
        a(f"ds_write_b32 v{vT0}, v{vNext}")
        a("s_mov_b64 exec, -1")
        a.label(f"L_pub{p}")
        a("s_waitcnt lgkmcnt(0)")
        a("s_barrier")
        write_flag(f"{p}")
        a(f"v_mov_b32 v{vT0}, s41")
        a(f"ds_read_b32 v{vT0+1}, v{vT0}")
        a("s_xor_b32 s41, s41, 4")
        a(f"s_mov_b32 s{sRawPrev}, s{sCur}")
        a(f"s_mov_b32 s{sCur}, s{sNxt}")
        a("s_waitcnt lgkmcnt(0)")
        a(f"v_readfirstlane_b32 s{sNxt}, v{vT0+1}")
        remap(sNxt)
        a(f"s_cmp_ge_u32 s{sCur}, {NT}")
        a("s_cbranch_scc1 L_x_fin")
    a("s_branch L_x_loop")
    a.label("L_x_fin")
    zs(1)
    a("s_waitcnt vmcnt(0)")
    a("s_barrier")
    zs(2)
    write_flag("f")

def follow_phase(a):
    vA, vB = 254, 255
    a("s_mov_b32 s40, s2")
    a(f"s_add_u32 s42, s2, {NWG}")
    a(f"s_mov_b32 s41, {TB + 12288}")
    a("s_barrier")
    a.label("L_f_loop")
    a("s_barrier")
    a(f"v_mov_b32 v{vA}, s41")
    a(f"ds_read_b32 v{vB}, v{vA}")
    a("s_xor_b32 s41, s41, 4")
    a("s_mov_b32 s40, s42")
    a("s_waitcnt lgkmcnt(0)")
    a(f"v_readfirstlane_b32 s42, v{vB}")
    a(f"s_cmp_lt_u32 s40, {NT}")
    a("s_cbranch_scc1 L_f_loop")
    a("s_barrier")

def helper_gemm(a_real, cfg):
    table = {}
    for final in (False, True):
        a = a_real if final else Null()
        vq = VQ(a, table, not final)
        vDW = 1; vDX = 2; vD6 = 5; vPA = 6; vP = 8; vT = 24
        sWo, sXo, sLW, sLX, sX6 = 40, 41, 42, 43, 44
        sNon, sPl = 54, 56
        def dma(step):
            buf = step % NSTAGE; tag = ('dma', step)
            a(f"s_add_u32 m0, s{sLW}, {buf*STAGE}")
            for j in range(4):
                a(f"buffer_load_dwordx4 v{vDW}, s[16:19], s{sWo} offen offset:{j*1024} lds"); vq.issue(tag)
            a(f"s_add_u32 s{sWo}, s{sWo}, {G.WF_KS}")
            a(f"s_add_u32 m0, s{sLX}, {buf*STAGE}")
            for j in range(4):
                a(f"buffer_load_dwordx4 v{vDX}, s[16:19], s{sXo} offen offset:{j*1024} lds"); vq.issue(tag)
            a(f"s_add_u32 m0, s{sLX}, {buf*STAGE+4096}")
            a(f"s_add_u32 s49, s{sXo}, 4096")
            a(f"buffer_load_dwordx4 v{vDX}, s[16:19], s49 offen lds"); vq.issue(tag)
            a("s_mov_b64 exec, s[50:51]")
            a(f"buffer_load_dwordx4 v{vD6}, s[16:19], s{sX6} offen offset:1024 lds"); vq.issue(tag)
            a("s_mov_b64 exec, -1")
            a(f"s_add_u32 s{sXo}, s{sXo}, {G.XF_KS}")
            a(f"s_add_u32 s{sX6}, s{sX6}, {G.XF_KS}")
        vPB = 7
        def poll_issue(c, model=True):
            if c == 0:
                for j in range(4):
                    a(f"s_mov_b32 s58, {FLAG_BASE + min(j * 1024, 3200 - 1024)}")
                    a(f"buffer_load_dwordx4 v[{vP+4*j}:{vP+4*j+3}], v{vPA}, s[16:19], s58 offen sc1")
                    if model: vq.issue(('pl', c))
            else:
                a(f"s_mov_b32 s58, {FLAG_BASE + (NX + 128 * c) * 4}")
                a(f"buffer_load_dwordx4 v[{vP}:{vP+3}], v{vPB}, s[16:19], s58 offen sc1")
                if model: vq.issue(('pl', c))
        def check(c):
            n = 16 if c == 0 else 4
            vq.wait(('pl', c), f"c{c}")
            a(f"s_mov_b32 s57, {SPIN_MAX}")
            a.label(f"L_chk{c}")
            for e in range(n): a(f"v_xor_b32 v{vT+e}, s{sNon}, v{vP+e}")
            for e in range(1, n - 1, 2): a(f"v_or3_b32 v{vT}, v{vT}, v{vT+e}, v{vT+e+1}")
            a(f"v_or_b32 v{vT}, v{vT}, v{vT+n-1}")
            a(f"v_cmp_ne_u32 vcc, 0, v{vT}")
            a("s_cmp_eq_u64 vcc, 0")
            a(f"s_cbranch_scc1 L_ok{c}")
            a("s_sub_u32 s57, s57, 1")
            a("s_cmp_eq_u32 s57, 0")
            a(f"s_cbranch_scc1 L_ok{c}")
            if cfg.get('fz_sleep'): a(f"s_sleep {cfg['fz_sleep']}")
            poll_issue(c, model=False)
            a("s_waitcnt vmcnt(0)")
            a(f"s_branch L_chk{c}")
            a.label(f"L_ok{c}")
            if cfg.get('zstamp'):
                a(f"s_sub_u32 s74, {SPIN_MAX}, s57"); a(f"v_writelane_b32 v242, s74, {c}")
        a(f"v_lshlrev_b32 v{vPA}, 4, v0")
        a(f"v_min_u32 v{vPB}, 31, v0")
        a(f"v_lshlrev_b32 v{vPB}, 4, v{vPB}")
        def zs(reg, i):
            if cfg.get('zstamp'):
                a("s_memrealtime s[70:71]"); a("s_waitcnt lgkmcnt(0)"); a(f"v_writelane_b32 v{reg}, s70, {i}")
        poll_issue(0); check(0)
        zs(240, 3)
        dma(0); dma(1); dma(2)
        poll_issue(1)
        vq.wait(('dma', 0), 'pd0')
        a("s_barrier")
        for s in range(31):
            vq.wait(('dma', s + 1), f"b{s}")
            zs(241, 2 * s)
            a("s_barrier")
            zs(241, 2 * s + 1)
            if s % 4 == 1 and (s + 3) // 4 <= 7: check((s + 3) // 4)
            if s + 3 <= 31: dma(s + 3)
            if s % 4 == 0 and s >= 4 and (s + 4) // 4 <= 7: poll_issue((s + 4) // 4)

def gen_fused(cfg=None):
    cfg = cfg or G.CFG
    a = Asm()
    name = 'conv_kernel'
    G.kernel_header(a, name)
    vT = K3.vT; XR = K3.XR; vXa = K3.vXa; vWa = K3.vWa; vSt = K3.vSt; vSt2 = K3.vSt2
    a("s_cmp_ge_u32 s2, 256")
    a("s_cbranch_scc1 L_fz_end")
    a("s_load_dwordx4 s[4:7], s[0:1], 0")
    a("s_load_dwordx4 s[36:39], s[0:1], 40")
    a(f"v_lshrrev_b32 v{vT}, 6, v0")
    a(f"v_and_b32 v0, 63, v0")
    a(f"v_readfirstlane_b32 s10, v{vT}")
    a("s_cmp_ge_u32 s10, 4")
    a("s_cbranch_scc1 L_fz_helper")
    if cfg.get('pf_code'):
        a("s_cmp_ge_u32 s2, 8"); a("s_cbranch_scc1 L_nopf")
        a("s_cmp_lg_u32 s10, 3"); a("s_cbranch_scc1 L_nopf")
        G.prefetch_code(a, "fz", "conv_kernel", "L_code_end", 12, 200, sp=60)
        a.label("L_nopf")
    K3.decode_ids(a)
    K3.gemm_setup(a)
    a("s_waitcnt vmcnt(0) lgkmcnt(0)")
    G.make_srd(a, 16, 38, 39, G.WS_BYTES)
    for r in range(168): a(f"v_mov_b32 v{r}, 0")
    follow_phase(a)
    K3.gemm_wave(a, cfg, zero=False, cont=("L_fz_ydone" if cfg.get('fuse45') else None))
    a.label("L_fz_helper")
    a("s_sub_u32 s10, s10, 4")
    xform_phase(a, cfg)
    a("s_add_u32 s10, s10, 4")
    K3.decode_ids(a)
    K3.helper_setup(a)
    helper_gemm(a, cfg)
    if cfg.get('zstamp'):
        a("s_lshl_b32 s73, s2, 2"); a("s_add_u32 s73, s73, s15"); a("s_lshl_b32 s73, s73, 10")
        a(f"s_add_u32 s73, s73, {218 << 20}")
        a("v_lshlrev_b32 v243, 2, v0")
        a("buffer_store_dword v240, v243, s[16:19], s73 offen")
        a("buffer_store_dword v241, v243, s[16:19], s73 offen offset:256")
        a("buffer_store_dword v242, v243, s[16:19], s73 offen offset:512")
    if not cfg.get('fuse45'):
        K3.ws_fill(a)
    else:
        import gen_k45g as K45
        NONCE_LDS = 6144
        a(f"v_mov_b32 v8, {NONCE_LDS}"); a("v_mov_b32 v9, s54")
        a("ds_write_b32 v8, v9")
        a("s_waitcnt lgkmcnt(0)")
        a("s_branch L_fz_y1")
        a.label("L_fz_ydone")
        a("s_waitcnt vmcnt(0)")
        a.label("L_fz_y1")
        a("s_barrier")
        a(f"v_mov_b32 v200, {NONCE_LDS}")
        a("ds_read_b32 v201, v200")
        a("s_waitcnt lgkmcnt(0)")
        a("v_readfirstlane_b32 s54, v201")
        a("s_cmp_lg_u32 s10, 4"); a("s_cbranch_scc1 L_fz_noyf")
        a("s_lshl_b32 s24, s14, 1"); a("s_add_u32 s24, s24, s13"); a("s_lshl_b32 s24, s24, 5"); a("s_add_u32 s24, s24, s11")
        a("s_lshl_b32 s24, s24, 2"); a(f"s_add_u32 s24, s24, {K45.YFLAG_BASE}")
        a("v_mov_b32 v202, s54"); a("v_mov_b32 v203, 0")
        a("s_mov_b64 exec, 1")
        a("buffer_store_dword v202, v203, s[16:19], s24 offen sc1")
        a("s_mov_b64 exec, -1")
        a.label("L_fz_noyf")
        K45.gen_k45g(cfg, a)
    a.label("L_fz_end")
    a("s_endpgm")
    return name, a.lines, 256, (256, 512, LDS_BYTES)
```

```python
from asmlib import *
import gen as G
from gen_k3 import LQ, NSTAGE
XC = 11264
STAGE = 16384 + 2 * XC
LDS_BYTES = STAGE * NSTAGE

T = 11
ACC = 0
WA = 176; WB = 192; NW = 208
XR = 216
vWa = 248; vXa = 250; vSt = 251; vSt2 = 252; vT = 253

def acc(i, c, t): return ACC + ((i * 2 + c) * 2 + t) * 4 if i < 10 else ACC + 160 + 4 * c
def wf(p, which): return (WA if p == 0 else WB) + which * 4
def nw(t): return NW + 4 * t
def xr(slot, c): return XR + slot * 8 + c * 4
def mf(d, A, B): return f"v_mfma_f32_16x16x32_bf16 v[{d}:{d+3}], v[{A}:{A+3}], v[{B}:{B+3}], v[{d}:{d+3}]"

def gemm_wave(a, cfg, zero=True, cont=None):
    lq = LQ(a)
    def x_read(step, i, slot):
        for c in range(2):
            r = xr(slot, c)
            off = 16384 + c * XC + i * 1024
            a(f"ds_read_b128 v[{r}:{r+3}], v{vXa} offset:{off}")
            lq.issue(('x', step, i))
    def w_read(step, c):
        p = step & 1
        for t in range(2):
            r = wf(p, c * 2 + t)
            for e in range(2):
                a(f"ds_read_b64_tr_b16 v[{r+2*e}:{r+2*e+1}], v{vWa+t} offset:{c*8192+e*1024}")
                lq.issue(('w', step))
    def w_xor(step):
        p = step & 1
        return [f"v_xor_b32 v{nw(t)+e}, 0x80008000, v{wf(p,2+t)+e}" for t in range(2) for e in range(4)]
    def bump(reg, step):
        d = STAGE if step % NSTAGE else -(NSTAGE - 1) * STAGE
        a(f"v_add_u32 v{reg}, {d & 0xffffffff:#x}, v{reg}")
    def step_code(s, tau0, barrier, nxt):
        p = s & 1
        if barrier:
            if G.CFG.get('gstamp'):
                a("s_memrealtime s[70:71]"); a("s_waitcnt lgkmcnt(0)")
                a("s_mov_b32 m0, s72"); a("v_writelane_b32 v255, s70, m0"); a("s_add_u32 s72, s72, 1")
            a("s_barrier")
            if G.CFG.get('gstamp'):
                a("s_memrealtime s[70:71]"); a("s_waitcnt lgkmcnt(0)")
                a("s_mov_b32 m0, s72"); a("v_writelane_b32 v255, s70, m0"); a("s_add_u32 s72, s72, 1")
        for i in range(T):
            tau = tau0 + i
            slot = tau % 4
            lq.wait(('x', s, i))
            if i < 10:
                ms = [mf(acc(i,0,0), wf(p,0), xr(slot,0)), mf(acc(i,0,1), wf(p,1), xr(slot,0)),
                      mf(acc(i,1,0), nw(0), xr(slot,0)), mf(acc(i,1,1), nw(1), xr(slot,0)),
                      mf(acc(i,0,0), wf(p,2), xr(slot,1)), mf(acc(i,0,1), wf(p,3), xr(slot,1)),
                      mf(acc(i,1,0), wf(p,0), xr(slot,1)), mf(acc(i,1,1), wf(p,1), xr(slot,1))]
            else:
                ms = [mf(acc(i,0,0), wf(p,0), xr(slot,0)), mf(acc(i,1,0), nw(0), xr(slot,0)),
                      mf(acc(i,0,0), wf(p,2), xr(slot,1)), mf(acc(i,1,0), wf(p,0), xr(slot,1))]
            xors = []
            for m in range(len(ms)):
                a(ms[m])
                if m == 0:
                    if i + 2 < T: x_read(s, i + 2, (tau + 2) % 4)
                    elif nxt:
                        if i + 2 == T: bump(vXa, s + 1)
                        x_read(s + 1, i + 2 - T, (tau + 2) % 4)
                if nxt and i == T - 6 and m == 4:
                    bump(vWa, s + 1); bump(vWa + 1, s + 1)
                if m == 3 and nxt and i == T - 5: w_read(s + 1, 0)
                if m == 3 and nxt and i == T - 4: w_read(s + 1, 1)
                if nxt and i == T - 2 and m == 4:
                    lq.wait(('w', s + 1))
                    xors = w_xor(s + 1)[4:]
                if nxt and i == T - 1 and m == 1:
                    xors = w_xor(s + 1)[:4]
                for _ in range(2):
                    if xors: a(xors.pop(0))
            for x in xors: a(x)
    if G.CFG.get('gstamp'):
        a("s_mov_b32 s72, 0"); a("v_mov_b32 v255, 0")
    if zero:
        for r in range(168): a(f"v_mov_b32 v{ACC+r}, 0")
    a("s_barrier")
    w_read(0, 0); w_read(0, 1)
    x_read(0, 0, 0); x_read(0, 1, 1)
    lq.wait(('w', 0))
    for x in w_xor(0): a(x)
    a("s_mov_b32 s46, 7")
    a.label("L_g_loop")
    q0 = list(lq.q)
    for u in range(4):
        step_code(u, u * T, True, True)
    q1 = [(t[0], t[1] - 4) + tuple(t[2:]) for t in lq.q]
    assert q0[len(q0)-len(q1):] == q1, (q0, q1)
    a("s_sub_u32 s46, s46, 1")
    a("s_cmp_lg_u32 s46, 0")
    a("s_cbranch_scc1 L_g_loop")
    lq.q = [(t[0], t[1] + 24) + tuple(t[2:]) for t in lq.q]
    step_code(28, 0 * T, True, True)
    step_code(29, 1 * T, True, True)
    if not G.CFG.get('k3_tail', True):
        step_code(30, 2 * T, True, True)
        step_code(31, 3 * T, False, False)
        a("s_nop 7")
    else:
        a("s_barrier")
    NW2 = 168; vXb = 253
    def epi_list(i, bb):
        l = []
        if i < 10:
            for c in range(2):
                dA = acc(i, c, bb); dB = acc(i, c, 1 - bb)
                l += [f"v_cvt_pk_bf16_f32 v{dA}, v{dA}, v{dA+1}", f"v_cvt_pk_bf16_f32 v{dA+1}, v{dA+2}, v{dA+3}",
                      f"v_cvt_pk_bf16_f32 v{dA+2}, v{dB}, v{dB+1}", f"v_cvt_pk_bf16_f32 v{dA+3}, v{dB+2}, v{dB+3}",
                      f"s_add_u32 s47, s48, {(c * G.YJ3 + i * 16 * 64) if G.CFG['y3'] else (c * G.YF_J + i * 16 * G.YF_ROW)}",
                      f"buffer_store_dwordx4 v[{dA}:{dA+3}], v{vSt}, s[16:19], s47 offen {G.CFG['k3_st']}"]
        else:
            for c in range(2):
                d = acc(10, c, 0)
                l += [f"v_cvt_pk_bf16_f32 v{d}, v{d}, v{d+1}", f"v_cvt_pk_bf16_f32 v{d+1}, v{d+2}, v{d+3}",
                      f"s_add_u32 s47, s49, {c * (G.YJ3 if G.CFG['y3'] else G.YF_J)}",
                      f"buffer_store_dwordx2 v[{d}:{d+1}], v{vSt2}, s[16:19], s47 offen {G.CFG['k3_st']}"]
        return l
    q_save = list(lq.q)
    for bb in range(2):
        if bb == 0:
            a("s_cmp_lg_u32 s13, 0"); a("s_cbranch_scc1 L_epi_b1")
        else:
            a.label("L_epi_b1")
        if not G.CFG.get('k3_tail', True):
            for i in range(T):
                for ins in epi_list(i, bb): a(ins)
        else:
            lq.q = list(q_save)
            bump(vWa, 31); bump(vWa + 1, 31)
            a(f"v_add_u32 v{vXb}, {STAGE}, v{vXa}")
            w_read(31, 0); w_read(31, 1)
            items = [(30, 0), (30, 1)]
            for i in range(T):
                if i + 2 < T: items.append((30, i + 2))
                items.append((31, i))
            def x_read2(step, i, slot):
                for c in range(2):
                    r = xr(slot, c)
                    off = 16384 + c * XC + i * 1024
                    a(f"ds_read_b128 v[{r}:{r+3}], v{vXa if step == 30 else vXb} offset:{off}")
                    lq.issue(('x', step, i))
            pend = []
            xored = False
            for n, (st, i) in enumerate(items):
                slot = (2 * T + n) % 4
                p = st & 1
                nwf = (lambda t: nw(t)) if st == 30 else (lambda t: NW2 + 4 * t)
                if st == 31 and not xored:
                    lq.wait(('w', 31))
                    for t in range(2):
                        for e in range(4): a(f"v_xor_b32 v{NW2+4*t+e}, 0x80008000, v{wf(1,2+t)+e}")
                    xored = True
                lq.wait(('x', st, i))
                if i < 10:
                    ms = [mf(acc(i,0,0), wf(p,0), xr(slot,0)), mf(acc(i,0,1), wf(p,1), xr(slot,0)),
                          mf(acc(i,1,0), nwf(0), xr(slot,0)), mf(acc(i,1,1), nwf(1), xr(slot,0)),
                          mf(acc(i,0,0), wf(p,2), xr(slot,1)), mf(acc(i,0,1), wf(p,3), xr(slot,1)),
                          mf(acc(i,1,0), wf(p,0), xr(slot,1)), mf(acc(i,1,1), wf(p,1), xr(slot,1))]
                else:
                    ms = [mf(acc(i,0,0), wf(p,0), xr(slot,0)), mf(acc(i,1,0), nwf(0), xr(slot,0)),
                          mf(acc(i,0,0), wf(p,2), xr(slot,1)), mf(acc(i,1,0), wf(p,0), xr(slot,1))]
                for m in range(len(ms)):
                    a(ms[m])
                    if m == 0 and n + 2 < len(items): x_read2(items[n + 2][0], items[n + 2][1], (2 * T + n + 2) % 4)
                    if m >= 1:
                        for _ in range(2):
                            if pend and pend[0][0] <= n - 1: a(pend.pop(0)[1])
                if st == 31:
                    pend += [(n + 1, ins) for ins in epi_list(i, bb)]
            a("s_nop 7")
            for _, ins in pend: a(ins)
        if bb == 0: a("s_branch L_epi_done")
    a.label("L_epi_done")
    if G.CFG.get('gstamp'):
        a("s_lshl_b32 s73, s2, 2"); a("s_add_u32 s73, s73, s15"); a("s_lshl_b32 s73, s73, 10")
        a(f"s_add_u32 s73, s73, {212 << 20}")
        a("v_mbcnt_lo_u32_b32 v254, -1, 0")
        a("v_mbcnt_hi_u32_b32 v254, -1, v254")
        a("v_lshlrev_b32 v254, 2, v254")
        a("buffer_store_dword v255, v254, s[16:19], s73 offen")
    if cont: a(f"s_branch {cont}")
    else: a("s_endpgm")

def ws_fill(a, sw=15):
    if not G.CFG.get('k45g'):
        a("s_cmp_ge_u32 s2, 8"); a("s_cbranch_scc1 L_nozero")
        a("s_cmp_lg_u32 s15, 0"); a("s_cbranch_scc1 L_nozero")
        a(f"s_mul_i32 s20, s2, {G.CNT_STRIDE}"); a(f"s_add_u32 s20, s20, {G.CNT_BASE}")
        a("v_mov_b32 v3, 0"); a("v_lshlrev_b32 v4, 2, v0")
        a("buffer_store_dword v3, v4, s[16:19], s20 offen")
        a.label("L_nozero")
    else:
        a(f"s_cmp_ge_u32 s2, {8 * G.CFG.get('k45_ng', 28)}"); a("s_cbranch_scc1 L_nofill")
        a(f"s_cmp_lg_u32 s{sw}, 1"); a("s_cbranch_scc1 L_nofill")
        a("s_lshl_b32 s20, s2, 10"); a(f"s_add_u32 s20, s20, {G.PART_BASE}")
        a("v_mov_b32 v8, -1"); a("v_mov_b32 v9, -1"); a("v_mov_b32 v10, -1"); a("v_mov_b32 v11, -1"); a("v_lshlrev_b32 v4, 4, v0")
        a("buffer_store_dwordx4 v[8:11], v4, s[16:19], s20 offen sc1")
        a.label("L_nofill")

def helper_wave(a, cfg):
    vDW = 1; vDX = 2
    sWo, sXo, sLW, sLX = 40, 41, 42, 43
    vD6 = 5; sX6 = 44
    XF2 = G.CFG['xf2']
    def dma(step):
        buf = step % NSTAGE
        a(f"s_add_u32 m0, s{sLW}, {buf*STAGE}")
        for j in range(4):
            a(f"buffer_load_dwordx4 v{vDW}, s[16:19], s{sWo} offen offset:{j*1024} lds")
        a(f"s_add_u32 s{sWo}, s{sWo}, {G.WF_KS}")
        a(f"s_add_u32 m0, s{sLX}, {buf*STAGE}")
        for j in range(4):
            if XF2 and j:
                a(f"s_add_u32 s49, s{sXo}, {1024*j}")
                a(f"buffer_load_dwordx4 v{vDX}, s[16:19], s49 offen offset:{j*1024} lds")
            else:
                a(f"buffer_load_dwordx4 v{vDX}, s[16:19], s{sXo} offen offset:{j*1024} lds")
        a(f"s_add_u32 m0, s{sLX}, {buf*STAGE+4096}")
        a(f"s_add_u32 s49, s{sXo}, {8192 if XF2 else 4096}")
        a(f"buffer_load_dwordx4 v{vDX}, s[16:19], s49 offen lds")
        a("s_mov_b64 exec, s[50:51]")
        a(f"buffer_load_dwordx4 v{vD6}, s[16:19], s{sX6} offen offset:1024 lds")
        a("s_mov_b64 exec, -1")
        adv = (64 if (step & 1) == 0 else G.XF_KP - 64) if XF2 else G.XF_KS
        a(f"s_add_u32 s{sXo}, s{sXo}, {adv}")
        a(f"s_add_u32 s{sX6}, s{sX6}, {adv}")
    for st in range(3): dma(st)
    a("s_waitcnt vmcnt(20)")
    a("s_barrier")
    a("s_mov_b32 s46, 7")
    a.label("L_h_loop")
    for u in range(4):
        a("s_waitcnt vmcnt(10)")
        a("s_barrier")
        dma(u + 3)
    a("s_sub_u32 s46, s46, 1")
    a("s_cmp_lg_u32 s46, 0")
    a("s_cbranch_scc1 L_h_loop")
    a("s_waitcnt vmcnt(10)"); a("s_barrier"); dma(31)
    a("s_waitcnt vmcnt(10)"); a("s_barrier")
    a("s_waitcnt vmcnt(0)"); a("s_barrier")
    if G.CFG.get('k3_latewait'): ws_fill(a)
    if G.CFG.get('pf_late'):
        a("s_cmp_ge_u32 s2, 8"); a("s_cbranch_scc1 L_h_end")
        a("s_cmp_lg_u32 s15, 3"); a("s_cbranch_scc1 L_h_end")
        G.prefetch_code_fwd(a, "k3b", "final_kernel", "L_code_end", 3, 12, sp=60)
        a.label("L_h_end")
    a("s_endpgm")

def decode_ids(a):
    a("s_and_b32 s11, s2, 7")
    a("s_lshr_b32 s12, s2, 3")
    a("s_lshr_b32 s13, s12, 3")
    a("s_lshl_b32 s11, s11, 2")
    a("s_add_u32 s11, s11, s13")
    a("s_bfe_u32 s13, s12, 0x10002")
    a("s_and_b32 s14, s12, 3")
    a("s_and_b32 s15, s10, 3")

def gemm_setup(a):
    g = vT; c16 = vT + 1; t0 = vT + 2; t1 = XR; t2 = XR + 1
    a(f"v_lshrrev_b32 v{g}, 4, v0")
    a(f"v_and_b32 v{c16}, 15, v0")
    a(f"v_bfe_u32 v{t0}, v{c16}, 3, 1")
    a(f"v_mul_u32_u24 v{t0}, 3, v{t0}")
    a(f"v_xor_b32 v{t0}, v{t0}, v{g}")
    a(f"v_lshlrev_b32 v{t0}, 4, v{t0}")
    a(f"v_lshl_add_u32 v{vXa}, v{c16}, 6, v{t0}")
    a(f"v_lshrrev_b32 v{t0}, 2, v{c16}")
    a(f"v_and_b32 v{t1}, 1, v{g}")
    a(f"v_lshl_or_b32 v{t1}, v{t1}, 2, v{t0}")
    a(f"v_lshl_add_u32 v{t0}, v{g}, 3, v{t0}")
    a(f"v_lshlrev_b32 v{t0}, 8, v{t0}")
    a(f"v_and_b32 v{t2}, 3, v{c16}")
    a(f"v_lshl_add_u32 v{t0}, v{t2}, 3, v{t0}")
    a("s_lshl_b32 s20, s15, 1")
    a("s_add_u32 s20, s20, s13")
    for t in range(2):
        if t: a("s_xor_b32 s20, s20, 1")
        a(f"v_xor_b32 v{t2}, s20, v{t1}")
        a(f"v_lshl_add_u32 v{vWa+t}, v{t2}, 5, v{t0}")
    if G.CFG['y3']:
        a(f"v_lshlrev_b32 v{vSt}, 6, v{c16}")
        a(f"v_lshl_add_u32 v{vSt}, v{g}, 4, v{vSt}")
        a(f"v_and_b32 v{t0}, 7, v{c16}")
        a(f"v_lshlrev_b32 v{vSt2}, 6, v{t0}")
        a(f"v_lshrrev_b32 v{t1}, 3, v{c16}")
        a(f"v_xor_b32 v{t1}, s13, v{t1}")
        a(f"s_mov_b32 s22, {G.YB3}")
        a(f"v_mul_lo_u32 v{t1}, v{t1}, s22")
        a(f"v_add_u32 v{vSt2}, v{vSt2}, v{t1}")
        a(f"v_lshl_add_u32 v{vSt2}, v{g}, 4, v{vSt2}")
        a("s_lshl_b32 s22, s13, 3")
        a(f"v_add_u32 v{vSt2}, s22, v{vSt2}")
        a(f"v_cmp_gt_u32 vcc, 7, v{t0}")
        a(f"v_mov_b32 v{t1}, 0x80000000")
        a(f"v_cndmask_b32 v{vSt2}, v{t1}, v{vSt2}, vcc")
        a("s_lshl_b32 s20, s14, 2")
        a("s_add_u32 s20, s20, s15")
        a(f"s_mul_i32 s48, s20, {G.YS3}")
        a(f"s_mul_i32 s20, s11, {2*G.YJ3}")
        a("s_add_u32 s48, s48, s20")
        a(f"s_add_u32 s48, s48, {G.YF_BASE}")
        a(f"s_add_u32 s49, s48, {160*64}")
        a(f"s_mul_i32 s20, s13, {G.YB3}")
        a("s_add_u32 s48, s48, s20")
    else:
        a(f"s_mov_b32 s21, {G.YF_ROW}")
        a(f"v_mul_u32_u24 v{vSt}, s21, v{c16}")
        a(f"v_lshl_add_u32 v{vSt}, v{g}, 4, v{vSt}")
        a("s_lshl_b32 s23, s15, 6")
        a(f"v_add_u32 v{vSt}, s23, v{vSt}")
        a(f"v_and_b32 v{t0}, 7, v{c16}")
        a(f"v_mul_u32_u24 v{vSt2}, s21, v{t0}")
        a(f"v_lshrrev_b32 v{t1}, 3, v{c16}")
        a(f"v_xor_b32 v{t1}, s13, v{t1}")
        a(f"s_mov_b32 s22, {G.YF_B}")
        a(f"v_mul_lo_u32 v{t1}, v{t1}, s22")
        a(f"v_add_u32 v{vSt2}, v{vSt2}, v{t1}")
        a(f"v_lshl_add_u32 v{vSt2}, v{g}, 4, v{vSt2}")
        a("s_lshl_b32 s22, s13, 3")
        a("s_add_u32 s22, s22, s23")
        a(f"v_add_u32 v{vSt2}, s22, v{vSt2}")
        a(f"v_cmp_gt_u32 vcc, 7, v{t0}")
        a(f"v_mov_b32 v{t1}, 0x80000000")
        a(f"v_cndmask_b32 v{vSt2}, v{t1}, v{vSt2}, vcc")
        a(f"s_mul_i32 s48, s11, {2*G.YF_J}")
        a("s_lshl_b32 s20, s14, 8")
        a("s_add_u32 s48, s48, s20")
        a(f"s_add_u32 s48, s48, {G.YF_BASE}")
        a(f"s_add_u32 s49, s48, {160*G.YF_ROW}")
        a(f"s_mul_i32 s20, s13, {G.YF_B}")
        a("s_add_u32 s48, s48, s20")

def helper_setup(a):
    a(f"s_mul_i32 s40, s11, {G.WF_K}")
    a(f"s_mul_i32 s20, s14, {G.WF_DQ}")
    a("s_add_u32 s40, s40, s20")
    if G.WF_BASE: a(f"s_add_u32 s40, s40, {G.WF_BASE}")
    a(f"s_mul_i32 s41, s11, {G.XF2_K if G.CFG['xf2'] else G.XF_K}")
    a(f"s_mul_i32 s20, s13, {G.XF2_B if G.CFG['xf2'] else G.XF_B}")
    a("s_add_u32 s41, s41, s20")
    a(f"s_add_u32 s41, s41, {G.XF_BASE}")
    a("s_lshl_b32 s42, s15, 12")
    a("s_mul_i32 s43, s15, 5632")
    a("s_lshr_b32 s20, s15, 1")
    a("s_lshl_b32 s21, s20, 9")
    a("s_sub_u32 s21, s43, s21")
    a("v_lshlrev_b32 v1, 4, v0")
    if G.CFG['xf2']:
        a("v_lshrrev_b32 v3, 2, v0"); a("v_lshlrev_b32 v3, 7, v3")
        a("v_and_b32 v4, 3, v0"); a("v_lshl_add_u32 v3, v4, 4, v3")
        a("s_lshl_b32 s21, s21, 1")
        a("v_add_u32 v2, s21, v3")
        a(f"s_add_u32 s22, s21, {10240-1024}")
        a("v_add_u32 v5, s22, v3")
        a("s_mov_b32 s44, s41")
        a("s_bitcmp1_b32 s15, 0")
        a("s_cbranch_scc0 L_six_even")
        a(f"s_mul_i32 s22, s20, 21504")
        a(f"s_add_u32 s22, s22, {20480-1024}")
        a("v_lshrrev_b32 v5, 2, v0"); a("v_lshlrev_b32 v5, 7, v5")
        a("v_and_b32 v3, 3, v0"); a("v_xor_b32 v3, 3, v3"); a("v_lshl_add_u32 v5, v3, 4, v5")
        a("v_add_u32 v5, s22, v5")
        a(f"s_mul_i32 s44, s11, {G.XF2_K}")
        a("s_xor_b32 s22, s13, 1")
        a(f"s_mul_i32 s22, s22, {G.XF2_B}")
        a("s_add_u32 s44, s44, s22")
        a(f"s_add_u32 s44, s44, {G.XF_BASE}")
    else:
        a("v_lshlrev_b32 v1, 4, v0")
        a("v_add_u32 v2, s21, v1")
        a("s_add_u32 s22, s21, 4096")
        a("v_add_u32 v5, s22, v1")
        a("s_mov_b32 s44, s41")
        a("s_bitcmp1_b32 s15, 0")
        a("s_cbranch_scc0 L_six_even")
        a(f"s_mul_i32 s22, s20, 10752")
        a(f"s_add_u32 s22, s22, {10240-1024}")
        a("v_lshrrev_b32 v5, 2, v0"); a("v_lshlrev_b32 v5, 6, v5")
        a("v_and_b32 v3, 3, v0"); a("v_xor_b32 v3, 3, v3"); a("v_lshl_add_u32 v5, v3, 4, v5")
        a("v_add_u32 v5, s22, v5")
        a(f"s_mul_i32 s44, s11, {G.XF_K}")
        a("s_xor_b32 s22, s13, 1")
        a(f"s_mul_i32 s22, s22, {G.XF_B}")
        a("s_add_u32 s44, s44, s22")
        a(f"s_add_u32 s44, s44, {G.XF_BASE}")
    a.label("L_six_even")
    a("s_mov_b32 s50, -1"); a("s_mov_b32 s51, 0")
    a("v_add_u32 v1, s42, v1")
    a("s_add_u32 s43, s43, 16384")

def gen_k3c(cfg=None):
    a = Asm()
    name = 'gemm_kernel'
    G.kernel_header(a, name)
    a("s_cmp_ge_u32 s2, 256")
    a("s_cbranch_scc1 L_k3_end")
    a("s_load_dwordx2 s[8:9], s[0:1], 48")
    a(f"v_lshrrev_b32 v{vT}, 6, v0")
    a(f"v_and_b32 v0, 63, v0")
    a(f"v_readfirstlane_b32 s10, v{vT}")
    if G.CFG.get('pf_code'):
        a("s_cmp_ge_u32 s2, 8"); a("s_cbranch_scc1 L_nopf3")
        a("s_cmp_lg_u32 s10, 7"); a("s_cbranch_scc1 L_nopf3")
        G.prefetch_code(a, "k3", "gemm_kernel", "final_kernel", 4, 12, sp=60)
        a.label("L_nopf3")
    decode_ids(a)
    late = G.CFG.get('k3_latewait')
    if not late:
        a("s_waitcnt lgkmcnt(0)")
        G.make_srd(a, 16, 8, 9, G.WS_BYTES)
    a("s_cmp_ge_u32 s10, 4")
    a("s_cbranch_scc1 L_k3_helper")
    gemm_setup(a)
    if late:
        a("s_waitcnt lgkmcnt(0)")
        G.make_srd(a, 16, 8, 9, G.WS_BYTES)
    gemm_wave(a, cfg)
    a.label("L_k3_helper")
    helper_setup(a)
    if late:
        a("s_waitcnt lgkmcnt(0)")
        G.make_srd(a, 16, 8, 9, G.WS_BYTES)
    if not late: ws_fill(a)
    helper_wave(a, cfg)
    a.label("L_k3_end")
    a("s_endpgm")
    return name, a.lines, 256, (256, 512, LDS_BYTES)
```

```python
from asmlib import *
import gen as G
import math, struct
f2h = lambda x: "0x%08x" % struct.unpack('<I', struct.pack('<f', x))[0]

RAW = 0
AF = 64
BF = 88
ACC = 104
VT = 200
NG = 28
L_TAB = 0; L_PART = 8192; L_SUM = L_PART + 6 * 4096; L_OFF = L_SUM + 1024
LDS = L_OFF + 6 * 8192

def hreg(o, dd, rp): return ACC + (o * 8 + dd) * 4 + rp

YFLAG_BASE = 152 << 20

def gen_k45g(cfg=None, a=None):
    cfg = cfg or G.CFG
    fused = a is not None
    if not fused: a = Asm()
    def st(i):
        if cfg.get('fstamp'):
            a("s_memrealtime s[70:71]"); a("s_waitcnt lgkmcnt(0)"); a(f"v_writelane_b32 v244, s70, {i}")
    name = 'final_kernel'
    vLane = VT; vR = VT+1; vG = VT+2; vOff = VT+3; vT0 = VT+4
    VTID4 = 214; PA = 216; PB = 224; GB = 232
    if fused:
        a(f"s_cmp_ge_u32 s11, {NG}")
        a("s_cbranch_scc1 L_k45_end")
        a("s_load_dwordx4 s[4:7], s[0:1], 16")
        a("s_load_dwordx2 s[28:29], s[0:1], 32")
        a("s_mov_b32 s12, s11")
        a("s_mov_b32 s11, s13")
        a("s_mov_b32 s13, s14")
        a(f"v_mbcnt_lo_u32_b32 v{vLane}, -1, 0")
        a(f"v_mbcnt_hi_u32_b32 v{vLane}, -1, v{vLane}")
        a("s_lshl_b32 s24, s10, 6")
        a(f"v_add_u32 v{VTID4}, s24, v{vLane}")
        a(f"v_lshlrev_b32 v{VTID4}, 2, v{VTID4}")
        a(f"v_and_b32 v{vR}, 15, v{vLane}")
        a(f"v_lshrrev_b32 v{vG}, 4, v{vLane}")
        a("s_mul_i32 s14, s12, 6")
        a("s_add_u32 s14, s14, s10")
    else:
        G.kernel_header(a, name)
        st(0)
        a(f"s_cmp_ge_u32 s2, {2*NG*4}")
        a("s_cbranch_scc1 L_k45_end")
        a("s_load_dwordx2 s[8:9], s[0:1], 48")
        a("s_load_dwordx4 s[4:7], s[0:1], 16")
        a("s_load_dwordx2 s[28:29], s[0:1], 32")
        a(f"v_lshrrev_b32 v{vT0}, 6, v0")
        a(f"v_and_b32 v{vLane}, 63, v0")
        a(f"v_readfirstlane_b32 s10, v{vT0}")
        if cfg.get('pf_code'):
            a("s_cmp_ge_u32 s2, 8"); a("s_cbranch_scc1 L_nopf45")
            a("s_cmp_lg_u32 s10, 7"); a("s_cbranch_scc1 L_nopf45")
            G.prefetch_code(a, "k45", "final_kernel", "L_code_end", 3, ACC + 8, sp=60)
            a.label("L_nopf45")
        a(f"v_lshlrev_b32 v{VTID4}, 2, v0")
        a(f"v_and_b32 v{vR}, 15, v{vLane}")
        a(f"v_lshrrev_b32 v{vG}, 4, v{vLane}")
        a("s_and_b32 s13, s2, 3")
        a("s_lshr_b32 s12, s2, 2")
        a(f"s_cmp_ge_u32 s12, {NG}")
        a("s_cselect_b32 s11, 1, 0")
        a(f"s_mul_i32 s15, s11, {NG}")
        a("s_sub_u32 s12, s12, s15")
        a("s_mul_i32 s14, s12, 6")
        a("s_add_u32 s14, s14, s10")
    if cfg['y3']:
        a(f"s_mov_b32 s24, {8*G.YJ3}")
        a(f"v_mul_u32_u24 v{vOff}, s24, v{vG}")
        a(f"v_lshrrev_b32 v{vT0+1}, 2, v{vR}")
        a(f"s_mov_b32 s24, {G.YS3}")
        a(f"v_mad_u32_u24 v{vOff}, v{vT0+1}, s24, v{vOff}")
        a(f"v_and_b32 v{vT0+1}, 3, v{vR}")
        a(f"v_lshl_add_u32 v{vOff}, v{vT0+1}, 4, v{vOff}")
        a(f"s_mul_i32 s24, s11, {G.YB3}")
        a(f"s_mul_i32 s25, s13, {4*G.YS3}")
        a("s_add_u32 s24, s24, s25")
        a("s_lshl_b32 s25, s14, 6")
        a("s_add_u32 s24, s24, s25")
        a(f"s_add_u32 s24, s24, {G.YF_BASE}")
    else:
        a(f"s_mov_b32 s24, {8*G.YF_J}")
        a(f"v_mul_u32_u24 v{vOff}, s24, v{vG}")
        a(f"v_lshl_add_u32 v{vOff}, v{vR}, 4, v{vOff}")
        a(f"s_mul_i32 s24, s11, {G.YF_B}")
        a(f"s_mul_i32 s25, s14, {G.YF_ROW}")
        a("s_add_u32 s24, s24, s25")
        a("s_lshl_b32 s25, s13, 8")
        a("s_add_u32 s24, s24, s25")
        a(f"s_add_u32 s24, s24, {G.YF_BASE}")
    a("s_mov_b32 s30, 0x05040100")
    a("s_mov_b32 s31, 0x07060302")
    a("s_waitcnt lgkmcnt(0)")
    st(6)
    if not fused: G.make_srd(a, 16, 8, 9, G.WS_BYTES)
    a("s_cmp_ge_u32 s10, 6")
    a("s_cbranch_scc1 L_k45_gb")
    if fused:
        a("s_lshl_b32 s26, s11, 2"); a("s_add_u32 s26, s26, s13"); a("s_lshl_b32 s26, s26, 7")
        a(f"s_add_u32 s26, s26, {YFLAG_BASE}")
        a(f"v_min_u32 v{vT0+1}, 31, v{vLane}")
        a(f"v_lshlrev_b32 v{vT0+1}, 2, v{vT0+1}")
        a(f"s_mov_b32 s33, {1 << 15}")
        a.label("L_k45_ypoll")
        a(f"buffer_load_dword v{vT0+2}, v{vT0+1}, s[16:19], s26 offen sc1")
        a("s_waitcnt vmcnt(0)")
        a(f"v_cmp_ne_u32 vcc, s54, v{vT0+2}")
        a("s_cmp_eq_u64 vcc, 0")
        a("s_cbranch_scc1 L_k45_yok")
        a("s_sub_u32 s33, s33, 1")
        a("s_cmp_eq_u32 s33, 0")
        a("s_cbranch_scc1 L_k45_yok")
        if cfg.get('fz_ysleep'): a(f"s_sleep {cfg['fz_ysleep']}")
        a("s_branch L_k45_ypoll")
        a.label("L_k45_yok")
    for s in range(2):
        for i in range(8):
            r = RAW + 4 * (8 * s + i)
            a(f"s_add_u32 s25, s24, {(32*s+i)*(G.YJ3 if cfg['y3'] else G.YF_J)}")
            a(f"buffer_load_dwordx4 v[{r}:{r+3}], v{vOff}, s[16:19], s25 offen")
    st(8)
    vN = vT0; vA = vT0+1; vP = BF
    a("s_lshr_b32 s27, s10, 1")
    a("s_and_b32 s33, s10, 1")
    a("s_lshl_b32 s27, s27, 4")
    a(f"v_add_u32 v{vN}, s27, v{vR}")
    a("s_lshl_b32 s33, s33, 5")
    a("s_add_u32 s33, s33, 1")
    a(f"v_lshlrev_b32 v{vA}, 3, v{vG}")
    a(f"v_add_u32 v{vA}, s33, v{vA}")
    for e2 in range(4):
        a(f"v_mul_u32_u24 v{vP+2*e2}, v{vA}, v{vN}")
        a(f"v_add_u32 v{vP+2*e2+1}, 32, v{vP+2*e2}")
        if e2 < 3: a(f"v_add_u32 v{vA}, 2, v{vA}")
    G.cos_table(a, None, [vP+e for e in range(8)], ACC, ACC+4, scale="0x3d000000")
    a("s_lshl_b32 s26, s10, 10")
    a(f"v_lshlrev_b32 v{vT0+3}, 4, v{vLane}")
    a(f"v_add_u32 v{vT0+3}, s26, v{vT0+3}")
    a(f"ds_write_b128 v{vT0+3}, v[{ACC}:{ACC+3}] offset:{L_TAB}")
    a.label("L_k45_gb")
    if cfg.get('pf_tlb'):
        a("s_cmp_lg_u32 s10, 6"); a("s_cbranch_scc1 L_notlb45")
        a(f"s_mul_i32 s24, s11, {G.OUT_B}")
        a("s_add_u32 s40, s28, s24"); a("s_addc_u32 s41, s29, 0")
        G.make_srd(a, 44, 40, 41, G.OUT_B)
        a("s_mul_i32 s24, s12, %d" % (6 * 48 * 1024))
        a(f"v_lshlrev_b32 v{ACC+8}, 13, v{vLane}")
        a(f"buffer_load_dword v{ACC+9}, v{ACC+8}, s[44:47], s24 offen")
        a.label("L_notlb45")
    G.make_srd(a, 20, 4, 5, 1024)
    G.make_srd(a, 36, 6, 7, 1024)
    a(f"v_lshlrev_b32 v{vT0+6}, 4, v{vR}")
    a("s_lshl_b32 s25, s13, 8")
    a(f"buffer_load_dwordx4 v[{GB}:{GB+3}], v{vT0+6}, s[20:23], s25 offen")
    a(f"buffer_load_dwordx4 v[{GB+4}:{GB+7}], v{vT0+6}, s[36:39], s25 offen")
    st(1)
    a("s_waitcnt lgkmcnt(0)")
    a("s_barrier")
    a("s_cmp_ge_u32 s10, 6")
    a("s_cbranch_scc1 L_k45_red2")
    a(f"v_lshlrev_b32 v{vT0+3}, 4, v{vLane}")
    for o in range(3):
        for s in range(2):
            r = AF + 4 * (2 * o + s)
            a(f"ds_read_b128 v[{r}:{r+3}], v{vT0+3} offset:{L_TAB+(2*o+s)*1024}")
    S1 = PA; S2 = PB
    a(f"s_cmp_ge_u32 s14, {G.NBLK}")
    a("s_cbranch_scc1 L_k45_zero")
    a("s_waitcnt lgkmcnt(0)")
    a(f"s_cmp_lg_u32 s14, {G.NBLK-1}")
    a("s_cbranch_scc1 L_k45_full")
    lastn = G.L_OUT - 48 * (G.NBLK - 1)
    for o in range(3):
        nvalid = lastn - 16 * o
        a(f"v_cmp_gt_i32 vcc, {max(nvalid,0)}, v{vR}")
        for r in range(8):
            a(f"v_cndmask_b32 v{AF+8*o+r}, 0, v{AF+8*o+r}, vcc")
    a.label("L_k45_full")
    a("s_waitcnt vmcnt(2)")
    st(2)
    for q in range(4):
        for s in range(2):
            for h in range(2):
                for e in range(4):
                    a(f"v_perm_b32 v{BF+(s*2+h)*4+e}, v{RAW+4*(8*s+2*e+1)+q}, v{RAW+4*(8*s+2*e)+q}, s{30+h}")
        for s in range(2):
            for o in range(3):
                for h in range(2):
                    d = ACC + (o * 8 + 2 * q + h) * 4
                    A = AF + 4 * (2 * o + s); B = BF + (s * 2 + h) * 4
                    c = "0" if s == 0 else f"v[{d}:{d+3}]"
                    a(f"v_mfma_f32_16x16x32_bf16 v[{d}:{d+3}], v[{A}:{A+3}], v[{B}:{B+3}], {c}")
    st(3)
    a("s_nop 7")
    for dd in range(8):
        first = True
        for o in range(3):
            for rp in range(4):
                h = hreg(o, dd, rp)
                if first:
                    a(f"v_mul_f32 v{S2+dd}, v{h}, v{h}"); a(f"v_mov_b32 v{S1+dd}, v{h}"); first = False
                else:
                    a(f"v_fmac_f32 v{S2+dd}, v{h}, v{h}"); a(f"v_add_f32 v{S1+dd}, v{S1+dd}, v{h}")
    a("s_branch L_k45_red")
    a.label("L_k45_zero")
    a("s_waitcnt vmcnt(0) lgkmcnt(0)")
    for r in range(8):
        a(f"v_mov_b32 v{S1+r}, 0"); a(f"v_mov_b32 v{S2+r}, 0")
    a.label("L_k45_red")
    st(4)
    a("s_lshl_b32 s25, s10, 12")
    a(f"v_lshlrev_b32 v{vT0}, 10, v{vG}")
    a(f"v_lshl_add_u32 v{vT0}, v{vR}, 5, v{vT0}")
    a(f"v_add_u32 v{vT0}, s25, v{vT0}")
    a(f"ds_write_b128 v{vT0}, v[{S1}:{S1+3}] offset:{L_PART}")
    a(f"ds_write_b128 v{vT0}, v[{S1+4}:{S1+7}] offset:{L_PART+16}")
    a(f"ds_write_b128 v{vT0}, v[{S2}:{S2+3}] offset:{L_PART+512}")
    a(f"ds_write_b128 v{vT0}, v[{S2+4}:{S2+7}] offset:{L_PART+512+16}")
    a.label("L_k45_red2")
    a("s_waitcnt lgkmcnt(0)")
    a("s_barrier")
    def offload():
        a("s_lshl_b32 s25, s10, 13")
        a(f"v_lshlrev_b32 v{vT0+1}, 4, v{vLane}")
        a(f"v_add_u32 v{vT0+1}, s25, v{vT0+1}")
        for dd in range(8):
            a(f"ds_write2_b32 v{vT0+1}, v{hreg(0,dd,3)}, v{hreg(1,dd,3)} offset0:0 offset1:1") if False else None
            for o in range(3):
                a(f"ds_write_b32 v{vT0+1}, v{hreg(o,dd,3)} offset:{L_OFF+dd*1024+4*o}")
    a(f"s_mul_i32 s24, s11, {4*NG}")
    a(f"s_mul_i32 s25, s13, {NG}")
    a("s_add_u32 s24, s24, s25")
    a("s_lshl_b32 s26, s24, 10")
    a(f"s_add_u32 s26, s26, {G.PART_BASE}")
    a("s_cmp_ge_u32 s10, 6")
    a("s_cbranch_scc1 L_k45_sumdone")
    a("s_cmp_lt_u32 s10, 4")
    a("s_cbranch_scc1 L_k45_red4")
    offload()
    a("s_branch L_k45_sumdone")
    a.label("L_k45_red4")
    for p in range(24):
        a(f"ds_read_b32 v{RAW+16+p}, v{VTID4} offset:{L_PART+p*1024}")
    a("s_waitcnt lgkmcnt(0)")
    vals = [RAW + 16 + p for p in range(24)]
    while len(vals) > 1:
        nv = []
        for i in range(0, len(vals) - 1, 2):
            a(f"v_add_f32 v{vals[i]}, v{vals[i]}, v{vals[i+1]}"); nv.append(vals[i])
        if len(vals) & 1: nv.append(vals[-1])
        vals = nv
    a("s_lshl_b32 s24, s12, 10")
    a("s_add_u32 s24, s24, s26")
    a(f"buffer_store_dword v{vals[0]}, v{VTID4}, s[16:19], s24 offen sc1")
    st(5)
    offload()
    PT = RAW
    a(f"s_mov_b32 s33, {1 << 14}")
    a.label("L_k45_poll")
    a("s_mov_b32 s27, s26")
    for p in range(NG):
        if p % 4 == 0 and p: a("s_add_u32 s27, s27, 4096")
        a(f"buffer_load_dword v{PT+p}, v{VTID4}, s[16:19], s27 offen offset:{(p%4)*1024} sc1")
    a("s_waitcnt vmcnt(0)")
    t = RAW + 32
    a(f"v_max3_u32 v{t}, v{PT}, v{PT+1}, v{PT+2}")
    for p in range(3, NG - 1, 2):
        a(f"v_max3_u32 v{t}, v{t}, v{PT+p}, v{PT+p+1}")
    a(f"v_max_u32 v{t}, v{t}, v{PT+NG-1}")
    a(f"v_cmp_eq_u32 vcc, -1, v{t}")
    a("s_cmp_eq_u64 vcc, 0")
    a("s_cbranch_scc1 L_k45_got")
    a("s_sub_u32 s33, s33, 1")
    a("s_cmp_eq_u32 s33, 0")
    a("s_cbranch_scc1 L_k45_got")
    if cfg.get('k45_sleep'): a(f"s_sleep {cfg['k45_sleep']}")
    a("s_branch L_k45_poll")
    a.label("L_k45_got")
    st(7)
    vals = [PT + p for p in range(NG)]
    while len(vals) > 1:
        nv = []
        for i in range(0, len(vals) - 1, 2):
            a(f"v_add_f32 v{vals[i]}, v{vals[i]}, v{vals[i+1]}"); nv.append(vals[i])
        if len(vals) & 1: nv.append(vals[-1])
        vals = nv
    a(f"ds_write_b32 v{VTID4}, v{vals[0]} offset:{L_SUM}")
    a.label("L_k45_sumdone")
    st(9)
    a("s_waitcnt lgkmcnt(0)")
    a("s_barrier")
    a("s_cmp_lt_u32 s10, 6")
    a("s_cbranch_scc1 L_k45_nohread")
    a("s_waitcnt vmcnt(0)")
    a("s_sub_u32 s25, s10, 6")
    a("s_mul_i32 s25, s25, 3")
    a("s_lshl_b32 s25, s25, 13")
    a(f"v_lshlrev_b32 v{vT0+1}, 4, v{vLane}")
    a(f"v_add_u32 v{vT0+1}, s25, v{vT0+1}")
    for j in range(3):
        for dd in range(8):
            h = hreg(j, dd, 0)
            a(f"ds_read_b96 v[{h}:{h+2}], v{vT0+1} offset:{L_OFF+j*8192+dd*1024}")
        a("s_waitcnt lgkmcnt(0)") if j < 2 else None
    a.label("L_k45_nohread")
    ST = RAW + 44
    a(f"v_lshlrev_b32 v{vT0+6}, 5, v{vR}")
    a(f"ds_read_b128 v[{ST}:{ST+3}], v{vT0+6} offset:{L_SUM}")
    a(f"ds_read_b128 v[{ST+4}:{ST+7}], v{vT0+6} offset:{L_SUM+16}")
    a(f"ds_read_b128 v[{ST+8}:{ST+11}], v{vT0+6} offset:{L_SUM+512}")
    a(f"ds_read_b128 v[{ST+12}:{ST+15}], v{vT0+6} offset:{L_SUM+512+16}")
    a(f"s_mov_b32 s24, {f2h(1.0 / G.L_OUT)}")
    a("s_mov_b32 s25, 0x3727c5ac")
    a("s_waitcnt vmcnt(0) lgkmcnt(0)")
    for dd in range(8):
        mu = ST + dd; m2 = ST + 8 + dd
        a(f"v_mul_f32 v{mu}, s24, v{mu}")
        a(f"v_mul_f32 v{m2}, s24, v{m2}")
        a(f"v_fma_f32 v{m2}, -v{mu}, v{mu}, v{m2}")
        a(f"v_max_f32 v{m2}, 0, v{m2}")
        a(f"v_add_f32 v{m2}, s25, v{m2}")
        a(f"v_rsq_f32 v{m2}, v{m2}")
        gsrc = GB + (dd >> 1); bsrc = GB + 4 + (dd >> 1)
        if dd & 1:
            a(f"v_and_b32 v{PA+dd}, 0xffff0000, v{gsrc}"); a(f"v_and_b32 v{PB+dd}, 0xffff0000, v{bsrc}")
        else:
            a(f"v_lshlrev_b32 v{PA+dd}, 16, v{gsrc}"); a(f"v_lshlrev_b32 v{PB+dd}, 16, v{bsrc}")
        a(f"v_mul_f32 v{PA+dd}, v{PA+dd}, v{m2}")
        a(f"v_fma_f32 v{PB+dd}, -v{mu}, v{PA+dd}, v{PB+dd}")
    a(f"s_mul_i32 s24, s11, {G.OUT_B}")
    a("s_add_u32 s28, s28, s24")
    a("s_addc_u32 s29, s29, 0")
    G.make_srd(a, 32, 28, 29, G.OUT_B)
    vO = vT0 + 6
    a("s_lshl_b32 s25, s13, 8")
    a(f"v_lshlrev_b32 v{vO}, 12, v{vG}")
    a(f"v_lshl_add_u32 v{vO}, v{vR}, 4, v{vO}")
    a(f"v_add_u32 v{vO}, s25, v{vO}")
    c0 = -2.0 * math.log2(math.e) * math.sqrt(2.0 / math.pi); c1 = c0 * 0.044715
    a(f"s_mov_b32 s26, {f2h(c1)}")
    a(f"v_mov_b32 v{vT0+7}, {f2h(c0)}")
    st(10)
    T0 = RAW
    cnt = [0]
    def gelu_row(regs, sreg):
        ob = RAW + 16 + 4 * (cnt[0] % 8); cnt[0] += 1
        for dd in range(8): a(f"v_fma_f32 v{regs[dd]}, v{regs[dd]}, v{PA+dd}, v{PB+dd}")
        for dd in range(8): a(f"v_mul_f32 v{T0+dd}, v{regs[dd]}, v{regs[dd]}")
        for dd in range(8): a(f"v_fma_f32 v{T0+dd}, v{T0+dd}, s26, v{vT0+7}")
        for dd in range(8): a(f"v_mul_f32 v{T0+dd}, v{T0+dd}, v{regs[dd]}")
        for dd in range(8): a(f"v_exp_f32 v{T0+dd}, v{T0+dd}")
        for dd in range(8): a(f"v_add_f32 v{T0+dd}, 1.0, v{T0+dd}")
        for dd in range(8): a(f"v_rcp_f32 v{T0+dd}, v{T0+dd}")
        for dd in range(8): a(f"v_mul_f32 v{T0+dd}, v{T0+dd}, v{regs[dd]}")
        for q in range(4): a(f"v_cvt_pk_bf16_f32 v{ob+q}, v{T0+2*q}, v{T0+2*q+1}")
        a(f"buffer_store_dwordx4 v[{ob}:{ob+3}], v{vO}, s[32:35], s{sreg} offen {cfg['k5_st']}")
    if cfg.get('gelu_loop'):
        a("s_cmp_ge_u32 s10, 6")
        a("s_cbranch_scc1 L_k45_hoff")
        a(f"s_cmp_ge_u32 s14, {G.NBLK}")
        a("s_cbranch_scc1 L_k45_fin")
        a("s_mul_i32 s52, s14, %d" % (48 * 1024))
        a(f"s_mov_b32 s53, {1*1024}"); a(f"s_mov_b32 s54, {14*1024}")
        a("s_branch L_k45_gelu")
        a.label("L_k45_hoff")
        a("s_sub_u32 s25, s10, 6")
        a("s_mul_i32 s25, s25, 3")
        a("s_mul_i32 s52, s12, 6")
        a("s_add_u32 s52, s52, s25")
        a("s_mul_i32 s52, s52, %d" % (48 * 1024))
        a(f"s_add_u32 s52, s52, {3*1024}")
        a(f"s_mov_b32 s53, {16*1024}"); a(f"s_mov_b32 s54, {16*1024}")
        a.label("L_k45_gelu")
        a("s_mov_b32 s55, 0")
        a("s_mov_b32 s56, 0")
        a("s_mov_b32 s57, 9")
        a.label("L_k45_gloop")
        H = [hreg(0, dd, 0) for dd in range(8)]
        ob = RAW + 16
        a("s_set_gpr_idx_on s55, gpr_idx(SRC0,DST)")
        for dd in range(8): a(f"v_fma_f32 v{H[dd]}, v{H[dd]}, v{PA+dd}, v{PB+dd}")
        a("s_set_gpr_idx_mode gpr_idx(SRC0,SRC1)")
        for dd in range(8): a(f"v_mul_f32 v{T0+dd}, v{H[dd]}, v{H[dd]}")
        a("s_set_gpr_idx_off")
        for dd in range(8): a(f"v_fma_f32 v{T0+dd}, v{T0+dd}, s26, v{vT0+7}")
        a("s_set_gpr_idx_on s55, gpr_idx(SRC0)")
        for dd in range(8): a(f"v_mul_f32 v{T0+dd}, v{H[dd]}, v{T0+dd}")
        a("s_set_gpr_idx_off")
        for dd in range(8): a(f"v_exp_f32 v{T0+dd}, v{T0+dd}")
        for dd in range(8): a(f"v_add_f32 v{T0+dd}, 1.0, v{T0+dd}")
        for dd in range(8): a(f"v_rcp_f32 v{T0+dd}, v{T0+dd}")
        a("s_set_gpr_idx_on s55, gpr_idx(SRC0)")
        for dd in range(8): a(f"v_mul_f32 v{T0+dd}, v{H[dd]}, v{T0+dd}")
        a("s_set_gpr_idx_off")
        for q in range(4): a(f"v_cvt_pk_bf16_f32 v{ob+q}, v{T0+2*q}, v{T0+2*q+1}")
        a(f"buffer_store_dwordx4 v[{ob}:{ob+3}], v{vO}, s[32:35], s52 offen {cfg['k5_st']}")
        a("s_add_u32 s55, s55, 1")
        a("s_add_u32 s56, s56, 1")
        a("s_cmp_eq_u32 s56, 3")
        a("s_cbranch_scc1 L_k45_gwrap")
        a("s_add_u32 s52, s52, s53")
        a("s_branch L_k45_gnext")
        a.label("L_k45_gwrap")
        a("s_add_u32 s52, s52, s54")
        a("s_add_u32 s55, s55, 29")
        a("s_mov_b32 s56, 0")
        a.label("L_k45_gnext")
        a("s_sub_u32 s57, s57, 1")
        a("s_cmp_lg_u32 s57, 0")
        a("s_cbranch_scc1 L_k45_gloop")
    else:
        a("s_cmp_ge_u32 s10, 6")
        a("s_cbranch_scc1 L_k45_hoff")
        a(f"s_cmp_ge_u32 s14, {G.NBLK}")
        a("s_cbranch_scc1 L_k45_fin")
        a("s_mul_i32 s24, s14, %d" % (48 * 1024))
        for jj in range(3):
            for rr in range(3): a(f"s_add_u32 s{52+3*jj+rr}, s24, {(16*jj+rr)*1024}")
        a("s_branch L_k45_gelu")
        a.label("L_k45_hoff")
        a("s_sub_u32 s25, s10, 6")
        a("s_mul_i32 s25, s25, 3")
        a("s_mul_i32 s24, s12, 6")
        a("s_add_u32 s24, s24, s25")
        a("s_mul_i32 s24, s24, %d" % (48 * 1024))
        for jj in range(3):
            for rr in range(3): a(f"s_add_u32 s{52+3*jj+rr}, s24, {(48*jj+16*rr+3)*1024}")
        a.label("L_k45_gelu")
        for jj in range(3):
            for rr in range(3):
                gelu_row([hreg(jj, dd, rr) for dd in range(8)], 52 + 3 * jj + rr)
    a.label("L_k45_fin")
    st(11)
    if cfg.get('fstamp'):
        a("s_waitcnt vmcnt(0)")
        st(12)
        a("s_lshl_b32 s73, s2, 3"); a("s_add_u32 s73, s73, s10"); a("s_lshl_b32 s73, s73, 8")
        a(f"s_add_u32 s73, s73, {214 << 20}")
        a(f"v_lshlrev_b32 v245, 2, v{vLane}")
        a("buffer_store_dword v244, v245, s[16:19], s73 offen")
    a.label("L_k45_end")
    a("s_endpgm")
    if fused: return None
    return name, a.lines, 248 if cfg.get('fstamp') else 240, (2 * NG * 4, 512, LDS)
```

```python
import sys, os
sys.path.insert(0, os.path.dirname(os.path.abspath(__file__)))
from asmlib import *

NAME = 'standalone__self_sup_conv_stem_wavlm__speech'

L_OUT = 7985
NBLK = 167
ROWS = 168
X_BYTES_B = 8000 * 2048
W_BYTES = 31 * 524288
WS_BYTES = 268435456
WF_BASE = 0
WF_K = 4 * 32 * 16384
XF_BASE = 64 << 20
XF_TILE = 2 * ROWS * 64
XF_B = 32 * XF_TILE
XF_K = 2 * XF_B
YF_BASE = 112 << 20
YF_B = 176 * 1024
YF_J = 2 * YF_B
PART_BASE = 140 << 20
NGRP = 42
CNT_BASE = 141 << 20
CNT_STRIDE = 8192 + 256
OUT_B = L_OUT * 1024

import json
CFG = dict(
    k3_nodma=False,
    k3_nomfma=False,
    k3_stamp=False,
    k3b=True,
    k3c=True,
    k12p=False,
    k12q=True,
    k12_nwg=256,
    k12_mix=7,
    k12_nf=64,
    w_nodup=True,
    k45f=True,
    k45g=True,
    k45_ng=28,
    pf_code=True,
    pf_late=False,
    y3=True,
    fuse12=True,
    fz_sleep=8,
    fz_early=False,
    fz_nm=0,
    fz_ord2=False,
    fz_xrow=False,
    fz_pfg=False,
    fz_pf3=True,
    fuse45=False,
    fz_ysleep=2,
    k3_latewait=True,
    gelu_loop=False,
    xf2=False,
    pf_tlb=False,
    k45_sleep=2,
    k45_wpg=6,
    k12_st='sc1',
    k3_st='sc1',
    k5_st='sc1',
    half=False,
    wfuse=False,
    c0=4,
    ldist=[6,5,5,0],
    xfull=True,
    layout=2,
    ypad=256,
    fused=False,
    hprio=0,
    st_flags='sc1',
    dma_flags='',
    timeline=False,
    k3_nolds=False,
)
CFG.update(json.loads(os.environ.get('GENCFG', '{}')))
if CFG['layout'] == 2:
    WF_K = 16384; WF_KS = 32 * 16384; WF_DQ = 32 * WF_KS
    XF_K = XF_TILE; XF_KS = 32 * XF_TILE; XF_B = 32 * XF_KS
    YF_J = 1024; YF_ROW = 65536 + CFG['ypad']; YF_B = 176 * YF_ROW
else:
    WF_KS = 16384; WF_DQ = 32 * 16384; XF_KS = XF_TILE; YF_ROW = 1024
YJ3 = 176 * 64; YS3 = 64 * YJ3; YB3 = 16 * YS3
XF2_K = 2 * XF_TILE; XF_KP = 32 * XF2_K; XF2_B = 16 * XF_KP

def kernel_header(a, name):
    a(f".globl {name}")
    a(".p2align 8")
    a(f".type {name},@function")
    a.label(name)

def kernel_desc(name, vgpr, sgpr=96, accum=None):
    accum = accum or ((vgpr + 3) // 4 * 4)
    return f""".amdhsa_kernel {name}
  .amdhsa_next_free_vgpr {vgpr}
  .amdhsa_next_free_sgpr {sgpr}
  .amdhsa_accum_offset {accum}
  .amdhsa_group_segment_fixed_size 0
  .amdhsa_kernarg_size 56
  .amdhsa_user_sgpr_count 2
  .amdhsa_user_sgpr_kernarg_segment_ptr 1
  .amdhsa_system_sgpr_workgroup_id_x 1
  .amdhsa_float_denorm_mode_32 3
.end_amdhsa_kernel
"""

def prefetch_code(a, tag, start, end, nloads, v, sp=50):
    a(f"s_getpc_b64 s[{sp}:{sp+1}]")
    a.label(f"L_pf_{tag}")
    a(f"s_sub_u32 s{sp}, s{sp}, L_pf_{tag}-{start}")
    a(f"s_subb_u32 s{sp+1}, s{sp+1}, 0")
    a(f"v_mbcnt_lo_u32_b32 v{v}, -1, 0")
    a(f"v_mbcnt_hi_u32_b32 v{v}, -1, v{v}")
    a(f"v_lshlrev_b32 v{v}, 6, v{v}")
    for j in range(nloads):
        a(f"v_add_u32 v{v+1}, {j*4096}, v{v}")
        a(f"v_min_u32 v{v+1}, {end}-{start}-4, v{v+1}")
        a(f"v_mov_b32 v{v+3}, s{sp+1}")
        a(f"v_add_co_u32 v{v+2}, vcc, s{sp}, v{v+1}")
        a(f"v_addc_co_u32 v{v+3}, vcc, 0, v{v+3}, vcc")
        a(f"global_load_dword v{v+4}, v[{v+2}:{v+3}], off")

def prefetch_code_fwd(a, tag, start, end, nloads, v, sp=50):
    a(f"s_getpc_b64 s[{sp}:{sp+1}]")
    a.label(f"L_pf_{tag}")
    a(f"s_add_u32 s{sp}, s{sp}, {start}-L_pf_{tag}")
    a(f"s_addc_u32 s{sp+1}, s{sp+1}, 0")
    a(f"v_mbcnt_lo_u32_b32 v{v}, -1, 0")
    a(f"v_mbcnt_hi_u32_b32 v{v}, -1, v{v}")
    a(f"v_lshlrev_b32 v{v}, 6, v{v}")
    for j in range(nloads):
        a(f"v_add_u32 v{v+1}, {j*4096}, v{v}")
        a(f"v_min_u32 v{v+1}, {end}-{start}-4, v{v+1}")
        a(f"v_mov_b32 v{v+3}, s{sp+1}")
        a(f"v_add_co_u32 v{v+2}, vcc, s{sp}, v{v+1}")
        a(f"v_addc_co_u32 v{v+3}, vcc, 0, v{v+3}, vcc")
        a(f"global_load_dword v{v+4}, v[{v+2}:{v+3}], off")

def make_srd(a, s, base_lo, base_hi, size):
    a(f"s_mov_b32 s{s}, s{base_lo}")
    a(f"s_and_b32 s{s+1}, s{base_hi}, 0xffff")
    a(f"s_mov_b32 s{s+2}, {size}")
    a(f"s_mov_b32 s{s+3}, 0x00020000")

def cos_table(a, vp0, vstep_list, dst, tmp, scale=None, lo_sel=None):
    for e in range(8):
        r = vstep_list[e]
        a(f"v_and_b32 v{r}, 127, v{r}")
        a(f"v_cvt_f32_u32 v{r}, v{r}")
        a(f"v_mul_f32 v{r}, 0x3c000000, v{r}")
        a(f"v_cos_f32 v{r}, v{r}")
    if scale is not None:
        for e in range(8):
            r = vstep_list[e]
            a(f"v_mul_f32 v{r}, {scale}, v{r}")
    for e2 in range(4):
        r0, r1 = vstep_list[2*e2], vstep_list[2*e2+1]
        a(f"v_cvt_pk_bf16_f32 v{dst+e2}, v{r0}, v{r1}")
    if lo_sel is not None:
        for e2 in range(4):
            r0, r1 = vstep_list[2*e2], vstep_list[2*e2+1]
            a(f"v_lshlrev_b32 v{tmp}, 16, v{dst+e2}")
            a(f"v_and_b32 v{tmp+1}, 0xffff0000, v{dst+e2}")
            a(f"v_sub_f32 v{r0}, v{r0}, v{tmp}")
            a(f"v_sub_f32 v{r1}, v{r1}, v{tmp+1}")
            a(f"v_cvt_pk_bf16_f32 v{tmp}, v{r0}, v{r1}")
            a(f"v_cndmask_b32 v{dst+e2}, v{dst+e2}, v{tmp}, s[{lo_sel}:{lo_sel+1}]")

def gen_k12():
    a = Asm()
    name = 'xform_kernel'
    kernel_header(a, name)
    NCG = CFG['c0'] if CFG['half'] else 8
    XFULL = CFG['half'] or CFG['wfuse']
    XF2_K = 2 * XF_TILE; XF_KP = 32 * XF2_K; XF2_B = 16 * XF_KP
    NX = 2 * NGRP * NCG
    NW = 128 * (CFG['c0'] if CFG['wfuse'] else NCG)
    RAW = 0
    AF = 64
    BF = 96
    ACC = 112
    VT = 144
    vLane = VT; vR = VT+1; vG = VT+2; vOff = VT+3; vSt = VT+4; vT0 = VT+5
    NV = 160
    a("s_cmp_ge_u32 s2, %d" % (NX + NW))
    a("s_cbranch_scc1 L_k12_end")
    a("s_load_dwordx4 s[4:7], s[0:1], 0")
    a("s_load_dwordx2 s[8:9], s[0:1], 48")
    a(f"v_and_b32 v{vLane}, 63, v0")
    a(f"v_lshrrev_b32 v{vT0}, 6, v0")
    a(f"v_and_b32 v{vR}, 15, v{vLane}")
    a(f"v_readfirstlane_b32 s10, v{vT0}")
    a(f"v_lshrrev_b32 v{vG}, 4, v{vLane}")
    a("s_mov_b32 s30, 0x05040100")
    a("s_mov_b32 s31, 0x07060302")
    a("s_waitcnt lgkmcnt(0)")
    make_srd(a, 16, 8, 9, WS_BYTES)
    a("s_cmp_ge_u32 s2, %d" % NX)
    a("s_cbranch_scc1 L_k12_w")
    a.c("X item: b, cg, grp")
    a(f"s_cmp_ge_u32 s2, {NGRP*NCG}")
    a("s_cselect_b32 s11, 1, 0")
    a(f"s_mul_i32 s12, s11, {NGRP*NCG}")
    a("s_sub_u32 s12, s2, s12")
    a(f"s_mul_hi_u32 s14, s12, {((1 << 32) + NCG - 1) // NCG if NCG > 1 else 0}")
    a(f"s_mul_i32 s13, s14, {NCG}")
    a("s_sub_u32 s13, s12, s13")
    a("s_lshl_b32 s14, s14, 2")
    a("s_add_u32 s14, s14, s10")
    a(f"s_mul_i32 s15, s11, {X_BYTES_B}")
    a("s_add_u32 s4, s4, s15")
    a("s_addc_u32 s5, s5, 0")
    make_srd(a, 12+8, 4, 5, X_BYTES_B)
    a("s_mul_i32 s15, s14, %d" % (48 * 2048))
    a("s_lshl_b32 s24, s13, 8")
    a("s_add_u32 s15, s15, s24")
    a(f"v_lshlrev_b32 v{vOff}, 14, v{vG}")
    a(f"v_lshl_add_u32 v{vOff}, v{vR}, 4, v{vOff}")
    a(f"v_add_u32 v{vOff}, s15, v{vOff}")
    for s in range(2):
        for i in range(8):
            off = (32 * s + i) * 2048
            if off == 0:
                a(f"buffer_load_dwordx4 v[{RAW}:{RAW+3}], v{vOff}, s[20:23], 0 offen")
            else:
                a(f"v_add_u32 v{vT0}, {off}, v{vOff}")
                r = RAW + 4 * (8 * s + i)
                a(f"buffer_load_dwordx4 v[{r}:{r+3}], v{vT0}, s[20:23], 0 offen")
    a.c("table generation: wave w -> o = w, s = 0,1")
    vA = vT0; vC = vT0+1; vP = BF
    a(f"v_lshrrev_b32 v{vA}, 2, v{vR}")
    a(f"v_lshlrev_b32 v{vA}, 1, v{vA}")
    a(f"v_bfe_u32 v{vC}, v{vR}, 1, 1")
    a(f"v_add_u32 v{vA}, v{vA}, v{vC}")
    a("s_lshl_b32 s24, s10, 3")
    a(f"v_add_u32 v{vA}, s24, v{vA}")
    a(f"v_lshl_add_u32 v{vA}, v{vA}, 1, 1")
    a(f"v_and_b32 v{vC}, 1, v{vR}")
    a(f"v_lshlrev_b32 v{vC}, 5, v{vC}")
    for s in range(2):
        a(f"v_lshlrev_b32 v{vT0+2}, 3, v{vG}")
        if s: a(f"v_add_u32 v{vT0+2}, 32, v{vT0+2}")
        a(f"v_mad_u32_u24 v{vP}, v{vA}, v{vT0+2}, v{vC}")
        for e in range(1, 8):
            a(f"v_add_u32 v{vP+e}, v{vP+e-1}, v{vA}")
        cos_table(a, None, [vP+e for e in range(8)], ACC, ACC+4)
        a("s_lshl_b32 s24, s10, 11")
        a(f"v_lshlrev_b32 v{vT0+3}, 4, v{vLane}")
        a(f"v_add_u32 v{vT0+3}, s24, v{vT0+3}")
        a(f"ds_write_b128 v{vT0+3}, v[{ACC}:{ACC+3}] offset:{s*1024}")
    a("s_waitcnt lgkmcnt(0)")
    a("s_barrier")
    a(f"v_lshlrev_b32 v{vT0+3}, 4, v{vLane}")
    for o in range(4):
        for s in range(2):
            r = AF + 4 * (2 * o + s)
            a(f"ds_read_b128 v[{r}:{r+3}], v{vT0+3} offset:{(2*o+s)*1024}")
    a("s_bfe_u32 s24, s14, 0x10003")
    a("s_mul_i32 s24, s24, 3")
    a(f"v_and_b32 v{vT0}, 3, v{vR}")
    a(f"v_xor_b32 v{vT0}, s24, v{vT0}")
    a(f"v_lshlrev_b32 v{vT0}, 4, v{vT0}")
    if XFULL:
        a(f"v_bfe_u32 v{vT0+1}, v{vR}, 2, 1")
        a(f"v_lshl_add_u32 v{vT0}, v{vT0+1}, 6, v{vT0}")
        a(f"v_lshrrev_b32 v{vT0+1}, 3, v{vR}")
        a(f"s_mov_b32 s24, {XF_KP}")
    else:
        a(f"v_lshrrev_b32 v{vT0+1}, 2, v{vR}")
        a(f"s_mov_b32 s24, {XF_KS}")
    a(f"v_mad_u32_u24 v{vT0}, v{vT0+1}, s24, v{vT0}")
    a(f"s_mov_b32 s24, {2*(XF2_K if XFULL else XF_K)}")
    a(f"v_mad_u32_u24 v{vSt}, v{vG}, s24, v{vT0}")
    a(f"s_mul_i32 s24, s11, {XF2_B if XFULL else XF_B}")
    a(f"s_mul_i32 s25, s13, {2*XF_KP if XFULL else 4*XF_KS}")
    a("s_add_u32 s24, s24, s25")
    a(f"s_lshl_b32 s25, s14, {7 if XFULL else 6}")
    a("s_add_u32 s24, s24, s25")
    a(f"s_add_u32 s24, s24, {XF_BASE}")
    a("s_waitcnt vmcnt(0) lgkmcnt(0)")
    def perms(q):
        for s in range(2):
            for h in range(2):
                for e in range(4):
                    d = BF + (s * 2 + h) * 4 + e
                    r0 = RAW + 4 * (8 * s + 2 * e) + q
                    r1 = RAW + 4 * (8 * s + 2 * e + 1) + q
                    a(f"v_perm_b32 v{d}, v{r1}, v{r0}, s{30+h}")
    def mfmas():
        for s in range(2):
            for o in range(4):
                for h in range(2):
                    d = ACC + (o * 2 + h) * 4
                    A = AF + 4 * (2 * o + s)
                    B = BF + (s * 2 + h) * 4
                    c = "0" if s == 0 else f"v[{d}:{d+3}]"
                    a(f"v_mfma_f32_16x16x32_bf16 v[{d}:{d+3}], v[{A}:{A+3}], v[{B}:{B+3}], {c}")
    def cvts(q):
        for o in range(4):
            for rp in range(4):
                d = RAW + 4 * (4 * o + rp) + q
                a(f"v_cvt_pk_bf16_f32 v{d}, v{ACC+(o*2)*4+rp}, v{ACC+(o*2+1)*4+rp}")
    perms(0)
    for q in range(4):
        mfmas()
        if q < 3: perms(q + 1)
        cvts(q)
    for o in range(4):
        for rp in range(4):
            off = (8 * o + (rp >> 1)) * XF_K + (rp & 1) * (ROWS * 64)
            if XFULL: off = (8 * o + (rp >> 1)) * XF2_K + (rp & 1) * (ROWS * 128)
            a(f"s_add_u32 s25, s24, {off}")
            r = RAW + 4 * (4 * o + rp)
            a(f"buffer_store_dwordx4 v[{r}:{r+3}], v{vSt}, s[16:19], s25 offen {CFG['k12_st']}")
    a("s_endpgm")
    a.label("L_k12_w")
    a(f"s_sub_u32 s12, s2, {NX}")
    a("s_and_b32 s13, s12, 3")
    a("s_lshr_b32 s14, s12, 2")
    a("s_lshl_b32 s14, s14, 2")
    a("s_add_u32 s14, s14, s10")
    make_srd(a, 20, 6, 7, W_BYTES)
    a(f"v_and_b32 v{vT0}, 1, v{vG}")
    a(f"v_lshlrev_b32 v{vOff}, 23, v{vT0}")
    a(f"v_lshrrev_b32 v{vT0}, 2, v{vR}")
    a(f"v_lshl_add_u32 v{vOff}, v{vT0}, 6, v{vOff}")
    a(f"v_and_b32 v{vT0}, 1, v{vR}")
    a(f"v_lshl_add_u32 v{vOff}, v{vT0}, 5, v{vOff}")
    a(f"v_bfe_u32 v{vT0}, v{vR}, 1, 1")
    a(f"v_lshl_add_u32 v{vOff}, v{vT0}, 3, v{vOff}")
    a("s_lshl_b32 s15, s14, 10")
    a("s_lshl_b32 s24, s13, 8")
    a("s_add_u32 s15, s15, s24")
    a(f"v_add_u32 v{vOff}, s15, v{vOff}")
    for i in range(8):
        r = RAW + 4 * i
        if i == 0:
            src = vOff
        else:
            a(f"v_add_u32 v{vT0}, {i << 20}, v{vOff}")
            src = vT0
        a(f"buffer_load_dwordx2 v[{r}:{r+1}], v{src}, s[20:23], 0 offen")
        a(f"buffer_load_dwordx2 v[{r+2}:{r+3}], v{src}, s[20:23], 0 offen offset:16")
    a.c("table: wave w -> o = w")
    vA = vT0; vC = vT0+1; vP = BF
    a(f"v_lshrrev_b32 v{vA}, 2, v{vR}")
    a(f"v_lshlrev_b32 v{vA}, 1, v{vA}")
    a(f"v_bfe_u32 v{vC}, v{vR}, 1, 1")
    a(f"v_add_u32 v{vA}, v{vA}, v{vC}")
    a("s_lshl_b32 s24, s10, 3")
    a(f"v_add_u32 v{vA}, s24, v{vA}")
    a(f"v_lshl_add_u32 v{vA}, v{vA}, 1, 1")
    a(f"v_and_b32 v{vC}, 1, v{vR}")
    a(f"v_lshlrev_b32 v{vC}, 5, v{vC}")
    a(f"v_and_b32 v{vT0+2}, 1, v{vG}")
    a(f"v_lshlrev_b32 v{vT0+2}, 3, v{vT0+2}")
    a(f"v_mad_u32_u24 v{vP}, v{vA}, v{vT0+2}, v{vC}")
    for e in range(1, 8):
        a(f"v_add_u32 v{vP+e}, v{vP+e-1}, v{vA}")
    a(f"v_cmp_lt_u32 s[26:27], 1, v{vG}")
    cos_table(a, None, [vP+e for e in range(8)], ACC, ACC+4, lo_sel=26)
    a("s_lshl_b32 s24, s10, 10")
    a(f"v_lshlrev_b32 v{vT0+3}, 4, v{vLane}")
    a(f"v_add_u32 v{vT0+3}, s24, v{vT0+3}")
    a(f"ds_write_b128 v{vT0+3}, v[{ACC}:{ACC+3}]")
    a("s_waitcnt lgkmcnt(0)")
    a("s_barrier")
    a(f"v_lshlrev_b32 v{vT0+3}, 4, v{vLane}")
    for o in range(4):
        r = AF + 4 * o
        a(f"ds_read_b128 v[{r}:{r+3}], v{vT0+3} offset:{o*1024}")
    a("s_and_b32 s24, s14, 3")
    a("s_bfe_u32 s25, s14, 0x10003")
    a("s_lshl_b32 s25, s25, 2")
    a("s_or_b32 s24, s24, s25")
    a("s_lshl_b32 s24, s24, 1")
    a(f"v_xor_b32 v{vT0}, s24, v{vR}")
    a(f"v_lshlrev_b32 v{vT0}, 4, v{vT0}")
    a(f"s_mov_b32 s25, {2*WF_K}")
    a(f"v_mul_u32_u24 v{vSt}, s25, v{vG}")
    a(f"v_add_u32 v{vSt}, v{vSt}, v{vT0}")
    a(f"s_mul_i32 s24, s13, {WF_DQ}")
    a("s_lshr_b32 s25, s14, 5")
    a(f"s_mul_i32 s25, s25, {WF_KS}")
    a("s_add_u32 s24, s24, s25")
    a("s_and_b32 s25, s14, 31")
    a("s_lshl_b32 s25, s25, 8")
    a("s_add_u32 s24, s24, s25")
    if WF_BASE: a(f"s_add_u32 s24, s24, {WF_BASE}")
    a("s_waitcnt vmcnt(0) lgkmcnt(0)")
    OUT = 32
    FR = 32
    for dd in range(8):
        q = dd >> 1; h = dd & 1
        for e in range(4):
            r0 = RAW + 4 * (2 * e) + q
            r1 = RAW + 4 * (2 * e + 1) + q
            a(f"v_perm_b32 v{FR+4*dd+e}, v{r1}, v{r0}, s{30+h}")
    for o in range(4):
        A = AF + 4 * o
        for dd in range(8):
            d = ACC + 4 * dd
            a(f"v_mfma_f32_16x16x32_bf16 v[{d}:{d+3}], v[{A}:{A+3}], v[{FR+4*dd}:{FR+4*dd+3}], 0")
        ob = RAW + 16 * (o & 1)
        for rp in range(4):
            for q in range(4):
                a(f"v_cvt_pk_bf16_f32 v{ob+4*rp+q}, v{ACC+8*q+rp}, v{ACC+8*q+4+rp}")
        for rp in range(4):
            off = (8 * o + (rp >> 1)) * WF_K + (rp & 1) * 8192
            a(f"s_add_u32 s25, s24, {off}")
            r = ob + 4 * rp
            a(f"buffer_store_dwordx4 v[{r}:{r+3}], v{vSt}, s[16:19], s25 offen {CFG['k12_st']}")
    a.label("L_k12_end")
    a("s_endpgm")
    return name, a.lines, NV, (NX + NW, 256, 16384)

STAMP_BASE = 200 << 20
def add_timeline(name, lines, kidx):
    out = []
    started = False
    n = 0
    for l in lines:
        t = l.strip()
        out.append(l)
        if not started and t == name + ':':
            out.append("    s_memrealtime s[92:93]")
            out.append("    v_lshrrev_b32 v1, 6, v0")
            out.append("    s_nop 1")
            out.append("    v_readfirstlane_b32 s91, v1")
            out.append("    s_waitcnt lgkmcnt(0)")
            started = True
        if t == 's_endpgm':
            out.pop()
            n += 1
            out.append("    s_waitcnt vmcnt(0) lgkmcnt(0)")
            out.append("    s_memrealtime s[94:95]")
            out.append("    s_load_dwordx2 s[80:81], s[0:1], 48")
            out.append("    s_mov_b64 exec, -1")
            out.append("    s_waitcnt lgkmcnt(0)")
            out.append("    s_mov_b32 s84, s80"); out.append("    s_and_b32 s85, s81, 0xffff")
            out.append(f"    s_mov_b32 s86, {WS_BYTES}"); out.append("    s_mov_b32 s87, 0x00020000")
            out.append("    s_lshl_b32 s88, s2, 4"); out.append("    s_add_u32 s88, s88, s91"); out.append("    s_lshl_b32 s88, s88, 4")
            out.append(f"    s_add_u32 s88, s88, {STAMP_BASE + kidx * (1 << 20)}")
            out.append("    v_mov_b32 v0, s92"); out.append("    v_mov_b32 v1, s93"); out.append("    v_mov_b32 v2, s94"); out.append("    v_mov_b32 v3, s95")
            out.append("    v_mov_b32 v4, 0")
            out.append("    buffer_store_dwordx4 v[0:3], v4, s[84:87], s88 offen")
            out.append("    s_endpgm")
    return out

def build(kernels):
    if CFG['timeline']:
        kernels = [(n, add_timeline(n, l, i), nv, g) for i, (n, l, nv, g) in enumerate(kernels)]
    hdr = open(os.path.join(os.path.dirname(os.path.abspath(__file__)), '..', NAME + '.s.ref')).read().split('\n')
    out = []
    for l in hdr:
        if l.startswith('; Override launch') or l.startswith('; grid=ceil') or l.startswith('; @launch'): continue
        if l.startswith(';'): out.append(l)
        else: break
    for (name, lines, nv, (g, blk, lds)) in kernels:
        out.append(f"; @launch kernel={name} grid=({g},1,1) block=({blk},1,1) lds={lds}")
    out.append('.amdgcn_target "amdgcn-amd-amdhsa--gfx950"')
    out.append('.text')
    for (name, lines, nv, _) in kernels:
        out += hazard_pass(lines)
    out.append('L_code_end:')
    out.append('    s_endpgm')
    out.append('.section .rodata,"a"')
    for (name, lines, nv, _) in kernels:
        out.append('.p2align 6')
        out.append(kernel_desc(name, nv))
    return '\n'.join(out) + '\n'

if __name__ == '__main__':
    from gen_k3 import gen_k3
    from gen_k45 import gen_k4, gen_k5
    from gen_k3b import gen_k3b
    from gen_k123 import gen_k123
    from gen_k3h import gen_k3h
    from gen_k3w import gen_k3w
    if CFG['wfuse']:
        ks = [gen_k12(), gen_k3w(), gen_k4(), gen_k5()]
    elif CFG['half']:
        ks = [gen_k12(), gen_k3h(), gen_k4(), gen_k5()]
    elif CFG['fused']:
        ks = [gen_k123(), gen_k4(), gen_k5()]
    else:
        ks = [gen_k12(), gen_k3b() if CFG['k3b'] else gen_k3(), gen_k4(), gen_k5()]
    if CFG['k12p']:
        from gen_k12p import gen_k12p
        ks[0] = gen_k12p()
    if CFG['k12q']:
        from gen_k12q import gen_k12q
        ks[0] = gen_k12q()
    if CFG['k3c']:
        from gen_k3c import gen_k3c
        ks[1] = gen_k3c()
    if CFG['fuse12']:
        from gen_fuse import gen_fused
        ks = [gen_fused()] + ks[2:]
    if CFG['fuse12'] and CFG['fuse45']:
        ks = ks[:1]
    elif CFG['k45g']:
        from gen_k45g import gen_k45g
        ks = ks[:-2] + [gen_k45g()]
    elif CFG['k45f']:
        from gen_k45 import gen_k45f
        ks = ks[:-2] + [gen_k45f()]
    dst = sys.argv[1] if len(sys.argv) > 1 else os.path.join(os.path.dirname(os.path.abspath(__file__)), '..', NAME + '.s')
    open(dst, 'w').write(build(ks))
    print('wrote', dst)
```

```python
from asmlib import *
import gen as G
import math, struct
f2h = lambda x: "0x%08x" % struct.unpack('<I', struct.pack('<f', x))[0]

RAW = 0
AF = 64
BF = 88
ACC = 104
VT = 200
NG = 28
L_TAB = 0; L_PART = 8192; L_SUM = L_PART + 6 * 4096; L_OFF = L_SUM + 1024
LDS = L_OFF + 6 * 8192

def hreg(o, dd, rp): return ACC + (o * 8 + dd) * 4 + rp

YFLAG_BASE = 152 << 20

def gen_k45g(cfg=None, a=None):
    cfg = cfg or G.CFG
    fused = a is not None
    if not fused: a = Asm()
    def st(i):
        if cfg.get('fstamp'):
            a("s_memrealtime s[70:71]"); a("s_waitcnt lgkmcnt(0)"); a(f"v_writelane_b32 v244, s70, {i}")
    name = 'final_kernel'
    vLane = VT; vR = VT+1; vG = VT+2; vOff = VT+3; vT0 = VT+4
    VTID4 = 214; PA = 216; PB = 224; GB = 232
    if fused:
        a(f"s_cmp_ge_u32 s11, {NG}")
        a("s_cbranch_scc1 L_k45_end")
        a("s_load_dwordx4 s[4:7], s[0:1], 16")
        a("s_load_dwordx2 s[28:29], s[0:1], 32")
        a("s_mov_b32 s12, s11")
        a("s_mov_b32 s11, s13")
        a("s_mov_b32 s13, s14")
        a(f"v_mbcnt_lo_u32_b32 v{vLane}, -1, 0")
        a(f"v_mbcnt_hi_u32_b32 v{vLane}, -1, v{vLane}")
        a("s_lshl_b32 s24, s10, 6")
        a(f"v_add_u32 v{VTID4}, s24, v{vLane}")
        a(f"v_lshlrev_b32 v{VTID4}, 2, v{VTID4}")
        a(f"v_and_b32 v{vR}, 15, v{vLane}")
        a(f"v_lshrrev_b32 v{vG}, 4, v{vLane}")
        a("s_mul_i32 s14, s12, 6")
        a("s_add_u32 s14, s14, s10")
    else:
        G.kernel_header(a, name)
        st(0)
        a(f"s_cmp_ge_u32 s2, {2*NG*4}")
        a("s_cbranch_scc1 L_k45_end")
        a("s_load_dwordx2 s[8:9], s[0:1], 48")
        a("s_load_dwordx4 s[4:7], s[0:1], 16")
        a("s_load_dwordx2 s[28:29], s[0:1], 32")
        a(f"v_lshrrev_b32 v{vT0}, 6, v0")
        a(f"v_and_b32 v{vLane}, 63, v0")
        a(f"v_readfirstlane_b32 s10, v{vT0}")
        if cfg.get('pf_code'):
            a("s_cmp_ge_u32 s2, 8"); a("s_cbranch_scc1 L_nopf45")
            a("s_cmp_lg_u32 s10, 7"); a("s_cbranch_scc1 L_nopf45")
            G.prefetch_code(a, "k45", "final_kernel", "L_code_end", 3, ACC + 8, sp=60)
            a.label("L_nopf45")
        a(f"v_lshlrev_b32 v{VTID4}, 2, v0")
        a(f"v_and_b32 v{vR}, 15, v{vLane}")
        a(f"v_lshrrev_b32 v{vG}, 4, v{vLane}")
        a("s_and_b32 s13, s2, 3")
        a("s_lshr_b32 s12, s2, 2")
        a(f"s_cmp_ge_u32 s12, {NG}")
        a("s_cselect_b32 s11, 1, 0")
        a(f"s_mul_i32 s15, s11, {NG}")
        a("s_sub_u32 s12, s12, s15")
        a("s_mul_i32 s14, s12, 6")
        a("s_add_u32 s14, s14, s10")
    if cfg['y3']:
        a(f"s_mov_b32 s24, {8*G.YJ3}")
        a(f"v_mul_u32_u24 v{vOff}, s24, v{vG}")
        a(f"v_lshrrev_b32 v{vT0+1}, 2, v{vR}")
        a(f"s_mov_b32 s24, {G.YS3}")
        a(f"v_mad_u32_u24 v{vOff}, v{vT0+1}, s24, v{vOff}")
        a(f"v_and_b32 v{vT0+1}, 3, v{vR}")
        a(f"v_lshl_add_u32 v{vOff}, v{vT0+1}, 4, v{vOff}")
        a(f"s_mul_i32 s24, s11, {G.YB3}")
        a(f"s_mul_i32 s25, s13, {4*G.YS3}")
        a("s_add_u32 s24, s24, s25")
        a("s_lshl_b32 s25, s14, 6")
        a("s_add_u32 s24, s24, s25")
        a(f"s_add_u32 s24, s24, {G.YF_BASE}")
    else:
        a(f"s_mov_b32 s24, {8*G.YF_J}")
        a(f"v_mul_u32_u24 v{vOff}, s24, v{vG}")
        a(f"v_lshl_add_u32 v{vOff}, v{vR}, 4, v{vOff}")
        a(f"s_mul_i32 s24, s11, {G.YF_B}")
        a(f"s_mul_i32 s25, s14, {G.YF_ROW}")
        a("s_add_u32 s24, s24, s25")
        a("s_lshl_b32 s25, s13, 8")
        a("s_add_u32 s24, s24, s25")
        a(f"s_add_u32 s24, s24, {G.YF_BASE}")
    a("s_mov_b32 s30, 0x05040100")
    a("s_mov_b32 s31, 0x07060302")
    a("s_waitcnt lgkmcnt(0)")
    st(6)
    if not fused: G.make_srd(a, 16, 8, 9, G.WS_BYTES)
    a("s_cmp_ge_u32 s10, 6")
    a("s_cbranch_scc1 L_k45_gb")
    if fused:
        a("s_lshl_b32 s26, s13, 8")
        a(f"s_add_u32 s26, s26, {YFLAG_BASE}")
        a(f"v_lshlrev_b32 v{vT0+1}, 2, v{vLane}")
        a(f"s_mov_b32 s33, {1 << 15}")
        a.label("L_k45_ypoll")
        a(f"buffer_load_dword v{vT0+2}, v{vT0+1}, s[16:19], s26 offen sc1")
        a("s_waitcnt vmcnt(0)")
        a(f"v_cmp_ne_u32 vcc, s54, v{vT0+2}")
        a("s_cmp_eq_u64 vcc, 0")
        a("s_cbranch_scc1 L_k45_yok")
        a("s_sub_u32 s33, s33, 1")
        a("s_cmp_eq_u32 s33, 0")
        a("s_cbranch_scc1 L_k45_yok")
        if cfg.get('fz_ysleep'): a(f"s_sleep {cfg['fz_ysleep']}")
        a("s_branch L_k45_ypoll")
        a.label("L_k45_yok")
    for s in range(2):
        for i in range(8):
            r = RAW + 4 * (8 * s + i)
            a(f"s_add_u32 s25, s24, {(32*s+i)*(G.YJ3 if cfg['y3'] else G.YF_J)}")
            a(f"buffer_load_dwordx4 v[{r}:{r+3}], v{vOff}, s[16:19], s25 offen")
    st(8)
    vN = vT0; vA = vT0+1; vP = BF
    a("s_lshr_b32 s27, s10, 1")
    a("s_and_b32 s33, s10, 1")
    a("s_lshl_b32 s27, s27, 4")
    a(f"v_add_u32 v{vN}, s27, v{vR}")
    a("s_lshl_b32 s33, s33, 5")
    a("s_add_u32 s33, s33, 1")
    a(f"v_lshlrev_b32 v{vA}, 3, v{vG}")
    a(f"v_add_u32 v{vA}, s33, v{vA}")
    for e2 in range(4):
        a(f"v_mul_u32_u24 v{vP+2*e2}, v{vA}, v{vN}")
        a(f"v_add_u32 v{vP+2*e2+1}, 32, v{vP+2*e2}")
        if e2 < 3: a(f"v_add_u32 v{vA}, 2, v{vA}")
    G.cos_table(a, None, [vP+e for e in range(8)], ACC, ACC+4, scale="0x3d000000")
    a("s_lshl_b32 s26, s10, 10")
    a(f"v_lshlrev_b32 v{vT0+3}, 4, v{vLane}")
    a(f"v_add_u32 v{vT0+3}, s26, v{vT0+3}")
    a(f"ds_write_b128 v{vT0+3}, v[{ACC}:{ACC+3}] offset:{L_TAB}")
    a.label("L_k45_gb")
    if cfg.get('pf_tlb'):
        a("s_cmp_lg_u32 s10, 6"); a("s_cbranch_scc1 L_notlb45")
        a(f"s_mul_i32 s24, s11, {G.OUT_B}")
        a("s_add_u32 s40, s28, s24"); a("s_addc_u32 s41, s29, 0")
        G.make_srd(a, 44, 40, 41, G.OUT_B)
        a("s_mul_i32 s24, s12, %d" % (6 * 48 * 1024))
        a(f"v_lshlrev_b32 v{ACC+8}, 13, v{vLane}")
        a(f"buffer_load_dword v{ACC+9}, v{ACC+8}, s[44:47], s24 offen")
        a.label("L_notlb45")
    G.make_srd(a, 20, 4, 5, 1024)
    G.make_srd(a, 36, 6, 7, 1024)
    a(f"v_lshlrev_b32 v{vT0+6}, 4, v{vR}")
    a("s_lshl_b32 s25, s13, 8")
    a(f"buffer_load_dwordx4 v[{GB}:{GB+3}], v{vT0+6}, s[20:23], s25 offen")
    a(f"buffer_load_dwordx4 v[{GB+4}:{GB+7}], v{vT0+6}, s[36:39], s25 offen")
    st(1)
    a("s_waitcnt lgkmcnt(0)")
    a("s_barrier")
    a("s_cmp_ge_u32 s10, 6")
    a("s_cbranch_scc1 L_k45_red2")
    a(f"v_lshlrev_b32 v{vT0+3}, 4, v{vLane}")
    for o in range(3):
        for s in range(2):
            r = AF + 4 * (2 * o + s)
            a(f"ds_read_b128 v[{r}:{r+3}], v{vT0+3} offset:{L_TAB+(2*o+s)*1024}")
    S1 = PA; S2 = PB
    a(f"s_cmp_ge_u32 s14, {G.NBLK}")
    a("s_cbranch_scc1 L_k45_zero")
    a("s_waitcnt lgkmcnt(0)")
    a(f"s_cmp_lg_u32 s14, {G.NBLK-1}")
    a("s_cbranch_scc1 L_k45_full")
    lastn = G.L_OUT - 48 * (G.NBLK - 1)
    for o in range(3):
        nvalid = lastn - 16 * o
        a(f"v_cmp_gt_i32 vcc, {max(nvalid,0)}, v{vR}")
        for r in range(8):
            a(f"v_cndmask_b32 v{AF+8*o+r}, 0, v{AF+8*o+r}, vcc")
    a.label("L_k45_full")
    a("s_waitcnt vmcnt(2)")
    st(2)
    for q in range(4):
        for s in range(2):
            for h in range(2):
                for e in range(4):
                    a(f"v_perm_b32 v{BF+(s*2+h)*4+e}, v{RAW+4*(8*s+2*e+1)+q}, v{RAW+4*(8*s+2*e)+q}, s{30+h}")
        for s in range(2):
            for o in range(3):
                for h in range(2):
                    d = ACC + (o * 8 + 2 * q + h) * 4
                    A = AF + 4 * (2 * o + s); B = BF + (s * 2 + h) * 4
                    c = "0" if s == 0 else f"v[{d}:{d+3}]"
                    a(f"v_mfma_f32_16x16x32_bf16 v[{d}:{d+3}], v[{A}:{A+3}], v[{B}:{B+3}], {c}")
    st(3)
    a("s_nop 7")
    for dd in range(8):
        first = True
        for o in range(3):
            for rp in range(4):
                h = hreg(o, dd, rp)
                if first:
                    a(f"v_mul_f32 v{S2+dd}, v{h}, v{h}"); a(f"v_mov_b32 v{S1+dd}, v{h}"); first = False
                else:
                    a(f"v_fmac_f32 v{S2+dd}, v{h}, v{h}"); a(f"v_add_f32 v{S1+dd}, v{S1+dd}, v{h}")
    a("s_branch L_k45_red")
    a.label("L_k45_zero")
    a("s_waitcnt vmcnt(0) lgkmcnt(0)")
    for r in range(8):
        a(f"v_mov_b32 v{S1+r}, 0"); a(f"v_mov_b32 v{S2+r}, 0")
    a.label("L_k45_red")
    st(4)
    a("s_lshl_b32 s25, s10, 12")
    a(f"v_lshlrev_b32 v{vT0}, 10, v{vG}")
    a(f"v_lshl_add_u32 v{vT0}, v{vR}, 5, v{vT0}")
    a(f"v_add_u32 v{vT0}, s25, v{vT0}")
    a(f"ds_write_b128 v{vT0}, v[{S1}:{S1+3}] offset:{L_PART}")
    a(f"ds_write_b128 v{vT0}, v[{S1+4}:{S1+7}] offset:{L_PART+16}")
    a(f"ds_write_b128 v{vT0}, v[{S2}:{S2+3}] offset:{L_PART+512}")
    a(f"ds_write_b128 v{vT0}, v[{S2+4}:{S2+7}] offset:{L_PART+512+16}")
    a.label("L_k45_red2")
    a("s_waitcnt lgkmcnt(0)")
    a("s_barrier")
    def offload():
        a("s_lshl_b32 s25, s10, 13")
        a(f"v_lshlrev_b32 v{vT0+1}, 4, v{vLane}")
        a(f"v_add_u32 v{vT0+1}, s25, v{vT0+1}")
        for dd in range(8):
            a(f"ds_write2_b32 v{vT0+1}, v{hreg(0,dd,3)}, v{hreg(1,dd,3)} offset0:0 offset1:1") if False else None
            for o in range(3):
                a(f"ds_write_b32 v{vT0+1}, v{hreg(o,dd,3)} offset:{L_OFF+dd*1024+4*o}")
    a(f"s_mul_i32 s24, s11, {4*NG}")
    a(f"s_mul_i32 s25, s13, {NG}")
    a("s_add_u32 s24, s24, s25")
    a("s_lshl_b32 s26, s24, 10")
    a(f"s_add_u32 s26, s26, {G.PART_BASE}")
    a("s_cmp_ge_u32 s10, 6")
    a("s_cbranch_scc1 L_k45_sumdone")
    a("s_cmp_lt_u32 s10, 4")
    a("s_cbranch_scc1 L_k45_red4")
    offload()
    a("s_branch L_k45_sumdone")
    a.label("L_k45_red4")
    for p in range(24):
        a(f"ds_read_b32 v{RAW+16+p}, v{VTID4} offset:{L_PART+p*1024}")
    a("s_waitcnt lgkmcnt(0)")
    vals = [RAW + 16 + p for p in range(24)]
    while len(vals) > 1:
        nv = []
        for i in range(0, len(vals) - 1, 2):
            a(f"v_add_f32 v{vals[i]}, v{vals[i]}, v{vals[i+1]}"); nv.append(vals[i])
        if len(vals) & 1: nv.append(vals[-1])
        vals = nv
    a("s_lshl_b32 s24, s12, 10")
    a("s_add_u32 s24, s24, s26")
    a(f"buffer_store_dword v{vals[0]}, v{VTID4}, s[16:19], s24 offen sc1")
    st(5)
    offload()
    PT = RAW
    a(f"s_mov_b32 s33, {1 << 14}")
    a.label("L_k45_poll")
    a("s_mov_b32 s27, s26")
    for p in range(NG):
        if p % 4 == 0 and p: a("s_add_u32 s27, s27, 4096")
        a(f"buffer_load_dword v{PT+p}, v{VTID4}, s[16:19], s27 offen offset:{(p%4)*1024} sc1")
    a("s_waitcnt vmcnt(0)")
    t = RAW + 32
    a(f"v_max3_u32 v{t}, v{PT}, v{PT+1}, v{PT+2}")
    for p in range(3, NG - 1, 2):
        a(f"v_max3_u32 v{t}, v{t}, v{PT+p}, v{PT+p+1}")
    a(f"v_max_u32 v{t}, v{t}, v{PT+NG-1}")
    a(f"v_cmp_eq_u32 vcc, -1, v{t}")
    a("s_cmp_eq_u64 vcc, 0")
    a("s_cbranch_scc1 L_k45_got")
    a("s_sub_u32 s33, s33, 1")
    a("s_cmp_eq_u32 s33, 0")
    a("s_cbranch_scc1 L_k45_got")
    if cfg.get('k45_sleep'): a(f"s_sleep {cfg['k45_sleep']}")
    a("s_branch L_k45_poll")
    a.label("L_k45_got")
    st(7)
    vals = [PT + p for p in range(NG)]
    while len(vals) > 1:
        nv = []
        for i in range(0, len(vals) - 1, 2):
            a(f"v_add_f32 v{vals[i]}, v{vals[i]}, v{vals[i+1]}"); nv.append(vals[i])
        if len(vals) & 1: nv.append(vals[-1])
        vals = nv
    a(f"ds_write_b32 v{VTID4}, v{vals[0]} offset:{L_SUM}")
    a.label("L_k45_sumdone")
    st(9)
    a("s_waitcnt lgkmcnt(0)")
    a("s_barrier")
    a("s_cmp_lt_u32 s10, 6")
    a("s_cbranch_scc1 L_k45_nohread")
    a("s_waitcnt vmcnt(0)")
    a("s_sub_u32 s25, s10, 6")
    a("s_mul_i32 s25, s25, 3")
    a("s_lshl_b32 s25, s25, 13")
    a(f"v_lshlrev_b32 v{vT0+1}, 4, v{vLane}")
    a(f"v_add_u32 v{vT0+1}, s25, v{vT0+1}")
    for j in range(3):
        for dd in range(8):
            h = hreg(j, dd, 0)
            a(f"ds_read_b96 v[{h}:{h+2}], v{vT0+1} offset:{L_OFF+j*8192+dd*1024}")
        a("s_waitcnt lgkmcnt(0)") if j < 2 else None
    a.label("L_k45_nohread")
    ST = RAW + 44
    a(f"v_lshlrev_b32 v{vT0+6}, 5, v{vR}")
    a(f"ds_read_b128 v[{ST}:{ST+3}], v{vT0+6} offset:{L_SUM}")
    a(f"ds_read_b128 v[{ST+4}:{ST+7}], v{vT0+6} offset:{L_SUM+16}")
    a(f"ds_read_b128 v[{ST+8}:{ST+11}], v{vT0+6} offset:{L_SUM+512}")
    a(f"ds_read_b128 v[{ST+12}:{ST+15}], v{vT0+6} offset:{L_SUM+512+16}")
    a(f"s_mov_b32 s24, {f2h(1.0 / G.L_OUT)}")
    a("s_mov_b32 s25, 0x3727c5ac")
    a("s_waitcnt vmcnt(0) lgkmcnt(0)")
    for dd in range(8):
        mu = ST + dd; m2 = ST + 8 + dd
        a(f"v_mul_f32 v{mu}, s24, v{mu}")
        a(f"v_mul_f32 v{m2}, s24, v{m2}")
        a(f"v_fma_f32 v{m2}, -v{mu}, v{mu}, v{m2}")
        a(f"v_max_f32 v{m2}, 0, v{m2}")
        a(f"v_add_f32 v{m2}, s25, v{m2}")
        a(f"v_rsq_f32 v{m2}, v{m2}")
        gsrc = GB + (dd >> 1); bsrc = GB + 4 + (dd >> 1)
        if dd & 1:
            a(f"v_and_b32 v{PA+dd}, 0xffff0000, v{gsrc}"); a(f"v_and_b32 v{PB+dd}, 0xffff0000, v{bsrc}")
        else:
            a(f"v_lshlrev_b32 v{PA+dd}, 16, v{gsrc}"); a(f"v_lshlrev_b32 v{PB+dd}, 16, v{bsrc}")
        a(f"v_mul_f32 v{PA+dd}, v{PA+dd}, v{m2}")
        a(f"v_fma_f32 v{PB+dd}, -v{mu}, v{PA+dd}, v{PB+dd}")
    a(f"s_mul_i32 s24, s11, {G.OUT_B}")
    a("s_add_u32 s28, s28, s24")
    a("s_addc_u32 s29, s29, 0")
    G.make_srd(a, 32, 28, 29, G.OUT_B)
    vO = vT0 + 6
    a("s_lshl_b32 s25, s13, 8")
    a(f"v_lshlrev_b32 v{vO}, 12, v{vG}")
    a(f"v_lshl_add_u32 v{vO}, v{vR}, 4, v{vO}")
    a(f"v_add_u32 v{vO}, s25, v{vO}")
    c0 = -2.0 * math.log2(math.e) * math.sqrt(2.0 / math.pi); c1 = c0 * 0.044715
    a(f"s_mov_b32 s26, {f2h(c1)}")
    a(f"v_mov_b32 v{vT0+7}, {f2h(c0)}")
    st(10)
    T0 = RAW
    cnt = [0]
    def gelu_row(regs, sreg):
        ob = RAW + 16 + 4 * (cnt[0] % 8); cnt[0] += 1
        for dd in range(8): a(f"v_fma_f32 v{regs[dd]}, v{regs[dd]}, v{PA+dd}, v{PB+dd}")
        for dd in range(8): a(f"v_mul_f32 v{T0+dd}, v{regs[dd]}, v{regs[dd]}")
        for dd in range(8): a(f"v_fma_f32 v{T0+dd}, v{T0+dd}, s26, v{vT0+7}")
        for dd in range(8): a(f"v_mul_f32 v{T0+dd}, v{T0+dd}, v{regs[dd]}")
        for dd in range(8): a(f"v_exp_f32 v{T0+dd}, v{T0+dd}")
        for dd in range(8): a(f"v_add_f32 v{T0+dd}, 1.0, v{T0+dd}")
        for dd in range(8): a(f"v_rcp_f32 v{T0+dd}, v{T0+dd}")
        for dd in range(8): a(f"v_mul_f32 v{T0+dd}, v{T0+dd}, v{regs[dd]}")
        for q in range(4): a(f"v_cvt_pk_bf16_f32 v{ob+q}, v{T0+2*q}, v{T0+2*q+1}")
        a(f"buffer_store_dwordx4 v[{ob}:{ob+3}], v{vO}, s[32:35], s{sreg} offen {cfg['k5_st']}")
    if cfg.get('gelu_loop'):
        a("s_cmp_ge_u32 s10, 6")
        a("s_cbranch_scc1 L_k45_hoff")
        a(f"s_cmp_ge_u32 s14, {G.NBLK}")
        a("s_cbranch_scc1 L_k45_fin")
        a("s_mul_i32 s52, s14, %d" % (48 * 1024))
        a(f"s_mov_b32 s53, {1*1024}"); a(f"s_mov_b32 s54, {14*1024}")
        a("s_branch L_k45_gelu")
        a.label("L_k45_hoff")
        a("s_sub_u32 s25, s10, 6")
        a("s_mul_i32 s25, s25, 3")
        a("s_mul_i32 s52, s12, 6")
        a("s_add_u32 s52, s52, s25")
        a("s_mul_i32 s52, s52, %d" % (48 * 1024))
        a(f"s_add_u32 s52, s52, {3*1024}")
        a(f"s_mov_b32 s53, {16*1024}"); a(f"s_mov_b32 s54, {16*1024}")
        a.label("L_k45_gelu")
        a("s_mov_b32 s55, 0")
        a("s_mov_b32 s56, 0")
        a("s_mov_b32 s57, 9")
        a.label("L_k45_gloop")
        H = [hreg(0, dd, 0) for dd in range(8)]
        ob = RAW + 16
        a("s_set_gpr_idx_on s55, gpr_idx(SRC0,DST)")
        for dd in range(8): a(f"v_fma_f32 v{H[dd]}, v{H[dd]}, v{PA+dd}, v{PB+dd}")
        a("s_set_gpr_idx_mode gpr_idx(SRC0,SRC1)")
        for dd in range(8): a(f"v_mul_f32 v{T0+dd}, v{H[dd]}, v{H[dd]}")
        a("s_set_gpr_idx_off")
        for dd in range(8): a(f"v_fma_f32 v{T0+dd}, v{T0+dd}, s26, v{vT0+7}")
        a("s_set_gpr_idx_on s55, gpr_idx(SRC0)")
        for dd in range(8): a(f"v_mul_f32 v{T0+dd}, v{H[dd]}, v{T0+dd}")
        a("s_set_gpr_idx_off")
        for dd in range(8): a(f"v_exp_f32 v{T0+dd}, v{T0+dd}")
        for dd in range(8): a(f"v_add_f32 v{T0+dd}, 1.0, v{T0+dd}")
        for dd in range(8): a(f"v_rcp_f32 v{T0+dd}, v{T0+dd}")
        a("s_set_gpr_idx_on s55, gpr_idx(SRC0)")
        for dd in range(8): a(f"v_mul_f32 v{T0+dd}, v{H[dd]}, v{T0+dd}")
        a("s_set_gpr_idx_off")
        for q in range(4): a(f"v_cvt_pk_bf16_f32 v{ob+q}, v{T0+2*q}, v{T0+2*q+1}")
        a(f"buffer_store_dwordx4 v[{ob}:{ob+3}], v{vO}, s[32:35], s52 offen {cfg['k5_st']}")
        a("s_add_u32 s55, s55, 1")
        a("s_add_u32 s56, s56, 1")
        a("s_cmp_eq_u32 s56, 3")
        a("s_cbranch_scc1 L_k45_gwrap")
        a("s_add_u32 s52, s52, s53")
        a("s_branch L_k45_gnext")
        a.label("L_k45_gwrap")
        a("s_add_u32 s52, s52, s54")
        a("s_add_u32 s55, s55, 29")
        a("s_mov_b32 s56, 0")
        a.label("L_k45_gnext")
        a("s_sub_u32 s57, s57, 1")
        a("s_cmp_lg_u32 s57, 0")
        a("s_cbranch_scc1 L_k45_gloop")
    else:
        a("s_cmp_ge_u32 s10, 6")
        a("s_cbranch_scc1 L_k45_hoff")
        a(f"s_cmp_ge_u32 s14, {G.NBLK}")
        a("s_cbranch_scc1 L_k45_fin")
        a("s_mul_i32 s24, s14, %d" % (48 * 1024))
        for jj in range(3):
            for rr in range(3): a(f"s_add_u32 s{52+3*jj+rr}, s24, {(16*jj+rr)*1024}")
        a("s_branch L_k45_gelu")
        a.label("L_k45_hoff")
        a("s_sub_u32 s25, s10, 6")
        a("s_mul_i32 s25, s25, 3")
        a("s_mul_i32 s24, s12, 6")
        a("s_add_u32 s24, s24, s25")
        a("s_mul_i32 s24, s24, %d" % (48 * 1024))
        for jj in range(3):
            for rr in range(3): a(f"s_add_u32 s{52+3*jj+rr}, s24, {(48*jj+16*rr+3)*1024}")
        a.label("L_k45_gelu")
        for jj in range(3):
            for rr in range(3):
                gelu_row([hreg(jj, dd, rr) for dd in range(8)], 52 + 3 * jj + rr)
    a.label("L_k45_fin")
    st(11)
    if cfg.get('fstamp'):
        a("s_waitcnt vmcnt(0)")
        st(12)
        a("s_lshl_b32 s73, s2, 3"); a("s_add_u32 s73, s73, s10"); a("s_lshl_b32 s73, s73, 8")
        a(f"s_add_u32 s73, s73, {214 << 20}")
        a(f"v_lshlrev_b32 v245, 2, v{vLane}")
        a("buffer_store_dword v244, v245, s[16:19], s73 offen")
    a.label("L_k45_end")
    a("s_endpgm")
    if fused: return None
    return name, a.lines, 248 if cfg.get('fstamp') else 240, (2 * NG * 4, 512, LDS)
```

```python
from asmlib import *
import gen as G
import gen_k3c as K3
from gen_k3c import STAGE, NSTAGE, LDS_BYTES, XC
from gen_k123 import VQ, Null

FLAG_BASE = 150 << 20
SPIN_MAX = 1 << 15
NX = 672; NW = 1024; NT = NX + NW; NWG = 256
CH = 212
TB = 3 * STAGE

def xform_phase(a, cfg):
    st = cfg['k12_st']; ld = cfg.get('k12_ld', '')
    BUF = [0 + 8, 64 + 8]; AF = 136; BF = 168; ACC = 184; VT = 216
    vR = VT+1; vG = VT+2; vSt = VT+4; vT0 = VT+5
    vNext = VT + 13; vZ = VT + 14; vL16 = VT + 15
    vXo = VT + 16; vWo = VT + 17; vXs = VT + 18; vWs = VT + 19; vNon = VT + 20; vTag = VT + 21
    vPA0 = VT + 22; vP0 = 240
    EARLY = cfg.get('fz_early')
    sCur, sNxt = 40, 42
    sRawCur, sRawNxt, sNon, sRawPrev = 52, 53, 54, 55
    uid = [0]
    NF = cfg.get('k12_nf', 96)
    PAT = cfg.get('fz_pat')
    def remap(sr):
        u = uid[0]; uid[0] += 1
        if PAT:
            per, nx = PAT
            nper = (NX + nx - 1) // nx
            assert NX % nx == 0
            head = nper * per
            magic = ((1 << 20) + per - 1) // per
            assert all(((p * magic) >> 20) == p // per for p in range(head))
            a(f"s_cmp_ge_u32 s{sr}, {head}")
            a(f"s_cbranch_scc1 L_rm{u}")
            a(f"s_mul_i32 s26, s{sr}, {magic}")
            a("s_lshr_b32 s26, s26, 20")
            a(f"s_mul_i32 s27, s26, {per}")
            a(f"s_sub_u32 s27, s{sr}, s27")
            a(f"s_mul_i32 s28, s26, {per-nx}"); a("s_add_u32 s28, s28, s27"); a(f"s_add_u32 s28, s28, {NX}")
            a(f"s_mul_i32 s29, s26, {nx}"); a("s_add_u32 s29, s29, s27"); a(f"s_sub_u32 s29, s29, {per-nx}")
            a(f"s_cmp_lt_u32 s27, {per-nx}")
            a(f"s_cselect_b32 s{sr}, s28, s29")
            a.label(f"L_rm{u}")
            return
        a(f"s_cmp_ge_u32 s{sr}, {NF + NX}")
        a(f"s_cbranch_scc1 L_rm{u}")
        a(f"s_sub_u32 s28, s{sr}, {NF}")
        a(f"s_add_u32 s29, s{sr}, {NX}")
        a(f"s_cmp_ge_u32 s{sr}, {NF}")
        a(f"s_cselect_b32 s{sr}, s28, s29")
        a.label(f"L_rm{u}")
    def zs(i):
        if cfg.get('zstamp'):
            a("s_memrealtime s[70:71]"); a("s_waitcnt lgkmcnt(0)"); a(f"v_writelane_b32 v240, s70, {i}")
    def zsn():
        if cfg.get('zstamp'):
            a("s_memrealtime s[70:71]"); a("s_waitcnt lgkmcnt(0)"); a("s_mov_b32 m0, s72"); a("v_writelane_b32 v240, s70, m0"); a("s_add_u32 s72, s72, 1")
    if cfg.get('zstamp'):
        a("v_mov_b32 v240, 0"); a("v_mov_b32 v241, 0"); a("v_mov_b32 v242, 0"); a("s_mov_b32 s72, 8")
    zs(0)
    a(f"v_and_b32 v{vR}, 15, v0")
    a(f"v_lshrrev_b32 v{vG}, 4, v0")
    a(f"v_lshlrev_b32 v{vL16}, 4, v0")
    a(f"v_add_u32 v{vL16}, {TB}, v{vL16}")
    a(f"v_mov_b32 v{vZ}, 0")
    a(f"v_lshlrev_b32 v{vPA0}, 4, v0")
    a("s_mov_b32 s30, 0x05040100")
    a("s_mov_b32 s31, 0x07060302")
    a("s_mov_b32 s32, 0x01000100")
    a("s_mov_b32 s33, 0x03020302")
    a(f"s_mov_b32 s{sCur}, s2")
    a(f"s_add_u32 s{sNxt}, s2, {NWG}")
    a(f"s_mov_b32 s{sRawPrev}, -1")
    a(f"s_mov_b32 s41, {TB + 12288}")
    a("s_mov_b32 s43, 0")
    a(f"v_lshlrev_b32 v{vXo}, 14, v{vG}")
    a(f"v_lshl_add_u32 v{vXo}, v{vR}, 4, v{vXo}")
    a(f"v_lshlrev_b32 v{vWo}, 22, v{vG}")
    a(f"v_lshrrev_b32 v{vT0}, 2, v{vR}")
    a(f"v_lshl_add_u32 v{vWo}, v{vT0}, 6, v{vWo}")
    a(f"v_and_b32 v{vT0}, 1, v{vR}")
    a(f"v_lshl_add_u32 v{vWo}, v{vT0}, 5, v{vWo}")
    a(f"v_bfe_u32 v{vT0}, v{vR}, 1, 1")
    a(f"v_lshl_add_u32 v{vWo}, v{vT0}, 3, v{vWo}")
    a(f"v_lshrrev_b32 v{vT0}, 2, v{vR}")
    a(f"s_mov_b32 s24, {G.XF_KS}")
    a(f"v_mul_u32_u24 v{vXs}, s24, v{vT0}")
    a(f"s_mov_b32 s24, {2*G.XF_K}")
    a(f"v_mad_u32_u24 v{vXs}, v{vG}, s24, v{vXs}")
    a(f"s_mov_b32 s24, {2*G.WF_K}")
    a(f"v_mul_u32_u24 v{vWs}, s24, v{vG}")
    remap(sCur); remap(sNxt)
    a("s_waitcnt lgkmcnt(0)")
    G.make_srd(a, 16, 38, 39, G.WS_BYTES)
    G.make_srd(a, 44, 36, 37, 256)
    a("s_or_b32 s24, s2, s10")
    a("s_cmp_lg_u32 s24, 0")
    a("s_cbranch_scc1 L_nononce")
    a("s_memrealtime s[24:25]")
    a("s_waitcnt lgkmcnt(0)")
    a("s_or_b32 s24, s24, 1")
    a(f"v_mov_b32 v{vTag}, s24")
    a("s_mov_b64 exec, 1")
    a(f"buffer_store_dword v{vTag}, v{vZ}, s[44:47], 0 offen offset:128 sc1")
    a("s_mov_b64 exec, -1")
    a.label("L_nononce")
    a(f"s_mov_b32 s{sNon}, 0")
    def issue_loads(sIdx, buf):
        u = uid[0]; uid[0] += 1
        a(f"s_cmp_ge_u32 s{sIdx}, {NT}")
        a(f"s_cbranch_scc1 L_ld_done{u}")
        a(f"s_cmp_ge_u32 s{sIdx}, {NX}")
        a(f"s_cbranch_scc1 L_ld_w{u}")
        a(f"s_cmp_ge_u32 s{sIdx}, 336")
        a("s_cselect_b32 s11, 1, 0")
        a("s_mul_i32 s12, s11, 336")
        a(f"s_sub_u32 s12, s{sIdx}, s12")
        a("s_and_b32 s13, s12, 7")
        a("s_lshr_b32 s14, s12, 3")
        a("s_lshl_b32 s14, s14, 2")
        a("s_add_u32 s14, s14, s10")
        a(f"s_mul_i32 s15, s11, {G.X_BYTES_B}")
        a("s_add_u32 s34, s4, s15")
        a("s_addc_u32 s35, s5, 0")
        G.make_srd(a, 20, 34, 35, G.X_BYTES_B)
        a("s_mul_i32 s15, s14, %d" % (48 * 2048))
        a("s_lshl_b32 s24, s13, 8")
        a("s_add_u32 s15, s15, s24")
        for s in range(2):
            for i in range(8):
                r = buf + 4 * (8 * s + i)
                a(f"s_add_u32 s25, s15, {(32*s+i)*2048}")
                a(f"buffer_load_dwordx4 v[{r}:{r+3}], v{vXo}, s[20:23], s25 offen {ld}")
        a(f"s_branch L_ld_done{u}")
        a.label(f"L_ld_w{u}")
        a(f"s_sub_u32 s12, s{sIdx}, {NX}")
        a("s_and_b32 s13, s12, 3")
        a("s_lshr_b32 s14, s12, 2")
        a("s_lshl_b32 s14, s14, 2")
        a("s_add_u32 s14, s14, s10")
        G.make_srd(a, 20, 6, 7, G.W_BYTES)
        a("s_lshl_b32 s15, s14, 10")
        a("s_lshl_b32 s24, s13, 8")
        a("s_add_u32 s15, s15, s24")
        for i in range(4):
            r = buf + 4 * i
            a(f"s_add_u32 s25, s15, {i << 20}")
            a(f"buffer_load_dwordx2 v[{r}:{r+1}], v{vWo}, s[20:23], s25 offen {ld}")
            a(f"buffer_load_dwordx2 v[{r+2}:{r+3}], v{vWo}, s[20:23], s25 offen offset:16 {ld}")
        a.label(f"L_ld_done{u}")
    if cfg.get('fuse45'):
        K3.ws_fill(a, sw=10)
    issue_loads(sCur, BUF[0])
    vA = vT0; vC = vT0+1; vP = BF
    a(f"v_lshrrev_b32 v{vA}, 2, v{vR}")
    a(f"v_lshlrev_b32 v{vA}, 1, v{vA}")
    a(f"v_bfe_u32 v{vC}, v{vR}, 1, 1")
    a(f"v_add_u32 v{vA}, v{vA}, v{vC}")
    a("s_lshl_b32 s24, s10, 3")
    a(f"v_add_u32 v{vA}, s24, v{vA}")
    a(f"v_lshl_add_u32 v{vA}, v{vA}, 1, 1")
    a(f"v_and_b32 v{vC}, 1, v{vR}")
    a(f"v_lshlrev_b32 v{vC}, 5, v{vC}")
    for s in range(2):
        a(f"v_lshlrev_b32 v{vT0+2}, 3, v{vG}")
        if s: a(f"v_add_u32 v{vT0+2}, 32, v{vT0+2}")
        a(f"v_mad_u32_u24 v{vP}, v{vA}, v{vT0+2}, v{vC}")
        for e in range(1, 8): a(f"v_add_u32 v{vP+e}, v{vP+e-1}, v{vA}")
        G.cos_table(a, None, [vP+e for e in range(8)], ACC, ACC+4)
        a("s_lshl_b32 s24, s10, 11")
        a(f"v_add_u32 v{vT0+3}, s24, v{vL16}")
        a(f"ds_write_b128 v{vT0+3}, v[{ACC}:{ACC+3}] offset:{s*1024}")
    a(f"v_lshlrev_b32 v{vT0+2}, 2, v{vG}")
    a(f"v_mad_u32_u24 v{vP}, v{vA}, v{vT0+2}, v{vC}")
    for e in range(1, 4): a(f"v_add_u32 v{vP+e}, v{vP+e-1}, v{vA}")
    for e in range(4):
        r = vP + e
        a(f"v_and_b32 v{r}, 127, v{r}"); a(f"v_cvt_f32_u32 v{r}, v{r}"); a(f"v_mul_f32 v{r}, 0x3c000000, v{r}"); a(f"v_cos_f32 v{r}, v{r}")
    for e in range(4):
        r = vP + e
        a(f"v_cvt_pk_bf16_f32 v{ACC+4}, v{r}, v{r}")
        a(f"v_lshlrev_b32 v{ACC+5}, 16, v{ACC+4}")
        a(f"v_sub_f32 v{ACC+5}, v{r}, v{ACC+5}")
        a(f"v_cvt_pk_bf16_f32 v{ACC+5}, v{ACC+5}, v{ACC+5}")
        a(f"v_perm_b32 v{ACC+e}, v{ACC+5}, v{ACC+4}, s30")
    a("s_lshl_b32 s24, s10, 10")
    a(f"v_add_u32 v{vT0+3}, s24, v{vL16}")
    a(f"ds_write_b128 v{vT0+3}, v[{ACC}:{ACC+3}] offset:8192")
    a("s_waitcnt lgkmcnt(0)")
    a("s_barrier")
    def write_flag(tag, sw=10):
        a(f"s_cmp_lg_u32 s{sw}, 0")
        a(f"s_cbranch_scc1 L_nofl{tag}")
        a(f"s_cmp_ge_u32 s{sRawPrev}, {NT}")
        a(f"s_cbranch_scc1 L_nofl{tag}")
        a(f"s_lshl_b32 s24, s{sRawPrev}, 2")
        a(f"s_add_u32 s24, s24, {FLAG_BASE}")
        a(f"v_mov_b32 v{vTag}, s{sNon}")
        a("s_mov_b64 exec, 1")
        a(f"buffer_store_dword v{vTag}, v{vZ}, s[16:19], s24 offen sc1")
        a("s_mov_b64 exec, -1")
        a.label(f"L_nofl{tag}")
    a.label("L_x_loop")
    for p in range(2):
        buf = BUF[p]; nbuf = BUF[p ^ 1]
        if p == 1:
            a("s_cmp_lg_u32 s43, 1"); a("s_cbranch_scc1 L_non_skip0")
            a(f"buffer_load_dword v{vNon}, v{vZ}, s[44:47], 0 offen offset:128 sc1")
            a.label("L_non_skip0")
        a("s_cmp_lg_u32 s10, 0")
        a(f"s_cbranch_scc1 L_nofetch{p}")
        a(f"v_mov_b32 v{vNext}, 1")
        a("s_mov_b64 exec, 1")
        a(f"buffer_atomic_add v{vNext}, v{vZ}, s[44:47], 0 offen sc0 sc1")
        a("s_mov_b64 exec, -1")
        a.label(f"L_nofetch{p}")
        issue_loads(sNxt, nbuf)
        if EARLY:
            a(f"s_cmp_lt_u32 s{sNxt}, {NT}")
            a(f"s_cbranch_scc1 L_nopoll{p}")
            for j in range(4):
                a(f"s_mov_b32 s58, {FLAG_BASE + min(j * 1024, 3200 - 1024)}")
                a(f"buffer_load_dwordx4 v[{vP0+4*j}:{vP0+4*j+3}], v{vPA0}, s[16:19], s58 offen sc1")
            a.label(f"L_nopoll{p}")
        def counted(tag, base):
            a(f"s_cmp_ge_u32 s{sNxt}, {NT}")
            a(f"s_cbranch_scc1 L_w0_{tag}")
            a(f"s_cmp_ge_u32 s{sNxt}, {NX}")
            a(f"s_cbranch_scc1 L_w8_{tag}")
            a(f"s_waitcnt vmcnt({base+16})")
            a(f"s_branch L_wd_{tag}")
            a.label(f"L_w8_{tag}")
            a(f"s_waitcnt vmcnt({base+8})")
            a(f"s_branch L_wd_{tag}")
            a.label(f"L_w0_{tag}")
            a(f"s_waitcnt vmcnt({base + (4 if EARLY else 0)})")
            a.label(f"L_wd_{tag}")
        if p == 0:
            a("s_cmp_lg_u32 s43, 0")
            a("s_cbranch_scc1 L_notfirst")
            counted("f", 0)
            a("s_mov_b32 s43, 1")
            a("s_branch L_wfin")
            a.label("L_notfirst")
            counted("a0", 16)
            a.label("L_wfin")
        else:
            counted("a1", 16)
        zsn()
        a(f"s_cmp_ge_u32 s{sCur}, {NX}")
        a(f"s_cbranch_scc1 L_cw{p}")
        a(f"s_cmp_ge_u32 s{sCur}, 336")
        a("s_cselect_b32 s11, 1, 0")
        a("s_mul_i32 s12, s11, 336")
        a(f"s_sub_u32 s12, s{sCur}, s12")
        a("s_and_b32 s13, s12, 7")
        a("s_lshr_b32 s14, s12, 3")
        a("s_lshl_b32 s14, s14, 2")
        a("s_add_u32 s14, s14, s10")
        for o in range(4):
            for s in range(2):
                r = AF + 4 * (2 * o + s)
                a(f"ds_read_b128 v[{r}:{r+3}], v{vL16} offset:{(2*o+s)*1024}")
        a("s_bfe_u32 s24, s14, 0x10003")
        a("s_mul_i32 s24, s24, 3")
        a(f"v_and_b32 v{vT0}, 3, v{vR}")
        a(f"v_xor_b32 v{vT0}, s24, v{vT0}")
        a(f"v_lshl_add_u32 v{vSt}, v{vT0}, 4, v{vXs}")
        a(f"s_mul_i32 s24, s11, {G.XF_B}")
        a(f"s_mul_i32 s25, s13, {4*G.XF_KS}")
        a("s_add_u32 s24, s24, s25")
        a("s_lshl_b32 s25, s14, 6")
        a("s_add_u32 s24, s24, s25")
        a(f"s_add_u32 s24, s24, {G.XF_BASE}")
        def perms(q):
            for s in range(2):
                for h in range(2):
                    for e in range(4):
                        d = BF + (s * 2 + h) * 4 + e
                        a(f"v_perm_b32 v{d}, v{buf + 4*(8*s+2*e+1) + q}, v{buf + 4*(8*s+2*e) + q}, s{30+h}")
        def mfmas():
            for s in range(2):
                for o in range(4):
                    for h in range(2):
                        d = ACC + (o * 2 + h) * 4
                        A = AF + 4 * (2 * o + s); B = BF + (s * 2 + h) * 4
                        c = "0" if s == 0 else f"v[{d}:{d+3}]"
                        a(f"v_mfma_f32_16x16x32_bf16 v[{d}:{d+3}], v[{A}:{A+3}], v[{B}:{B+3}], {c}")
        def cvts(q):
            for o in range(4):
                for rp in range(4):
                    a(f"v_cvt_pk_bf16_f32 v{buf + 4*(4*o+rp) + q}, v{ACC+(o*2)*4+rp}, v{ACC+(o*2+1)*4+rp}")
        perms(0)
        a("s_waitcnt lgkmcnt(0)")
        for q in range(4):
            mfmas()
            if q < 3: perms(q + 1)
            cvts(q)
        for o in range(4):
            for rp in range(4):
                off = (8 * o + (rp >> 1)) * G.XF_K + (rp & 1) * (G.ROWS * 64)
                a(f"s_add_u32 s25, s24, {off}")
                r = buf + 4 * (4 * o + rp)
                a(f"buffer_store_dwordx4 v[{r}:{r+3}], v{vSt}, s[16:19], s25 offen {st}")
        a(f"s_branch L_next{p}")
        a.label(f"L_cw{p}")
        a(f"s_sub_u32 s12, s{sCur}, {NX}")
        a("s_and_b32 s13, s12, 3")
        a("s_lshr_b32 s14, s12, 2")
        a("s_lshl_b32 s14, s14, 2")
        a("s_add_u32 s14, s14, s10")
        for o in range(4):
            r = AF + 4 * o
            a(f"ds_read_b128 v[{r}:{r+3}], v{vL16} offset:{8192+o*1024}")
        a("s_and_b32 s24, s14, 3")
        a("s_bfe_u32 s25, s14, 0x10003")
        a("s_lshl_b32 s25, s25, 2")
        a("s_or_b32 s24, s24, s25")
        a("s_lshl_b32 s24, s24, 1")
        a(f"v_xor_b32 v{vT0}, s24, v{vR}")
        a(f"v_lshl_add_u32 v{vSt}, v{vT0}, 4, v{vWs}")
        a(f"s_mul_i32 s24, s13, {G.WF_DQ}")
        a("s_lshr_b32 s25, s14, 5")
        a(f"s_mul_i32 s25, s25, {G.WF_KS}")
        a("s_add_u32 s24, s24, s25")
        a("s_and_b32 s25, s14, 31")
        a("s_lshl_b32 s25, s25, 8")
        a("s_add_u32 s24, s24, s25")
        if G.WF_BASE: a(f"s_add_u32 s24, s24, {G.WF_BASE}")
        FR = buf + 16
        for dd in range(8):
            q = dd >> 1; h = dd & 1
            for e in range(4):
                a(f"v_perm_b32 v{FR+4*dd+e}, v{buf+4*e+q}, v{buf+4*e+q}, s{32+h}")
        a("s_waitcnt lgkmcnt(0)")
        for o in range(4):
            A = AF + 4 * o
            for dd in range(8):
                d = ACC + 4 * dd
                a(f"v_mfma_f32_16x16x32_bf16 v[{d}:{d+3}], v[{A}:{A+3}], v[{FR+4*dd}:{FR+4*dd+3}], 0")
            ob = (buf if (o & 1) == 0 else buf + 48)
            for rp in range(4):
                for q in range(4):
                    a(f"v_cvt_pk_bf16_f32 v{ob+4*rp+q}, v{ACC+8*q+rp}, v{ACC+8*q+4+rp}")
            for rp in range(4):
                off = (8 * o + (rp >> 1)) * G.WF_K + (rp & 1) * 8192
                a(f"s_add_u32 s25, s24, {off}")
                r = ob + 4 * rp
                a(f"buffer_store_dwordx4 v[{r}:{r+3}], v{vSt}, s[16:19], s25 offen {st}")
        a.label(f"L_next{p}")
        counted(f"p{p}", 16)
        if p == 1:
            a("s_cmp_lg_u32 s43, 1"); a("s_cbranch_scc1 L_nonok")
            a("s_mov_b32 s43, 2")
            a(f"s_mov_b32 s57, {SPIN_MAX}")
            a.label("L_non")
            a(f"v_readfirstlane_b32 s{sNon}, v{vNon}")
            a(f"s_cmp_lg_u32 s{sNon}, 0")
            a("s_cbranch_scc1 L_nonok")
            a("s_sub_u32 s57, s57, 1")
            a("s_cmp_eq_u32 s57, 0")
            a("s_cbranch_scc1 L_nonok")
            a(f"buffer_load_dword v{vNon}, v{vZ}, s[44:47], 0 offen offset:128 sc1")
            a("s_waitcnt vmcnt(0)")
            a("s_branch L_non")
            a.label("L_nonok")
        a("s_cmp_lg_u32 s10, 0")
        a(f"s_cbranch_scc1 L_pub{p}")
        a(f"v_add_u32 v{vNext}, {2*NWG}, v{vNext}")
        a(f"v_mov_b32 v{vT0}, s41")
        a("s_mov_b64 exec, 1")
        a(f"ds_write_b32 v{vT0}, v{vNext}")
        a("s_mov_b64 exec, -1")
        a.label(f"L_pub{p}")
        a("s_waitcnt lgkmcnt(0)")
        a("s_barrier")
        write_flag(f"{p}")
        a(f"v_mov_b32 v{vT0}, s41")
        a(f"ds_read_b32 v{vT0+1}, v{vT0}")
        a("s_xor_b32 s41, s41, 4")
        a(f"s_mov_b32 s{sRawPrev}, s{sCur}")
        a(f"s_mov_b32 s{sCur}, s{sNxt}")
        a("s_waitcnt lgkmcnt(0)")
        a(f"v_readfirstlane_b32 s{sNxt}, v{vT0+1}")
        remap(sNxt)
        a(f"s_cmp_ge_u32 s{sCur}, {NT}")
        a("s_cbranch_scc1 L_x_fin")
    a("s_branch L_x_loop")
    a.label("L_x_fin")
    zs(1)
    if not EARLY:
        a("s_waitcnt vmcnt(0)")
        a("s_barrier")
        zs(2)
        write_flag("f")
        return None
    def finish(tag, early):
        a(f"s_waitcnt vmcnt({31 if early else 0})")
        a("s_barrier")
        write_flag(tag, 15)
    return finish

def follow_phase(a):
    vA, vB = 254, 255
    a("s_mov_b32 s40, s2")
    a(f"s_add_u32 s42, s2, {NWG}")
    a(f"s_mov_b32 s41, {TB + 12288}")
    a("s_barrier")
    a.label("L_f_loop")
    a("s_barrier")
    a(f"v_mov_b32 v{vA}, s41")
    a(f"ds_read_b32 v{vB}, v{vA}")
    a("s_xor_b32 s41, s41, 4")
    a("s_mov_b32 s40, s42")
    a("s_waitcnt lgkmcnt(0)")
    a(f"v_readfirstlane_b32 s42, v{vB}")
    a(f"s_cmp_lt_u32 s40, {NT}")
    a("s_cbranch_scc1 L_f_loop")
    a("s_barrier")

def helper_gemm(a_real, cfg, finish=None):
    table = {}
    for final in (False, True):
        a = a_real if final else Null()
        vq = VQ(a, table, not final)
        vDW = 1; vDX = 2; vD6 = 5; vPA = 6; vP = 8; vT = 24
        sWo, sXo, sLW, sLX, sX6 = 40, 41, 42, 43, 44
        sNon, sPl = 54, 56
        def dma(step):
            buf = step % NSTAGE; tag = ('dma', step)
            a(f"s_add_u32 m0, s{sLW}, {buf*STAGE}")
            for j in range(4):
                a(f"buffer_load_dwordx4 v{vDW}, s[16:19], s{sWo} offen offset:{j*1024} lds"); vq.issue(tag)
            a(f"s_add_u32 s{sWo}, s{sWo}, {G.WF_KS}")
            a(f"s_add_u32 m0, s{sLX}, {buf*STAGE}")
            for j in range(4):
                a(f"buffer_load_dwordx4 v{vDX}, s[16:19], s{sXo} offen offset:{j*1024} lds"); vq.issue(tag)
            a(f"s_add_u32 m0, s{sLX}, {buf*STAGE+4096}")
            a(f"s_add_u32 s49, s{sXo}, 4096")
            a(f"buffer_load_dwordx4 v{vDX}, s[16:19], s49 offen lds"); vq.issue(tag)
            a("s_mov_b64 exec, s[50:51]")
            a(f"buffer_load_dwordx4 v{vD6}, s[16:19], s{sX6} offen offset:1024 lds"); vq.issue(tag)
            a("s_mov_b64 exec, -1")
            a(f"s_add_u32 s{sXo}, s{sXo}, {G.XF_KS}")
            a(f"s_add_u32 s{sX6}, s{sX6}, {G.XF_KS}")
        vPB = 7
        def poll_issue(c, model=True):
            if c == 0:
                for j in range(4):
                    a(f"s_mov_b32 s58, {FLAG_BASE + min(j * 1024, 3200 - 1024)}")
                    a(f"buffer_load_dwordx4 v[{vP+4*j}:{vP+4*j+3}], v{vPA}, s[16:19], s58 offen sc1")
                    if model: vq.issue(('pl', c))
            else:
                a(f"s_mov_b32 s58, {FLAG_BASE + (NX + 128 * c) * 4}")
                a(f"buffer_load_dwordx4 v[{vP}:{vP+3}], v{vPB}, s[16:19], s58 offen sc1")
                if model: vq.issue(('pl', c))
        def check(c, sfx=''):
            n = 16 if c == 0 else 4
            vq.wait(('pl', c), f"c{c}")
            a(f"s_mov_b32 s57, {SPIN_MAX}")
            a.label(f"L_chk{c}{sfx}")
            for e in range(n): a(f"v_xor_b32 v{vT+e}, s{sNon}, v{vP+e}")
            for e in range(1, n - 1, 2): a(f"v_or3_b32 v{vT}, v{vT}, v{vT+e}, v{vT+e+1}")
            a(f"v_or_b32 v{vT}, v{vT}, v{vT+n-1}")
            a(f"v_cmp_ne_u32 vcc, 0, v{vT}")
            a("s_cmp_eq_u64 vcc, 0")
            a(f"s_cbranch_scc1 L_ok{c}{sfx}")
            a("s_sub_u32 s57, s57, 1")
            a("s_cmp_eq_u32 s57, 0")
            a(f"s_cbranch_scc1 L_ok{c}{sfx}")
            if cfg.get('fz_sleep'): a(f"s_sleep {cfg['fz_sleep']}")
            poll_issue(c, model=False)
            a("s_waitcnt vmcnt(0)")
            a(f"s_branch L_chk{c}{sfx}")
            a.label(f"L_ok{c}{sfx}")
            if cfg.get('zstamp'):
                a(f"s_sub_u32 s74, {SPIN_MAX}, s57"); a(f"v_writelane_b32 v242, s74, {c}")
        a(f"v_lshlrev_b32 v{vPA}, 4, v0")
        a(f"v_min_u32 v{vPB}, 31, v0")
        a(f"v_lshlrev_b32 v{vPB}, 4, v{vPB}")
        def zs(reg, i):
            if cfg.get('zstamp'):
                a("s_memrealtime s[70:71]"); a("s_waitcnt lgkmcnt(0)"); a(f"v_writelane_b32 v{reg}, s70, {i}")
        if finish is None:
            poll_issue(0); check(0)
            zs(240, 3)
            dma(0); dma(1); dma(2)
            poll_issue(1)
        else:
            a("s_cmp_lt_u32 s55, 800")
            a("s_cbranch_scc1 L_slowexit")
            a("s_waitcnt vmcnt(16)")
            for e in range(16): a(f"v_xor_b32 v{vT+e}, s{sNon}, v{240+e}")
            for e in range(1, 15, 2): a(f"v_or3_b32 v{vT}, v{vT}, v{vT+e}, v{vT+e+1}")
            a(f"v_or_b32 v{vT}, v{vT}, v{vT+15}")
            a(f"v_cmp_ne_u32 vcc, 0, v{vT}")
            a("s_cmp_eq_u64 vcc, 0")
            a("s_cbranch_scc1 L_c0fast")
            poll_issue(0, model=False)
            a("s_waitcnt vmcnt(0)")
            check(0)
            a.label("L_c0fast")
            zs(239, 3)
            sv = (list(vq.h))
            dma(0); dma(1); dma(2)
            poll_issue(1)
            if final: finish("f", True)
            a("s_branch L_exitjoin")
            a.label("L_slowexit")
            if final: finish("s", False)
            keep = list(vq.h); col = vq.collect; vq.collect = False
            poll_issue(0, model=False)
            a("s_waitcnt vmcnt(0)")
            check(0, "s")
            dma(0); dma(1); dma(2)
            poll_issue(1)
            vq.h = keep; vq.collect = col
            a.label("L_exitjoin")
        vq.wait(('dma', 0), 'pd0')
        a("s_barrier")
        for s in range(31):
            vq.wait(('dma', s + 1), f"b{s}")
            zs(241, 2 * s)
            a("s_barrier")
            zs(241, 2 * s + 1)
            if s % 4 == 1 and (s + 3) // 4 <= 7: check((s + 3) // 4)
            if s + 3 <= 31: dma(s + 3)
            if s % 4 == 0 and s >= 4 and (s + 4) // 4 <= 7: poll_issue((s + 4) // 4)

def gen_fused(cfg=None):
    cfg = cfg or G.CFG
    a = Asm()
    name = 'conv_kernel'
    G.kernel_header(a, name)
    vT = K3.vT; XR = K3.XR; vXa = K3.vXa; vWa = K3.vWa; vSt = K3.vSt; vSt2 = K3.vSt2
    a("s_cmp_ge_u32 s2, 256")
    a("s_cbranch_scc1 L_fz_end")
    a("s_load_dwordx4 s[4:7], s[0:1], 0")
    a("s_load_dwordx4 s[36:39], s[0:1], 40")
    a(f"v_lshrrev_b32 v{vT}, 6, v0")
    a(f"v_and_b32 v0, 63, v0")
    a(f"v_readfirstlane_b32 s10, v{vT}")
    a("s_cmp_ge_u32 s10, 4")
    a("s_cbranch_scc1 L_fz_helper")
    if cfg.get('pf_code'):
        a("s_cmp_ge_u32 s2, 8"); a("s_cbranch_scc1 L_nopf")
        a("s_cmp_lg_u32 s10, 3"); a("s_cbranch_scc1 L_nopf")
        G.prefetch_code(a, "fz", "conv_kernel", "L_code_end", 12, 200, sp=60)
        a.label("L_nopf")
    K3.decode_ids(a)
    K3.gemm_setup(a)
    a("s_waitcnt vmcnt(0) lgkmcnt(0)")
    G.make_srd(a, 16, 38, 39, G.WS_BYTES)
    for r in range(168): a(f"v_mov_b32 v{r}, 0")
    follow_phase(a)
    K3.gemm_wave(a, cfg, zero=False, cont=("L_fz_ydone" if cfg.get('fuse45') else None))
    a.label("L_fz_helper")
    a("s_sub_u32 s10, s10, 4")
    if cfg.get('fz_xprio'): a(f"s_setprio {cfg['fz_xprio']}")
    finish = xform_phase(a, cfg)
    a("s_add_u32 s10, s10, 4")
    K3.decode_ids(a)
    K3.helper_setup(a)
    if cfg.get('fz_hprio'): a(f"s_setprio {cfg['fz_hprio']}")
    helper_gemm(a, cfg, finish)
    if cfg.get('zstamp'):
        a("s_lshl_b32 s73, s2, 2"); a("s_add_u32 s73, s73, s15"); a("s_lshl_b32 s73, s73, 10")
        a(f"s_add_u32 s73, s73, {218 << 20}")
        a("v_lshlrev_b32 v243, 2, v0")
        a("buffer_store_dword v240, v243, s[16:19], s73 offen")
        a("buffer_store_dword v241, v243, s[16:19], s73 offen offset:256")
        a("buffer_store_dword v242, v243, s[16:19], s73 offen offset:512")
    if not cfg.get('fuse45'):
        K3.ws_fill(a)
    else:
        import gen_k45g as K45
        NONCE_LDS = 6144
        a(f"v_mov_b32 v8, {NONCE_LDS}"); a("v_mov_b32 v9, s54")
        a("ds_write_b32 v8, v9")
        a("s_waitcnt lgkmcnt(0)")
        a("s_branch L_fz_y1")
        a.label("L_fz_ydone")
        a("s_waitcnt vmcnt(0)")
        a.label("L_fz_y1")
        a("s_barrier")
        a(f"v_mov_b32 v200, {NONCE_LDS}")
        a("ds_read_b32 v201, v200")
        a("s_waitcnt lgkmcnt(0)")
        a("v_readfirstlane_b32 s54, v201")
        a("s_cmp_lg_u32 s10, 4"); a("s_cbranch_scc1 L_fz_noyf")
        a("s_lshl_b32 s24, s14, 1"); a("s_add_u32 s24, s24, s13"); a("s_lshl_b32 s24, s24, 5"); a("s_add_u32 s24, s24, s11")
        a("s_lshl_b32 s24, s24, 2"); a(f"s_add_u32 s24, s24, {K45.YFLAG_BASE}")
        a("v_mov_b32 v202, s54"); a("v_mov_b32 v203, 0")
        a("s_mov_b64 exec, 1")
        a("buffer_store_dword v202, v203, s[16:19], s24 offen sc1")
        a("s_mov_b64 exec, -1")
        a.label("L_fz_noyf")
        K45.gen_k45g(cfg, a)
    a.label("L_fz_end")
    a("s_endpgm")
    return name, a.lines, 256, (256, 512, LDS_BYTES)
```

```python
from asmlib import *
import gen as G
import gen_k3c as K3
from gen_k3c import STAGE, NSTAGE, LDS_BYTES, XC
from gen_k123 import VQ, Null

FLAG_BASE = 150 << 20
SPIN_MAX = 1 << 15
NX = 672; NWG = 256
NM = G.CFG.get('fz_nm', 0)
NW = 1024 - 128 * NM; NT = NX + NW
LFLAG_BASE = FLAG_BASE + 8192
CH = 212
TB = 3 * STAGE

def xform_phase(a, cfg):
    st = cfg['k12_st']; ld = cfg.get('k12_ld', '')
    BUF = [0 + 8, 64 + 8]; AF = 136; BF = 168; ACC = 184; VT = 216
    vR = VT+1; vG = VT+2; vSt = VT+4; vT0 = VT+5
    vNext = VT + 13; vZ = VT + 14; vL16 = VT + 15
    vXo = VT + 16; vWo = VT + 17; vXs = VT + 18; vWs = VT + 19; vNon = VT + 20; vTag = VT + 21
    vPA0 = VT + 22; vP0 = 240
    EARLY = cfg.get('fz_early')
    sCur, sNxt = 40, 42
    sRawCur, sRawNxt, sNon, sRawPrev = 52, 53, 54, 55
    uid = [0]
    NF = cfg.get('k12_nf', 96)
    PAT = cfg.get('fz_pat')
    def remap(sr):
        u = uid[0]; uid[0] += 1
        if PAT:
            per, nx = PAT
            nper = (NX + nx - 1) // nx
            assert NX % nx == 0
            head = nper * per
            magic = ((1 << 20) + per - 1) // per
            assert all(((p * magic) >> 20) == p // per for p in range(head))
            a(f"s_cmp_ge_u32 s{sr}, {head}")
            a(f"s_cbranch_scc1 L_rm{u}")
            a(f"s_mul_i32 s26, s{sr}, {magic}")
            a("s_lshr_b32 s26, s26, 20")
            a(f"s_mul_i32 s27, s26, {per}")
            a(f"s_sub_u32 s27, s{sr}, s27")
            a(f"s_mul_i32 s28, s26, {per-nx}"); a("s_add_u32 s28, s28, s27"); a(f"s_add_u32 s28, s28, {NX}")
            a(f"s_mul_i32 s29, s26, {nx}"); a("s_add_u32 s29, s29, s27"); a(f"s_sub_u32 s29, s29, {per-nx}")
            a(f"s_cmp_lt_u32 s27, {per-nx}")
            a(f"s_cselect_b32 s{sr}, s28, s29")
            a.label(f"L_rm{u}")
            return
        a(f"s_cmp_ge_u32 s{sr}, {NF + NX}")
        a(f"s_cbranch_scc1 L_rm{u}")
        a(f"s_sub_u32 s28, s{sr}, {NF}")
        a(f"s_add_u32 s29, s{sr}, {NX}")
        a(f"s_cmp_ge_u32 s{sr}, {NF}")
        a(f"s_cselect_b32 s{sr}, s28, s29")
        a.label(f"L_rm{u}")
    def zs(i):
        if cfg.get('zstamp'):
            a("s_memrealtime s[70:71]"); a("s_waitcnt lgkmcnt(0)"); a(f"v_writelane_b32 v240, s70, {i}")
    def zsn():
        if cfg.get('zstamp'):
            a("s_memrealtime s[70:71]"); a("s_waitcnt lgkmcnt(0)"); a("s_mov_b32 m0, s72"); a("v_writelane_b32 v240, s70, m0"); a("s_add_u32 s72, s72, 1")
    if cfg.get('zstamp'):
        a("v_mov_b32 v240, 0"); a("v_mov_b32 v241, 0"); a("v_mov_b32 v242, 0"); a("s_mov_b32 s72, 8")
    zs(0)
    a(f"v_and_b32 v{vR}, 15, v0")
    a(f"v_lshrrev_b32 v{vG}, 4, v0")
    a(f"v_lshlrev_b32 v{vL16}, 4, v0")
    a(f"v_add_u32 v{vL16}, {TB}, v{vL16}")
    a(f"v_mov_b32 v{vZ}, 0")
    a(f"v_lshlrev_b32 v{vPA0}, 4, v0")
    a("s_mov_b32 s30, 0x05040100")
    a("s_mov_b32 s31, 0x07060302")
    a("s_mov_b32 s32, 0x01000100")
    a("s_mov_b32 s33, 0x03020302")
    a(f"s_mov_b32 s{sCur}, s2")
    a(f"s_add_u32 s{sNxt}, s2, {NWG}")
    a(f"s_mov_b32 s{sRawPrev}, -1")
    a(f"s_mov_b32 s41, {TB + 12288}")
    a("s_mov_b32 s43, 0")
    a(f"v_lshlrev_b32 v{vXo}, 14, v{vG}")
    a(f"v_lshl_add_u32 v{vXo}, v{vR}, 4, v{vXo}")
    a(f"v_lshlrev_b32 v{vWo}, 22, v{vG}")
    a(f"v_lshrrev_b32 v{vT0}, 2, v{vR}")
    a(f"v_lshl_add_u32 v{vWo}, v{vT0}, 6, v{vWo}")
    a(f"v_and_b32 v{vT0}, 1, v{vR}")
    a(f"v_lshl_add_u32 v{vWo}, v{vT0}, 5, v{vWo}")
    a(f"v_bfe_u32 v{vT0}, v{vR}, 1, 1")
    a(f"v_lshl_add_u32 v{vWo}, v{vT0}, 3, v{vWo}")
    a(f"v_lshrrev_b32 v{vT0}, 2, v{vR}")
    a(f"s_mov_b32 s24, {G.XF_KS}")
    a(f"v_mul_u32_u24 v{vXs}, s24, v{vT0}")
    a(f"s_mov_b32 s24, {2*G.XF_K}")
    a(f"v_mad_u32_u24 v{vXs}, v{vG}, s24, v{vXs}")
    a(f"s_mov_b32 s24, {2*G.WF_K}")
    a(f"v_mul_u32_u24 v{vWs}, s24, v{vG}")
    remap(sCur); remap(sNxt)
    a("s_waitcnt lgkmcnt(0)")
    G.make_srd(a, 16, 38, 39, G.WS_BYTES)
    G.make_srd(a, 44, 36, 37, 256)
    a("s_or_b32 s24, s2, s10")
    a("s_cmp_lg_u32 s24, 0")
    a("s_cbranch_scc1 L_nononce")
    a("s_memrealtime s[24:25]")
    a("s_waitcnt lgkmcnt(0)")
    a("s_or_b32 s24, s24, 1")
    a(f"v_mov_b32 v{vTag}, s24")
    a("s_mov_b64 exec, 1")
    a(f"buffer_store_dword v{vTag}, v{vZ}, s[44:47], 0 offen offset:128 sc1")
    a("s_mov_b64 exec, -1")
    a.label("L_nononce")
    a(f"s_mov_b32 s{sNon}, 0")
    def issue_loads(sIdx, buf):
        u = uid[0]; uid[0] += 1
        a(f"s_cmp_ge_u32 s{sIdx}, {NT}")
        a(f"s_cbranch_scc1 L_ld_done{u}")
        a(f"s_cmp_ge_u32 s{sIdx}, {NX}")
        a(f"s_cbranch_scc1 L_ld_w{u}")
        a(f"s_cmp_ge_u32 s{sIdx}, 336")
        a("s_cselect_b32 s11, 1, 0")
        a("s_mul_i32 s12, s11, 336")
        a(f"s_sub_u32 s12, s{sIdx}, s12")
        a("s_and_b32 s13, s12, 7")
        a("s_lshr_b32 s14, s12, 3")
        a("s_lshl_b32 s14, s14, 2")
        a("s_add_u32 s14, s14, s10")
        a(f"s_mul_i32 s15, s11, {G.X_BYTES_B}")
        a("s_add_u32 s34, s4, s15")
        a("s_addc_u32 s35, s5, 0")
        G.make_srd(a, 20, 34, 35, G.X_BYTES_B)
        a("s_mul_i32 s15, s14, %d" % (48 * 2048))
        a("s_lshl_b32 s24, s13, 8")
        a("s_add_u32 s15, s15, s24")
        for s in range(2):
            for i in range(8):
                r = buf + 4 * (8 * s + i)
                a(f"s_add_u32 s25, s15, {(32*s+i)*2048}")
                a(f"buffer_load_dwordx4 v[{r}:{r+3}], v{vXo}, s[20:23], s25 offen {ld}")
        a(f"s_branch L_ld_done{u}")
        a.label(f"L_ld_w{u}")
        a(f"s_sub_u32 s12, s{sIdx}, {NX}")
        a("s_and_b32 s13, s12, 3")
        a("s_lshr_b32 s14, s12, 2")
        a("s_lshl_b32 s14, s14, 2")
        a("s_add_u32 s14, s14, s10")
        G.make_srd(a, 20, 6, 7, G.W_BYTES)
        a("s_lshl_b32 s15, s14, 10")
        a("s_lshl_b32 s24, s13, 8")
        a("s_add_u32 s15, s15, s24")
        for i in range(4):
            r = buf + 4 * i
            a(f"s_add_u32 s25, s15, {i << 20}")
            a(f"buffer_load_dwordx2 v[{r}:{r+1}], v{vWo}, s[20:23], s25 offen {ld}")
            a(f"buffer_load_dwordx2 v[{r+2}:{r+3}], v{vWo}, s[20:23], s25 offen offset:16 {ld}")
        a.label(f"L_ld_done{u}")
    if cfg.get('fuse45'):
        K3.ws_fill(a, sw=10)
    issue_loads(sCur, BUF[0])
    vA = vT0; vC = vT0+1; vP = BF
    a(f"v_lshrrev_b32 v{vA}, 2, v{vR}")
    a(f"v_lshlrev_b32 v{vA}, 1, v{vA}")
    a(f"v_bfe_u32 v{vC}, v{vR}, 1, 1")
    a(f"v_add_u32 v{vA}, v{vA}, v{vC}")
    a("s_lshl_b32 s24, s10, 3")
    a(f"v_add_u32 v{vA}, s24, v{vA}")
    a(f"v_lshl_add_u32 v{vA}, v{vA}, 1, 1")
    a(f"v_and_b32 v{vC}, 1, v{vR}")
    a(f"v_lshlrev_b32 v{vC}, 5, v{vC}")
    for s in range(2):
        a(f"v_lshlrev_b32 v{vT0+2}, 3, v{vG}")
        if s: a(f"v_add_u32 v{vT0+2}, 32, v{vT0+2}")
        a(f"v_mad_u32_u24 v{vP}, v{vA}, v{vT0+2}, v{vC}")
        for e in range(1, 8): a(f"v_add_u32 v{vP+e}, v{vP+e-1}, v{vA}")
        G.cos_table(a, None, [vP+e for e in range(8)], ACC, ACC+4)
        a("s_lshl_b32 s24, s10, 11")
        a(f"v_add_u32 v{vT0+3}, s24, v{vL16}")
        a(f"ds_write_b128 v{vT0+3}, v[{ACC}:{ACC+3}] offset:{s*1024}")
    a(f"v_lshlrev_b32 v{vT0+2}, 2, v{vG}")
    a(f"v_mad_u32_u24 v{vP}, v{vA}, v{vT0+2}, v{vC}")
    for e in range(1, 4): a(f"v_add_u32 v{vP+e}, v{vP+e-1}, v{vA}")
    for e in range(4):
        r = vP + e
        a(f"v_and_b32 v{r}, 127, v{r}"); a(f"v_cvt_f32_u32 v{r}, v{r}"); a(f"v_mul_f32 v{r}, 0x3c000000, v{r}"); a(f"v_cos_f32 v{r}, v{r}")
    for e in range(4):
        r = vP + e
        a(f"v_cvt_pk_bf16_f32 v{ACC+4}, v{r}, v{r}")
        a(f"v_lshlrev_b32 v{ACC+5}, 16, v{ACC+4}")
        a(f"v_sub_f32 v{ACC+5}, v{r}, v{ACC+5}")
        a(f"v_cvt_pk_bf16_f32 v{ACC+5}, v{ACC+5}, v{ACC+5}")
        a(f"v_perm_b32 v{ACC+e}, v{ACC+5}, v{ACC+4}, s30")
    a("s_lshl_b32 s24, s10, 10")
    a(f"v_add_u32 v{vT0+3}, s24, v{vL16}")
    a(f"ds_write_b128 v{vT0+3}, v[{ACC}:{ACC+3}] offset:8192")
    a("s_waitcnt lgkmcnt(0)")
    a("s_barrier")
    def write_flag(tag, sw=10):
        a(f"s_cmp_lg_u32 s{sw}, 0")
        a(f"s_cbranch_scc1 L_nofl{tag}")
        a(f"s_cmp_ge_u32 s{sRawPrev}, {NT}")
        a(f"s_cbranch_scc1 L_nofl{tag}")
        a(f"s_lshl_b32 s24, s{sRawPrev}, 2")
        a(f"s_add_u32 s24, s24, {FLAG_BASE}")
        a(f"v_mov_b32 v{vTag}, s{sNon}")
        a("s_mov_b64 exec, 1")
        a(f"buffer_store_dword v{vTag}, v{vZ}, s[16:19], s24 offen sc1")
        a("s_mov_b64 exec, -1")
        a.label(f"L_nofl{tag}")
    a.label("L_x_loop")
    for p in range(2):
        buf = BUF[p]; nbuf = BUF[p ^ 1]
        if p == 1:
            a("s_cmp_lg_u32 s43, 1"); a("s_cbranch_scc1 L_non_skip0")
            a(f"buffer_load_dword v{vNon}, v{vZ}, s[44:47], 0 offen offset:128 sc1")
            a.label("L_non_skip0")
        a("s_cmp_lg_u32 s10, 0")
        a(f"s_cbranch_scc1 L_nofetch{p}")
        a(f"v_mov_b32 v{vNext}, 1")
        a("s_mov_b64 exec, 1")
        a(f"buffer_atomic_add v{vNext}, v{vZ}, s[44:47], 0 offen sc0 sc1")
        a("s_mov_b64 exec, -1")
        a.label(f"L_nofetch{p}")
        issue_loads(sNxt, nbuf)
        if EARLY:
            a(f"s_cmp_lt_u32 s{sNxt}, {NT}")
            a(f"s_cbranch_scc1 L_nopoll{p}")
            for j in range(4):
                a(f"s_mov_b32 s58, {FLAG_BASE + min(j * 1024, 3200 - 1024)}")
                a(f"buffer_load_dwordx4 v[{vP0+4*j}:{vP0+4*j+3}], v{vPA0}, s[16:19], s58 offen sc1")
            a.label(f"L_nopoll{p}")
        def counted(tag, base):
            a(f"s_cmp_ge_u32 s{sNxt}, {NT}")
            a(f"s_cbranch_scc1 L_w0_{tag}")
            a(f"s_cmp_ge_u32 s{sNxt}, {NX}")
            a(f"s_cbranch_scc1 L_w8_{tag}")
            a(f"s_waitcnt vmcnt({base+16})")
            a(f"s_branch L_wd_{tag}")
            a.label(f"L_w8_{tag}")
            a(f"s_waitcnt vmcnt({base+8})")
            a(f"s_branch L_wd_{tag}")
            a.label(f"L_w0_{tag}")
            a(f"s_waitcnt vmcnt({base + (4 if EARLY else 0)})")
            a.label(f"L_wd_{tag}")
        if p == 0:
            a("s_cmp_lg_u32 s43, 0")
            a("s_cbranch_scc1 L_notfirst")
            counted("f", 0)
            a("s_mov_b32 s43, 1")
            a("s_branch L_wfin")
            a.label("L_notfirst")
            counted("a0", 16)
            a.label("L_wfin")
        else:
            counted("a1", 16)
        zsn()
        a(f"s_cmp_ge_u32 s{sCur}, {NX}")
        a(f"s_cbranch_scc1 L_cw{p}")
        a(f"s_cmp_ge_u32 s{sCur}, 336")
        a("s_cselect_b32 s11, 1, 0")
        a("s_mul_i32 s12, s11, 336")
        a(f"s_sub_u32 s12, s{sCur}, s12")
        a("s_and_b32 s13, s12, 7")
        a("s_lshr_b32 s14, s12, 3")
        a("s_lshl_b32 s14, s14, 2")
        a("s_add_u32 s14, s14, s10")
        for o in range(4):
            for s in range(2):
                r = AF + 4 * (2 * o + s)
                a(f"ds_read_b128 v[{r}:{r+3}], v{vL16} offset:{(2*o+s)*1024}")
        a("s_bfe_u32 s24, s14, 0x10003")
        a("s_mul_i32 s24, s24, 3")
        a(f"v_and_b32 v{vT0}, 3, v{vR}")
        a(f"v_xor_b32 v{vT0}, s24, v{vT0}")
        a(f"v_lshl_add_u32 v{vSt}, v{vT0}, 4, v{vXs}")
        a(f"s_mul_i32 s24, s11, {G.XF_B}")
        a(f"s_mul_i32 s25, s13, {4*G.XF_KS}")
        a("s_add_u32 s24, s24, s25")
        a("s_lshl_b32 s25, s14, 6")
        a("s_add_u32 s24, s24, s25")
        a(f"s_add_u32 s24, s24, {G.XF_BASE}")
        def perms(q):
            for s in range(2):
                for h in range(2):
                    for e in range(4):
                        d = BF + (s * 2 + h) * 4 + e
                        a(f"v_perm_b32 v{d}, v{buf + 4*(8*s+2*e+1) + q}, v{buf + 4*(8*s+2*e) + q}, s{30+h}")
        def mfmas():
            for s in range(2):
                for o in range(4):
                    for h in range(2):
                        d = ACC + (o * 2 + h) * 4
                        A = AF + 4 * (2 * o + s); B = BF + (s * 2 + h) * 4
                        c = "0" if s == 0 else f"v[{d}:{d+3}]"
                        a(f"v_mfma_f32_16x16x32_bf16 v[{d}:{d+3}], v[{A}:{A+3}], v[{B}:{B+3}], {c}")
        def cvts(q):
            for o in range(4):
                for rp in range(4):
                    a(f"v_cvt_pk_bf16_f32 v{buf + 4*(4*o+rp) + q}, v{ACC+(o*2)*4+rp}, v{ACC+(o*2+1)*4+rp}")
        perms(0)
        a("s_waitcnt lgkmcnt(0)")
        for q in range(4):
            mfmas()
            if q < 3: perms(q + 1)
            cvts(q)
        for o in range(4):
            for rp in range(4):
                off = (8 * o + (rp >> 1)) * G.XF_K + (rp & 1) * (G.ROWS * 64)
                a(f"s_add_u32 s25, s24, {off}")
                r = buf + 4 * (4 * o + rp)
                a(f"buffer_store_dwordx4 v[{r}:{r+3}], v{vSt}, s[16:19], s25 offen {st}")
        a(f"s_branch L_next{p}")
        a.label(f"L_cw{p}")
        a(f"s_sub_u32 s12, s{sCur}, {NX}")
        a("s_and_b32 s13, s12, 3")
        a("s_lshr_b32 s14, s12, 2")
        a("s_lshl_b32 s14, s14, 2")
        a("s_add_u32 s14, s14, s10")
        for o in range(4):
            r = AF + 4 * o
            a(f"ds_read_b128 v[{r}:{r+3}], v{vL16} offset:{8192+o*1024}")
        a("s_and_b32 s24, s14, 3")
        a("s_bfe_u32 s25, s14, 0x10003")
        a("s_lshl_b32 s25, s25, 2")
        a("s_or_b32 s24, s24, s25")
        a("s_lshl_b32 s24, s24, 1")
        a(f"v_xor_b32 v{vT0}, s24, v{vR}")
        a(f"v_lshl_add_u32 v{vSt}, v{vT0}, 4, v{vWs}")
        a(f"s_mul_i32 s24, s13, {G.WF_DQ}")
        a("s_lshr_b32 s25, s14, 5")
        a(f"s_mul_i32 s25, s25, {G.WF_KS}")
        a("s_add_u32 s24, s24, s25")
        a("s_and_b32 s25, s14, 31")
        a("s_lshl_b32 s25, s25, 8")
        a("s_add_u32 s24, s24, s25")
        if G.WF_BASE: a(f"s_add_u32 s24, s24, {G.WF_BASE}")
        FR = buf + 16
        for dd in range(8):
            q = dd >> 1; h = dd & 1
            for e in range(4):
                a(f"v_perm_b32 v{FR+4*dd+e}, v{buf+4*e+q}, v{buf+4*e+q}, s{32+h}")
        a("s_waitcnt lgkmcnt(0)")
        for o in range(4):
            A = AF + 4 * o
            for dd in range(8):
                d = ACC + 4 * dd
                a(f"v_mfma_f32_16x16x32_bf16 v[{d}:{d+3}], v[{A}:{A+3}], v[{FR+4*dd}:{FR+4*dd+3}], 0")
            ob = (buf if (o & 1) == 0 else buf + 48)
            for rp in range(4):
                for q in range(4):
                    a(f"v_cvt_pk_bf16_f32 v{ob+4*rp+q}, v{ACC+8*q+rp}, v{ACC+8*q+4+rp}")
            for rp in range(4):
                off = (8 * o + (rp >> 1)) * G.WF_K + (rp & 1) * 8192
                a(f"s_add_u32 s25, s24, {off}")
                r = ob + 4 * rp
                a(f"buffer_store_dwordx4 v[{r}:{r+3}], v{vSt}, s[16:19], s25 offen {st}")
        a.label(f"L_next{p}")
        counted(f"p{p}", 16)
        if p == 1:
            a("s_cmp_lg_u32 s43, 1"); a("s_cbranch_scc1 L_nonok")
            a("s_mov_b32 s43, 2")
            a(f"s_mov_b32 s57, {SPIN_MAX}")
            a.label("L_non")
            a(f"v_readfirstlane_b32 s{sNon}, v{vNon}")
            a(f"s_cmp_lg_u32 s{sNon}, 0")
            a("s_cbranch_scc1 L_nonok")
            a("s_sub_u32 s57, s57, 1")
            a("s_cmp_eq_u32 s57, 0")
            a("s_cbranch_scc1 L_nonok")
            a(f"buffer_load_dword v{vNon}, v{vZ}, s[44:47], 0 offen offset:128 sc1")
            a("s_waitcnt vmcnt(0)")
            a("s_branch L_non")
            a.label("L_nonok")
        a("s_cmp_lg_u32 s10, 0")
        a(f"s_cbranch_scc1 L_pub{p}")
        a(f"v_add_u32 v{vNext}, {2*NWG}, v{vNext}")
        a(f"v_mov_b32 v{vT0}, s41")
        a("s_mov_b64 exec, 1")
        a(f"ds_write_b32 v{vT0}, v{vNext}")
        a("s_mov_b64 exec, -1")
        a.label(f"L_pub{p}")
        a("s_waitcnt lgkmcnt(0)")
        a("s_barrier")
        write_flag(f"{p}")
        a(f"v_mov_b32 v{vT0}, s41")
        a(f"ds_read_b32 v{vT0+1}, v{vT0}")
        a("s_xor_b32 s41, s41, 4")
        a(f"s_mov_b32 s{sRawPrev}, s{sCur}")
        a(f"s_mov_b32 s{sCur}, s{sNxt}")
        a("s_waitcnt lgkmcnt(0)")
        a(f"v_readfirstlane_b32 s{sNxt}, v{vT0+1}")
        remap(sNxt)
        a(f"s_cmp_ge_u32 s{sCur}, {NT}")
        a("s_cbranch_scc1 L_x_fin")
    a("s_branch L_x_loop")
    a.label("L_x_fin")
    zs(1)
    if not EARLY:
        a("s_waitcnt vmcnt(0)")
        a("s_barrier")
        zs(2)
        write_flag("f")
        return None
    def finish(tag, early):
        a(f"s_waitcnt vmcnt({31 if early else 0})")
        a("s_barrier")
        write_flag(tag, 15)
    return finish

def follow_phase(a):
    vA, vB = 254, 255
    a("s_mov_b32 s40, s2")
    a(f"s_add_u32 s42, s2, {NWG}")
    a(f"s_mov_b32 s41, {TB + 12288}")
    a("s_barrier")
    a.label("L_f_loop")
    a("s_barrier")
    a(f"v_mov_b32 v{vA}, s41")
    a(f"ds_read_b32 v{vB}, v{vA}")
    a("s_xor_b32 s41, s41, 4")
    a("s_mov_b32 s40, s42")
    a("s_waitcnt lgkmcnt(0)")
    a(f"v_readfirstlane_b32 s42, v{vB}")
    a(f"s_cmp_lt_u32 s40, {NT}")
    a("s_cbranch_scc1 L_f_loop")
    a("s_barrier")

def helper_gemm(a_real, cfg, finish=None, late=None):
    table = {}
    for final in (False, True):
        a = a_real if final else Null()
        vq = VQ(a, table, not final)
        U = '' if late is None else f"_l{late}"
        vDW = 1; vDX = 2; vD6 = 5; vPA = 6; vP = 8; vT = 24
        sWo, sXo, sLW, sLX, sX6 = 40, 41, 42, 43, 44
        sNon, sPl = 54, 56
        def dma(step):
            buf = step % NSTAGE; tag = ('dma', step)
            a(f"s_add_u32 m0, s{sLW}, {buf*STAGE}")
            for j in range(4):
                a(f"buffer_load_dwordx4 v{vDW}, s[16:19], s{sWo} offen offset:{j*1024} lds"); vq.issue(tag)
            a(f"s_add_u32 s{sWo}, s{sWo}, {G.WF_KS}")
            a(f"s_add_u32 m0, s{sLX}, {buf*STAGE}")
            for j in range(4):
                a(f"buffer_load_dwordx4 v{vDX}, s[16:19], s{sXo} offen offset:{j*1024} lds"); vq.issue(tag)
            a(f"s_add_u32 m0, s{sLX}, {buf*STAGE+4096}")
            a(f"s_add_u32 s49, s{sXo}, 4096")
            a(f"buffer_load_dwordx4 v{vDX}, s[16:19], s49 offen lds"); vq.issue(tag)
            a("s_mov_b64 exec, s[50:51]")
            a(f"buffer_load_dwordx4 v{vD6}, s[16:19], s{sX6} offen offset:1024 lds"); vq.issue(tag)
            a("s_mov_b64 exec, -1")
            a(f"s_add_u32 s{sXo}, s{sXo}, {G.XF_KS}")
            a(f"s_add_u32 s{sX6}, s{sX6}, {G.XF_KS}")
        vPB = 7
        def poll_issue(c, model=True):
            if c == 0:
                for j in range(4):
                    a(f"s_mov_b32 s58, {FLAG_BASE + min(j * 1024, 3200 - 1024)}")
                    a(f"buffer_load_dwordx4 v[{vP+4*j}:{vP+4*j+3}], v{vPA}, s[16:19], s58 offen sc1")
                    if model: vq.issue(('pl', c))
            elif c >= 8 - NM:
                for j in range(2):
                    a(f"s_mov_b32 s58, {LFLAG_BASE + (7 - c) * 2048 + j * 1024}")
                    a(f"buffer_load_dwordx4 v[{vP+4*j}:{vP+4*j+3}], v{vPA}, s[16:19], s58 offen sc1")
                    if model: vq.issue(('pl', c))
            else:
                a(f"s_mov_b32 s58, {FLAG_BASE + (NX + 128 * c) * 4}")
                a(f"buffer_load_dwordx4 v[{vP}:{vP+3}], v{vPB}, s[16:19], s58 offen sc1")
                if model: vq.issue(('pl', c))
        def check(c, sfx=''):
            n = 16 if c == 0 else (8 if c >= 8 - NM else 4)
            sfx = sfx + U
            vq.wait(('pl', c), f"c{c}")
            a(f"s_mov_b32 s57, {SPIN_MAX}")
            a.label(f"L_chk{c}{sfx}")
            for e in range(n): a(f"v_xor_b32 v{vT+e}, s{sNon}, v{vP+e}")
            for e in range(1, n - 1, 2): a(f"v_or3_b32 v{vT}, v{vT}, v{vT+e}, v{vT+e+1}")
            a(f"v_or_b32 v{vT}, v{vT}, v{vT+n-1}")
            a(f"v_cmp_ne_u32 vcc, 0, v{vT}")
            a("s_cmp_eq_u64 vcc, 0")
            a(f"s_cbranch_scc1 L_ok{c}{sfx}")
            a("s_sub_u32 s57, s57, 1")
            a("s_cmp_eq_u32 s57, 0")
            a(f"s_cbranch_scc1 L_ok{c}{sfx}")
            if cfg.get('fz_sleep'): a(f"s_sleep {cfg['fz_sleep']}")
            poll_issue(c, model=False)
            a("s_waitcnt vmcnt(0)")
            a(f"s_branch L_chk{c}{sfx}")
            a.label(f"L_ok{c}{sfx}")
            if cfg.get('zstamp'):
                a(f"s_sub_u32 s74, {SPIN_MAX}, s57"); a(f"v_writelane_b32 v242, s74, {c}")
        a(f"v_lshlrev_b32 v{vPA}, 4, v0")
        a(f"v_min_u32 v{vPB}, 31, v0")
        a(f"v_lshlrev_b32 v{vPB}, 4, v{vPB}")
        def zs(reg, i):
            if cfg.get('zstamp'):
                a("s_memrealtime s[70:71]"); a("s_waitcnt lgkmcnt(0)"); a(f"v_writelane_b32 v{reg}, s70, {i}")
        LAF, LRAW, LFR, LACC, LOUT = 40, 56, 72, 104, 136
        vWo, vWs, vR_, vZ_, vTag_ = 233, 235, 217, 230, 154
        vLS = 153
        def l_setup():
            a("s_lshr_b32 s60, s2, 1"); a(f"s_add_u32 s60, s60, {128 * late}")
            a("s_and_b32 s61, s2, 1"); a("s_lshl_b32 s61, s61, 1")
            a("s_and_b32 s62, s60, 3"); a("s_bfe_u32 s63, s60, 0x10003"); a("s_lshl_b32 s63, s63, 2")
            a("s_or_b32 s62, s62, s63"); a("s_lshl_b32 s62, s62, 1")
            a(f"v_xor_b32 v{vLS}, s62, v{vR_}"); a(f"v_lshl_add_u32 v{vLS}, v{vLS}, 4, v{vWs}")
            a(f"s_mul_i32 s62, s61, {G.WF_DQ}"); a("s_lshr_b32 s63, s60, 5"); a(f"s_mul_i32 s63, s63, {G.WF_KS}")
            a("s_add_u32 s62, s62, s63"); a("s_and_b32 s63, s60, 31"); a("s_lshl_b32 s63, s63, 8"); a("s_add_u32 s62, s62, s63")
            if G.WF_BASE: a(f"s_add_u32 s62, s62, {G.WF_BASE}")
            a("s_lshl_b32 s60, s60, 10"); a("s_lshl_b32 s63, s61, 8"); a("s_add_u32 s60, s60, s63")
            a("s_lshl_b32 s63, s2, 3"); a(f"s_add_u32 s63, s63, {LFLAG_BASE + (7 - late) * 2048}")
            G.make_srd(a, 20, 6, 7, G.W_BYTES)
            a(f"v_lshlrev_b32 v{vLS+2}, 4, v0"); a(f"v_add_u32 v{vLS+2}, {TB}, v{vLS+2}")
            for o in range(4):
                a(f"ds_read_b128 v[{LAF+4*o}:{LAF+4*o+3}], v{vLS+2} offset:{8192+o*1024}")
            a("s_waitcnt lgkmcnt(0)")
        def l_loads(e, n0, n1):
            for n in range(n0, n1):
                i, hf = n >> 1, n & 1
                a(f"s_add_u32 s59, s60, {(i << 20) + e * 256}")
                a(f"buffer_load_dwordx2 v[{LRAW+4*i+2*hf}:{LRAW+4*i+2*hf+1}], v{vWo}, s[20:23], s59 offen offset:{16*hf}")
                vq.issue(('ll', e))
        def l_perms(e):
            vq.wait(('ll', e), f"ll{e}")
            for dd in range(8):
                q = dd >> 1; h = dd & 1
                for k in range(4):
                    a(f"v_perm_b32 v{LFR+4*dd+k}, v{LRAW+4*k+q}, v{LRAW+4*k+q}, s{32+h}")
        def l_comp(o):
            for dd in range(8):
                d = LACC + 4 * dd
                a(f"v_mfma_f32_16x16x32_bf16 v[{d}:{d+3}], v[{LAF+4*o}:{LAF+4*o+3}], v[{LFR+4*dd}:{LFR+4*dd+3}], 0")
            for rp in range(4):
                for q in range(4):
                    a(f"v_cvt_pk_bf16_f32 v{LOUT+4*rp+q}, v{LACC+8*q+rp}, v{LACC+8*q+4+rp}")
        def l_stores(e, o, rps):
            for rp in rps:
                off = (8 * o + (rp >> 1)) * G.WF_K + (rp & 1) * 8192 + e * G.WF_DQ
                a(f"s_add_u32 s59, s62, {off}")
                a(f"buffer_store_dwordx4 v[{LOUT+4*rp}:{LOUT+4*rp+3}], v{vLS}, s[16:19], s59 offen {cfg['k12_st']}")
                vq.issue(('ls', e))
        def l_flag(e):
            vq.wait(('ls', e), f"ls{e}")
            a(f"v_mov_b32 v{vTag_}, s{sNon}")
            a(f"s_add_u32 s59, s63, {4 * e}")
            a("s_mov_b64 exec, 1")
            a(f"buffer_store_dword v{vTag_}, v{vZ_}, s[16:19], s59 offen sc1"); vq.issue(('lf', e))
            a("s_mov_b64 exec, -1")
        def l_step(s):
            if late is None: return
            for e in range(2):
                t = s - (1 + 8 * e)
                if t == 0: l_perms(e)
                if 0 <= t <= 7:
                    if t % 2 == 0: l_comp(t // 2); l_stores(e, t // 2, (0, 1))
                    else: l_stores(e, t // 2, (2, 3))
                if t == 9: l_flag(e)
            if 2 <= s <= 5: l_loads(1, 2 * (s - 2), 2 * (s - 2) + 2)
        if late is not None: l_setup()
        if finish is None:
            poll_issue(0); check(0)
            zs(240, 3)
            dma(0); dma(1); dma(2)
            poll_issue(1)
            if late is not None: l_loads(0, 0, 8)
        else:
            a("s_cmp_lt_u32 s55, 800")
            a("s_cbranch_scc1 L_slowexit")
            a("s_waitcnt vmcnt(16)")
            for e in range(16): a(f"v_xor_b32 v{vT+e}, s{sNon}, v{240+e}")
            for e in range(1, 15, 2): a(f"v_or3_b32 v{vT}, v{vT}, v{vT+e}, v{vT+e+1}")
            a(f"v_or_b32 v{vT}, v{vT}, v{vT+15}")
            a(f"v_cmp_ne_u32 vcc, 0, v{vT}")
            a("s_cmp_eq_u64 vcc, 0")
            a("s_cbranch_scc1 L_c0fast")
            poll_issue(0, model=False)
            a("s_waitcnt vmcnt(0)")
            check(0)
            a.label("L_c0fast")
            zs(239, 3)
            sv = (list(vq.h))
            dma(0); dma(1); dma(2)
            poll_issue(1)
            if final: finish("f", True)
            a("s_branch L_exitjoin")
            a.label("L_slowexit")
            if final: finish("s", False)
            keep = list(vq.h); col = vq.collect; vq.collect = False
            poll_issue(0, model=False)
            a("s_waitcnt vmcnt(0)")
            check(0, "s")
            dma(0); dma(1); dma(2)
            poll_issue(1)
            vq.h = keep; vq.collect = col
            a.label("L_exitjoin")
        vq.wait(('dma', 0), 'pd0')
        a("s_barrier")
        for s in range(31):
            vq.wait(('dma', s + 1), f"b{s}")
            zs(241, 2 * s)
            a("s_barrier")
            zs(241, 2 * s + 1)
            if s % 4 == 1 and (s + 3) // 4 <= 7: check((s + 3) // 4)
            if s + 3 <= 31: dma(s + 3)
            if s % 4 == 0 and s >= 4 and (s + 4) // 4 <= 7: poll_issue((s + 4) // 4)
            l_step(s)
            if cfg.get('fuse45') and cfg.get('fz_pf3') and s == 24 and U == '' and final:
                a("s_cmp_ge_u32 s2, 8"); a("s_cbranch_scc1 L_nopf_p3")
                a("s_cmp_lg_u32 s15, 0"); a("s_cbranch_scc1 L_nopf_p3")
                G.prefetch_code_fwd(a, "p3", "L_fz_ydone", "L_code_end", 3, 40, sp=60)
                a.label("L_nopf_p3")
        if U: a("s_branch L_hg_done")

def gen_fused(cfg=None):
    cfg = cfg or G.CFG
    a = Asm()
    name = 'conv_kernel'
    G.kernel_header(a, name)
    vT = K3.vT; XR = K3.XR; vXa = K3.vXa; vWa = K3.vWa; vSt = K3.vSt; vSt2 = K3.vSt2
    a("s_cmp_ge_u32 s2, 256")
    a("s_cbranch_scc1 L_fz_end")
    a("s_load_dwordx4 s[4:7], s[0:1], 0")
    a("s_load_dwordx4 s[36:39], s[0:1], 40")
    a(f"v_lshrrev_b32 v{vT}, 6, v0")
    a(f"v_and_b32 v0, 63, v0")
    a(f"v_readfirstlane_b32 s10, v{vT}")
    a("s_cmp_ge_u32 s10, 4")
    a("s_cbranch_scc1 L_fz_helper")
    if cfg.get('pf_code'):
        a("s_cmp_ge_u32 s2, 8"); a("s_cbranch_scc1 L_nopf")
        a("s_cmp_lg_u32 s10, 3"); a("s_cbranch_scc1 L_nopf")
        G.prefetch_code(a, "fz", "conv_kernel", "L_code_end", 12 + 2 * NM, 200, sp=60)
        a.label("L_nopf")
    K3.decode_ids(a)
    K3.gemm_setup(a)
    a("s_waitcnt vmcnt(0) lgkmcnt(0)")
    G.make_srd(a, 16, 38, 39, G.WS_BYTES)
    for r in range(168): a(f"v_mov_b32 v{r}, 0")
    follow_phase(a)
    K3.gemm_wave(a, cfg, zero=False, cont=("L_fz_ydone" if cfg.get('fuse45') else None))
    a.label("L_fz_helper")
    a("s_sub_u32 s10, s10, 4")
    if cfg.get('fz_xprio'): a(f"s_setprio {cfg['fz_xprio']}")
    finish = xform_phase(a, cfg)
    a("s_add_u32 s10, s10, 4")
    K3.decode_ids(a)
    K3.helper_setup(a)
    if cfg.get('fz_hprio'): a(f"s_setprio {cfg['fz_hprio']}")
    if NM:
        assert finish is None
        a("s_cmp_eq_u32 s15, 3"); a("s_cbranch_scc1 L_hg7")
        if NM == 2: a("s_cmp_eq_u32 s15, 2"); a("s_cbranch_scc1 L_hg6")
        helper_gemm(a, cfg, None)
        a("s_branch L_hg_done")
        a.label("L_hg7"); helper_gemm(a, cfg, None, late=7)
        if NM == 2:
            a.label("L_hg6"); helper_gemm(a, cfg, None, late=6)
        a.label("L_hg_done")
    else:
        helper_gemm(a, cfg, finish)
    if cfg.get('zstamp'):
        a("s_lshl_b32 s73, s2, 2"); a("s_add_u32 s73, s73, s15"); a("s_lshl_b32 s73, s73, 10")
        a(f"s_add_u32 s73, s73, {218 << 20}")
        a("v_lshlrev_b32 v243, 2, v0")
        a("buffer_store_dword v240, v243, s[16:19], s73 offen")
        a("buffer_store_dword v241, v243, s[16:19], s73 offen offset:256")
        a("buffer_store_dword v242, v243, s[16:19], s73 offen offset:512")
    if not cfg.get('fuse45'):
        K3.ws_fill(a)
    else:
        import gen_k45g as K45
        NONCE_LDS = 6144
        a(f"v_mov_b32 v8, {NONCE_LDS}"); a("v_mov_b32 v9, s54")
        a("ds_write_b32 v8, v9")
        a("s_waitcnt lgkmcnt(0)")
        a("s_branch L_fz_y1")
        a.label("L_fz_ydone")
        a("s_waitcnt vmcnt(0)")
        a.label("L_fz_y1")
        a("s_barrier")
        a(f"v_mov_b32 v200, {NONCE_LDS}")
        a("ds_read_b32 v201, v200")
        a("s_waitcnt lgkmcnt(0)")
        a("v_readfirstlane_b32 s54, v201")
        a("s_cmp_lg_u32 s10, 4"); a("s_cbranch_scc1 L_fz_noyf")
        a("s_lshl_b32 s24, s14, 1"); a("s_add_u32 s24, s24, s13"); a("s_lshl_b32 s24, s24, 5"); a("s_add_u32 s24, s24, s11")
        a("s_lshl_b32 s24, s24, 2"); a(f"s_add_u32 s24, s24, {K45.YFLAG_BASE}")
        a("v_mov_b32 v202, s54"); a("v_mov_b32 v203, 0")
        a("s_mov_b64 exec, 1")
        a("buffer_store_dword v202, v203, s[16:19], s24 offen sc1")
        a("s_mov_b64 exec, -1")
        a.label("L_fz_noyf")
        K45.gen_k45g(cfg, a)
    a.label("L_fz_end")
    a("s_endpgm")
    return name, a.lines, 256, (256, 512, LDS_BYTES)
```

```python
from asmlib import *
import gen as G
import gen_k3c as K3
from gen_k3c import STAGE, NSTAGE, LDS_BYTES, XC
from gen_k123 import VQ, Null

FLAG_BASE = 150 << 20
SPIN_MAX = 1 << 15
NX = 672; NWG = 256
NM = G.CFG.get('fz_nm', 0)
NW = 1024 - 128 * NM; NT = NX + NW
LFLAG_BASE = FLAG_BASE + 8192
CH = 212
TB = 3 * STAGE

def xform_phase(a, cfg):
    st = cfg['k12_st']; ld = cfg.get('k12_ld', '')
    BUF = [0 + 8, 64 + 8]; AF = 136; BF = 168; ACC = 184; VT = 216
    vR = VT+1; vG = VT+2; vSt = VT+4; vT0 = VT+5
    vNext = VT + 13; vZ = VT + 14; vL16 = VT + 15
    vXo = VT + 16; vWo = VT + 17; vXs = VT + 18; vWs = VT + 19; vNon = VT + 20; vTag = VT + 21
    vPA0 = VT + 22; vP0 = 240
    EARLY = cfg.get('fz_early')
    sCur, sNxt = 40, 42
    sRawCur, sRawNxt, sNon, sRawPrev = 52, 53, 54, 55
    uid = [0]
    NF = cfg.get('k12_nf', 96)
    PAT = cfg.get('fz_pat')
    def remap(sr):
        u = uid[0]; uid[0] += 1
        if PAT:
            per, nx = PAT
            nper = (NX + nx - 1) // nx
            assert NX % nx == 0
            head = nper * per
            magic = ((1 << 20) + per - 1) // per
            assert all(((p * magic) >> 20) == p // per for p in range(head))
            a(f"s_cmp_ge_u32 s{sr}, {head}")
            a(f"s_cbranch_scc1 L_rm{u}")
            a(f"s_mul_i32 s26, s{sr}, {magic}")
            a("s_lshr_b32 s26, s26, 20")
            a(f"s_mul_i32 s27, s26, {per}")
            a(f"s_sub_u32 s27, s{sr}, s27")
            a(f"s_mul_i32 s28, s26, {per-nx}"); a("s_add_u32 s28, s28, s27"); a(f"s_add_u32 s28, s28, {NX}")
            a(f"s_mul_i32 s29, s26, {nx}"); a("s_add_u32 s29, s29, s27"); a(f"s_sub_u32 s29, s29, {per-nx}")
            a(f"s_cmp_lt_u32 s27, {per-nx}")
            a(f"s_cselect_b32 s{sr}, s28, s29")
            a.label(f"L_rm{u}")
            return
        a(f"s_cmp_ge_u32 s{sr}, {NF + NX}")
        a(f"s_cbranch_scc1 L_rm{u}")
        a(f"s_sub_u32 s28, s{sr}, {NF}")
        a(f"s_add_u32 s29, s{sr}, {NX}")
        a(f"s_cmp_ge_u32 s{sr}, {NF}")
        a(f"s_cselect_b32 s{sr}, s28, s29")
        a.label(f"L_rm{u}")
    def zs(i):
        if cfg.get('zstamp'):
            a("s_memrealtime s[70:71]"); a("s_waitcnt lgkmcnt(0)"); a(f"v_writelane_b32 v240, s70, {i}")
    def zsn():
        if cfg.get('zstamp'):
            a("s_memrealtime s[70:71]"); a("s_waitcnt lgkmcnt(0)"); a("s_mov_b32 m0, s72"); a("v_writelane_b32 v240, s70, m0"); a("s_add_u32 s72, s72, 1")
    if cfg.get('zstamp'):
        a("v_mov_b32 v240, 0"); a("v_mov_b32 v241, 0"); a("v_mov_b32 v242, 0"); a("s_mov_b32 s72, 8")
    zs(0)
    a(f"v_and_b32 v{vR}, 15, v0")
    a(f"v_lshrrev_b32 v{vG}, 4, v0")
    a(f"v_lshlrev_b32 v{vL16}, 4, v0")
    a(f"v_add_u32 v{vL16}, {TB}, v{vL16}")
    a(f"v_mov_b32 v{vZ}, 0")
    a(f"v_lshlrev_b32 v{vPA0}, 4, v0")
    a("s_mov_b32 s30, 0x05040100")
    a("s_mov_b32 s31, 0x07060302")
    a("s_mov_b32 s32, 0x01000100")
    a("s_mov_b32 s33, 0x03020302")
    a(f"s_mov_b32 s{sCur}, s2")
    a(f"s_add_u32 s{sNxt}, s2, {NWG}")
    a(f"s_mov_b32 s{sRawPrev}, -1")
    a(f"s_mov_b32 s41, {TB + 12288}")
    a("s_mov_b32 s43, 0")
    a(f"v_lshlrev_b32 v{vXo}, 14, v{vG}")
    a(f"v_lshl_add_u32 v{vXo}, v{vR}, 4, v{vXo}")
    a(f"v_lshlrev_b32 v{vWo}, 22, v{vG}")
    a(f"v_lshrrev_b32 v{vT0}, 2, v{vR}")
    a(f"v_lshl_add_u32 v{vWo}, v{vT0}, 6, v{vWo}")
    a(f"v_and_b32 v{vT0}, 1, v{vR}")
    a(f"v_lshl_add_u32 v{vWo}, v{vT0}, 5, v{vWo}")
    a(f"v_bfe_u32 v{vT0}, v{vR}, 1, 1")
    a(f"v_lshl_add_u32 v{vWo}, v{vT0}, 3, v{vWo}")
    a(f"v_lshrrev_b32 v{vT0}, 2, v{vR}")
    a(f"s_mov_b32 s24, {G.XF_KS}")
    a(f"v_mul_u32_u24 v{vXs}, s24, v{vT0}")
    a(f"s_mov_b32 s24, {2*G.XF_K}")
    a(f"v_mad_u32_u24 v{vXs}, v{vG}, s24, v{vXs}")
    a(f"s_mov_b32 s24, {2*G.WF_K}")
    a(f"v_mul_u32_u24 v{vWs}, s24, v{vG}")
    remap(sCur); remap(sNxt)
    a("s_waitcnt lgkmcnt(0)")
    G.make_srd(a, 16, 38, 39, G.WS_BYTES)
    G.make_srd(a, 44, 36, 37, 256)
    a("s_or_b32 s24, s2, s10")
    a("s_cmp_lg_u32 s24, 0")
    a("s_cbranch_scc1 L_nononce")
    a("s_memrealtime s[24:25]")
    a("s_waitcnt lgkmcnt(0)")
    a("s_or_b32 s24, s24, 1")
    a(f"v_mov_b32 v{vTag}, s24")
    a("s_mov_b64 exec, 1")
    a(f"buffer_store_dword v{vTag}, v{vZ}, s[44:47], 0 offen offset:128 sc1")
    a("s_mov_b64 exec, -1")
    a.label("L_nononce")
    a(f"s_mov_b32 s{sNon}, 0")
    def issue_loads(sIdx, buf):
        u = uid[0]; uid[0] += 1
        a(f"s_cmp_ge_u32 s{sIdx}, {NT}")
        a(f"s_cbranch_scc1 L_ld_done{u}")
        a(f"s_cmp_ge_u32 s{sIdx}, {NX}")
        a(f"s_cbranch_scc1 L_ld_w{u}")
        a(f"s_cmp_ge_u32 s{sIdx}, 336")
        a("s_cselect_b32 s11, 1, 0")
        a("s_mul_i32 s12, s11, 336")
        a(f"s_sub_u32 s12, s{sIdx}, s12")
        a("s_and_b32 s13, s12, 7")
        a("s_lshr_b32 s14, s12, 3")
        a("s_lshl_b32 s14, s14, 2")
        a("s_add_u32 s14, s14, s10")
        a(f"s_mul_i32 s15, s11, {G.X_BYTES_B}")
        a("s_add_u32 s34, s4, s15")
        a("s_addc_u32 s35, s5, 0")
        G.make_srd(a, 20, 34, 35, G.X_BYTES_B)
        a("s_mul_i32 s15, s14, %d" % (48 * 2048))
        a("s_lshl_b32 s24, s13, 8")
        a("s_add_u32 s15, s15, s24")
        for s in range(2):
            for i in range(8):
                r = buf + 4 * (8 * s + i)
                a(f"s_add_u32 s25, s15, {(32*s+i)*2048}")
                a(f"buffer_load_dwordx4 v[{r}:{r+3}], v{vXo}, s[20:23], s25 offen {ld}")
        a(f"s_branch L_ld_done{u}")
        a.label(f"L_ld_w{u}")
        a(f"s_sub_u32 s12, s{sIdx}, {NX}")
        a("s_and_b32 s13, s12, 3")
        a("s_lshr_b32 s14, s12, 2")
        a("s_lshl_b32 s14, s14, 2")
        a("s_add_u32 s14, s14, s10")
        G.make_srd(a, 20, 6, 7, G.W_BYTES)
        a("s_lshl_b32 s15, s14, 10")
        a("s_lshl_b32 s24, s13, 8")
        a("s_add_u32 s15, s15, s24")
        for i in range(4):
            r = buf + 4 * i
            a(f"s_add_u32 s25, s15, {i << 20}")
            a(f"buffer_load_dwordx2 v[{r}:{r+1}], v{vWo}, s[20:23], s25 offen {ld}")
            a(f"buffer_load_dwordx2 v[{r+2}:{r+3}], v{vWo}, s[20:23], s25 offen offset:16 {ld}")
        a.label(f"L_ld_done{u}")
    if cfg.get('fuse45'):
        K3.ws_fill(a, sw=10)
    issue_loads(sCur, BUF[0])
    vA = vT0; vC = vT0+1; vP = BF
    a(f"v_lshrrev_b32 v{vA}, 2, v{vR}")
    a(f"v_lshlrev_b32 v{vA}, 1, v{vA}")
    a(f"v_bfe_u32 v{vC}, v{vR}, 1, 1")
    a(f"v_add_u32 v{vA}, v{vA}, v{vC}")
    a("s_lshl_b32 s24, s10, 3")
    a(f"v_add_u32 v{vA}, s24, v{vA}")
    a(f"v_lshl_add_u32 v{vA}, v{vA}, 1, 1")
    a(f"v_and_b32 v{vC}, 1, v{vR}")
    a(f"v_lshlrev_b32 v{vC}, 5, v{vC}")
    for s in range(2):
        a(f"v_lshlrev_b32 v{vT0+2}, 3, v{vG}")
        if s: a(f"v_add_u32 v{vT0+2}, 32, v{vT0+2}")
        a(f"v_mad_u32_u24 v{vP}, v{vA}, v{vT0+2}, v{vC}")
        for e in range(1, 8): a(f"v_add_u32 v{vP+e}, v{vP+e-1}, v{vA}")
        G.cos_table(a, None, [vP+e for e in range(8)], ACC, ACC+4)
        a("s_lshl_b32 s24, s10, 11")
        a(f"v_add_u32 v{vT0+3}, s24, v{vL16}")
        a(f"ds_write_b128 v{vT0+3}, v[{ACC}:{ACC+3}] offset:{s*1024}")
    a(f"v_lshlrev_b32 v{vT0+2}, 2, v{vG}")
    a(f"v_mad_u32_u24 v{vP}, v{vA}, v{vT0+2}, v{vC}")
    for e in range(1, 4): a(f"v_add_u32 v{vP+e}, v{vP+e-1}, v{vA}")
    for e in range(4):
        r = vP + e
        a(f"v_and_b32 v{r}, 127, v{r}"); a(f"v_cvt_f32_u32 v{r}, v{r}"); a(f"v_mul_f32 v{r}, 0x3c000000, v{r}"); a(f"v_cos_f32 v{r}, v{r}")
    for e in range(4):
        r = vP + e
        a(f"v_cvt_pk_bf16_f32 v{ACC+4}, v{r}, v{r}")
        a(f"v_lshlrev_b32 v{ACC+5}, 16, v{ACC+4}")
        a(f"v_sub_f32 v{ACC+5}, v{r}, v{ACC+5}")
        a(f"v_cvt_pk_bf16_f32 v{ACC+5}, v{ACC+5}, v{ACC+5}")
        a(f"v_perm_b32 v{ACC+e}, v{ACC+5}, v{ACC+4}, s30")
    a("s_lshl_b32 s24, s10, 10")
    a(f"v_add_u32 v{vT0+3}, s24, v{vL16}")
    a(f"ds_write_b128 v{vT0+3}, v[{ACC}:{ACC+3}] offset:8192")
    a("s_waitcnt lgkmcnt(0)")
    a("s_barrier")
    def write_flag(tag, sw=10):
        a(f"s_cmp_lg_u32 s{sw}, 0")
        a(f"s_cbranch_scc1 L_nofl{tag}")
        a(f"s_cmp_ge_u32 s{sRawPrev}, {NT}")
        a(f"s_cbranch_scc1 L_nofl{tag}")
        a(f"s_lshl_b32 s24, s{sRawPrev}, 2")
        a(f"s_add_u32 s24, s24, {FLAG_BASE}")
        a(f"v_mov_b32 v{vTag}, s{sNon}")
        a("s_mov_b64 exec, 1")
        a(f"buffer_store_dword v{vTag}, v{vZ}, s[16:19], s24 offen sc1")
        a("s_mov_b64 exec, -1")
        a.label(f"L_nofl{tag}")
    a.label("L_x_loop")
    for p in range(2):
        buf = BUF[p]; nbuf = BUF[p ^ 1]
        if p == 1:
            a("s_cmp_lg_u32 s43, 1"); a("s_cbranch_scc1 L_non_skip0")
            a(f"buffer_load_dword v{vNon}, v{vZ}, s[44:47], 0 offen offset:128 sc1")
            a.label("L_non_skip0")
        a("s_cmp_lg_u32 s10, 0")
        a(f"s_cbranch_scc1 L_nofetch{p}")
        a(f"v_mov_b32 v{vNext}, 1")
        a("s_mov_b64 exec, 1")
        a(f"buffer_atomic_add v{vNext}, v{vZ}, s[44:47], 0 offen sc0 sc1")
        a("s_mov_b64 exec, -1")
        a.label(f"L_nofetch{p}")
        issue_loads(sNxt, nbuf)
        if EARLY:
            a(f"s_cmp_lt_u32 s{sNxt}, {NT}")
            a(f"s_cbranch_scc1 L_nopoll{p}")
            for j in range(4):
                a(f"s_mov_b32 s58, {FLAG_BASE + min(j * 1024, 3200 - 1024)}")
                a(f"buffer_load_dwordx4 v[{vP0+4*j}:{vP0+4*j+3}], v{vPA0}, s[16:19], s58 offen sc1")
            a.label(f"L_nopoll{p}")
        def counted(tag, base):
            a(f"s_cmp_ge_u32 s{sNxt}, {NT}")
            a(f"s_cbranch_scc1 L_w0_{tag}")
            a(f"s_cmp_ge_u32 s{sNxt}, {NX}")
            a(f"s_cbranch_scc1 L_w8_{tag}")
            a(f"s_waitcnt vmcnt({base+16})")
            a(f"s_branch L_wd_{tag}")
            a.label(f"L_w8_{tag}")
            a(f"s_waitcnt vmcnt({base+8})")
            a(f"s_branch L_wd_{tag}")
            a.label(f"L_w0_{tag}")
            a(f"s_waitcnt vmcnt({base + (4 if EARLY else 0)})")
            a.label(f"L_wd_{tag}")
        if p == 0:
            a("s_cmp_lg_u32 s43, 0")
            a("s_cbranch_scc1 L_notfirst")
            counted("f", 0)
            a("s_mov_b32 s43, 1")
            a("s_branch L_wfin")
            a.label("L_notfirst")
            counted("a0", 16)
            a.label("L_wfin")
        else:
            counted("a1", 16)
        zsn()
        a(f"s_cmp_ge_u32 s{sCur}, {NX}")
        a(f"s_cbranch_scc1 L_cw{p}")
        a(f"s_cmp_ge_u32 s{sCur}, 336")
        a("s_cselect_b32 s11, 1, 0")
        a("s_mul_i32 s12, s11, 336")
        a(f"s_sub_u32 s12, s{sCur}, s12")
        a("s_and_b32 s13, s12, 7")
        a("s_lshr_b32 s14, s12, 3")
        a("s_lshl_b32 s14, s14, 2")
        a("s_add_u32 s14, s14, s10")
        for o in range(4):
            for s in range(2):
                r = AF + 4 * (2 * o + s)
                a(f"ds_read_b128 v[{r}:{r+3}], v{vL16} offset:{(2*o+s)*1024}")
        a("s_bfe_u32 s24, s14, 0x10003")
        a("s_mul_i32 s24, s24, 3")
        a(f"v_and_b32 v{vT0}, 3, v{vR}")
        a(f"v_xor_b32 v{vT0}, s24, v{vT0}")
        a(f"v_lshl_add_u32 v{vSt}, v{vT0}, 4, v{vXs}")
        a(f"s_mul_i32 s24, s11, {G.XF_B}")
        a(f"s_mul_i32 s25, s13, {4*G.XF_KS}")
        a("s_add_u32 s24, s24, s25")
        a("s_lshl_b32 s25, s14, 6")
        a("s_add_u32 s24, s24, s25")
        a(f"s_add_u32 s24, s24, {G.XF_BASE}")
        def perms(q):
            for s in range(2):
                for h in range(2):
                    for e in range(4):
                        d = BF + (s * 2 + h) * 4 + e
                        a(f"v_perm_b32 v{d}, v{buf + 4*(8*s+2*e+1) + q}, v{buf + 4*(8*s+2*e) + q}, s{30+h}")
        def mfmas():
            for s in range(2):
                for o in range(4):
                    for h in range(2):
                        d = ACC + (o * 2 + h) * 4
                        A = AF + 4 * (2 * o + s); B = BF + (s * 2 + h) * 4
                        c = "0" if s == 0 else f"v[{d}:{d+3}]"
                        a(f"v_mfma_f32_16x16x32_bf16 v[{d}:{d+3}], v[{A}:{A+3}], v[{B}:{B+3}], {c}")
        def cvts(q):
            for o in range(4):
                for rp in range(4):
                    a(f"v_cvt_pk_bf16_f32 v{buf + 4*(4*o+rp) + q}, v{ACC+(o*2)*4+rp}, v{ACC+(o*2+1)*4+rp}")
        perms(0)
        a("s_waitcnt lgkmcnt(0)")
        for q in range(4):
            mfmas()
            if q < 3: perms(q + 1)
            cvts(q)
        for o in range(4):
            for rp in range(4):
                off = (8 * o + (rp >> 1)) * G.XF_K + (rp & 1) * (G.ROWS * 64)
                a(f"s_add_u32 s25, s24, {off}")
                r = buf + 4 * (4 * o + rp)
                a(f"buffer_store_dwordx4 v[{r}:{r+3}], v{vSt}, s[16:19], s25 offen {st}")
        a(f"s_branch L_next{p}")
        a.label(f"L_cw{p}")
        a(f"s_sub_u32 s12, s{sCur}, {NX}")
        a("s_and_b32 s13, s12, 3")
        a("s_lshr_b32 s14, s12, 2")
        a("s_lshl_b32 s14, s14, 2")
        a("s_add_u32 s14, s14, s10")
        for o in range(4):
            r = AF + 4 * o
            a(f"ds_read_b128 v[{r}:{r+3}], v{vL16} offset:{8192+o*1024}")
        a("s_and_b32 s24, s14, 3")
        a("s_bfe_u32 s25, s14, 0x10003")
        a("s_lshl_b32 s25, s25, 2")
        a("s_or_b32 s24, s24, s25")
        a("s_lshl_b32 s24, s24, 1")
        a(f"v_xor_b32 v{vT0}, s24, v{vR}")
        a(f"v_lshl_add_u32 v{vSt}, v{vT0}, 4, v{vWs}")
        a(f"s_mul_i32 s24, s13, {G.WF_DQ}")
        a("s_lshr_b32 s25, s14, 5")
        a(f"s_mul_i32 s25, s25, {G.WF_KS}")
        a("s_add_u32 s24, s24, s25")
        a("s_and_b32 s25, s14, 31")
        a("s_lshl_b32 s25, s25, 8")
        a("s_add_u32 s24, s24, s25")
        if G.WF_BASE: a(f"s_add_u32 s24, s24, {G.WF_BASE}")
        FR = buf + 16
        for dd in range(8):
            q = dd >> 1; h = dd & 1
            for e in range(4):
                a(f"v_perm_b32 v{FR+4*dd+e}, v{buf+4*e+q}, v{buf+4*e+q}, s{32+h}")
        a("s_waitcnt lgkmcnt(0)")
        for o in range(4):
            A = AF + 4 * o
            for dd in range(8):
                d = ACC + 4 * dd
                a(f"v_mfma_f32_16x16x32_bf16 v[{d}:{d+3}], v[{A}:{A+3}], v[{FR+4*dd}:{FR+4*dd+3}], 0")
            ob = (buf if (o & 1) == 0 else buf + 48)
            for rp in range(4):
                for q in range(4):
                    a(f"v_cvt_pk_bf16_f32 v{ob+4*rp+q}, v{ACC+8*q+rp}, v{ACC+8*q+4+rp}")
            for rp in range(4):
                off = (8 * o + (rp >> 1)) * G.WF_K + (rp & 1) * 8192
                a(f"s_add_u32 s25, s24, {off}")
                r = ob + 4 * rp
                a(f"buffer_store_dwordx4 v[{r}:{r+3}], v{vSt}, s[16:19], s25 offen {st}")
        a.label(f"L_next{p}")
        counted(f"p{p}", 16)
        if p == 1:
            a("s_cmp_lg_u32 s43, 1"); a("s_cbranch_scc1 L_nonok")
            a("s_mov_b32 s43, 2")
            a(f"s_mov_b32 s57, {SPIN_MAX}")
            a.label("L_non")
            a(f"v_readfirstlane_b32 s{sNon}, v{vNon}")
            a(f"s_cmp_lg_u32 s{sNon}, 0")
            a("s_cbranch_scc1 L_nonok")
            a("s_sub_u32 s57, s57, 1")
            a("s_cmp_eq_u32 s57, 0")
            a("s_cbranch_scc1 L_nonok")
            a(f"buffer_load_dword v{vNon}, v{vZ}, s[44:47], 0 offen offset:128 sc1")
            a("s_waitcnt vmcnt(0)")
            a("s_branch L_non")
            a.label("L_nonok")
        a("s_cmp_lg_u32 s10, 0")
        a(f"s_cbranch_scc1 L_pub{p}")
        a(f"v_add_u32 v{vNext}, {2*NWG}, v{vNext}")
        a(f"v_mov_b32 v{vT0}, s41")
        a("s_mov_b64 exec, 1")
        a(f"ds_write_b32 v{vT0}, v{vNext}")
        a("s_mov_b64 exec, -1")
        a.label(f"L_pub{p}")
        a("s_waitcnt lgkmcnt(0)")
        a("s_barrier")
        write_flag(f"{p}")
        a(f"v_mov_b32 v{vT0}, s41")
        a(f"ds_read_b32 v{vT0+1}, v{vT0}")
        a("s_xor_b32 s41, s41, 4")
        a(f"s_mov_b32 s{sRawPrev}, s{sCur}")
        a(f"s_mov_b32 s{sCur}, s{sNxt}")
        a("s_waitcnt lgkmcnt(0)")
        a(f"v_readfirstlane_b32 s{sNxt}, v{vT0+1}")
        remap(sNxt)
        a(f"s_cmp_ge_u32 s{sCur}, {NT}")
        a("s_cbranch_scc1 L_x_fin")
    a("s_branch L_x_loop")
    a.label("L_x_fin")
    zs(1)
    if not EARLY:
        a("s_waitcnt vmcnt(0)")
        a("s_barrier")
        zs(2)
        write_flag("f")
        return None
    def finish(tag, early):
        a(f"s_waitcnt vmcnt({31 if early else 0})")
        a("s_barrier")
        write_flag(tag, 15)
    return finish

def follow_phase(a):
    vA, vB = 254, 255
    a("s_mov_b32 s40, s2")
    a(f"s_add_u32 s42, s2, {NWG}")
    a(f"s_mov_b32 s41, {TB + 12288}")
    a("s_barrier")
    a.label("L_f_loop")
    a("s_barrier")
    a(f"v_mov_b32 v{vA}, s41")
    a(f"ds_read_b32 v{vB}, v{vA}")
    a("s_xor_b32 s41, s41, 4")
    a("s_mov_b32 s40, s42")
    a("s_waitcnt lgkmcnt(0)")
    a(f"v_readfirstlane_b32 s42, v{vB}")
    a(f"s_cmp_lt_u32 s40, {NT}")
    a("s_cbranch_scc1 L_f_loop")
    a("s_barrier")

def helper_gemm(a_real, cfg, finish=None, late=None):
    table = {}
    for final in (False, True):
        a = a_real if final else Null()
        vq = VQ(a, table, not final)
        U = '' if late is None else f"_l{late}"
        vDW = 1; vDX = 2; vD6 = 5; vPA = 6; vP = 8; vT = 24
        sWo, sXo, sLW, sLX, sX6 = 40, 41, 42, 43, 44
        sNon, sPl = 54, 56
        def dma(step):
            buf = step % NSTAGE; tag = ('dma', step)
            a(f"s_add_u32 m0, s{sLW}, {buf*STAGE}")
            for j in range(4):
                a(f"buffer_load_dwordx4 v{vDW}, s[16:19], s{sWo} offen offset:{j*1024} lds"); vq.issue(tag)
            a(f"s_add_u32 s{sWo}, s{sWo}, {G.WF_KS}")
            a(f"s_add_u32 m0, s{sLX}, {buf*STAGE}")
            for j in range(4):
                a(f"buffer_load_dwordx4 v{vDX}, s[16:19], s{sXo} offen offset:{j*1024} lds"); vq.issue(tag)
            a(f"s_add_u32 m0, s{sLX}, {buf*STAGE+4096}")
            a(f"s_add_u32 s49, s{sXo}, 4096")
            a(f"buffer_load_dwordx4 v{vDX}, s[16:19], s49 offen lds"); vq.issue(tag)
            a("s_mov_b64 exec, s[50:51]")
            a(f"buffer_load_dwordx4 v{vD6}, s[16:19], s{sX6} offen offset:1024 lds"); vq.issue(tag)
            a("s_mov_b64 exec, -1")
            a(f"s_add_u32 s{sXo}, s{sXo}, {G.XF_KS}")
            a(f"s_add_u32 s{sX6}, s{sX6}, {G.XF_KS}")
        vPB = 7
        def poll_issue(c, model=True):
            if c == 0:
                for j in range(4):
                    a(f"s_mov_b32 s58, {FLAG_BASE + min(j * 1024, 3200 - 1024)}")
                    a(f"buffer_load_dwordx4 v[{vP+4*j}:{vP+4*j+3}], v{vPA}, s[16:19], s58 offen sc1")
                    if model: vq.issue(('pl', c))
            elif c >= 8 - NM:
                for j in range(2):
                    a(f"s_mov_b32 s58, {LFLAG_BASE + (7 - c) * 2048 + j * 1024}")
                    a(f"buffer_load_dwordx4 v[{vP+4*j}:{vP+4*j+3}], v{vPA}, s[16:19], s58 offen sc1")
                    if model: vq.issue(('pl', c))
            else:
                a(f"s_mov_b32 s58, {FLAG_BASE + (NX + 128 * c) * 4}")
                a(f"buffer_load_dwordx4 v[{vP}:{vP+3}], v{vPB}, s[16:19], s58 offen sc1")
                if model: vq.issue(('pl', c))
        def check(c, sfx=''):
            n = 16 if c == 0 else (8 if c >= 8 - NM else 4)
            sfx = sfx + U
            vq.wait(('pl', c), f"c{c}")
            a(f"s_mov_b32 s57, {SPIN_MAX}")
            a.label(f"L_chk{c}{sfx}")
            for e in range(n): a(f"v_xor_b32 v{vT+e}, s{sNon}, v{vP+e}")
            for e in range(1, n - 1, 2): a(f"v_or3_b32 v{vT}, v{vT}, v{vT+e}, v{vT+e+1}")
            a(f"v_or_b32 v{vT}, v{vT}, v{vT+n-1}")
            a(f"v_cmp_ne_u32 vcc, 0, v{vT}")
            a("s_cmp_eq_u64 vcc, 0")
            a(f"s_cbranch_scc1 L_ok{c}{sfx}")
            a("s_sub_u32 s57, s57, 1")
            a("s_cmp_eq_u32 s57, 0")
            a(f"s_cbranch_scc1 L_ok{c}{sfx}")
            if cfg.get('fz_sleep'): a(f"s_sleep {cfg['fz_sleep']}")
            poll_issue(c, model=False)
            a("s_waitcnt vmcnt(0)")
            a(f"s_branch L_chk{c}{sfx}")
            a.label(f"L_ok{c}{sfx}")
            if cfg.get('zstamp'):
                a(f"s_sub_u32 s74, {SPIN_MAX}, s57"); a(f"v_writelane_b32 v242, s74, {c}")
        a(f"v_lshlrev_b32 v{vPA}, 4, v0")
        a(f"v_min_u32 v{vPB}, 31, v0")
        a(f"v_lshlrev_b32 v{vPB}, 4, v{vPB}")
        def zs(reg, i):
            if cfg.get('zstamp'):
                a("s_memrealtime s[70:71]"); a("s_waitcnt lgkmcnt(0)"); a(f"v_writelane_b32 v{reg}, s70, {i}")
        LAF, LRAW, LFR, LACC, LOUT = 40, 56, 72, 104, 136
        vWo, vWs, vR_, vZ_, vTag_ = 233, 235, 217, 230, 154
        vLS = 153
        def l_setup():
            a("s_lshr_b32 s60, s2, 1"); a(f"s_add_u32 s60, s60, {128 * late}")
            a("s_and_b32 s61, s2, 1"); a("s_lshl_b32 s61, s61, 1")
            a("s_and_b32 s62, s60, 3"); a("s_bfe_u32 s63, s60, 0x10003"); a("s_lshl_b32 s63, s63, 2")
            a("s_or_b32 s62, s62, s63"); a("s_lshl_b32 s62, s62, 1")
            a(f"v_xor_b32 v{vLS}, s62, v{vR_}"); a(f"v_lshl_add_u32 v{vLS}, v{vLS}, 4, v{vWs}")
            a(f"s_mul_i32 s62, s61, {G.WF_DQ}"); a("s_lshr_b32 s63, s60, 5"); a(f"s_mul_i32 s63, s63, {G.WF_KS}")
            a("s_add_u32 s62, s62, s63"); a("s_and_b32 s63, s60, 31"); a("s_lshl_b32 s63, s63, 8"); a("s_add_u32 s62, s62, s63")
            if G.WF_BASE: a(f"s_add_u32 s62, s62, {G.WF_BASE}")
            a("s_lshl_b32 s60, s60, 10"); a("s_lshl_b32 s63, s61, 8"); a("s_add_u32 s60, s60, s63")
            a("s_lshl_b32 s63, s2, 3"); a(f"s_add_u32 s63, s63, {LFLAG_BASE + (7 - late) * 2048}")
            G.make_srd(a, 20, 6, 7, G.W_BYTES)
            a(f"v_lshlrev_b32 v{vLS+2}, 4, v0"); a(f"v_add_u32 v{vLS+2}, {TB}, v{vLS+2}")
            for o in range(4):
                a(f"ds_read_b128 v[{LAF+4*o}:{LAF+4*o+3}], v{vLS+2} offset:{8192+o*1024}")
            a("s_waitcnt lgkmcnt(0)")
        def l_loads(e, n0, n1):
            for n in range(n0, n1):
                i, hf = n >> 1, n & 1
                a(f"s_add_u32 s59, s60, {(i << 20) + e * 256}")
                a(f"buffer_load_dwordx2 v[{LRAW+4*i+2*hf}:{LRAW+4*i+2*hf+1}], v{vWo}, s[20:23], s59 offen offset:{16*hf}")
                vq.issue(('ll', e))
        def l_perms(e):
            vq.wait(('ll', e), f"ll{e}")
            for dd in range(8):
                q = dd >> 1; h = dd & 1
                for k in range(4):
                    a(f"v_perm_b32 v{LFR+4*dd+k}, v{LRAW+4*k+q}, v{LRAW+4*k+q}, s{32+h}")
        def l_comp(o):
            for dd in range(8):
                d = LACC + 4 * dd
                a(f"v_mfma_f32_16x16x32_bf16 v[{d}:{d+3}], v[{LAF+4*o}:{LAF+4*o+3}], v[{LFR+4*dd}:{LFR+4*dd+3}], 0")
            for rp in range(4):
                for q in range(4):
                    a(f"v_cvt_pk_bf16_f32 v{LOUT+4*rp+q}, v{LACC+8*q+rp}, v{LACC+8*q+4+rp}")
        def l_stores(e, o, rps):
            for rp in rps:
                off = (8 * o + (rp >> 1)) * G.WF_K + (rp & 1) * 8192 + e * G.WF_DQ
                a(f"s_add_u32 s59, s62, {off}")
                a(f"buffer_store_dwordx4 v[{LOUT+4*rp}:{LOUT+4*rp+3}], v{vLS}, s[16:19], s59 offen {cfg['k12_st']}")
                vq.issue(('ls', e))
        def l_flag(e):
            vq.wait(('ls', e), f"ls{e}")
            a(f"v_mov_b32 v{vTag_}, s{sNon}")
            a(f"s_add_u32 s59, s63, {4 * e}")
            a("s_mov_b64 exec, 1")
            a(f"buffer_store_dword v{vTag_}, v{vZ_}, s[16:19], s59 offen sc1"); vq.issue(('lf', e))
            a("s_mov_b64 exec, -1")
        def l_step(s):
            if late is None: return
            for e in range(2):
                t = s - (1 + 8 * e)
                if t == 0: l_perms(e)
                if 0 <= t <= 7:
                    if t % 2 == 0: l_comp(t // 2); l_stores(e, t // 2, (0, 1))
                    else: l_stores(e, t // 2, (2, 3))
                if t == 9: l_flag(e)
            if 2 <= s <= 5: l_loads(1, 2 * (s - 2), 2 * (s - 2) + 2)
        if late is not None: l_setup()
        if finish is None:
            poll_issue(0); check(0)
            zs(240, 3)
            dma(0); dma(1); dma(2)
            poll_issue(1)
            if late is not None: l_loads(0, 0, 8)
        else:
            a("s_cmp_lt_u32 s55, 800")
            a("s_cbranch_scc1 L_slowexit")
            a("s_waitcnt vmcnt(16)")
            for e in range(16): a(f"v_xor_b32 v{vT+e}, s{sNon}, v{240+e}")
            for e in range(1, 15, 2): a(f"v_or3_b32 v{vT}, v{vT}, v{vT+e}, v{vT+e+1}")
            a(f"v_or_b32 v{vT}, v{vT}, v{vT+15}")
            a(f"v_cmp_ne_u32 vcc, 0, v{vT}")
            a("s_cmp_eq_u64 vcc, 0")
            a("s_cbranch_scc1 L_c0fast")
            poll_issue(0, model=False)
            a("s_waitcnt vmcnt(0)")
            check(0)
            a.label("L_c0fast")
            zs(239, 3)
            sv = (list(vq.h))
            dma(0); dma(1); dma(2)
            poll_issue(1)
            if final: finish("f", True)
            a("s_branch L_exitjoin")
            a.label("L_slowexit")
            if final: finish("s", False)
            keep = list(vq.h); col = vq.collect; vq.collect = False
            poll_issue(0, model=False)
            a("s_waitcnt vmcnt(0)")
            check(0, "s")
            dma(0); dma(1); dma(2)
            poll_issue(1)
            vq.h = keep; vq.collect = col
            a.label("L_exitjoin")
        vq.wait(('dma', 0), 'pd0')
        a("s_barrier")
        for s in range(31):
            vq.wait(('dma', s + 1), f"b{s}")
            zs(241, 2 * s)
            a("s_barrier")
            zs(241, 2 * s + 1)
            if s % 4 == 1 and (s + 3) // 4 <= 7: check((s + 3) // 4)
            if s + 3 <= 31: dma(s + 3)
            if s % 4 == 0 and s >= 4 and (s + 4) // 4 <= 7: poll_issue((s + 4) // 4)
            l_step(s)
            if cfg.get('fz_pfg') and s in (0, 20) and U == '' and final:
                a(f"s_cmp_ge_u32 s2, 8"); a(f"s_cbranch_scc1 L_nopf_g{s}")
                a(f"s_cmp_lg_u32 s15, 0"); a(f"s_cbranch_scc1 L_nopf_g{s}")
                G.prefetch_code(a, f"g{s}", "L_g_loop", "L_fz_helper", 4, 40, sp=60)
                a.label(f"L_nopf_g{s}")
            if cfg.get('fuse45') and cfg.get('fz_pf3') and s == 24 and U == '' and final:
                a("s_cmp_ge_u32 s2, 8"); a("s_cbranch_scc1 L_nopf_p3")
                a("s_cmp_lg_u32 s15, 0"); a("s_cbranch_scc1 L_nopf_p3")
                G.prefetch_code_fwd(a, "p3", "L_fz_ydone", "L_code_end", 3, 40, sp=60)
                a.label("L_nopf_p3")
        if U: a("s_branch L_hg_done")

def gen_fused(cfg=None):
    cfg = cfg or G.CFG
    a = Asm()
    name = 'conv_kernel'
    G.kernel_header(a, name)
    vT = K3.vT; XR = K3.XR; vXa = K3.vXa; vWa = K3.vWa; vSt = K3.vSt; vSt2 = K3.vSt2
    a("s_cmp_ge_u32 s2, 256")
    a("s_cbranch_scc1 L_fz_end")
    a("s_load_dwordx4 s[4:7], s[0:1], 0")
    a("s_load_dwordx4 s[36:39], s[0:1], 40")
    a(f"v_lshrrev_b32 v{vT}, 6, v0")
    a(f"v_and_b32 v0, 63, v0")
    a(f"v_readfirstlane_b32 s10, v{vT}")
    a("s_cmp_ge_u32 s10, 4")
    a("s_cbranch_scc1 L_fz_helper")
    if cfg.get('pf_code'):
        a("s_cmp_ge_u32 s2, 8"); a("s_cbranch_scc1 L_nopf")
        a("s_cmp_lg_u32 s10, 3"); a("s_cbranch_scc1 L_nopf")
        G.prefetch_code(a, "fz", "conv_kernel", "L_code_end", 12 + 2 * NM, 200, sp=60)
        a.label("L_nopf")
    K3.decode_ids(a)
    K3.gemm_setup(a)
    a("s_waitcnt vmcnt(0) lgkmcnt(0)")
    G.make_srd(a, 16, 38, 39, G.WS_BYTES)
    for r in range(168): a(f"v_mov_b32 v{r}, 0")
    follow_phase(a)
    K3.gemm_wave(a, cfg, zero=False, cont=("L_fz_ydone" if cfg.get('fuse45') else None))
    a.label("L_fz_helper")
    a("s_sub_u32 s10, s10, 4")
    if cfg.get('fz_xprio'): a(f"s_setprio {cfg['fz_xprio']}")
    finish = xform_phase(a, cfg)
    a("s_add_u32 s10, s10, 4")
    K3.decode_ids(a)
    K3.helper_setup(a)
    if cfg.get('fz_hprio'): a(f"s_setprio {cfg['fz_hprio']}")
    if NM:
        assert finish is None
        a("s_cmp_eq_u32 s15, 3"); a("s_cbranch_scc1 L_hg7")
        if NM == 2: a("s_cmp_eq_u32 s15, 2"); a("s_cbranch_scc1 L_hg6")
        helper_gemm(a, cfg, None)
        a("s_branch L_hg_done")
        a.label("L_hg7"); helper_gemm(a, cfg, None, late=7)
        if NM == 2:
            a.label("L_hg6"); helper_gemm(a, cfg, None, late=6)
        a.label("L_hg_done")
    else:
        helper_gemm(a, cfg, finish)
    if cfg.get('zstamp'):
        a("s_lshl_b32 s73, s2, 2"); a("s_add_u32 s73, s73, s15"); a("s_lshl_b32 s73, s73, 10")
        a(f"s_add_u32 s73, s73, {218 << 20}")
        a("v_lshlrev_b32 v243, 2, v0")
        a("buffer_store_dword v240, v243, s[16:19], s73 offen")
        a("buffer_store_dword v241, v243, s[16:19], s73 offen offset:256")
        a("buffer_store_dword v242, v243, s[16:19], s73 offen offset:512")
    if not cfg.get('fuse45'):
        K3.ws_fill(a)
    else:
        import gen_k45g as K45
        NONCE_LDS = 6144
        a(f"v_mov_b32 v8, {NONCE_LDS}"); a("v_mov_b32 v9, s54")
        a("ds_write_b32 v8, v9")
        a("s_waitcnt lgkmcnt(0)")
        a("s_branch L_fz_y1")
        a.label("L_fz_ydone")
        a("s_waitcnt vmcnt(0)")
        a.label("L_fz_y1")
        a("s_barrier")
        a(f"v_mov_b32 v200, {NONCE_LDS}")
        a("ds_read_b32 v201, v200")
        a("s_waitcnt lgkmcnt(0)")
        a("v_readfirstlane_b32 s54, v201")
        a("s_cmp_lg_u32 s10, 4"); a("s_cbranch_scc1 L_fz_noyf")
        a("s_lshl_b32 s24, s14, 1"); a("s_add_u32 s24, s24, s13"); a("s_lshl_b32 s24, s24, 5"); a("s_add_u32 s24, s24, s11")
        a("s_lshl_b32 s24, s24, 2"); a(f"s_add_u32 s24, s24, {K45.YFLAG_BASE}")
        a("v_mov_b32 v202, s54"); a("v_mov_b32 v203, 0")
        a("s_mov_b64 exec, 1")
        a("buffer_store_dword v202, v203, s[16:19], s24 offen sc1")
        a("s_mov_b64 exec, -1")
        a.label("L_fz_noyf")
        K45.gen_k45g(cfg, a)
    a.label("L_fz_end")
    a("s_endpgm")
    return name, a.lines, 256, (256, 512, LDS_BYTES)
```

```python
from asmlib import *
import gen as G
import math, struct
f2h = lambda x: "0x%08x" % struct.unpack('<I', struct.pack('<f', x))[0]

RAW = 0
AF = 64
BF = 88
ACC = 104
VT = 200
NG = G.CFG.get('k45_ng', 28)
L_TAB = 0; L_PART = 8192; L_SUM = L_PART + 6 * 4096; L_OFF = L_SUM + 1024
LDS = L_OFF + 6 * 8192

def hreg(o, dd, rp): return ACC + (o * 8 + dd) * 4 + rp

YFLAG_BASE = 152 << 20

def gen_k45g(cfg=None, a=None):
    cfg = cfg or G.CFG
    fused = a is not None
    if not fused: a = Asm()
    def st(i):
        if cfg.get('fstamp'):
            a("s_memrealtime s[70:71]"); a("s_waitcnt lgkmcnt(0)"); a(f"v_writelane_b32 v244, s70, {i}")
    name = 'final_kernel'
    vLane = VT; vR = VT+1; vG = VT+2; vOff = VT+3; vT0 = VT+4
    VTID4 = 214; PA = 216; PB = 224; GB = 232
    if fused:
        a(f"s_cmp_ge_u32 s11, {NG}")
        a("s_cbranch_scc1 L_k45_end")
        a("s_load_dwordx4 s[4:7], s[0:1], 16")
        a("s_load_dwordx2 s[28:29], s[0:1], 32")
        a("s_mov_b32 s12, s11")
        a("s_mov_b32 s11, s13")
        a("s_mov_b32 s13, s14")
        a(f"v_mbcnt_lo_u32_b32 v{vLane}, -1, 0")
        a(f"v_mbcnt_hi_u32_b32 v{vLane}, -1, v{vLane}")
        a("s_lshl_b32 s24, s10, 6")
        a(f"v_add_u32 v{VTID4}, s24, v{vLane}")
        a(f"v_lshlrev_b32 v{VTID4}, 2, v{VTID4}")
        a(f"v_and_b32 v{vR}, 15, v{vLane}")
        a(f"v_lshrrev_b32 v{vG}, 4, v{vLane}")
        a("s_mul_i32 s61, s12, 6"); a("s_mov_b32 s62, 6")
        a("s_add_u32 s14, s61, s10")
    else:
        G.kernel_header(a, name)
        st(0)
        a(f"s_cmp_ge_u32 s2, {2*NG*4}")
        a("s_cbranch_scc1 L_k45_end")
        a("s_load_dwordx2 s[8:9], s[0:1], 48")
        a("s_load_dwordx4 s[4:7], s[0:1], 16")
        a("s_load_dwordx2 s[28:29], s[0:1], 32")
        a(f"v_lshrrev_b32 v{vT0}, 6, v0")
        a(f"v_and_b32 v{vLane}, 63, v0")
        a(f"v_readfirstlane_b32 s10, v{vT0}")
        if cfg.get('pf_code'):
            a("s_cmp_ge_u32 s2, 8"); a("s_cbranch_scc1 L_nopf45")
            a("s_cmp_lg_u32 s10, 7"); a("s_cbranch_scc1 L_nopf45")
            G.prefetch_code(a, "k45", "final_kernel", "L_code_end", 3, ACC + 8, sp=60)
            a.label("L_nopf45")
        a(f"v_lshlrev_b32 v{VTID4}, 2, v0")
        a(f"v_and_b32 v{vR}, 15, v{vLane}")
        a(f"v_lshrrev_b32 v{vG}, 4, v{vLane}")
        a("s_and_b32 s13, s2, 3")
        a("s_lshr_b32 s12, s2, 2")
        a(f"s_cmp_ge_u32 s12, {NG}")
        a("s_cselect_b32 s11, 1, 0")
        a(f"s_mul_i32 s15, s11, {NG}")
        a("s_sub_u32 s12, s12, s15")
        if NG == 28:
            a("s_mul_i32 s61, s12, 6"); a("s_mov_b32 s62, 6")
        else:
            a("s_mul_i32 s61, s12, 6"); a("s_mul_i32 s62, s12, 5"); a("s_add_u32 s62, s62, 8")
            a("s_cmp_lt_u32 s12, 8"); a("s_cselect_b32 s61, s61, s62"); a("s_cselect_b32 s62, 6, 5")
        a("s_add_u32 s14, s61, s10")
        a("s_cmp_lt_u32 s10, s62"); a("s_cselect_b32 s14, s14, 200")
    if cfg['y3']:
        a(f"s_mov_b32 s24, {8*G.YJ3}")
        a(f"v_mul_u32_u24 v{vOff}, s24, v{vG}")
        a(f"v_lshrrev_b32 v{vT0+1}, 2, v{vR}")
        a(f"s_mov_b32 s24, {G.YS3}")
        a(f"v_mad_u32_u24 v{vOff}, v{vT0+1}, s24, v{vOff}")
        a(f"v_and_b32 v{vT0+1}, 3, v{vR}")
        a(f"v_lshl_add_u32 v{vOff}, v{vT0+1}, 4, v{vOff}")
        a(f"s_mul_i32 s24, s11, {G.YB3}")
        a(f"s_mul_i32 s25, s13, {4*G.YS3}")
        a("s_add_u32 s24, s24, s25")
        a("s_lshl_b32 s25, s14, 6")
        a("s_add_u32 s24, s24, s25")
        a(f"s_add_u32 s24, s24, {G.YF_BASE}")
    else:
        a(f"s_mov_b32 s24, {8*G.YF_J}")
        a(f"v_mul_u32_u24 v{vOff}, s24, v{vG}")
        a(f"v_lshl_add_u32 v{vOff}, v{vR}, 4, v{vOff}")
        a(f"s_mul_i32 s24, s11, {G.YF_B}")
        a(f"s_mul_i32 s25, s14, {G.YF_ROW}")
        a("s_add_u32 s24, s24, s25")
        a("s_lshl_b32 s25, s13, 8")
        a("s_add_u32 s24, s24, s25")
        a(f"s_add_u32 s24, s24, {G.YF_BASE}")
    a("s_mov_b32 s30, 0x05040100")
    a("s_mov_b32 s31, 0x07060302")
    a("s_waitcnt lgkmcnt(0)")
    st(6)
    if not fused: G.make_srd(a, 16, 8, 9, G.WS_BYTES)
    a("s_cmp_ge_u32 s10, 6")
    a("s_cbranch_scc1 L_k45_gb")
    if fused:
        a("s_lshl_b32 s26, s13, 8")
        a(f"s_add_u32 s26, s26, {YFLAG_BASE}")
        a(f"v_lshlrev_b32 v{vT0+1}, 2, v{vLane}")
        a(f"s_mov_b32 s33, {1 << 15}")
        a.label("L_k45_ypoll")
        a(f"buffer_load_dword v{vT0+2}, v{vT0+1}, s[16:19], s26 offen sc1")
        a("s_waitcnt vmcnt(0)")
        a(f"v_cmp_ne_u32 vcc, s54, v{vT0+2}")
        a("s_cmp_eq_u64 vcc, 0")
        a("s_cbranch_scc1 L_k45_yok")
        a("s_sub_u32 s33, s33, 1")
        a("s_cmp_eq_u32 s33, 0")
        a("s_cbranch_scc1 L_k45_yok")
        if cfg.get('fz_ysleep'): a(f"s_sleep {cfg['fz_ysleep']}")
        a("s_branch L_k45_ypoll")
        a.label("L_k45_yok")
    a("s_cmp_ge_u32 s14, 168"); a("s_cbranch_scc1 L_k45_noy")
    for s in range(2):
        for i in range(8):
            r = RAW + 4 * (8 * s + i)
            a(f"s_add_u32 s25, s24, {(32*s+i)*(G.YJ3 if cfg['y3'] else G.YF_J)}")
            a(f"buffer_load_dwordx4 v[{r}:{r+3}], v{vOff}, s[16:19], s25 offen")
    a.label("L_k45_noy")
    st(8)
    vN = vT0; vA = vT0+1; vP = BF
    a("s_lshr_b32 s27, s10, 1")
    a("s_and_b32 s33, s10, 1")
    a("s_lshl_b32 s27, s27, 4")
    a(f"v_add_u32 v{vN}, s27, v{vR}")
    a("s_lshl_b32 s33, s33, 5")
    a("s_add_u32 s33, s33, 1")
    a(f"v_lshlrev_b32 v{vA}, 3, v{vG}")
    a(f"v_add_u32 v{vA}, s33, v{vA}")
    for e2 in range(4):
        a(f"v_mul_u32_u24 v{vP+2*e2}, v{vA}, v{vN}")
        a(f"v_add_u32 v{vP+2*e2+1}, 32, v{vP+2*e2}")
        if e2 < 3: a(f"v_add_u32 v{vA}, 2, v{vA}")
    G.cos_table(a, None, [vP+e for e in range(8)], ACC, ACC+4, scale="0x3d000000")
    a("s_lshl_b32 s26, s10, 10")
    a(f"v_lshlrev_b32 v{vT0+3}, 4, v{vLane}")
    a(f"v_add_u32 v{vT0+3}, s26, v{vT0+3}")
    a(f"ds_write_b128 v{vT0+3}, v[{ACC}:{ACC+3}] offset:{L_TAB}")
    a.label("L_k45_gb")
    if cfg.get('pf_tlb'):
        a("s_cmp_lg_u32 s10, 6"); a("s_cbranch_scc1 L_notlb45")
        a(f"s_mul_i32 s24, s11, {G.OUT_B}")
        a("s_add_u32 s40, s28, s24"); a("s_addc_u32 s41, s29, 0")
        G.make_srd(a, 44, 40, 41, G.OUT_B)
        a("s_mul_i32 s24, s12, %d" % (6 * 48 * 1024))
        a(f"v_lshlrev_b32 v{ACC+8}, 13, v{vLane}")
        a(f"buffer_load_dword v{ACC+9}, v{ACC+8}, s[44:47], s24 offen")
        a.label("L_notlb45")
    G.make_srd(a, 20, 4, 5, 1024)
    G.make_srd(a, 36, 6, 7, 1024)
    a(f"v_lshlrev_b32 v{vT0+6}, 4, v{vR}")
    a("s_lshl_b32 s25, s13, 8")
    a(f"buffer_load_dwordx4 v[{GB}:{GB+3}], v{vT0+6}, s[20:23], s25 offen")
    a(f"buffer_load_dwordx4 v[{GB+4}:{GB+7}], v{vT0+6}, s[36:39], s25 offen")
    st(1)
    a("s_waitcnt lgkmcnt(0)")
    a("s_barrier")
    a("s_cmp_ge_u32 s10, 6")
    a("s_cbranch_scc1 L_k45_red2")
    a(f"v_lshlrev_b32 v{vT0+3}, 4, v{vLane}")
    for o in range(3):
        for s in range(2):
            r = AF + 4 * (2 * o + s)
            a(f"ds_read_b128 v[{r}:{r+3}], v{vT0+3} offset:{L_TAB+(2*o+s)*1024}")
    S1 = PA; S2 = PB
    a(f"s_cmp_ge_u32 s14, {G.NBLK}")
    a("s_cbranch_scc1 L_k45_zero")
    a("s_waitcnt lgkmcnt(0)")
    a(f"s_cmp_lg_u32 s14, {G.NBLK-1}")
    a("s_cbranch_scc1 L_k45_full")
    lastn = G.L_OUT - 48 * (G.NBLK - 1)
    for o in range(3):
        nvalid = lastn - 16 * o
        a(f"v_cmp_gt_i32 vcc, {max(nvalid,0)}, v{vR}")
        for r in range(8):
            a(f"v_cndmask_b32 v{AF+8*o+r}, 0, v{AF+8*o+r}, vcc")
    a.label("L_k45_full")
    a("s_waitcnt vmcnt(2)")
    st(2)
    for q in range(4):
        for s in range(2):
            for h in range(2):
                for e in range(4):
                    a(f"v_perm_b32 v{BF+(s*2+h)*4+e}, v{RAW+4*(8*s+2*e+1)+q}, v{RAW+4*(8*s+2*e)+q}, s{30+h}")
        for s in range(2):
            for o in range(3):
                for h in range(2):
                    d = ACC + (o * 8 + 2 * q + h) * 4
                    A = AF + 4 * (2 * o + s); B = BF + (s * 2 + h) * 4
                    c = "0" if s == 0 else f"v[{d}:{d+3}]"
                    a(f"v_mfma_f32_16x16x32_bf16 v[{d}:{d+3}], v[{A}:{A+3}], v[{B}:{B+3}], {c}")
    st(3)
    a("s_nop 7")
    for dd in range(8):
        first = True
        for o in range(3):
            for rp in range(4):
                h = hreg(o, dd, rp)
                if first:
                    a(f"v_mul_f32 v{S2+dd}, v{h}, v{h}"); a(f"v_mov_b32 v{S1+dd}, v{h}"); first = False
                else:
                    a(f"v_fmac_f32 v{S2+dd}, v{h}, v{h}"); a(f"v_add_f32 v{S1+dd}, v{S1+dd}, v{h}")
    a("s_branch L_k45_red")
    a.label("L_k45_zero")
    a("s_waitcnt vmcnt(0) lgkmcnt(0)")
    for r in range(8):
        a(f"v_mov_b32 v{S1+r}, 0"); a(f"v_mov_b32 v{S2+r}, 0")
    a.label("L_k45_red")
    st(4)
    a("s_lshl_b32 s25, s10, 12")
    a(f"v_lshlrev_b32 v{vT0}, 10, v{vG}")
    a(f"v_lshl_add_u32 v{vT0}, v{vR}, 5, v{vT0}")
    a(f"v_add_u32 v{vT0}, s25, v{vT0}")
    a(f"ds_write_b128 v{vT0}, v[{S1}:{S1+3}] offset:{L_PART}")
    a(f"ds_write_b128 v{vT0}, v[{S1+4}:{S1+7}] offset:{L_PART+16}")
    a(f"ds_write_b128 v{vT0}, v[{S2}:{S2+3}] offset:{L_PART+512}")
    a(f"ds_write_b128 v{vT0}, v[{S2+4}:{S2+7}] offset:{L_PART+512+16}")
    a.label("L_k45_red2")
    a("s_waitcnt lgkmcnt(0)")
    a("s_barrier")
    def offload():
        a("s_lshl_b32 s25, s10, 13")
        a(f"v_lshlrev_b32 v{vT0+1}, 4, v{vLane}")
        a(f"v_add_u32 v{vT0+1}, s25, v{vT0+1}")
        for dd in range(8):
            a(f"ds_write2_b32 v{vT0+1}, v{hreg(0,dd,3)}, v{hreg(1,dd,3)} offset0:0 offset1:1") if False else None
            for o in range(3):
                a(f"ds_write_b32 v{vT0+1}, v{hreg(o,dd,3)} offset:{L_OFF+dd*1024+4*o}")
    a(f"s_mul_i32 s24, s11, {4*NG}")
    a(f"s_mul_i32 s25, s13, {NG}")
    a("s_add_u32 s24, s24, s25")
    a("s_lshl_b32 s26, s24, 10")
    a(f"s_add_u32 s26, s26, {G.PART_BASE}")
    a("s_cmp_ge_u32 s10, 6")
    a("s_cbranch_scc1 L_k45_sumdone")
    a("s_cmp_lt_u32 s10, 4")
    a("s_cbranch_scc1 L_k45_red4")
    offload()
    a("s_branch L_k45_sumdone")
    a.label("L_k45_red4")
    for p in range(24):
        a(f"ds_read_b32 v{RAW+16+p}, v{VTID4} offset:{L_PART+p*1024}")
    a("s_waitcnt lgkmcnt(0)")
    vals = [RAW + 16 + p for p in range(24)]
    while len(vals) > 1:
        nv = []
        for i in range(0, len(vals) - 1, 2):
            a(f"v_add_f32 v{vals[i]}, v{vals[i]}, v{vals[i+1]}"); nv.append(vals[i])
        if len(vals) & 1: nv.append(vals[-1])
        vals = nv
    a("s_lshl_b32 s24, s12, 10")
    a("s_add_u32 s24, s24, s26")
    a(f"buffer_store_dword v{vals[0]}, v{VTID4}, s[16:19], s24 offen sc1")
    st(5)
    offload()
    PT = RAW
    a(f"s_mov_b32 s33, {1 << 14}")
    a.label("L_k45_poll")
    a("s_mov_b32 s27, s26")
    for p in range(NG):
        if p % 4 == 0 and p: a("s_add_u32 s27, s27, 4096")
        a(f"buffer_load_dword v{PT+p}, v{VTID4}, s[16:19], s27 offen offset:{(p%4)*1024} sc1")
    a("s_waitcnt vmcnt(0)")
    t = RAW + 32
    a(f"v_max3_u32 v{t}, v{PT}, v{PT+1}, v{PT+2}")
    for p in range(3, NG - 1, 2):
        a(f"v_max3_u32 v{t}, v{t}, v{PT+p}, v{PT+p+1}")
    a(f"v_max_u32 v{t}, v{t}, v{PT+NG-1}")
    a(f"v_cmp_eq_u32 vcc, -1, v{t}")
    a("s_cmp_eq_u64 vcc, 0")
    a("s_cbranch_scc1 L_k45_got")
    a("s_sub_u32 s33, s33, 1")
    a("s_cmp_eq_u32 s33, 0")
    a("s_cbranch_scc1 L_k45_got")
    if cfg.get('k45_sleep'): a(f"s_sleep {cfg['k45_sleep']}")
    a("s_branch L_k45_poll")
    a.label("L_k45_got")
    st(7)
    vals = [PT + p for p in range(NG)]
    while len(vals) > 1:
        nv = []
        for i in range(0, len(vals) - 1, 2):
            a(f"v_add_f32 v{vals[i]}, v{vals[i]}, v{vals[i+1]}"); nv.append(vals[i])
        if len(vals) & 1: nv.append(vals[-1])
        vals = nv
    a(f"ds_write_b32 v{VTID4}, v{vals[0]} offset:{L_SUM}")
    a.label("L_k45_sumdone")
    st(9)
    a("s_waitcnt lgkmcnt(0)")
    a("s_barrier")
    a("s_cmp_lt_u32 s10, 6")
    a("s_cbranch_scc1 L_k45_nohread")
    a("s_waitcnt vmcnt(0)")
    a("s_sub_u32 s25, s10, 6")
    a("s_mul_i32 s25, s25, 3")
    a("s_lshl_b32 s25, s25, 13")
    a(f"v_lshlrev_b32 v{vT0+1}, 4, v{vLane}")
    a(f"v_add_u32 v{vT0+1}, s25, v{vT0+1}")
    for j in range(3):
        for dd in range(8):
            h = hreg(j, dd, 0)
            a(f"ds_read_b96 v[{h}:{h+2}], v{vT0+1} offset:{L_OFF+j*8192+dd*1024}")
        a("s_waitcnt lgkmcnt(0)") if j < 2 else None
    a.label("L_k45_nohread")
    ST = RAW + 44
    a(f"v_lshlrev_b32 v{vT0+6}, 5, v{vR}")
    a(f"ds_read_b128 v[{ST}:{ST+3}], v{vT0+6} offset:{L_SUM}")
    a(f"ds_read_b128 v[{ST+4}:{ST+7}], v{vT0+6} offset:{L_SUM+16}")
    a(f"ds_read_b128 v[{ST+8}:{ST+11}], v{vT0+6} offset:{L_SUM+512}")
    a(f"ds_read_b128 v[{ST+12}:{ST+15}], v{vT0+6} offset:{L_SUM+512+16}")
    a(f"s_mov_b32 s24, {f2h(1.0 / G.L_OUT)}")
    a("s_mov_b32 s25, 0x3727c5ac")
    a("s_waitcnt vmcnt(0) lgkmcnt(0)")
    for dd in range(8):
        mu = ST + dd; m2 = ST + 8 + dd
        a(f"v_mul_f32 v{mu}, s24, v{mu}")
        a(f"v_mul_f32 v{m2}, s24, v{m2}")
        a(f"v_fma_f32 v{m2}, -v{mu}, v{mu}, v{m2}")
        a(f"v_max_f32 v{m2}, 0, v{m2}")
        a(f"v_add_f32 v{m2}, s25, v{m2}")
        a(f"v_rsq_f32 v{m2}, v{m2}")
        gsrc = GB + (dd >> 1); bsrc = GB + 4 + (dd >> 1)
        if dd & 1:
            a(f"v_and_b32 v{PA+dd}, 0xffff0000, v{gsrc}"); a(f"v_and_b32 v{PB+dd}, 0xffff0000, v{bsrc}")
        else:
            a(f"v_lshlrev_b32 v{PA+dd}, 16, v{gsrc}"); a(f"v_lshlrev_b32 v{PB+dd}, 16, v{bsrc}")
        a(f"v_mul_f32 v{PA+dd}, v{PA+dd}, v{m2}")
        a(f"v_fma_f32 v{PB+dd}, -v{mu}, v{PA+dd}, v{PB+dd}")
    a(f"s_mul_i32 s24, s11, {G.OUT_B}")
    a("s_add_u32 s28, s28, s24")
    a("s_addc_u32 s29, s29, 0")
    G.make_srd(a, 32, 28, 29, G.OUT_B)
    vO = vT0 + 6
    a("s_lshl_b32 s25, s13, 8")
    a(f"v_lshlrev_b32 v{vO}, 12, v{vG}")
    a(f"v_lshl_add_u32 v{vO}, v{vR}, 4, v{vO}")
    a(f"v_add_u32 v{vO}, s25, v{vO}")
    c0 = -2.0 * math.log2(math.e) * math.sqrt(2.0 / math.pi); c1 = c0 * 0.044715
    a(f"s_mov_b32 s26, {f2h(c1)}")
    a(f"v_mov_b32 v{vT0+7}, {f2h(c0)}")
    st(10)
    T0 = RAW
    cnt = [0]
    def gelu_row(regs, sreg):
        ob = RAW + 16 + 4 * (cnt[0] % 8); cnt[0] += 1
        for dd in range(8): a(f"v_fma_f32 v{regs[dd]}, v{regs[dd]}, v{PA+dd}, v{PB+dd}")
        for dd in range(8): a(f"v_mul_f32 v{T0+dd}, v{regs[dd]}, v{regs[dd]}")
        for dd in range(8): a(f"v_fma_f32 v{T0+dd}, v{T0+dd}, s26, v{vT0+7}")
        for dd in range(8): a(f"v_mul_f32 v{T0+dd}, v{T0+dd}, v{regs[dd]}")
        for dd in range(8): a(f"v_exp_f32 v{T0+dd}, v{T0+dd}")
        for dd in range(8): a(f"v_add_f32 v{T0+dd}, 1.0, v{T0+dd}")
        for dd in range(8): a(f"v_rcp_f32 v{T0+dd}, v{T0+dd}")
        for dd in range(8): a(f"v_mul_f32 v{T0+dd}, v{T0+dd}, v{regs[dd]}")
        for q in range(4): a(f"v_cvt_pk_bf16_f32 v{ob+q}, v{T0+2*q}, v{T0+2*q+1}")
        a(f"buffer_store_dwordx4 v[{ob}:{ob+3}], v{vO}, s[32:35], s{sreg} offen {cfg['k5_st']}")
    if cfg.get('gelu_loop'):
        a("s_cmp_ge_u32 s10, 6")
        a("s_cbranch_scc1 L_k45_hoff")
        a(f"s_cmp_ge_u32 s14, {G.NBLK}")
        a("s_cbranch_scc1 L_k45_fin")
        a("s_mul_i32 s52, s14, %d" % (48 * 1024))
        a(f"s_mov_b32 s53, {1*1024}"); a(f"s_mov_b32 s54, {14*1024}")
        a("s_branch L_k45_gelu")
        a.label("L_k45_hoff")
        a("s_sub_u32 s25, s10, 6")
        a("s_mul_i32 s25, s25, 3")
        a("s_mul_i32 s52, s12, 6")
        a("s_add_u32 s52, s52, s25")
        a("s_mul_i32 s52, s52, %d" % (48 * 1024))
        a(f"s_add_u32 s52, s52, {3*1024}")
        a(f"s_mov_b32 s53, {16*1024}"); a(f"s_mov_b32 s54, {16*1024}")
        a.label("L_k45_gelu")
        a("s_mov_b32 s55, 0")
        a("s_mov_b32 s56, 0")
        a("s_mov_b32 s57, 9")
        a.label("L_k45_gloop")
        H = [hreg(0, dd, 0) for dd in range(8)]
        ob = RAW + 16
        a("s_set_gpr_idx_on s55, gpr_idx(SRC0,DST)")
        for dd in range(8): a(f"v_fma_f32 v{H[dd]}, v{H[dd]}, v{PA+dd}, v{PB+dd}")
        a("s_set_gpr_idx_mode gpr_idx(SRC0,SRC1)")
        for dd in range(8): a(f"v_mul_f32 v{T0+dd}, v{H[dd]}, v{H[dd]}")
        a("s_set_gpr_idx_off")
        for dd in range(8): a(f"v_fma_f32 v{T0+dd}, v{T0+dd}, s26, v{vT0+7}")
        a("s_set_gpr_idx_on s55, gpr_idx(SRC0)")
        for dd in range(8): a(f"v_mul_f32 v{T0+dd}, v{H[dd]}, v{T0+dd}")
        a("s_set_gpr_idx_off")
        for dd in range(8): a(f"v_exp_f32 v{T0+dd}, v{T0+dd}")
        for dd in range(8): a(f"v_add_f32 v{T0+dd}, 1.0, v{T0+dd}")
        for dd in range(8): a(f"v_rcp_f32 v{T0+dd}, v{T0+dd}")
        a("s_set_gpr_idx_on s55, gpr_idx(SRC0)")
        for dd in range(8): a(f"v_mul_f32 v{T0+dd}, v{H[dd]}, v{T0+dd}")
        a("s_set_gpr_idx_off")
        for q in range(4): a(f"v_cvt_pk_bf16_f32 v{ob+q}, v{T0+2*q}, v{T0+2*q+1}")
        a(f"buffer_store_dwordx4 v[{ob}:{ob+3}], v{vO}, s[32:35], s52 offen {cfg['k5_st']}")
        a("s_add_u32 s55, s55, 1")
        a("s_add_u32 s56, s56, 1")
        a("s_cmp_eq_u32 s56, 3")
        a("s_cbranch_scc1 L_k45_gwrap")
        a("s_add_u32 s52, s52, s53")
        a("s_branch L_k45_gnext")
        a.label("L_k45_gwrap")
        a("s_add_u32 s52, s52, s54")
        a("s_add_u32 s55, s55, 29")
        a("s_mov_b32 s56, 0")
        a.label("L_k45_gnext")
        a("s_sub_u32 s57, s57, 1")
        a("s_cmp_lg_u32 s57, 0")
        a("s_cbranch_scc1 L_k45_gloop")
    else:
        a("s_cmp_ge_u32 s10, 6")
        a("s_cbranch_scc1 L_k45_hoff")
        a(f"s_cmp_ge_u32 s14, {G.NBLK}")
        a("s_cbranch_scc1 L_k45_fin")
        a("s_mul_i32 s24, s14, %d" % (48 * 1024))
        for jj in range(3):
            for rr in range(3): a(f"s_add_u32 s{52+3*jj+rr}, s24, {(16*jj+rr)*1024}")
        a("s_branch L_k45_gelu")
        a.label("L_k45_hoff")
        a("s_sub_u32 s25, s10, 6")
        a("s_mul_i32 s25, s25, 3")
        a("s_add_u32 s24, s61, s25")
        a("s_mul_i32 s24, s24, %d" % (48 * 1024))
        for jj in range(3):
            for rr in range(3): a(f"s_add_u32 s{52+3*jj+rr}, s24, {(48*jj+16*rr+3)*1024}")
        a("s_add_u32 s25, s25, 2"); a("s_cmp_lt_u32 s25, s62")
        for rr in range(3): a(f"s_cselect_b32 s{58+rr}, s{58+rr}, 0x7ff00000")
        a.label("L_k45_gelu")
        for jj in range(3):
            for rr in range(3):
                gelu_row([hreg(jj, dd, rr) for dd in range(8)], 52 + 3 * jj + rr)
    a.label("L_k45_fin")
    st(11)
    if cfg.get('fstamp'):
        a("s_waitcnt vmcnt(0)")
        st(12)
        a("s_lshl_b32 s73, s2, 3"); a("s_add_u32 s73, s73, s10"); a("s_lshl_b32 s73, s73, 8")
        a(f"s_add_u32 s73, s73, {214 << 20}")
        a(f"v_lshlrev_b32 v245, 2, v{vLane}")
        a("buffer_store_dword v244, v245, s[16:19], s73 offen")
    a.label("L_k45_end")
    a("s_endpgm")
    if fused: return None
    return name, a.lines, 248 if cfg.get('fstamp') else 240, (2 * NG * 4, 512, LDS)
```

```python
import os, sys
os.environ['GENCFG'] = '{"timeline": false}'
sys.path.insert(0, os.path.dirname(os.path.abspath(__file__)))
from asmlib import *
import gen as G
os.makedirs('var', exist_ok=True)
a = Asm(); name = 'mb_kernel'
G.kernel_header(a, name)
a("s_cmp_ge_u32 s2, 512"); a("s_cbranch_scc1 L_end")
for i in range(12288): a(f"v_add3_u32 v{8+(i%16)}, v{8+(i%16)}, v1, v2")
a.label("L_end"); a("s_endpgm")
open('ic_evict.s', 'w').write(G.build([(name, a.lines, 32, (512, 64, 70000))]))
a = Asm()
G.kernel_header(a, name)
a("s_cmp_ge_u32 s2, 2048"); a("s_cbranch_scc1 L_end")
a("s_load_dwordx2 s[4:5], s[0:1], 0"); a("s_waitcnt lgkmcnt(0)")
G.make_srd(a, 8, 4, 5, 512 << 20)
a("v_lshlrev_b32 v1, 4, v0")
a("s_lshl_b32 s12, s2, 18")
a("s_mov_b32 s13, 4")
a.label("L_loop")
for i in range(16):
    a(f"s_add_u32 s14, s12, {i*4096}")
    a(f"buffer_load_dwordx4 v[{4+4*i}:{7+4*i}], v1, s[8:11], s14 offen")
a("s_waitcnt vmcnt(0)")
a("s_add_u32 s12, s12, 65536"); a("s_sub_u32 s13, s13, 1"); a("s_cmp_lg_u32 s13, 0"); a("s_cbranch_scc1 L_loop")
a.label("L_end"); a("s_endpgm")
open('rdflush.s', 'w').write(G.build([(name, a.lines, 72, (2048, 256, 0))]))
```

```python
from asmlib import *
import gen as G
import gen_k3c as K3
from gen_k3c import STAGE, NSTAGE, LDS_BYTES, XC
from gen_k123 import VQ, Null

FLAG_BASE = 150 << 20
SPIN_MAX = 1 << 15
NX = 672; NWG = 256
NM = G.CFG.get('fz_nm', 0)
NW = 1024 - 128 * NM; NT = NX + NW
LFLAG_BASE = FLAG_BASE + 8192
CH = 212
TB = 3 * STAGE

def xform_phase(a, cfg):
    st = cfg['k12_st']; ld = cfg.get('k12_ld', '')
    BUF = [0 + 8, 64 + 8]; AF = 136; BF = 168; ACC = 184; VT = 216
    vR = VT+1; vG = VT+2; vSt = VT+4; vT0 = VT+5
    vNext = VT + 13; vZ = VT + 14; vL16 = VT + 15
    vXo = VT + 16; vWo = VT + 17; vXs = VT + 18; vWs = VT + 19; vNon = VT + 20; vTag = VT + 21
    vPA0 = VT + 22; vP0 = 240
    EARLY = cfg.get('fz_early')
    sCur, sNxt = 40, 42
    sRawCur, sRawNxt, sNon, sRawPrev = 52, 53, 54, 55
    uid = [0]
    NF = cfg.get('k12_nf', 96)
    PAT = cfg.get('fz_pat')
    def remap(sr):
        u = uid[0]; uid[0] += 1
        if PAT:
            per, nx = PAT
            nper = (NX + nx - 1) // nx
            assert NX % nx == 0
            head = nper * per
            magic = ((1 << 20) + per - 1) // per
            assert all(((p * magic) >> 20) == p // per for p in range(head))
            a(f"s_cmp_ge_u32 s{sr}, {head}")
            a(f"s_cbranch_scc1 L_rm{u}")
            a(f"s_mul_i32 s26, s{sr}, {magic}")
            a("s_lshr_b32 s26, s26, 20")
            a(f"s_mul_i32 s27, s26, {per}")
            a(f"s_sub_u32 s27, s{sr}, s27")
            a(f"s_mul_i32 s28, s26, {per-nx}"); a("s_add_u32 s28, s28, s27"); a(f"s_add_u32 s28, s28, {NX}")
            a(f"s_mul_i32 s29, s26, {nx}"); a("s_add_u32 s29, s29, s27"); a(f"s_sub_u32 s29, s29, {per-nx}")
            a(f"s_cmp_lt_u32 s27, {per-nx}")
            a(f"s_cselect_b32 s{sr}, s28, s29")
            a.label(f"L_rm{u}")
            return
        if cfg.get('fz_ord2'):
            a(f"s_cmp_ge_u32 s{sr}, 800"); a(f"s_cbranch_scc1 L_rm{u}")
            a(f"s_cmp_ge_u32 s{sr}, 632"); a(f"s_cbranch_scc1 L_rc{u}")
            a(f"s_cmp_ge_u32 s{sr}, 512"); a(f"s_cbranch_scc1 L_rb{u}")
            a(f"s_cmp_ge_u32 s{sr}, 8"); a(f"s_cbranch_scc1 L_ra{u}")
            a(f"s_add_u32 s{sr}, s{sr}, {NX}"); a(f"s_branch L_rm{u}")
            a.label(f"L_ra{u}")
            a(f"s_sub_u32 s26, s{sr}, 8"); a("s_mul_i32 s27, s26, 43691"); a("s_lshr_b32 s27, s27, 18")
            a("s_mul_i32 s28, s27, 6"); a("s_sub_u32 s28, s26, s28"); a("s_lshl_b32 s27, s27, 3"); a(f"s_add_u32 s{sr}, s27, s28")
            a(f"s_branch L_rm{u}")
            a.label(f"L_rb{u}")
            a(f"s_add_u32 s{sr}, s{sr}, {NX + 8 - 512}"); a(f"s_branch L_rm{u}")
            a.label(f"L_rc{u}")
            a(f"s_sub_u32 s26, s{sr}, 632"); a("s_lshr_b32 s27, s26, 1"); a("s_and_b32 s28, s26, 1")
            a("s_lshl_b32 s27, s27, 3"); a("s_add_u32 s27, s27, s28"); a(f"s_add_u32 s{sr}, s27, 6")
            a.label(f"L_rm{u}")
            return
        a(f"s_cmp_ge_u32 s{sr}, {NF + NX}")
        a(f"s_cbranch_scc1 L_rm{u}")
        a(f"s_sub_u32 s28, s{sr}, {NF}")
        a(f"s_add_u32 s29, s{sr}, {NX}")
        a(f"s_cmp_ge_u32 s{sr}, {NF}")
        a(f"s_cselect_b32 s{sr}, s28, s29")
        a.label(f"L_rm{u}")
    def zs(i):
        if cfg.get('zstamp'):
            a("s_memrealtime s[70:71]"); a("s_waitcnt lgkmcnt(0)"); a(f"v_writelane_b32 v240, s70, {i}")
    def zsn():
        if cfg.get('zstamp'):
            a("s_memrealtime s[70:71]"); a("s_waitcnt lgkmcnt(0)"); a("s_mov_b32 m0, s72"); a("v_writelane_b32 v240, s70, m0"); a("s_add_u32 s72, s72, 1")
    if cfg.get('zstamp'):
        a("v_mov_b32 v240, 0"); a("v_mov_b32 v241, 0"); a("v_mov_b32 v242, 0"); a("s_mov_b32 s72, 8")
    zs(0)
    a(f"v_and_b32 v{vR}, 15, v0")
    a(f"v_lshrrev_b32 v{vG}, 4, v0")
    a(f"v_lshlrev_b32 v{vL16}, 4, v0")
    a(f"v_add_u32 v{vL16}, {TB}, v{vL16}")
    a(f"v_mov_b32 v{vZ}, 0")
    a(f"v_lshlrev_b32 v{vPA0}, 4, v0")
    a("s_mov_b32 s30, 0x05040100")
    a("s_mov_b32 s31, 0x07060302")
    a("s_mov_b32 s32, 0x01000100")
    a("s_mov_b32 s33, 0x03020302")
    a(f"s_mov_b32 s{sCur}, s2")
    a(f"s_add_u32 s{sNxt}, s2, {NWG}")
    a(f"s_mov_b32 s{sRawPrev}, -1")
    a(f"s_mov_b32 s41, {TB + 12288}")
    a("s_mov_b32 s43, 0")
    a(f"v_lshlrev_b32 v{vXo}, 14, v{vG}")
    a(f"v_lshl_add_u32 v{vXo}, v{vR}, 4, v{vXo}")
    a(f"v_lshlrev_b32 v{vWo}, 22, v{vG}")
    a(f"v_lshrrev_b32 v{vT0}, 2, v{vR}")
    a(f"v_lshl_add_u32 v{vWo}, v{vT0}, 6, v{vWo}")
    a(f"v_and_b32 v{vT0}, 1, v{vR}")
    a(f"v_lshl_add_u32 v{vWo}, v{vT0}, 5, v{vWo}")
    a(f"v_bfe_u32 v{vT0}, v{vR}, 1, 1")
    a(f"v_lshl_add_u32 v{vWo}, v{vT0}, 3, v{vWo}")
    a(f"v_lshrrev_b32 v{vT0}, 2, v{vR}")
    a(f"s_mov_b32 s24, {G.XF_KS}")
    a(f"v_mul_u32_u24 v{vXs}, s24, v{vT0}")
    a(f"s_mov_b32 s24, {2*G.XF_K}")
    a(f"v_mad_u32_u24 v{vXs}, v{vG}, s24, v{vXs}")
    a(f"s_mov_b32 s24, {2*G.WF_K}")
    a(f"v_mul_u32_u24 v{vWs}, s24, v{vG}")
    remap(sCur); remap(sNxt)
    a("s_waitcnt lgkmcnt(0)")
    G.make_srd(a, 16, 38, 39, G.WS_BYTES)
    G.make_srd(a, 44, 36, 37, 256)
    a("s_or_b32 s24, s2, s10")
    a("s_cmp_lg_u32 s24, 0")
    a("s_cbranch_scc1 L_nononce")
    a("s_memrealtime s[24:25]")
    a("s_waitcnt lgkmcnt(0)")
    a("s_or_b32 s24, s24, 1")
    a(f"v_mov_b32 v{vTag}, s24")
    a("s_mov_b64 exec, 1")
    a(f"buffer_store_dword v{vTag}, v{vZ}, s[44:47], 0 offen offset:128 sc1")
    a("s_mov_b64 exec, -1")
    a.label("L_nononce")
    a(f"s_mov_b32 s{sNon}, 0")
    def xdec():
        if cfg.get('fz_xrow'):
            a("s_and_b32 s13, s12, 1"); a("s_lshl_b32 s13, s13, 2"); a("s_add_u32 s13, s13, s10")
            a("s_lshr_b32 s14, s12, 1")
        else:
            a("s_and_b32 s13, s12, 7")
            a("s_lshr_b32 s14, s12, 3")
            a("s_lshl_b32 s14, s14, 2")
            a("s_add_u32 s14, s14, s10")
    def issue_loads(sIdx, buf):
        u = uid[0]; uid[0] += 1
        a(f"s_cmp_ge_u32 s{sIdx}, {NT}")
        a(f"s_cbranch_scc1 L_ld_done{u}")
        a(f"s_cmp_ge_u32 s{sIdx}, {NX}")
        a(f"s_cbranch_scc1 L_ld_w{u}")
        a(f"s_cmp_ge_u32 s{sIdx}, 336")
        a("s_cselect_b32 s11, 1, 0")
        a("s_mul_i32 s12, s11, 336")
        a(f"s_sub_u32 s12, s{sIdx}, s12")
        xdec()
        a(f"s_mul_i32 s15, s11, {G.X_BYTES_B}")
        a("s_add_u32 s34, s4, s15")
        a("s_addc_u32 s35, s5, 0")
        G.make_srd(a, 20, 34, 35, G.X_BYTES_B)
        a("s_mul_i32 s15, s14, %d" % (48 * 2048))
        a("s_lshl_b32 s24, s13, 8")
        a("s_add_u32 s15, s15, s24")
        for s in range(2):
            for i in range(8):
                r = buf + 4 * (8 * s + i)
                a(f"s_add_u32 s25, s15, {(32*s+i)*2048}")
                a(f"buffer_load_dwordx4 v[{r}:{r+3}], v{vXo}, s[20:23], s25 offen {ld}")
        a(f"s_branch L_ld_done{u}")
        a.label(f"L_ld_w{u}")
        a(f"s_sub_u32 s12, s{sIdx}, {NX}")
        a("s_and_b32 s13, s12, 3")
        a("s_lshr_b32 s14, s12, 2")
        a("s_lshl_b32 s14, s14, 2")
        a("s_add_u32 s14, s14, s10")
        G.make_srd(a, 20, 6, 7, G.W_BYTES)
        a("s_lshl_b32 s15, s14, 10")
        a("s_lshl_b32 s24, s13, 8")
        a("s_add_u32 s15, s15, s24")
        for i in range(4):
            r = buf + 4 * i
            a(f"s_add_u32 s25, s15, {i << 20}")
            a(f"buffer_load_dwordx2 v[{r}:{r+1}], v{vWo}, s[20:23], s25 offen {ld}")
            a(f"buffer_load_dwordx2 v[{r+2}:{r+3}], v{vWo}, s[20:23], s25 offen offset:16 {ld}")
        a.label(f"L_ld_done{u}")
    if cfg.get('fuse45'):
        K3.ws_fill(a, sw=10)
    issue_loads(sCur, BUF[0])
    vA = vT0; vC = vT0+1; vP = BF
    a(f"v_lshrrev_b32 v{vA}, 2, v{vR}")
    a(f"v_lshlrev_b32 v{vA}, 1, v{vA}")
    a(f"v_bfe_u32 v{vC}, v{vR}, 1, 1")
    a(f"v_add_u32 v{vA}, v{vA}, v{vC}")
    a("s_lshl_b32 s24, s10, 3")
    a(f"v_add_u32 v{vA}, s24, v{vA}")
    a(f"v_lshl_add_u32 v{vA}, v{vA}, 1, 1")
    a(f"v_and_b32 v{vC}, 1, v{vR}")
    a(f"v_lshlrev_b32 v{vC}, 5, v{vC}")
    for s in range(2):
        a(f"v_lshlrev_b32 v{vT0+2}, 3, v{vG}")
        if s: a(f"v_add_u32 v{vT0+2}, 32, v{vT0+2}")
        a(f"v_mad_u32_u24 v{vP}, v{vA}, v{vT0+2}, v{vC}")
        for e in range(1, 8): a(f"v_add_u32 v{vP+e}, v{vP+e-1}, v{vA}")
        G.cos_table(a, None, [vP+e for e in range(8)], ACC, ACC+4)
        a("s_lshl_b32 s24, s10, 11")
        a(f"v_add_u32 v{vT0+3}, s24, v{vL16}")
        a(f"ds_write_b128 v{vT0+3}, v[{ACC}:{ACC+3}] offset:{s*1024}")
    a(f"v_lshlrev_b32 v{vT0+2}, 2, v{vG}")
    a(f"v_mad_u32_u24 v{vP}, v{vA}, v{vT0+2}, v{vC}")
    for e in range(1, 4): a(f"v_add_u32 v{vP+e}, v{vP+e-1}, v{vA}")
    for e in range(4):
        r = vP + e
        a(f"v_and_b32 v{r}, 127, v{r}"); a(f"v_cvt_f32_u32 v{r}, v{r}"); a(f"v_mul_f32 v{r}, 0x3c000000, v{r}"); a(f"v_cos_f32 v{r}, v{r}")
    for e in range(4):
        r = vP + e
        a(f"v_cvt_pk_bf16_f32 v{ACC+4}, v{r}, v{r}")
        a(f"v_lshlrev_b32 v{ACC+5}, 16, v{ACC+4}")
        a(f"v_sub_f32 v{ACC+5}, v{r}, v{ACC+5}")
        a(f"v_cvt_pk_bf16_f32 v{ACC+5}, v{ACC+5}, v{ACC+5}")
        a(f"v_perm_b32 v{ACC+e}, v{ACC+5}, v{ACC+4}, s30")
    a("s_lshl_b32 s24, s10, 10")
    a(f"v_add_u32 v{vT0+3}, s24, v{vL16}")
    a(f"ds_write_b128 v{vT0+3}, v[{ACC}:{ACC+3}] offset:8192")
    a("s_waitcnt lgkmcnt(0)")
    a("s_barrier")
    def write_flag(tag, sw=10):
        a(f"s_cmp_lg_u32 s{sw}, 0")
        a(f"s_cbranch_scc1 L_nofl{tag}")
        a(f"s_cmp_ge_u32 s{sRawPrev}, {NT}")
        a(f"s_cbranch_scc1 L_nofl{tag}")
        if cfg.get('fz_ord2'):
            a(f"s_and_b32 s24, s{sRawPrev}, 7"); a("s_mul_i32 s24, s24, 84"); a(f"s_lshr_b32 s25, s{sRawPrev}, 3"); a("s_add_u32 s24, s24, s25")
            a(f"s_cmp_ge_u32 s{sRawPrev}, {NX}"); a(f"s_cselect_b32 s24, s{sRawPrev}, s24")
            a("s_lshl_b32 s24, s24, 2")
        else:
            a(f"s_lshl_b32 s24, s{sRawPrev}, 2")
        a(f"s_add_u32 s24, s24, {FLAG_BASE}")
        a(f"v_mov_b32 v{vTag}, s{sNon}")
        a("s_mov_b64 exec, 1")
        a(f"buffer_store_dword v{vTag}, v{vZ}, s[16:19], s24 offen sc1")
        a("s_mov_b64 exec, -1")
        a.label(f"L_nofl{tag}")
    a.label("L_x_loop")
    for p in range(2):
        buf = BUF[p]; nbuf = BUF[p ^ 1]
        if p == 1:
            a("s_cmp_lg_u32 s43, 1"); a("s_cbranch_scc1 L_non_skip0")
            a(f"buffer_load_dword v{vNon}, v{vZ}, s[44:47], 0 offen offset:128 sc1")
            a.label("L_non_skip0")
        a("s_cmp_lg_u32 s10, 0")
        a(f"s_cbranch_scc1 L_nofetch{p}")
        a(f"v_mov_b32 v{vNext}, 1")
        a("s_mov_b64 exec, 1")
        a(f"buffer_atomic_add v{vNext}, v{vZ}, s[44:47], 0 offen sc0 sc1")
        a("s_mov_b64 exec, -1")
        a.label(f"L_nofetch{p}")
        issue_loads(sNxt, nbuf)
        if EARLY:
            a(f"s_cmp_lt_u32 s{sNxt}, {NT}")
            a(f"s_cbranch_scc1 L_nopoll{p}")
            for j in range(4):
                a(f"s_mov_b32 s58, {FLAG_BASE + min(j * 1024, 3200 - 1024)}")
                a(f"buffer_load_dwordx4 v[{vP0+4*j}:{vP0+4*j+3}], v{vPA0}, s[16:19], s58 offen sc1")
            a.label(f"L_nopoll{p}")
        def counted(tag, base):
            a(f"s_cmp_ge_u32 s{sNxt}, {NT}")
            a(f"s_cbranch_scc1 L_w0_{tag}")
            a(f"s_cmp_ge_u32 s{sNxt}, {NX}")
            a(f"s_cbranch_scc1 L_w8_{tag}")
            a(f"s_waitcnt vmcnt({base+16})")
            a(f"s_branch L_wd_{tag}")
            a.label(f"L_w8_{tag}")
            a(f"s_waitcnt vmcnt({base+8})")
            a(f"s_branch L_wd_{tag}")
            a.label(f"L_w0_{tag}")
            a(f"s_waitcnt vmcnt({base + (4 if EARLY else 0)})")
            a.label(f"L_wd_{tag}")
        if p == 0:
            a("s_cmp_lg_u32 s43, 0")
            a("s_cbranch_scc1 L_notfirst")
            counted("f", 0)
            a("s_mov_b32 s43, 1")
            a("s_branch L_wfin")
            a.label("L_notfirst")
            counted("a0", 16)
            a.label("L_wfin")
        else:
            counted("a1", 16)
        zsn()
        a(f"s_cmp_ge_u32 s{sCur}, {NX}")
        a(f"s_cbranch_scc1 L_cw{p}")
        a(f"s_cmp_ge_u32 s{sCur}, 336")
        a("s_cselect_b32 s11, 1, 0")
        a("s_mul_i32 s12, s11, 336")
        a(f"s_sub_u32 s12, s{sCur}, s12")
        xdec()
        for o in range(4):
            for s in range(2):
                r = AF + 4 * (2 * o + s)
                a(f"ds_read_b128 v[{r}:{r+3}], v{vL16} offset:{(2*o+s)*1024}")
        a("s_bfe_u32 s24, s14, 0x10003")
        a("s_mul_i32 s24, s24, 3")
        a(f"v_and_b32 v{vT0}, 3, v{vR}")
        a(f"v_xor_b32 v{vT0}, s24, v{vT0}")
        a(f"v_lshl_add_u32 v{vSt}, v{vT0}, 4, v{vXs}")
        a(f"s_mul_i32 s24, s11, {G.XF_B}")
        a(f"s_mul_i32 s25, s13, {4*G.XF_KS}")
        a("s_add_u32 s24, s24, s25")
        a("s_lshl_b32 s25, s14, 6")
        a("s_add_u32 s24, s24, s25")
        a(f"s_add_u32 s24, s24, {G.XF_BASE}")
        def perms(q):
            for s in range(2):
                for h in range(2):
                    for e in range(4):
                        d = BF + (s * 2 + h) * 4 + e
                        a(f"v_perm_b32 v{d}, v{buf + 4*(8*s+2*e+1) + q}, v{buf + 4*(8*s+2*e) + q}, s{30+h}")
        def mfmas():
            for s in range(2):
                for o in range(4):
                    for h in range(2):
                        d = ACC + (o * 2 + h) * 4
                        A = AF + 4 * (2 * o + s); B = BF + (s * 2 + h) * 4
                        c = "0" if s == 0 else f"v[{d}:{d+3}]"
                        a(f"v_mfma_f32_16x16x32_bf16 v[{d}:{d+3}], v[{A}:{A+3}], v[{B}:{B+3}], {c}")
        def cvts(q):
            for o in range(4):
                for rp in range(4):
                    a(f"v_cvt_pk_bf16_f32 v{buf + 4*(4*o+rp) + q}, v{ACC+(o*2)*4+rp}, v{ACC+(o*2+1)*4+rp}")
        perms(0)
        a("s_waitcnt lgkmcnt(0)")
        for q in range(4):
            mfmas()
            if q < 3: perms(q + 1)
            cvts(q)
        for o in range(4):
            for rp in range(4):
                off = (8 * o + (rp >> 1)) * G.XF_K + (rp & 1) * (G.ROWS * 64)
                a(f"s_add_u32 s25, s24, {off}")
                r = buf + 4 * (4 * o + rp)
                a(f"buffer_store_dwordx4 v[{r}:{r+3}], v{vSt}, s[16:19], s25 offen {st}")
        a(f"s_branch L_next{p}")
        a.label(f"L_cw{p}")
        a(f"s_sub_u32 s12, s{sCur}, {NX}")
        a("s_and_b32 s13, s12, 3")
        a("s_lshr_b32 s14, s12, 2")
        a("s_lshl_b32 s14, s14, 2")
        a("s_add_u32 s14, s14, s10")
        for o in range(4):
            r = AF + 4 * o
            a(f"ds_read_b128 v[{r}:{r+3}], v{vL16} offset:{8192+o*1024}")
        a("s_and_b32 s24, s14, 3")
        a("s_bfe_u32 s25, s14, 0x10003")
        a("s_lshl_b32 s25, s25, 2")
        a("s_or_b32 s24, s24, s25")
        a("s_lshl_b32 s24, s24, 1")
        a(f"v_xor_b32 v{vT0}, s24, v{vR}")
        a(f"v_lshl_add_u32 v{vSt}, v{vT0}, 4, v{vWs}")
        a(f"s_mul_i32 s24, s13, {G.WF_DQ}")
        a("s_lshr_b32 s25, s14, 5")
        a(f"s_mul_i32 s25, s25, {G.WF_KS}")
        a("s_add_u32 s24, s24, s25")
        a("s_and_b32 s25, s14, 31")
        a("s_lshl_b32 s25, s25, 8")
        a("s_add_u32 s24, s24, s25")
        if G.WF_BASE: a(f"s_add_u32 s24, s24, {G.WF_BASE}")
        FR = buf + 16
        for dd in range(8):
            q = dd >> 1; h = dd & 1
            for e in range(4):
                a(f"v_perm_b32 v{FR+4*dd+e}, v{buf+4*e+q}, v{buf+4*e+q}, s{32+h}")
        a("s_waitcnt lgkmcnt(0)")
        for o in range(4):
            A = AF + 4 * o
            for dd in range(8):
                d = ACC + 4 * dd
                a(f"v_mfma_f32_16x16x32_bf16 v[{d}:{d+3}], v[{A}:{A+3}], v[{FR+4*dd}:{FR+4*dd+3}], 0")
            ob = (buf if (o & 1) == 0 else buf + 48)
            for rp in range(4):
                for q in range(4):
                    a(f"v_cvt_pk_bf16_f32 v{ob+4*rp+q}, v{ACC+8*q+rp}, v{ACC+8*q+4+rp}")
            for rp in range(4):
                off = (8 * o + (rp >> 1)) * G.WF_K + (rp & 1) * 8192
                a(f"s_add_u32 s25, s24, {off}")
                r = ob + 4 * rp
                a(f"buffer_store_dwordx4 v[{r}:{r+3}], v{vSt}, s[16:19], s25 offen {st}")
        a.label(f"L_next{p}")
        counted(f"p{p}", 16)
        if p == 1:
            a("s_cmp_lg_u32 s43, 1"); a("s_cbranch_scc1 L_nonok")
            a("s_mov_b32 s43, 2")
            a(f"s_mov_b32 s57, {SPIN_MAX}")
            a.label("L_non")
            a(f"v_readfirstlane_b32 s{sNon}, v{vNon}")
            a(f"s_cmp_lg_u32 s{sNon}, 0")
            a("s_cbranch_scc1 L_nonok")
            a("s_sub_u32 s57, s57, 1")
            a("s_cmp_eq_u32 s57, 0")
            a("s_cbranch_scc1 L_nonok")
            a(f"buffer_load_dword v{vNon}, v{vZ}, s[44:47], 0 offen offset:128 sc1")
            a("s_waitcnt vmcnt(0)")
            a("s_branch L_non")
            a.label("L_nonok")
        a("s_cmp_lg_u32 s10, 0")
        a(f"s_cbranch_scc1 L_pub{p}")
        a(f"v_add_u32 v{vNext}, {2*NWG}, v{vNext}")
        a(f"v_mov_b32 v{vT0}, s41")
        a("s_mov_b64 exec, 1")
        a(f"ds_write_b32 v{vT0}, v{vNext}")
        a("s_mov_b64 exec, -1")
        a.label(f"L_pub{p}")
        a("s_waitcnt lgkmcnt(0)")
        a("s_barrier")
        write_flag(f"{p}")
        a(f"v_mov_b32 v{vT0}, s41")
        a(f"ds_read_b32 v{vT0+1}, v{vT0}")
        a("s_xor_b32 s41, s41, 4")
        a(f"s_mov_b32 s{sRawPrev}, s{sCur}")
        a(f"s_mov_b32 s{sCur}, s{sNxt}")
        a("s_waitcnt lgkmcnt(0)")
        a(f"v_readfirstlane_b32 s{sNxt}, v{vT0+1}")
        remap(sNxt)
        a(f"s_cmp_ge_u32 s{sCur}, {NT}")
        a("s_cbranch_scc1 L_x_fin")
    a("s_branch L_x_loop")
    a.label("L_x_fin")
    zs(1)
    if not EARLY:
        a("s_waitcnt vmcnt(0)")
        a("s_barrier")
        zs(2)
        write_flag("f")
        return None
    def finish(tag, early):
        a(f"s_waitcnt vmcnt({31 if early else 0})")
        a("s_barrier")
        write_flag(tag, 15)
    return finish

def follow_phase(a):
    vA, vB = 254, 255
    a("s_mov_b32 s40, s2")
    a(f"s_add_u32 s42, s2, {NWG}")
    a(f"s_mov_b32 s41, {TB + 12288}")
    a("s_barrier")
    a.label("L_f_loop")
    a("s_barrier")
    a(f"v_mov_b32 v{vA}, s41")
    a(f"ds_read_b32 v{vB}, v{vA}")
    a("s_xor_b32 s41, s41, 4")
    a("s_mov_b32 s40, s42")
    a("s_waitcnt lgkmcnt(0)")
    a(f"v_readfirstlane_b32 s42, v{vB}")
    a(f"s_cmp_lt_u32 s40, {NT}")
    a("s_cbranch_scc1 L_f_loop")
    a("s_barrier")

def helper_gemm(a_real, cfg, finish=None, late=None):
    table = {}
    for final in (False, True):
        a = a_real if final else Null()
        vq = VQ(a, table, not final)
        U = '' if late is None else f"_l{late}"
        vDW = 1; vDX = 2; vD6 = 5; vPA = 6; vP = 8; vT = 24
        sWo, sXo, sLW, sLX, sX6 = 40, 41, 42, 43, 44
        sNon, sPl = 54, 56
        def dma(step):
            buf = step % NSTAGE; tag = ('dma', step)
            a(f"s_add_u32 m0, s{sLW}, {buf*STAGE}")
            for j in range(4):
                a(f"buffer_load_dwordx4 v{vDW}, s[16:19], s{sWo} offen offset:{j*1024} lds"); vq.issue(tag)
            a(f"s_add_u32 s{sWo}, s{sWo}, {G.WF_KS}")
            a(f"s_add_u32 m0, s{sLX}, {buf*STAGE}")
            for j in range(4):
                a(f"buffer_load_dwordx4 v{vDX}, s[16:19], s{sXo} offen offset:{j*1024} lds"); vq.issue(tag)
            a(f"s_add_u32 m0, s{sLX}, {buf*STAGE+4096}")
            a(f"s_add_u32 s49, s{sXo}, 4096")
            a(f"buffer_load_dwordx4 v{vDX}, s[16:19], s49 offen lds"); vq.issue(tag)
            a("s_mov_b64 exec, s[50:51]")
            a(f"buffer_load_dwordx4 v{vD6}, s[16:19], s{sX6} offen offset:1024 lds"); vq.issue(tag)
            a("s_mov_b64 exec, -1")
            a(f"s_add_u32 s{sXo}, s{sXo}, {G.XF_KS}")
            a(f"s_add_u32 s{sX6}, s{sX6}, {G.XF_KS}")
        vPB = 7
        ORD2 = cfg.get('fz_ord2'); vPC = 38
        def nregs(c):
            if ORD2: return 4 + (8 if c >= 8 - NM else 4)
            return 16 if c == 0 else (8 if c >= 8 - NM else 4)
        def poll_issue(c, model=True):
            base = vP
            if ORD2:
                a(f"s_mov_b32 s58, {FLAG_BASE + 84 * c * 4}")
                a(f"buffer_load_dwordx4 v[{base}:{base+3}], v{vPC}, s[16:19], s58 offen sc1")
                if model: vq.issue(('pl', c))
                base += 4
            if c == 0 and not ORD2:
                for j in range(4):
                    a(f"s_mov_b32 s58, {FLAG_BASE + min(j * 1024, 3200 - 1024)}")
                    a(f"buffer_load_dwordx4 v[{vP+4*j}:{vP+4*j+3}], v{vPA}, s[16:19], s58 offen sc1")
                    if model: vq.issue(('pl', c))
            elif c >= 8 - NM:
                for j in range(2):
                    a(f"s_mov_b32 s58, {LFLAG_BASE + (7 - c) * 2048 + j * 1024}")
                    a(f"buffer_load_dwordx4 v[{base+4*j}:{base+4*j+3}], v{vPA}, s[16:19], s58 offen sc1")
                    if model: vq.issue(('pl', c))
            else:
                a(f"s_mov_b32 s58, {FLAG_BASE + (NX + 128 * c) * 4}")
                a(f"buffer_load_dwordx4 v[{base}:{base+3}], v{vPB}, s[16:19], s58 offen sc1")
                if model: vq.issue(('pl', c))
        def check(c, sfx=''):
            n = nregs(c)
            sfx = sfx + U
            vq.wait(('pl', c), f"c{c}")
            a(f"s_mov_b32 s57, {SPIN_MAX}")
            a.label(f"L_chk{c}{sfx}")
            for e in range(n): a(f"v_xor_b32 v{vT+e}, s{sNon}, v{vP+e}")
            for e in range(1, n - 1, 2): a(f"v_or3_b32 v{vT}, v{vT}, v{vT+e}, v{vT+e+1}")
            a(f"v_or_b32 v{vT}, v{vT}, v{vT+n-1}")
            a(f"v_cmp_ne_u32 vcc, 0, v{vT}")
            a("s_cmp_eq_u64 vcc, 0")
            a(f"s_cbranch_scc1 L_ok{c}{sfx}")
            a("s_sub_u32 s57, s57, 1")
            a("s_cmp_eq_u32 s57, 0")
            a(f"s_cbranch_scc1 L_ok{c}{sfx}")
            if cfg.get('fz_sleep'): a(f"s_sleep {cfg['fz_sleep']}")
            poll_issue(c, model=False)
            a("s_waitcnt vmcnt(0)")
            a(f"s_branch L_chk{c}{sfx}")
            a.label(f"L_ok{c}{sfx}")
            if cfg.get('zstamp'):
                a(f"s_sub_u32 s74, {SPIN_MAX}, s57"); a(f"v_writelane_b32 v242, s74, {c}")
        a(f"v_lshlrev_b32 v{vPA}, 4, v0")
        a(f"v_min_u32 v{vPB}, 31, v0")
        a(f"v_lshlrev_b32 v{vPB}, 4, v{vPB}")
        if ORD2:
            a(f"v_min_u32 v{vPC}, 20, v0")
            a(f"v_lshlrev_b32 v{vPC}, 4, v{vPC}")
        def zs(reg, i):
            if cfg.get('zstamp'):
                a("s_memrealtime s[70:71]"); a("s_waitcnt lgkmcnt(0)"); a(f"v_writelane_b32 v{reg}, s70, {i}")
        LAF, LRAW, LFR, LACC, LOUT = 40, 56, 72, 104, 136
        vWo, vWs, vR_, vZ_, vTag_ = 233, 235, 217, 230, 154
        vLS = 153
        def l_setup():
            a("s_lshr_b32 s60, s2, 1"); a(f"s_add_u32 s60, s60, {128 * late}")
            a("s_and_b32 s61, s2, 1"); a("s_lshl_b32 s61, s61, 1")
            a("s_and_b32 s62, s60, 3"); a("s_bfe_u32 s63, s60, 0x10003"); a("s_lshl_b32 s63, s63, 2")
            a("s_or_b32 s62, s62, s63"); a("s_lshl_b32 s62, s62, 1")
            a(f"v_xor_b32 v{vLS}, s62, v{vR_}"); a(f"v_lshl_add_u32 v{vLS}, v{vLS}, 4, v{vWs}")
            a(f"s_mul_i32 s62, s61, {G.WF_DQ}"); a("s_lshr_b32 s63, s60, 5"); a(f"s_mul_i32 s63, s63, {G.WF_KS}")
            a("s_add_u32 s62, s62, s63"); a("s_and_b32 s63, s60, 31"); a("s_lshl_b32 s63, s63, 8"); a("s_add_u32 s62, s62, s63")
            if G.WF_BASE: a(f"s_add_u32 s62, s62, {G.WF_BASE}")
            a("s_lshl_b32 s60, s60, 10"); a("s_lshl_b32 s63, s61, 8"); a("s_add_u32 s60, s60, s63")
            a("s_lshl_b32 s63, s2, 3"); a(f"s_add_u32 s63, s63, {LFLAG_BASE + (7 - late) * 2048}")
            G.make_srd(a, 20, 6, 7, G.W_BYTES)
            a(f"v_lshlrev_b32 v{vLS+2}, 4, v0"); a(f"v_add_u32 v{vLS+2}, {TB}, v{vLS+2}")
            for o in range(4):
                a(f"ds_read_b128 v[{LAF+4*o}:{LAF+4*o+3}], v{vLS+2} offset:{8192+o*1024}")
            a("s_waitcnt lgkmcnt(0)")
        def l_loads(e, n0, n1):
            for n in range(n0, n1):
                i, hf = n >> 1, n & 1
                a(f"s_add_u32 s59, s60, {(i << 20) + e * 256}")
                a(f"buffer_load_dwordx2 v[{LRAW+4*i+2*hf}:{LRAW+4*i+2*hf+1}], v{vWo}, s[20:23], s59 offen offset:{16*hf}")
                vq.issue(('ll', e))
        def l_perms(e):
            vq.wait(('ll', e), f"ll{e}")
            for dd in range(8):
                q = dd >> 1; h = dd & 1
                for k in range(4):
                    a(f"v_perm_b32 v{LFR+4*dd+k}, v{LRAW+4*k+q}, v{LRAW+4*k+q}, s{32+h}")
        def l_comp(o):
            for dd in range(8):
                d = LACC + 4 * dd
                a(f"v_mfma_f32_16x16x32_bf16 v[{d}:{d+3}], v[{LAF+4*o}:{LAF+4*o+3}], v[{LFR+4*dd}:{LFR+4*dd+3}], 0")
            for rp in range(4):
                for q in range(4):
                    a(f"v_cvt_pk_bf16_f32 v{LOUT+4*rp+q}, v{LACC+8*q+rp}, v{LACC+8*q+4+rp}")
        def l_stores(e, o, rps):
            for rp in rps:
                off = (8 * o + (rp >> 1)) * G.WF_K + (rp & 1) * 8192 + e * G.WF_DQ
                a(f"s_add_u32 s59, s62, {off}")
                a(f"buffer_store_dwordx4 v[{LOUT+4*rp}:{LOUT+4*rp+3}], v{vLS}, s[16:19], s59 offen {cfg['k12_st']}")
                vq.issue(('ls', e))
        def l_flag(e):
            vq.wait(('ls', e), f"ls{e}")
            a(f"v_mov_b32 v{vTag_}, s{sNon}")
            a(f"s_add_u32 s59, s63, {4 * e}")
            a("s_mov_b64 exec, 1")
            a(f"buffer_store_dword v{vTag_}, v{vZ_}, s[16:19], s59 offen sc1"); vq.issue(('lf', e))
            a("s_mov_b64 exec, -1")
        def l_step(s):
            if late is None: return
            for e in range(2):
                t = s - (1 + 8 * e)
                if t == 0: l_perms(e)
                if 0 <= t <= 7:
                    if t % 2 == 0: l_comp(t // 2); l_stores(e, t // 2, (0, 1))
                    else: l_stores(e, t // 2, (2, 3))
                if t == 9: l_flag(e)
            if 2 <= s <= 5: l_loads(1, 2 * (s - 2), 2 * (s - 2) + 2)
        if late is not None: l_setup()
        if finish is None:
            poll_issue(0); check(0)
            zs(240, 3)
            dma(0); dma(1); dma(2)
            poll_issue(1)
            if late is not None: l_loads(0, 0, 8)
        else:
            a("s_cmp_lt_u32 s55, 800")
            a("s_cbranch_scc1 L_slowexit")
            a("s_waitcnt vmcnt(16)")
            for e in range(16): a(f"v_xor_b32 v{vT+e}, s{sNon}, v{240+e}")
            for e in range(1, 15, 2): a(f"v_or3_b32 v{vT}, v{vT}, v{vT+e}, v{vT+e+1}")
            a(f"v_or_b32 v{vT}, v{vT}, v{vT+15}")
            a(f"v_cmp_ne_u32 vcc, 0, v{vT}")
            a("s_cmp_eq_u64 vcc, 0")
            a("s_cbranch_scc1 L_c0fast")
            poll_issue(0, model=False)
            a("s_waitcnt vmcnt(0)")
            check(0)
            a.label("L_c0fast")
            zs(239, 3)
            sv = (list(vq.h))
            dma(0); dma(1); dma(2)
            poll_issue(1)
            if final: finish("f", True)
            a("s_branch L_exitjoin")
            a.label("L_slowexit")
            if final: finish("s", False)
            keep = list(vq.h); col = vq.collect; vq.collect = False
            poll_issue(0, model=False)
            a("s_waitcnt vmcnt(0)")
            check(0, "s")
            dma(0); dma(1); dma(2)
            poll_issue(1)
            vq.h = keep; vq.collect = col
            a.label("L_exitjoin")
        vq.wait(('dma', 0), 'pd0')
        a("s_barrier")
        for s in range(31):
            vq.wait(('dma', s + 1), f"b{s}")
            zs(241, 2 * s)
            a("s_barrier")
            zs(241, 2 * s + 1)
            if s % 4 == 1 and (s + 3) // 4 <= 7: check((s + 3) // 4)
            if s + 3 <= 31: dma(s + 3)
            if s % 4 == 0 and s >= 4 and (s + 4) // 4 <= 7: poll_issue((s + 4) // 4)
            l_step(s)
            if cfg.get('fz_pfg') and s in (0, 20) and U == '' and final:
                a(f"s_cmp_ge_u32 s2, 8"); a(f"s_cbranch_scc1 L_nopf_g{s}")
                a(f"s_cmp_lg_u32 s15, 0"); a(f"s_cbranch_scc1 L_nopf_g{s}")
                G.prefetch_code(a, f"g{s}", "L_g_loop", "L_fz_helper", 4, 40, sp=60)
                a.label(f"L_nopf_g{s}")
            if cfg.get('fuse45') and cfg.get('fz_pf3') and s == 24 and U == '' and final:
                a("s_cmp_ge_u32 s2, 8"); a("s_cbranch_scc1 L_nopf_p3")
                a("s_cmp_lg_u32 s15, 0"); a("s_cbranch_scc1 L_nopf_p3")
                G.prefetch_code_fwd(a, "p3", "L_fz_ydone", "L_code_end", 3, 40, sp=60)
                a.label("L_nopf_p3")
        if U: a("s_branch L_hg_done")

def gen_fused(cfg=None):
    cfg = cfg or G.CFG
    a = Asm()
    name = 'conv_kernel'
    G.kernel_header(a, name)
    vT = K3.vT; XR = K3.XR; vXa = K3.vXa; vWa = K3.vWa; vSt = K3.vSt; vSt2 = K3.vSt2
    a("s_cmp_ge_u32 s2, 256")
    a("s_cbranch_scc1 L_fz_end")
    a("s_load_dwordx4 s[4:7], s[0:1], 0")
    a("s_load_dwordx4 s[36:39], s[0:1], 40")
    a(f"v_lshrrev_b32 v{vT}, 6, v0")
    a(f"v_and_b32 v0, 63, v0")
    a(f"v_readfirstlane_b32 s10, v{vT}")
    a("s_cmp_ge_u32 s10, 4")
    a("s_cbranch_scc1 L_fz_helper")
    if cfg.get('pf_code'):
        a("s_cmp_ge_u32 s2, 8"); a("s_cbranch_scc1 L_nopf")
        a("s_cmp_lg_u32 s10, 3"); a("s_cbranch_scc1 L_nopf")
        G.prefetch_code(a, "fz", "conv_kernel", "L_code_end", 12 + 2 * NM, 200, sp=60)
        a.label("L_nopf")
    K3.decode_ids(a)
    K3.gemm_setup(a)
    a("s_waitcnt vmcnt(0) lgkmcnt(0)")
    G.make_srd(a, 16, 38, 39, G.WS_BYTES)
    for r in range(168): a(f"v_mov_b32 v{r}, 0")
    follow_phase(a)
    K3.gemm_wave(a, cfg, zero=False, cont=("L_fz_ydone" if cfg.get('fuse45') else None))
    a.label("L_fz_helper")
    a("s_sub_u32 s10, s10, 4")
    if cfg.get('fz_xprio'): a(f"s_setprio {cfg['fz_xprio']}")
    finish = xform_phase(a, cfg)
    a("s_add_u32 s10, s10, 4")
    K3.decode_ids(a)
    K3.helper_setup(a)
    if cfg.get('fz_hprio'): a(f"s_setprio {cfg['fz_hprio']}")
    if NM:
        assert finish is None
        a("s_cmp_eq_u32 s15, 3"); a("s_cbranch_scc1 L_hg7")
        if NM == 2: a("s_cmp_eq_u32 s15, 2"); a("s_cbranch_scc1 L_hg6")
        helper_gemm(a, cfg, None)
        a("s_branch L_hg_done")
        a.label("L_hg7"); helper_gemm(a, cfg, None, late=7)
        if NM == 2:
            a.label("L_hg6"); helper_gemm(a, cfg, None, late=6)
        a.label("L_hg_done")
    else:
        helper_gemm(a, cfg, finish)
    if cfg.get('zstamp'):
        a("s_lshl_b32 s73, s2, 2"); a("s_add_u32 s73, s73, s15"); a("s_lshl_b32 s73, s73, 10")
        a(f"s_add_u32 s73, s73, {218 << 20}")
        a("v_lshlrev_b32 v243, 2, v0")
        a("buffer_store_dword v240, v243, s[16:19], s73 offen")
        a("buffer_store_dword v241, v243, s[16:19], s73 offen offset:256")
        a("buffer_store_dword v242, v243, s[16:19], s73 offen offset:512")
    if not cfg.get('fuse45'):
        K3.ws_fill(a)
    else:
        import gen_k45g as K45
        NONCE_LDS = 6144
        a(f"v_mov_b32 v8, {NONCE_LDS}"); a("v_mov_b32 v9, s54")
        a("ds_write_b32 v8, v9")
        a("s_waitcnt lgkmcnt(0)")
        a("s_branch L_fz_y1")
        a.label("L_fz_ydone")
        a("s_waitcnt vmcnt(0)")
        a.label("L_fz_y1")
        a("s_barrier")
        a(f"v_mov_b32 v200, {NONCE_LDS}")
        a("ds_read_b32 v201, v200")
        a("s_waitcnt lgkmcnt(0)")
        a("v_readfirstlane_b32 s54, v201")
        a("s_cmp_lg_u32 s10, 4"); a("s_cbranch_scc1 L_fz_noyf")
        a("s_lshl_b32 s24, s14, 1"); a("s_add_u32 s24, s24, s13"); a("s_lshl_b32 s24, s24, 5"); a("s_add_u32 s24, s24, s11")
        a("s_lshl_b32 s24, s24, 2"); a(f"s_add_u32 s24, s24, {K45.YFLAG_BASE}")
        a("v_mov_b32 v202, s54"); a("v_mov_b32 v203, 0")
        a("s_mov_b64 exec, 1")
        a("buffer_store_dword v202, v203, s[16:19], s24 offen sc1")
        a("s_mov_b64 exec, -1")
        a.label("L_fz_noyf")
        K45.gen_k45g(cfg, a)
    a.label("L_fz_end")
    a("s_endpgm")
    return name, a.lines, 256, (256, 512, LDS_BYTES)
```
